```python
import torch

def _softmax(x, axis=-1):
    return torch.softmax(x, dim=axis)
def _gelu(x):
    return torch.nn.functional.gelu(x, approximate="tanh")
def _silu(x):
    return torch.nn.functional.silu(x)
def _sigmoid(x):
    return torch.sigmoid(x)
def _layernorm(x, axis=-1, eps=1e-5):
    m = x.mean(dim=axis, keepdim=True)
    v = x.var(dim=axis, keepdim=True, unbiased=False)
    return (x - m) / torch.sqrt(v + eps)
def _scatter_add(tgt, idx, src, axis=0):
    return tgt.clone().index_add_(axis, idx, src)
def _segment_sum(src, seg, n):
    out = torch.zeros((n,) + src.shape[1:], dtype=src.dtype)
    return out.index_add_(0, seg, src)
def _pad(x, pw):
    flat = tuple(v for pair in reversed(pw) for v in pair)
    return torch.nn.functional.pad(x, flat)

kernel_name = 'sequential_preLN__sliding_block_cached__glu_gated_glu__decode'

def setup_inputs():

    _w = (lambda a: (lambda t: t.to(torch.bfloat16) if t.is_floating_point() else t)(torch.as_tensor(a)))
    def _A_setup():
        B, Sq, D = 8, 1, 1024
        Hq, Hkv, Sk, Dh = 32, 4, 4096, 128
        assert Hq % Hkv == 0, (Hq, Hkv)
        return {
            "x": _w((lambda *s: torch.randn(*s, dtype=torch.bfloat16) * 0.05)(B, Sq, D)),
            "k_cache": _w((lambda *s: torch.randn(*s, dtype=torch.bfloat16) * 3.2)(B, Hkv, Sk, Dh)),
            "v_cache": _w((lambda *s: torch.randn(*s, dtype=torch.bfloat16) * 0.4)(B, Hkv, Sk, Dh)),
            "wq": _w((lambda *s: torch.randn(*s, dtype=torch.bfloat16) * 3.2)(D, Hq * Dh) * (D ** -0.5)),
            "wo": _w((lambda *s: torch.randn(*s, dtype=torch.bfloat16) * 0.4)(Hq * Dh, D) * ((Hq * Dh) ** -0.5)),
        }
    _A_in = _A_setup()

    def _B_setup():
        B, S, D, F = 8, 1, 1024, 3584
        return {
            "x": _w((lambda *s: torch.randn(*s, dtype=torch.bfloat16) * 0.05)(B, S, D)),
            "w_gate": _w((lambda *s: torch.randn(*s, dtype=torch.bfloat16) * 0.05)(D, F)),
            "w_up": _w((lambda *s: torch.randn(*s, dtype=torch.bfloat16) * 0.05)(D, F)),
            "w_down": _w((lambda *s: torch.randn(*s, dtype=torch.bfloat16) * 0.05)(F, D)),
        }
    _B_in = _B_setup()

    return {
        "A_x": _A_in["x"],
        "A_k_cache": _A_in["k_cache"],
        "A_v_cache": _A_in["v_cache"],
        "A_wq": _A_in["wq"],
        "A_wo": _A_in["wo"],
        "B_x": _B_in["x"],
        "B_w_gate": _B_in["w_gate"],
        "B_w_up": _B_in["w_up"],
        "B_w_down": _B_in["w_down"],
    }

def reference(A_x, A_k_cache, A_v_cache, A_wq, A_wo, B_x, B_w_gate, B_w_up, B_w_down):
    def _A_ref(x, k_cache, v_cache, wq, wo):
        B, Sq, D = x.shape
        Hq, Dh = 32, 128
        Hkv, Sk = k_cache.shape[1], k_cache.shape[2]
        W = min(4096, max(256, Sk // 4))
        rep = Hq // Hkv
        q = (lambda x, *d: x.permute(*d))((x @ wq).reshape(B, Sq, Hq, Dh), 0, 2, 1, 3)
        k = (lambda x, n, axis: torch.repeat_interleave(x, n, dim=axis))(k_cache[:, :, Sk - W:, :], rep, axis=1)
        v = (lambda x, n, axis: torch.repeat_interleave(x, n, dim=axis))(v_cache[:, :, Sk - W:, :], rep, axis=1)
        scores = torch.einsum("bhqd,bhkd->bhqk", q, k) * (Dh ** -0.5)
        p = _softmax(scores, axis=-1)
        o = torch.einsum("bhqk,bhkd->bhqd", p, v)
        return (lambda x, *d: x.permute(*d))(o, 0, 2, 1, 3).reshape(B, Sq, Hq * Dh) @ wo

    def _B_ref(x, w_gate, w_up, w_down):
        g = torch.einsum("bsd,df->bsf", x, w_gate)
        u = torch.einsum("bsd,df->bsf", x, w_up)
        h = _sigmoid(g) * u
        return torch.einsum("bsf,fd->bsd", h, w_down)

    x = A_x
    h = x + _A_ref(_layernorm(x, axis=-1), A_k_cache, A_v_cache, A_wq, A_wo)
    h2 = h + _B_ref(_layernorm(h, axis=-1), B_w_gate, B_w_up, B_w_down)
    return h2
```

```python
import sys, struct

NAME = "sequential_preLN__sliding_block_cached__glu_gated_glu__decode"
STAMPS = "--stamps" in sys.argv
OUT = [a for a in sys.argv[1:] if not a.startswith("--")]
OUT = OUT[0] if OUT else "cdna_kernels/%s.s" % NAME

lines = []
def e(s): lines.append("    " + s)
def lab(s): lines.append(s + ":")
def cmt(s): lines.append("    ; " + s)
_uid = [0]
def uid(p):
    _uid[0] += 1
    return "L_%s_%d" % (p, _uid[0])
def f32(x): return "0x%08x" % struct.unpack("<I", struct.pack("<f", x))[0]

WS_EPOCH = 0x0
WS_TRIG = 0x4000
WS_H1 = 0x100000
WS_H2 = 0x200000
WS_H3B = 0x280000
WS_H4S = 0x290000
WS_H4U = 0x2B0000
WS_H3A = 0x300000
WS_H5 = 0x400000
WS_TS = 0x600000
WS_SIZE = 0x800000

L_W = 0
L_K = 65536
L_ACT = 131072
L_QB = 147456
L_PB = 149504
L_MX = 153600
L_SM = 153856
LDS_BYTES = 154112

S_X, S_K, S_V, S_WQ, S_WO, S_BX, S_WG, S_WU = 4, 6, 8, 10, 12, 14, 16, 18
S_WD, S_OUT, S_DBG, S_WS = 20, 22, 24, 26
S_WAVE, S_XCD, S_SLOT, S_T = 28, 29, 30, 31
SRD_W = 32
SRD_WS = 36
SRD_X = 40
SRD_O = 44
S_TT = 48
S_HI8 = 50
S_SPIN = 52
S_A, S_B, S_C, S_D = 53, 54, 55, 56
S_E, S_F = 57, 58
S_TM = 60
S_ST = 64
S_EX = 62

LOG2E = 1.4426950408889634

def srd(dst, ptr, nbytes):
    e("s_mov_b32 s%d, s%d" % (dst, ptr))
    e("s_and_b32 s%d, s%d, 0xffff" % (dst + 1, ptr + 1))
    e("s_mov_b32 s%d, 0x%x" % (dst + 2, nbytes))
    e("s_mov_b32 s%d, 0x20000" % (dst + 3))

def stamp(k):
    if not STAMPS: return
    e("s_memrealtime s[%d:%d]" % (S_TM, S_TM + 1))
    e("s_waitcnt lgkmcnt(0)")
    e("s_mov_b32 s%d, s%d" % (S_ST + k, S_TM))

def stamps_flush(vtmp):
    if not STAMPS: return
    e("s_mov_b64 exec, -1")
    for k in range(16):
        e("v_writelane_b32 v%d, s%d, %d" % (vtmp, S_ST + k, k))
    e("s_lshl_b32 s%d, s2, 9" % S_A)
    e("s_lshl_b32 s%d, s%d, 6" % (S_B, S_WAVE))
    e("s_add_u32 s%d, s%d, s%d" % (S_A, S_A, S_B))
    e("s_add_u32 s%d, s%d, 0x%x" % (S_A, S_A, WS_TS))
    e("v_lshlrev_b32 v%d, 2, v1" % (vtmp + 1))
    e("s_mov_b64 exec, 0xffff")
    e("buffer_store_dword v%d, v%d, s[%d:%d], s%d offen" % (vtmp, vtmp + 1, SRD_WS, SRD_WS + 3, S_A))
    e("s_mov_b64 exec, -1")

def dpp_add(dst, src, ctrl, op="v_add_f32"):
    e("%s_dpp v%d, v%d, v%d %s row_mask:0xf bank_mask:0xf" % (op, dst, src, src, ctrl))

def wave_allreduce(v, t, op="v_add_f32"):
    for r in (8, 4, 2, 1):
        e("s_nop 1")
        dpp_add(v, v, "row_ror:%d" % r, op)
    xrow_allreduce(v, t, op)

def xrow_allreduce(v, t, op="v_add_f32"):
    e("v_mov_b32 v%d, v%d" % (t, v))
    e("s_nop 1")
    e("v_permlane16_swap_b32 v%d, v%d" % (v, t))
    e("s_nop 1")
    e("%s v%d, v%d, v%d" % (op, v, v, t))
    e("v_mov_b32 v%d, v%d" % (t, v))
    e("s_nop 1")
    e("v_permlane32_swap_b32 v%d, v%d" % (v, t))
    e("s_nop 1")
    e("%s v%d, v%d, v%d" % (op, v, v, t))

def bf16_round(v):
    e("v_cvt_pk_bf16_f32 v%d, v%d, v%d" % (v, v, v))
    e("v_lshlrev_b32 v%d, 16, v%d" % (v, v))

def unpack(lo, hi, src):
    e("v_lshlrev_b32 v%d, 16, v%d" % (lo, src))
    e("v_and_b32 v%d, 0xffff0000, v%d" % (hi, src))

def poll_begin():
    top = uid("poll")
    lab(top)
    return top

def poll_end(top, checks):
    ok = uid("ok")
    e("s_waitcnt vmcnt(0)")
    for c in checks: e(c)
    e("s_cmp_eq_u64 exec, -1")
    e("s_mov_b64 exec, -1")
    e("s_cbranch_scc1 %s" % ok)
    e("s_sub_u32 s%d, s%d, 1" % (S_SPIN, S_SPIN))
    e("s_cbranch_scc0 %s" % top)
    e("s_mov_b32 s%d, 0" % S_SPIN)
    lab(ok)

def chk64(v):
    return "v_cmpx_eq_u64 vcc, s[%d:%d], v[%d:%d]" % (S_TT, S_TT + 1, v, v + 1)
def chk32(v):
    return "v_cmpx_eq_u32 vcc, s%d, v%d" % (S_T, v)

def ln_stats(vals, vsum, vt, vmean, vrs, vsq):
    e("v_add_f32 v%d, v%d, v%d" % (vsum, vals[0], vals[1]))
    for i in range(2, 16):
        e("v_add_f32 v%d, v%d, v%d" % (vsum, vsum, vals[i]))
    wave_allreduce(vsum, vt)
    e("v_mul_f32 v%d, %s, v%d" % (vmean, f32(1.0 / 1024), vsum))
    e("v_sub_f32 v%d, v%d, v%d" % (vt, vals[0], vmean))
    e("v_mul_f32 v%d, v%d, v%d" % (vsum, vt, vt))
    for i in range(1, 16):
        e("v_sub_f32 v%d, v%d, v%d" % (vt, vals[i], vmean))
        e("v_fmac_f32 v%d, v%d, v%d" % (vsum, vt, vt))
    wave_allreduce(vsum, vt)
    e("v_mul_f32 v%d, %s, v%d" % (vsq, f32(1.0 / 1024), vsum))
    bf16_round(vsq)
    e("v_add_f32 v%d, %s, v%d" % (vsq, f32(1e-5), vsq))
    bf16_round(vsq)
    e("v_sqrt_f32 v%d, v%d" % (vsq, vsq))
    bf16_round(vmean)
    bf16_round(vsq)
    e("v_rcp_f32 v%d, v%d" % (vrs, vsq))
    e("s_nop 0")

def ln_apply_pair(dst, a, b, vmean, vrs, vsq, t0, t1):
    e("v_sub_f32 v%d, v%d, v%d" % (a, a, vmean))
    e("v_sub_f32 v%d, v%d, v%d" % (b, b, vmean))
    e("v_cvt_pk_bf16_f32 v%d, v%d, v%d" % (t0, a, b))
    unpack(a, b, t0)
    e("v_mul_f32 v%d, v%d, v%d" % (t0, a, vrs))
    e("v_mul_f32 v%d, v%d, v%d" % (t1, b, vrs))
    e("v_fma_f32 v%d, -v%d, v%d, v%d" % (a, t0, vsq, a))
    e("v_fma_f32 v%d, -v%d, v%d, v%d" % (b, t1, vsq, b))
    e("v_fmac_f32 v%d, v%d, v%d" % (t0, a, vrs))
    e("v_fmac_f32 v%d, v%d, v%d" % (t1, b, vrs))
    e("v_cvt_pk_bf16_f32 v%d, v%d, v%d" % (dst, t0, t1))

def sigma_of(dst, u, t):
    e("v_and_b32 v%d, 3, v%d" % (dst, u))
    e("v_lshlrev_b32 v%d, 1, v%d" % (dst, dst))
    e("v_bfe_u32 v%d, v%d, 2, 1" % (t, u))
    e("v_or_b32 v%d, v%d, v%d" % (dst, dst, t))

def dma256_voff(va, vb, pitch, t):
    e("v_bfe_u32 v%d, v1, 1, 3" % t)
    e("v_xor_b32 v%d, v3, v%d" % (t, t))
    e("v_lshlrev_b32 v%d, 5, v%d" % (t, t))
    e("v_and_b32 v%d, 1, v1" % va)
    e("v_lshl_add_u32 v%d, v%d, 4, v%d" % (t, va, t))
    e("v_mul_u32_u24 v%d, %d, v3" % (va, pitch))
    e("v_add_u32 v%d, v%d, v%d" % (va, va, t))
    e("v_xor_b32 v%d, 0x80, v%d" % (vb, va))

def dma256_issue(srd_, va, vb, s_base, pitch, ldsbase, nchunk=8):
    e("s_mul_i32 s%d, s%d, %d" % (S_A, S_WAVE, 32 * pitch))
    e("s_add_u32 s%d, s%d, s%d" % (S_A, S_A, s_base))
    e("s_lshl_b32 s%d, s%d, 13" % (S_B, S_WAVE))
    if ldsbase: e("s_add_u32 s%d, s%d, %d" % (S_B, S_B, ldsbase))
    for m in range(nchunk):
        e("s_mov_b32 m0, s%d" % S_B)
        if m < nchunk - 1: e("s_add_u32 s%d, s%d, 1024" % (S_B, S_B))
        else: e("s_nop 0")
        e("buffer_load_dwordx4 v%d, s[%d:%d], s%d offen nt lds" % (vb if (m & 2) else va, srd_, srd_ + 3, S_A))
        if m < nchunk - 1: e("s_add_u32 s%d, s%d, %d" % (S_A, S_A, 4 * pitch))

def tr256_addr(va, t, ldsbase):
    e("v_bfe_u32 v%d, v1, 2, 2" % t)
    e("v_and_b32 v%d, 1, v3" % va)
    e("v_lshl_or_b32 v%d, v%d, 2, v%d" % (va, va, t))
    e("v_xor_b32 v%d, s%d, v%d" % (va, S_WAVE, va))
    e("v_lshlrev_b32 v%d, 5, v%d" % (va, va))
    e("v_lshl_add_u32 v%d, v3, 3, v%d" % (t, t))
    e("v_lshl_add_u32 v%d, v%d, 8, v%d" % (va, t, va))
    e("v_and_b32 v%d, 3, v1" % t)
    e("v_lshl_add_u32 v%d, v%d, 3, v%d" % (va, t, va))
    if ldsbase: e("v_add_u32 v%d, %d, v%d" % (va, ldsbase, va))

def tr256_read(dst, va):
    for m in range(8):
        for h in range(2):
            e("ds_read_b64_tr_b16 v[%d:%d], v%d offset:%d" % (dst + 4 * m + 2 * h, dst + 4 * m + 2 * h + 1, va, m * 8192 + h * 1024))

def act_rd_addr(ve, vo, t, ldsbase):
    e("v_and_b32 v%d, 7, v1" % t)
    e("v_lshlrev_b32 v%d, 1, v3" % ve)
    e("v_xor_b32 v%d, v%d, v%d" % (ve, ve, t))
    e("v_lshlrev_b32 v%d, 4, v%d" % (ve, ve))
    e("v_lshl_add_u32 v%d, v3, 7, v%d" % (ve, ve))
    e("v_add_u32 v%d, %d, v%d" % (ve, ldsbase, ve))
    e("v_xor_b32 v%d, 16, v%d" % (vo, ve))

def gemv8(acc, wf, af, ve, vo, nstep=8):
    for m in range(nstep):
        e("ds_read_b128 v[%d:%d], v%d offset:%d" % (af + 4 * m, af + 4 * m + 3, vo if (m & 1) else ve, m * 512))
    for m in range(nstep):
        e("s_waitcnt lgkmcnt(%d)" % (nstep - 1 - m))
        c = "0" if m == 0 else "v[%d:%d]" % (acc, acc + 3)
        e("v_mfma_f32_16x16x32_bf16 v[%d:%d], v[%d:%d], v[%d:%d], %s" % (acc, acc + 3, wf + 4 * m, wf + 4 * m + 3, af + 4 * m, af + 4 * m + 3, c))

def gen():
    lines.append("; Fused decode layer: preLN + sliding-window GQA attention + preLN + GLU MLP (persistent, 1 WG per CU)")
    lines.append("; @launch grid=(256,1,1) block=(512,1,1) lds=%d" % LDS_BYTES)
    lines.append('.amdgcn_target "amdgcn-amd-amdhsa--gfx950"')
    lines.append(".text")
    lines.append(".globl %s_kernel" % NAME)
    lines.append(".p2align 8")
    lines.append(".type %s_kernel,@function" % NAME)
    lab("%s_kernel" % NAME)
    e("s_cmp_ge_u32 s2, 256")
    e("s_cbranch_scc1 L_end")
    e("s_load_dwordx16 s[4:19], s[0:1], 0")
    e("s_load_dwordx8 s[20:27], s[0:1], 64")
    if STAMPS:
        e("s_memrealtime s[%d:%d]" % (S_TM, S_TM + 1))
    e("v_lshrrev_b32 v4, 6, v0")
    e("v_and_b32 v1, 63, v0")
    e("v_readfirstlane_b32 s%d, v4" % S_WAVE)
    e("v_and_b32 v2, 15, v1")
    e("v_lshrrev_b32 v3, 4, v1")
    e("s_and_b32 s%d, s2, 7" % S_XCD)
    e("s_lshr_b32 s%d, s2, 4" % S_SLOT)
    e("s_mov_b32 s%d, 0x40000" % S_SPIN)
    e("s_mov_b32 s%d, 0xff00ff00" % S_HI8)
    e("s_mov_b32 s%d, 0xff00ff00" % (S_HI8 + 1))
    e("s_bitcmp1_b32 s2, 3")
    e("s_cbranch_scc1 L_roleA")
    role_b()
    lab("L_roleA")
    role_a()
    lab("L_end")
    e("s_endpgm")
    lines.append('.section .rodata,"a"')
    lines.append(".p2align 6")
    lines.append(".amdhsa_kernel %s_kernel" % NAME)
    lines.append("  .amdhsa_next_free_vgpr 256")
    lines.append("  .amdhsa_next_free_sgpr 96")
    lines.append("  .amdhsa_accum_offset 256")
    lines.append("  .amdhsa_group_segment_fixed_size 0")
    lines.append("  .amdhsa_kernarg_size 96")
    lines.append("  .amdhsa_user_sgpr_count 2")
    lines.append("  .amdhsa_user_sgpr_kernarg_segment_ptr 1")
    lines.append("  .amdhsa_system_sgpr_workgroup_id_x 1")
    lines.append(".end_amdhsa_kernel")

def make_tag(vE):
    e("v_readfirstlane_b32 s%d, v%d" % (S_F, vE))
    e("s_nop 3")
    e("s_mul_i32 s%d, s%d, 0x9e3779b1" % (S_T, S_F))
    e("s_add_u32 s%d, s%d, 0x85ebca6b" % (S_T, S_T))
    e("s_mov_b32 s%d, s%d" % (S_TT, S_T))
    e("s_mov_b32 s%d, s%d" % (S_TT + 1, S_T))
    e("s_add_u32 s%d, s%d, 1" % (S_F, S_F))

V_VA, V_VB = 4, 5
V_TR = 6
V_AE, V_AO = 7, 8
V_T0, V_T1, V_T2, V_T3 = 9, 10, 11, 12
V_PUB = 13
V_RED = 14
V_H = 15
V_XP = 16
V_AW = 17
V_G = 18
V_Z = 19
V_ACC = 20
V_P = 24
V_M, V_RS, V_SQ, V_SUM = 28, 29, 30, 31
V_L = 32
V_U = 64
V_WF = 96
V_AF = 128
V_KF = 192
V_X1 = 224

def publish_partial(s_off, sc="sc1"):
    e("s_nop 7")
    e("v_cndmask_b32 v%d, v%d, v%d, s[%d:%d]" % (V_P, V_ACC, V_ACC + 2, S_HI8, S_HI8 + 1))
    e("v_cndmask_b32 v%d, v%d, v%d, s[%d:%d]" % (V_P + 1, V_ACC + 1, V_ACC + 3, S_HI8, S_HI8 + 1))
    e("buffer_store_dwordx4 v[%d:%d], v%d, s[%d:%d], s%d offen %s" % (V_P, V_P + 3, V_PUB, SRD_WS, SRD_WS + 3, s_off, sc))

def reduce16(s_off):
    top = poll_begin()
    e("buffer_load_dwordx4 v[%d:%d], v%d, s[%d:%d], s%d offen sc1" % (V_L, V_L + 3, V_RED, SRD_WS, SRD_WS + 3, s_off))
    poll_end(top, [chk64(V_L + 2)])
    a, b = V_L, V_L + 1
    e("s_nop 3")
    dpp_add(a, a, "row_ror:4"); dpp_add(b, b, "row_ror:4")
    e("s_nop 0")
    dpp_add(a, a, "row_ror:8"); dpp_add(b, b, "row_ror:8")
    e("s_nop 1")
    e("v_permlane32_swap_b32 v%d, v%d" % (a, b))
    e("s_nop 1")
    e("v_add_f32 v%d, v%d, v%d" % (a, a, b))
    e("v_mov_b32 v%d, v%d" % (b, a))
    e("s_nop 1")
    e("v_permlane16_swap_b32 v%d, v%d" % (a, b))
    e("s_nop 1")
    e("v_add_f32 v%d, v%d, v%d" % (a, a, b))
    e("v_mov_b32 v%d, v%d" % (b, a))
    e("s_nop 1")
    e("v_permlane32_swap_b32 v%d, v%d" % (a, b))
    e("s_nop 1")

def role_b():
    cmt("================= role B =================")
    dma256_voff(V_VA, V_VB, 8192, V_T0)
    e("v_lshlrev_b32 v%d, 4, v1" % V_G)
    e("v_mov_b32 v%d, 0" % V_Z)
    e("s_and_b32 s%d, s%d, 3" % (S_C, S_SLOT))
    e("s_lshl_b32 s%d, s%d, 3" % (S_C, S_C))
    e("s_or_b32 s%d, s%d, s%d" % (S_C, S_C, S_XCD))
    e("s_lshr_b32 s%d, s%d, 2" % (S_D, S_SLOT))
    e("s_lshl_b32 s%d, s%d, 21" % (S_E, S_D))
    e("s_lshl_b32 s%d, s%d, 8" % (S_A, S_C))
    e("s_add_u32 s%d, s%d, s%d" % (S_E, S_E, S_A))
    e("s_waitcnt lgkmcnt(0)")
    if STAMPS: e("s_mov_b32 s%d, s%d" % (S_ST, S_TM))
    srd(SRD_X, S_X, 16384)
    srd(SRD_WS, S_WS, WS_SIZE)
    srd(SRD_W, S_WQ, 8 << 20)
    e("s_lshl_b32 s%d, s%d, 11" % (S_A, S_WAVE))
    e("buffer_load_dwordx4 v[%d:%d], v%d, s[%d:%d], s%d offen" % (V_L, V_L + 3, V_G, SRD_X, SRD_X + 3, S_A))
    e("buffer_load_dwordx4 v[%d:%d], v%d, s[%d:%d], s%d offen offset:1024" % (V_L + 4, V_L + 7, V_G, SRD_X, SRD_X + 3, S_A))
    e("s_lshl_b32 s%d, s%d, 9" % (S_B, S_D))
    e("s_add_u32 s%d, s%d, s%d" % (S_B, S_B, S_A))
    e("buffer_load_dwordx4 v[%d:%d], v%d, s[%d:%d], s%d offen" % (V_L + 8, V_L + 11, V_G, SRD_X, SRD_X + 3, S_B))
    e("buffer_load_dword v%d, v%d, s[%d:%d], 0 offen sc1" % (V_L + 12, V_Z, SRD_WS, SRD_WS + 3))
    dma256_issue(SRD_W, V_VA, V_VB, S_E, 8192, L_W)
    stamp(1)
    e("s_lshr_b32 s%d, s%d, 1" % (S_A, S_SLOT))
    e("s_lshl_b32 s%d, s%d, 11" % (S_A, S_A))
    e("s_lshl_b32 s%d, s%d, 8" % (S_B, S_XCD))
    e("s_add_u32 s%d, s%d, s%d" % (S_A, S_A, S_B))
    e("s_and_b32 s%d, s%d, 1" % (S_B, S_SLOT))
    e("s_lshl_b32 s%d, s%d, 7" % (S_B, S_B))
    e("s_add_u32 s%d, s%d, s%d" % (S_A, S_A, S_B))
    e("s_lshl_b32 s%d, s%d, 4" % (S_B, S_WAVE))
    e("s_add_u32 s%d, s%d, s%d" % (S_A, S_A, S_B))
    e("s_mov_b32 s80, s%d" % S_A)
    e("v_and_b32 v%d, 3, v1" % V_T0)
    e("v_lshlrev_b32 v%d, 2, v%d" % (V_X1, V_T0))
    e("buffer_load_dword v%d, v%d, s[%d:%d], s%d offen" % (V_XP, V_X1, SRD_X, SRD_X + 3, S_A))
    tr256_addr(V_TR, V_T0, L_W)
    act_rd_addr(V_AE, V_AO, V_T0, L_ACT)
    e("v_and_b32 v%d, 7, v1" % V_T0)
    e("v_lshlrev_b32 v%d, 10, v%d" % (V_PUB, V_T0))
    e("v_lshrrev_b32 v%d, 3, v2" % V_T0)
    e("v_lshl_add_u32 v%d, v3, 1, v%d" % (V_T0, V_T0))
    e("v_lshl_add_u32 v%d, v%d, 4, v%d" % (V_PUB, V_T0, V_PUB))
    e("s_lshl_b32 s%d, s%d, 7" % (S_A, S_WAVE))
    e("v_add_u32 v%d, s%d, v%d" % (V_PUB, S_A, V_PUB))
    e("v_lshrrev_b32 v%d, 2, v1" % V_T0)
    e("v_lshlrev_b32 v%d, 13, v%d" % (V_RED, V_T0))
    e("v_and_b32 v%d, 3, v1" % V_T0)
    e("v_lshl_add_u32 v%d, v%d, 4, v%d" % (V_RED, V_T0, V_RED))
    e("s_lshl_b32 s%d, s%d, 6" % (S_A, S_WAVE))
    e("v_add_u32 v%d, s%d, v%d" % (V_RED, S_A, V_RED))
    e("s_waitcnt vmcnt(9)")
    make_tag(V_L + 12)
    e("v_mov_b32 v%d, s%d" % (V_P + 2, S_T))
    e("v_mov_b32 v%d, s%d" % (V_P + 3, S_T))
    for i in range(8):
        unpack(V_U + 2 * i, V_U + 2 * i + 1, V_L + i)
    ln_stats([V_U + i for i in range(16)], V_SUM, V_T0, V_M, V_RS, V_SQ)
    for i in range(4):
        unpack(V_U + 2 * i, V_U + 2 * i + 1, V_L + 8 + i)
    for i in range(4):
        ln_apply_pair(V_L + 16 + i, V_U + 2 * i, V_U + 2 * i + 1, V_M, V_RS, V_SQ, V_T0, V_T1)
    e("v_and_b32 v%d, 7, v1" % V_T2)
    sigma_of(V_T0, V_T2, V_T1)
    e("v_xor_b32 v%d, s%d, v%d" % (V_T0, S_WAVE, V_T0))
    e("v_lshlrev_b32 v%d, 4, v%d" % (V_T0, V_T0))
    e("v_lshl_add_u32 v%d, v1, 7, v%d" % (V_T0, V_T0))
    e("v_add_u32 v%d, %d, v%d" % (V_T0, L_ACT, V_T0))
    e("s_mov_b64 exec, 0xffffffff")
    e("ds_write_b128 v%d, v[%d:%d]" % (V_T0, V_L + 16, V_L + 19))
    e("s_mov_b64 exec, -1")
    e("v_bfe_u32 v%d, v1, 1, 3" % V_T2)
    sigma_of(V_T0, V_T2, V_T1)
    e("v_xor_b32 v%d, s%d, v%d" % (V_T0, S_WAVE, V_T0))
    e("v_lshlrev_b32 v%d, 4, v%d" % (V_T0, V_T0))
    e("v_lshrrev_b32 v%d, 1, v1" % V_T1)
    e("v_lshl_add_u32 v%d, v%d, 7, v%d" % (V_T0, V_T1, V_T0))
    e("v_and_b32 v%d, 1, v1" % V_T1)
    e("v_lshl_add_u32 v%d, v%d, 3, v%d" % (V_T0, V_T1, V_T0))
    e("v_add_u32 v%d, %d, v%d" % (V_AW, L_ACT, V_T0))
    e("s_lshl_b32 s%d, s%d, 2" % (S_A, S_C))
    e("s_add_u32 s%d, s%d, s%d" % (S_A, S_A, S_D))
    e("s_lshl_b32 s%d, s%d, 13" % (S_A, S_A))
    e("s_add_u32 s81, s%d, 0x%x" % (S_A, WS_H1))
    stamp(2)
    e("s_waitcnt vmcnt(0) lgkmcnt(0)")
    e("s_barrier")
    stamp(3)
    tr256_read(V_WF, V_TR)
    gemv8(V_ACC, V_WF, V_AF, V_AE, V_AO)
    publish_partial(81)
    stamp(4)
    srd(SRD_W, S_WO, 8 << 20)
    dma256_voff(V_VA, V_VB, 2048, V_T0)
    e("s_lshl_b32 s%d, s%d, 3" % (S_A, S_SLOT))
    e("s_or_b32 s%d, s%d, s%d" % (S_A, S_A, S_XCD))
    e("s_lshl_b32 s%d, s%d, 7" % (S_A, S_A))
    e("s_add_u32 s%d, s%d, 0x%x" % (S_C, S_A, WS_TRIG))
    top = poll_begin()
    e("buffer_load_dwordx2 v[%d:%d], v%d, s[%d:%d], s%d offen sc1" % (V_L, V_L + 1, V_Z, SRD_WS, SRD_WS + 3, S_C))
    poll_end(top, [chk64(V_L)])
    e("s_barrier")
    e("s_lshl_b32 s%d, s%d, 19" % (S_E, S_SLOT))
    e("s_lshl_b32 s%d, s%d, 8" % (S_A, S_XCD))
    e("s_add_u32 s%d, s%d, s%d" % (S_E, S_E, S_A))
    dma256_issue(SRD_W, V_VA, V_VB, S_E, 2048, L_W)
    stamp(5)
    e("s_lshr_b32 s%d, s%d, 2" % (S_A, S_SLOT))
    e("s_lshl_b32 s%d, s%d, 3" % (S_A, S_A))
    e("s_add_u32 s%d, s%d, s%d" % (S_A, S_A, S_WAVE))
    e("s_lshl_b32 s%d, s%d, 14" % (S_A, S_A))
    e("s_and_b32 s%d, s%d, 3" % (S_B, S_SLOT))
    e("s_lshl_b32 s%d, s%d, 10" % (S_B, S_B))
    e("s_add_u32 s%d, s%d, s%d" % (S_A, S_A, S_B))
    e("s_add_u32 s82, s%d, 0x%x" % (S_A, WS_H2))
    e("s_add_u32 s83, s82, 4096")
    e("s_add_u32 s90, s82, 8192")
    e("s_add_u32 s91, s82, 12288")
    e("s_lshl_b32 s%d, s%d, 4" % (S_A, S_XCD))
    e("s_add_u32 s%d, s%d, s%d" % (S_A, S_A, S_SLOT))
    e("s_lshl_b32 s%d, s%d, 13" % (S_A, S_A))
    e("s_add_u32 s84, s%d, 0x%x" % (S_A, WS_H3A))
    e("s_lshl_b32 s%d, s%d, 17" % (S_A, S_XCD))
    e("s_lshl_b32 s%d, s%d, 9" % (S_B, S_SLOT))
    e("s_add_u32 s%d, s%d, s%d" % (S_A, S_A, S_B))
    e("s_add_u32 s85, s%d, 0x%x" % (S_A, WS_H3A))
    e("s_add_u32 s86, s%d, 0x%x" % (S_A, WS_H5))
    e("s_waitcnt vmcnt(0)")
    e("s_barrier")
    tr256_read(V_WF, V_TR)
    stamp(6)
    top = poll_begin()
    for s, sg in enumerate((82, 83, 90, 91)):
        e("buffer_load_dwordx4 v[%d:%d], v%d, s[%d:%d], s%d offen sc1" % (V_L + 4 * s, V_L + 4 * s + 3, V_G, SRD_WS, SRD_WS + 3, sg))
    poll_end(top, [chk32(V_L + 4 * s + 3) for s in range(4)])
    stamp(7)
    Ls = [V_L + 4 * s + 2 for s in range(4)]
    e("v_max3_f32 v%d, v%d, v%d, v%d" % (V_T0, Ls[0], Ls[1], Ls[2]))
    e("v_max_f32 v%d, v%d, v%d" % (V_T0, V_T0, Ls[3]))
    for s in range(4): e("v_sub_f32 v%d, v%d, v%d" % (Ls[s], Ls[s], V_T0))
    for s in range(4): e("v_exp_f32 v%d, v%d" % (Ls[s], Ls[s]))
    for s in range(4):
        unpack(V_U + 4 * s, V_U + 4 * s + 1, V_L + 4 * s)
        unpack(V_U + 4 * s + 2, V_U + 4 * s + 3, V_L + 4 * s + 1)
    e("v_add_f32 v%d, v%d, v%d" % (V_T0, Ls[0], Ls[1]))
    e("v_add_f32 v%d, v%d, v%d" % (V_T1, Ls[2], Ls[3]))
    e("v_add_f32 v%d, v%d, v%d" % (V_T0, V_T0, V_T1))
    e("v_rcp_f32 v%d, v%d" % (V_T0, V_T0))
    for k in range(4):
        e("v_mul_f32 v%d, v%d, v%d" % (V_U + k, V_U + k, Ls[0]))
    for s in range(1, 4):
        for k in range(4):
            e("v_fmac_f32 v%d, v%d, v%d" % (V_U + k, V_U + 4 * s + k, Ls[s]))
    for k in range(4):
        e("v_mul_f32 v%d, v%d, v%d" % (V_U + k, V_U + k, V_T0))
    e("v_cvt_pk_bf16_f32 v%d, v%d, v%d" % (V_U + 16, V_U, V_U + 1))
    e("v_cvt_pk_bf16_f32 v%d, v%d, v%d" % (V_U + 17, V_U + 2, V_U + 3))
    e("ds_write_b64 v%d, v[%d:%d]" % (V_AW, V_U + 16, V_U + 17))
    e("s_waitcnt lgkmcnt(0)")
    e("s_barrier")
    gemv8(V_ACC, V_WF, V_AF, V_AE, V_AO)
    publish_partial(84)
    stamp(8)
    reduce16(85)
    stamp(9)
    e("v_cvt_pk_bf16_f32 v%d, v%d, v%d" % (V_T0, V_L, V_L + 1))
    unpack(V_U, V_U + 1, V_T0)
    unpack(V_U + 2, V_U + 3, V_XP)
    e("v_add_f32 v%d, v%d, v%d" % (V_U, V_U, V_U + 2))
    e("v_add_f32 v%d, v%d, v%d" % (V_U + 1, V_U + 1, V_U + 3))
    e("v_cvt_pk_bf16_f32 v%d, v%d, v%d" % (V_U + 4, V_U, V_U + 1))
    e("v_mov_b32 v%d, s%d" % (V_U + 5, S_T))
    e("v_mov_b32 v%d, v%d" % (V_H, V_U + 4))
    e("s_lshl_b32 s%d, s80, 1" % S_A)
    e("s_add_u32 s%d, s%d, 0x%x" % (S_A, S_A, WS_H3B))
    e("v_lshlrev_b32 v%d, 1, v%d" % (V_T0, V_X1))
    e("s_mov_b64 exec, 0xf")
    e("buffer_store_dwordx2 v[%d:%d], v%d, s[%d:%d], s%d offen sc1" % (V_U + 4, V_U + 5, V_T0, SRD_WS, SRD_WS + 3, S_A))
    e("s_mov_b64 exec, -1")
    stamp(10)
    srd(SRD_W, S_WD, 3584 * 2048)
    e("s_lshr_b32 s%d, s%d, 3" % (S_C, S_SLOT))
    e("s_lshl_b32 s%d, s%d, 1" % (S_A, S_XCD))
    e("s_add_u32 s%d, s%d, s%d" % (S_C, S_C, S_A))
    e("s_and_b32 s%d, s%d, 7" % (S_D, S_SLOT))
    e("s_mul_i32 s%d, s%d, %d" % (S_E, S_C, 224 * 2048))
    e("s_lshl_b32 s%d, s%d, 8" % (S_A, S_D))
    e("s_add_u32 s%d, s%d, s%d" % (S_E, S_E, S_A))
    e("s_barrier")
    skip = uid("nod")
    e("s_cmp_eq_u32 s%d, 7" % S_WAVE)
    e("s_cbranch_scc1 %s" % skip)
    dma256_issue(SRD_W, V_VA, V_VB, S_E, 2048, L_W)
    lab(skip)
    e("v_mov_b32 v%d, 0" % (V_U + 8)); e("v_mov_b32 v%d, 0" % (V_U + 9)); e("v_mov_b32 v%d, 0" % (V_U + 10)); e("v_mov_b32 v%d, 0" % (V_U + 11))
    e("v_and_b32 v%d, 31, v1" % V_T0)
    e("v_lshlrev_b32 v%d, 4, v%d" % (V_T0, V_T0))
    e("v_add_u32 v%d, %d, v%d" % (V_T0, L_ACT + 28 * 128, V_T0))
    e("ds_write_b128 v%d, v[%d:%d]" % (V_T0, V_U + 8, V_U + 11))
    e("s_min_u32 s%d, s%d, 6" % (S_A, S_WAVE))
    e("s_lshl_b32 s%d, s%d, 10" % (S_B, S_A))
    e("s_mul_i32 s%d, s%d, 7168" % (S_E, S_C))
    e("s_add_u32 s%d, s%d, s%d" % (S_E, S_E, S_B))
    e("s_add_u32 s87, s%d, 0x%x" % (S_E, WS_H4S))
    e("s_add_u32 s88, s%d, 0x%x" % (S_E, WS_H4U))
    e("s_lshl_b32 s%d, s%d, 2" % (S_B, S_A))
    e("v_add_u32 v%d, s%d, v3" % (V_T3, S_B))
    e("v_and_b32 v%d, 7, v%d" % (V_T2, V_T3))
    sigma_of(V_T0, V_T2, V_T1)
    e("v_and_b32 v%d, 7, v1" % V_T1)
    e("v_xor_b32 v%d, v%d, v%d" % (V_T0, V_T0, V_T1))
    e("v_lshlrev_b32 v%d, 4, v%d" % (V_T0, V_T0))
    e("v_lshl_add_u32 v%d, v%d, 7, v%d" % (V_T0, V_T3, V_T0))
    e("v_bfe_u32 v%d, v1, 3, 1" % V_T1)
    e("v_lshl_add_u32 v%d, v%d, 3, v%d" % (V_T0, V_T1, V_T0))
    e("v_add_u32 v%d, %d, v%d" % (V_AW, L_ACT, V_T0))
    e("s_lshl_b32 s%d, s%d, 4" % (S_A, S_D))
    e("s_add_u32 s%d, s%d, s%d" % (S_A, S_A, S_C))
    e("s_lshl_b32 s%d, s%d, 13" % (S_A, S_A))
    e("s_add_u32 s89, s%d, 0x%x" % (S_A, WS_H5))
    srd(SRD_O, S_OUT, 16384)
    e("s_waitcnt vmcnt(0) lgkmcnt(0)")
    e("s_barrier")
    tr256_read(V_WF, V_TR)
    stamp(11)
    top = poll_begin()
    e("buffer_load_dwordx4 v[%d:%d], v%d, s[%d:%d], s87 offen sc1" % (V_L, V_L + 3, V_G, SRD_WS, SRD_WS + 3))
    e("buffer_load_dwordx4 v[%d:%d], v%d, s[%d:%d], s88 offen sc1" % (V_L + 4, V_L + 7, V_G, SRD_WS, SRD_WS + 3))
    poll_end(top, [chk32(V_L + 1), chk32(V_L + 3), chk32(V_L + 5), chk32(V_L + 7)])
    stamp(12)
    unpack(V_U, V_U + 1, V_L); unpack(V_U + 2, V_U + 3, V_L + 2)
    unpack(V_U + 4, V_U + 5, V_L + 4); unpack(V_U + 6, V_U + 7, V_L + 6)
    for k in range(4): e("v_mul_f32 v%d, v%d, v%d" % (V_U + k, V_U + k, V_U + 4 + k))
    e("v_cvt_pk_bf16_f32 v%d, v%d, v%d" % (V_U + 16, V_U, V_U + 1))
    e("v_cvt_pk_bf16_f32 v%d, v%d, v%d" % (V_U + 17, V_U + 2, V_U + 3))
    e("ds_write_b64 v%d, v[%d:%d]" % (V_AW, V_U + 16, V_U + 17))
    e("s_waitcnt lgkmcnt(0)")
    e("s_barrier")
    gemv8(V_ACC, V_WF, V_AF, V_AE, V_AO)
    publish_partial(89)
    stamp(13)
    reduce16(86)
    stamp(14)
    e("v_cvt_pk_bf16_f32 v%d, v%d, v%d" % (V_T0, V_L, V_L + 1))
    unpack(V_U, V_U + 1, V_T0)
    unpack(V_U + 2, V_U + 3, V_H)
    e("v_add_f32 v%d, v%d, v%d" % (V_U, V_U, V_U + 2))
    e("v_add_f32 v%d, v%d, v%d" % (V_U + 1, V_U + 1, V_U + 3))
    e("v_cvt_pk_bf16_f32 v%d, v%d, v%d" % (V_U + 4, V_U, V_U + 1))
    e("s_mov_b64 exec, 0xf")
    e("buffer_store_dword v%d, v%d, s[%d:%d], s80 offen" % (V_U + 4, V_X1, SRD_O, SRD_O + 3))
    noep = uid("noep")
    e("s_add_u32 s%d, s2, s%d" % (S_A, S_WAVE))
    e("s_cmp_lg_u32 s%d, 0" % S_A)
    e("s_cbranch_scc1 %s" % noep)
    e("s_mov_b64 exec, 1")
    e("v_mov_b32 v%d, s%d" % (V_T0, S_F))
    e("buffer_store_dword v%d, v%d, s[%d:%d], 0 offen sc1" % (V_T0, V_Z, SRD_WS, SRD_WS + 3))
    lab(noep)
    stamp(15)
    stamps_flush(V_U)
    e("s_endpgm")

def role_a():
    cmt("================= role A =================")
    dma256_voff(V_VA, V_VB, 256, V_T0)
    e("v_mov_b32 v%d, 0" % V_Z)
    KO = V_X1
    e("v_xor_b32 v%d, v2, v3" % V_T0)
    e("v_lshlrev_b32 v%d, 4, v%d" % (V_T0, V_T0))
    e("v_lshl_add_u32 v%d, v3, 8, v%d" % (KO, V_T0))
    for i in range(1, 4): e("v_xor_b32 v%d, %d, v%d" % (KO + i, 64 * i, KO))
    e("s_lshl_b32 s%d, s%d, 22" % (S_E, S_XCD))
    e("s_lshr_b32 s%d, s%d, 2" % (S_C, S_SLOT))
    e("s_lshl_b32 s%d, s%d, 20" % (S_A, S_C))
    e("s_add_u32 s%d, s%d, s%d" % (S_E, S_E, S_A))
    e("s_and_b32 s%d, s%d, 3" % (S_D, S_SLOT))
    e("s_lshl_b32 s%d, s%d, 16" % (S_A, S_D))
    e("s_add_u32 s%d, s%d, s%d" % (S_E, S_E, S_A))
    e("s_add_u32 s%d, s%d, 0x%x" % (S_E, S_E, 3072 * 256))
    e("s_waitcnt lgkmcnt(0)")
    if STAMPS: e("s_mov_b32 s%d, s%d" % (S_ST, S_TM))
    srd(SRD_W, S_V, 32 << 20)
    srd(SRD_X, S_K, 32 << 20)
    srd(SRD_WS, S_WS, WS_SIZE)
    e("buffer_load_dword v%d, v%d, s[%d:%d], 0 offen sc1" % (V_L + 12, V_Z, SRD_WS, SRD_WS + 3))
    dma256_issue(SRD_W, V_VA, V_VB, S_E, 256, L_W)
    e("s_lshl_b32 s%d, s%d, 13" % (S_B, S_WAVE))
    e("s_add_u32 s%d, s%d, s%d" % (S_A, S_B, S_E))
    e("s_add_u32 s%d, s%d, %d" % (S_B, S_B, L_K))
    for m in range(8):
        e("s_mov_b32 m0, s%d" % S_B)
        e("s_add_u32 s%d, s%d, 1024" % (S_B, S_B))
        e("buffer_load_dwordx4 v%d, s[%d:%d], s%d offen nt lds" % (KO + (m & 3), SRD_X, SRD_X + 3, S_A))
        e("s_add_u32 s%d, s%d, 1024" % (S_A, S_A))
    stamp(1)
    e("v_lshlrev_b32 v%d, 4, v1" % V_G)
    tr256_addr(V_TR, V_T0, L_W)
    KA = V_X1 + 4
    e("v_xor_b32 v%d, v2, v3" % V_T0)
    e("v_lshlrev_b32 v%d, 4, v%d" % (V_T0, V_T0))
    e("v_lshl_add_u32 v%d, v2, 8, v%d" % (V_T0, V_T0))
    e("s_lshl_b32 s%d, s%d, 13" % (S_A, S_WAVE))
    e("s_add_u32 s%d, s%d, %d" % (S_A, S_A, L_K))
    e("v_add_u32 v%d, s%d, v%d" % (KA, S_A, V_T0))
    for i in range(1, 4): e("v_xor_b32 v%d, %d, v%d" % (KA + i, 64 * i, KA))
    QE, QO = V_X1 + 8, V_X1 + 9
    act_rd_addr(QE, QO, V_T0, L_QB)
    act_rd_addr(V_AE, V_AO, V_T0, L_PB)
    QW = V_X1 + 10
    e("v_bfe_u32 v%d, v1, 2, 3" % V_T2)
    sigma_of(V_T0, V_T2, V_T1)
    e("v_xor_b32 v%d, s%d, v%d" % (V_T0, S_WAVE, V_T0))
    e("v_lshlrev_b32 v%d, 4, v%d" % (V_T0, V_T0))
    e("v_lshrrev_b32 v%d, 2, v1" % V_T1)
    e("v_lshl_add_u32 v%d, v%d, 7, v%d" % (V_T0, V_T1, V_T0))
    e("v_and_b32 v%d, 3, v1" % V_T1)
    e("v_lshl_add_u32 v%d, v%d, 2, v%d" % (V_T0, V_T1, V_T0))
    e("v_add_u32 v%d, %d, v%d" % (QW, L_QB, V_T0))
    PW0, PW1 = V_X1 + 11, V_X1 + 12
    e("v_and_b32 v%d, 2, v3" % V_T0)
    e("s_and_b32 s%d, s%d, 1" % (S_A, S_WAVE))
    e("v_or_b32 v%d, s%d, v%d" % (V_T0, S_A, V_T0))
    e("v_and_b32 v%d, 7, v1" % V_T1)
    e("v_xor_b32 v%d, v%d, v%d" % (V_T0, V_T0, V_T1))
    e("v_lshlrev_b32 v%d, 4, v%d" % (V_T0, V_T0))
    e("v_lshrrev_b32 v%d, 1, v3" % V_T1)
    e("v_lshl_add_u32 v%d, v%d, 7, v%d" % (V_T0, V_T1, V_T0))
    e("v_and_b32 v%d, 1, v3" % V_T1)
    e("v_lshl_add_u32 v%d, v%d, 3, v%d" % (V_T0, V_T1, V_T0))
    e("s_lshl_b32 s%d, s%d, 9" % (S_A, S_WAVE))
    e("s_add_u32 s%d, s%d, %d" % (S_A, S_A, L_PB))
    e("v_add_u32 v%d, s%d, v%d" % (PW0, S_A, V_T0))
    e("v_xor_b32 v%d, 64, v%d" % (PW1, PW0))
    SW, SR = V_X1 + 13, V_X1 + 14
    e("v_and_b32 v%d, 7, v1" % V_T0)
    e("v_lshlrev_b32 v%d, 5, v%d" % (V_T0, V_T0))
    e("v_add_u32 v%d, %d, v%d" % (SR, L_MX, V_T0))
    e("s_lshl_b32 s%d, s%d, 2" % (S_A, S_WAVE))
    e("v_add_u32 v%d, s%d, v%d" % (SW, S_A, SR))
    e("s_lshl_b32 s%d, s%d, 3" % (S_A, S_C))
    e("s_add_u32 s%d, s%d, s%d" % (S_A, S_A, S_WAVE))
    e("s_lshl_b32 s%d, s%d, 15" % (S_A, S_A))
    e("s_lshl_b32 s%d, s%d, 10" % (S_B, S_XCD))
    e("s_add_u32 s%d, s%d, s%d" % (S_A, S_A, S_B))
    e("s_add_u32 s80, s%d, 0x%x" % (S_A, WS_H1))
    for i in range(1, 4): e("s_add_u32 s%d, s80, %d" % (80 + i, 8192 * i))
    e("s_lshl_b32 s%d, s%d, 3" % (S_A, S_C))
    e("s_add_u32 s%d, s%d, s%d" % (S_A, S_A, S_XCD))
    e("s_lshl_b32 s%d, s%d, 2" % (S_A, S_A))
    e("s_add_u32 s%d, s%d, s%d" % (S_A, S_A, S_D))
    e("s_lshl_b32 s%d, s%d, 12" % (S_A, S_A))
    e("s_lshl_b32 s%d, s%d, 6" % (S_B, S_WAVE))
    e("s_add_u32 s%d, s%d, s%d" % (S_A, S_A, S_B))
    e("s_add_u32 s84, s%d, 0x%x" % (S_A, WS_H2))
    e("v_and_b32 v%d, 7, v1" % V_T0)
    e("v_lshlrev_b32 v%d, 9, v%d" % (V_PUB, V_T0))
    e("v_lshl_add_u32 v%d, v3, 4, v%d" % (V_PUB, V_PUB))
    e("s_waitcnt vmcnt(16)")
    make_tag(V_L + 12)
    e("v_mov_b32 v%d, s%d" % (V_P + 3, S_T))
    e("v_mov_b32 v%d, s%d" % (V_P + 2, S_T))
    e("s_waitcnt vmcnt(8)")
    e("s_barrier")
    stamp(2)
    notr = uid("notr")
    e("s_cmp_lg_u32 s%d, 0" % S_WAVE)
    e("s_cbranch_scc1 %s" % notr)
    e("s_lshl_b32 s%d, s%d, 3" % (S_A, S_SLOT))
    e("s_or_b32 s%d, s%d, s%d" % (S_A, S_A, S_XCD))
    e("s_lshl_b32 s%d, s%d, 7" % (S_A, S_A))
    e("s_add_u32 s%d, s%d, 0x%x" % (S_A, S_A, WS_TRIG))
    e("s_mov_b64 exec, 1")
    e("buffer_store_dwordx2 v[%d:%d], v%d, s[%d:%d], s%d offen sc1" % (V_P + 2, V_P + 3, V_Z, SRD_WS, SRD_WS + 3, S_A))
    e("s_mov_b64 exec, -1")
    lab(notr)
    tr256_read(V_WF, V_TR)
    e("s_waitcnt vmcnt(0)")
    stamp(3)
    for t in range(2):
        for sg in range(4):
            r = V_KF + 16 * t + 4 * sg
            e("ds_read_b128 v[%d:%d], v%d offset:%d" % (r, r + 3, KA + sg, t * 4096))
    top = poll_begin()
    for k in range(4):
        e("buffer_load_dwordx4 v[%d:%d], v%d, s[%d:%d], s%d offen sc1" % (V_L + 4 * k, V_L + 4 * k + 3, V_G, SRD_WS, SRD_WS + 3, 80 + k))
    poll_end(top, [chk64(V_L + 4 * k + 2) for k in range(4)])
    stamp(4)
    e("v_add_f32 v%d, v%d, v%d" % (V_L, V_L, V_L + 4))
    e("v_add_f32 v%d, v%d, v%d" % (V_L + 1, V_L + 1, V_L + 5))
    e("v_add_f32 v%d, v%d, v%d" % (V_L + 8, V_L + 8, V_L + 12))
    e("v_add_f32 v%d, v%d, v%d" % (V_L + 9, V_L + 9, V_L + 13))
    e("v_add_f32 v%d, v%d, v%d" % (V_L, V_L, V_L + 8))
    e("v_add_f32 v%d, v%d, v%d" % (V_L + 1, V_L + 1, V_L + 9))
    e("v_cvt_pk_bf16_f32 v%d, v%d, v%d" % (V_T0, V_L, V_L + 1))
    e("ds_write_b32 v%d, v%d" % (QW, V_T0))
    e("s_waitcnt lgkmcnt(0)")
    e("s_barrier")
    for sg in range(4):
        e("ds_read_b128 v[%d:%d], v%d offset:%d" % (V_AF + 4 * sg, V_AF + 4 * sg + 3, QO if (sg & 1) else QE, sg * 512))
    S0, S1 = V_U, V_U + 4
    for sg in range(4):
        e("s_waitcnt lgkmcnt(%d)" % (3 - sg))
        for t, acc in ((0, S0), (1, S1)):
            c = "0" if sg == 0 else "v[%d:%d]" % (acc, acc + 3)
            r = V_KF + 16 * t + 4 * sg
            e("v_mfma_f32_16x16x32_bf16 v[%d:%d], v[%d:%d], v[%d:%d], %s" % (acc, acc + 3, r, r + 3, V_AF + 4 * sg, V_AF + 4 * sg + 3, c))
    e("s_nop 7")
    for i in range(4):
        e("v_cvt_pk_bf16_f32 v%d, v%d, v%d" % (V_L + i, V_U + 2 * i, V_U + 2 * i + 1))
    for i in range(4):
        unpack(V_U + 2 * i, V_U + 2 * i + 1, V_L + i)
    for i in range(8):
        e("v_mul_f32 v%d, %s, v%d" % (V_U + i, f32(128 ** -0.5), V_U + i))
    for i in range(4):
        e("v_cvt_pk_bf16_f32 v%d, v%d, v%d" % (V_L + i, V_U + 2 * i, V_U + 2 * i + 1))
    for i in range(4):
        unpack(V_U + 2 * i, V_U + 2 * i + 1, V_L + i)
    e("v_max3_f32 v%d, v%d, v%d, v%d" % (V_M, V_U, V_U + 1, V_U + 2))
    e("v_max3_f32 v%d, v%d, v%d, v%d" % (V_T0, V_U + 3, V_U + 4, V_U + 5))
    e("v_max3_f32 v%d, v%d, v%d, v%d" % (V_M, V_M, V_U + 6, V_U + 7))
    e("v_max_f32 v%d, v%d, v%d" % (V_M, V_M, V_T0))
    xrow_allreduce(V_M, V_T0, "v_max_f32")
    e("ds_write_b32 v%d, v%d" % (SW, V_M))
    e("s_waitcnt lgkmcnt(0)")
    e("s_barrier")
    e("ds_read_b128 v[%d:%d], v%d" % (V_L, V_L + 3, SR))
    e("ds_read_b128 v[%d:%d], v%d offset:16" % (V_L + 4, V_L + 7, SR))
    e("s_waitcnt lgkmcnt(0)")
    e("v_max3_f32 v%d, v%d, v%d, v%d" % (V_M, V_L, V_L + 1, V_L + 2))
    e("v_max3_f32 v%d, v%d, v%d, v%d" % (V_T0, V_L + 3, V_L + 4, V_L + 5))
    e("v_max3_f32 v%d, v%d, v%d, v%d" % (V_M, V_M, V_L + 6, V_L + 7))
    e("v_max_f32 v%d, v%d, v%d" % (V_M, V_M, V_T0))
    e("s_mov_b32 s%d, %s" % (S_A, f32(LOG2E)))
    for i in range(8):
        e("v_sub_f32 v%d, v%d, v%d" % (V_U + i, V_U + i, V_M))
    for i in range(8):
        e("v_mul_f32 v%d, s%d, v%d" % (V_U + i, S_A, V_U + i))
    for i in range(8):
        e("v_exp_f32 v%d, v%d" % (V_U + i, V_U + i))
    e("v_mul_f32 v%d, s%d, v%d" % (V_M, S_A, V_M))
    for i in range(4):
        e("v_cvt_pk_bf16_f32 v%d, v%d, v%d" % (V_L + i, V_U + 2 * i, V_U + 2 * i + 1))
    e("ds_write_b64 v%d, v[%d:%d]" % (PW0, V_L, V_L + 1))
    e("ds_write_b64 v%d, v[%d:%d] offset:256" % (PW1, V_L + 2, V_L + 3))
    e("v_add_f32 v%d, v%d, v%d" % (V_SUM, V_U, V_U + 1))
    for i in range(2, 8):
        e("v_add_f32 v%d, v%d, v%d" % (V_SUM, V_SUM, V_U + i))
    xrow_allreduce(V_SUM, V_T0)
    e("ds_write_b32 v%d, v%d offset:256" % (SW, V_SUM))
    e("s_waitcnt lgkmcnt(0)")
    e("s_barrier")
    stamp(5)
    e("ds_read_b128 v[%d:%d], v%d offset:256" % (V_L, V_L + 3, SR))
    e("ds_read_b128 v[%d:%d], v%d offset:272" % (V_L + 4, V_L + 7, SR))
    gemv8(V_ACC, V_WF, V_AF, V_AE, V_AO)
    e("v_add_f32 v%d, v%d, v%d" % (V_L, V_L, V_L + 1))
    e("v_add_f32 v%d, v%d, v%d" % (V_L + 2, V_L + 2, V_L + 3))
    e("v_add_f32 v%d, v%d, v%d" % (V_L + 4, V_L + 4, V_L + 5))
    e("v_add_f32 v%d, v%d, v%d" % (V_L + 6, V_L + 6, V_L + 7))
    e("v_add_f32 v%d, v%d, v%d" % (V_L, V_L, V_L + 2))
    e("v_add_f32 v%d, v%d, v%d" % (V_L + 4, V_L + 4, V_L + 6))
    e("v_add_f32 v%d, v%d, v%d" % (V_L, V_L, V_L + 4))
    e("v_rcp_f32 v%d, v%d" % (V_T0, V_L))
    e("v_log_f32 v%d, v%d" % (V_T1, V_L))
    e("s_nop 0")
    e("v_add_f32 v%d, v%d, v%d" % (V_P + 2, V_T1, V_M))
    for k in range(4):
        e("v_mul_f32 v%d, v%d, v%d" % (V_ACC + k, V_ACC + k, V_T0))
    e("v_cvt_pk_bf16_f32 v%d, v%d, v%d" % (V_P, V_ACC, V_ACC + 1))
    e("v_cvt_pk_bf16_f32 v%d, v%d, v%d" % (V_P + 1, V_ACC + 2, V_ACC + 3))
    e("s_not_b64 exec, s[%d:%d]" % (S_HI8, S_HI8 + 1))
    e("buffer_store_dwordx4 v[%d:%d], v%d, s[%d:%d], s84 offen sc1" % (V_P, V_P + 3, V_PUB, SRD_WS, SRD_WS + 3))
    e("s_mov_b64 exec, -1")
    stamp(6)
    e("s_cmp_ge_u32 s%d, 14" % S_SLOT)
    e("s_cbranch_scc1 L_a_done")
    e("s_cmp_ge_u32 s%d, 7" % S_SLOT)
    e("s_cselect_b32 s%d, s%d, s%d" % (SRD_W, S_WU, S_WG))
    e("s_cselect_b32 s%d, s%d, s%d" % (S_A, S_WU + 1, S_WG + 1))
    e("s_cselect_b32 s%d, 7, 0" % S_B)
    e("s_cselect_b32 s85, 0x%x, 0" % (WS_H4U - WS_H4S))
    e("s_add_u32 s85, s85, 0x%x" % WS_H4S)
    e("s_and_b32 s%d, s%d, 0xffff" % (SRD_W + 1, S_A))
    e("s_mov_b32 s%d, 0x%x" % (SRD_W + 2, 1024 * 7168))
    e("s_mov_b32 s%d, 0x20000" % (SRD_W + 3))
    e("s_sub_u32 s%d, s%d, s%d" % (S_C, S_SLOT, S_B))
    e("s_mul_i32 s%d, s%d, 7" % (S_A, S_XCD))
    e("s_add_u32 s%d, s%d, s%d" % (S_C, S_C, S_A))
    GO = V_X1
    e("v_lshrrev_b32 v%d, 3, v1" % V_T0)
    e("v_bfe_u32 v%d, v1, 4, 1" % V_T1)
    e("v_and_b32 v%d, 7, v1" % V_T2)
    e("v_xor_b32 v%d, v%d, v%d" % (V_T1, V_T1, V_T2))
    e("v_lshlrev_b32 v%d, 4, v%d" % (V_T1, V_T1))
    e("v_mul_u32_u24 v%d, 7168, v%d" % (GO, V_T0))
    e("v_add_u32 v%d, v%d, v%d" % (GO, GO, V_T1))
    for i in range(1, 4): e("v_xor_b32 v%d, %d, v%d" % (GO + i, 32 * i, GO))
    e("s_mul_i32 s%d, s%d, %d" % (S_A, S_WAVE, 16 * 8 * 7168))
    e("s_lshl_b32 s%d, s%d, 7" % (S_B, S_C))
    e("s_add_u32 s%d, s%d, s%d" % (S_A, S_A, S_B))
    e("s_lshl_b32 s%d, s%d, 14" % (S_B, S_WAVE))
    e("s_barrier")
    for m in range(16):
        e("s_mov_b32 m0, s%d" % S_B)
        e("s_add_u32 s%d, s%d, 1024" % (S_B, S_B))
        var = (m & 1) | (((m >> 2) & 1) << 1)
        e("buffer_load_dwordx4 v%d, s[%d:%d], s%d offen nt lds" % (GO + var, SRD_W, SRD_W + 3, S_A))
        e("s_add_u32 s%d, s%d, %d" % (S_A, S_A, 8 * 7168))
    stamp(7)
    e("v_bfe_u32 v%d, v1, 3, 1" % V_T0)
    e("v_and_b32 v%d, 1, v3" % V_T1)
    e("v_lshl_or_b32 v%d, v%d, 1, v%d" % (V_T0, V_T1, V_T0))
    e("v_bfe_u32 v%d, v1, 1, 1" % V_T1)
    e("v_lshl_or_b32 v%d, v%d, 2, v%d" % (V_T0, V_T1, V_T0))
    e("v_xor_b32 v%d, s%d, v%d" % (V_T0, S_WAVE, V_T0))
    e("v_lshlrev_b32 v%d, 4, v%d" % (V_T0, V_T0))
    e("v_bfe_u32 v%d, v1, 2, 2" % V_T2)
    e("v_lshl_add_u32 v%d, v3, 3, v%d" % (V_T2, V_T2))
    e("v_lshl_add_u32 v%d, v%d, 5, v%d" % (V_T2, V_T1, V_T2))
    e("v_lshl_add_u32 v%d, v%d, 7, v%d" % (V_T0, V_T2, V_T0))
    e("v_and_b32 v%d, 1, v1" % V_T1)
    e("v_lshl_add_u32 v%d, v%d, 3, v%d" % (V_TR, V_T1, V_T0))
    e("v_add_u32 v%d, 0x10000, v%d" % (V_VA, V_TR))
    e("v_lshrrev_b32 v%d, 3, v2" % V_T0)
    e("v_lshl_or_b32 v%d, v3, 1, v%d" % (V_T1, V_T0))
    e("v_and_b32 v%d, 7, v1" % V_T2)
    e("v_xor_b32 v%d, v%d, v%d" % (V_T1, V_T1, V_T2))
    e("v_lshlrev_b32 v%d, 4, v%d" % (V_T1, V_T1))
    e("v_lshl_add_u32 v%d, v%d, 2, v3" % (V_T0, V_T0))
    e("v_lshl_add_u32 v%d, v%d, 7, v%d" % (V_T1, V_T0, V_T1))
    e("v_add_u32 v%d, %d, v%d" % (V_AE, L_ACT, V_T1))
    e("v_bfe_u32 v%d, v1, 1, 3" % V_T2)
    sigma_of(V_T0, V_T2, V_T1)
    e("v_xor_b32 v%d, s%d, v%d" % (V_T0, S_WAVE, V_T0))
    e("v_lshlrev_b32 v%d, 4, v%d" % (V_T0, V_T0))
    e("v_lshrrev_b32 v%d, 1, v1" % V_T1)
    e("v_lshl_add_u32 v%d, v%d, 7, v%d" % (V_T0, V_T1, V_T0))
    e("v_and_b32 v%d, 1, v1" % V_T1)
    e("v_lshl_add_u32 v%d, v%d, 3, v%d" % (V_T0, V_T1, V_T0))
    e("v_add_u32 v%d, %d, v%d" % (V_AW, L_ACT, V_T0))
    e("s_lshl_b32 s%d, s%d, 12" % (S_A, S_WAVE))
    e("s_add_u32 s86, s%d, 0x%x" % (S_A, WS_H3B))
    e("s_lshl_b32 s%d, s%d, 11" % (S_A, S_C))
    e("s_lshl_b32 s%d, s%d, 8" % (S_B, S_WAVE))
    e("s_add_u32 s%d, s%d, s%d" % (S_A, S_A, S_B))
    e("s_add_u32 s85, s85, s%d" % S_A)
    e("v_and_b32 v%d, 1, v3" % V_T0)
    e("v_lshlrev_b32 v%d, 7, v%d" % (V_PUB, V_T0))
    e("v_and_b32 v%d, 7, v1" % V_T0)
    e("v_lshl_add_u32 v%d, v%d, 4, v%d" % (V_PUB, V_T0, V_PUB))
    e("v_lshrrev_b32 v%d, 1, v3" % V_T0)
    e("v_lshl_add_u32 v%d, v%d, 3, v%d" % (V_PUB, V_T0, V_PUB))
    e("s_waitcnt vmcnt(0)")
    e("s_barrier")
    GF = V_KF
    for m in range(16):
        for h in range(2):
            e("ds_read_b64_tr_b16 v[%d:%d], v%d offset:%d" % (GF + 4 * m + 2 * h, GF + 4 * m + 2 * h + 1, V_TR if m < 8 else V_VA, (m & 7) * 8192 + h * 512))
    stamp(8)
    top = poll_begin()
    for n in range(4):
        e("buffer_load_dwordx4 v[%d:%d], v%d, s[%d:%d], s86 offen offset:%d sc1" % (V_L + 4 * n, V_L + 4 * n + 3, V_G, SRD_WS, SRD_WS + 3, n * 1024))
    poll_end(top, [chk32(V_L + 2 * i + 1) for i in range(8)])
    stamp(9)
    for i in range(8):
        unpack(V_U + 2 * i, V_U + 2 * i + 1, V_L + 2 * i)
    ln_stats([V_U + i for i in range(16)], V_SUM, V_T0, V_M, V_RS, V_SQ)
    for i in range(8):
        ln_apply_pair(V_L + i, V_U + 2 * i, V_U + 2 * i + 1, V_M, V_RS, V_SQ, V_T0, V_T1)
    for n in range(4):
        e("ds_write_b64 v%d, v[%d:%d] offset:%d" % (V_AW, V_L + 2 * n, V_L + 2 * n + 1, n * 4096))
    e("s_waitcnt lgkmcnt(0)")
    e("s_barrier")
    stamp(10)
    for m in range(16):
        e("ds_read_b128 v[%d:%d], v%d offset:%d" % (V_AF + 4 * m, V_AF + 4 * m + 3, V_AE, m * 1024))
    for m in range(16):
        e("s_waitcnt lgkmcnt(%d)" % min(15, 15 - m))
        c = "0" if m == 0 else "v[%d:%d]" % (V_ACC, V_ACC + 3)
        e("v_mfma_f32_16x16x32_bf16 v[%d:%d], v[%d:%d], v[%d:%d], %s" % (V_ACC, V_ACC + 3, GF + 4 * m, GF + 4 * m + 3, V_AF + 4 * m, V_AF + 4 * m + 3, c))
    e("s_nop 7")
    e("v_permlane32_swap_b32 v%d, v%d" % (V_ACC, V_ACC + 2))
    e("v_permlane32_swap_b32 v%d, v%d" % (V_ACC + 1, V_ACC + 3))
    e("s_nop 1")
    e("v_add_f32_dpp v%d, v%d, v%d row_shl:8 row_mask:0xf bank_mask:0xf" % (V_ACC, V_ACC + 2, V_ACC))
    e("v_add_f32_dpp v%d, v%d, v%d row_shl:8 row_mask:0xf bank_mask:0xf" % (V_ACC + 1, V_ACC + 3, V_ACC + 1))
    e("v_cvt_pk_bf16_f32 v%d, v%d, v%d" % (V_P, V_ACC, V_ACC + 1))
    nosig = uid("nosig")
    e("s_cmp_ge_u32 s%d, 7" % S_SLOT)
    e("s_cbranch_scc1 %s" % nosig)
    unpack(V_U, V_U + 1, V_P)
    e("v_mul_f32 v%d, %s, v%d" % (V_U, f32(-LOG2E), V_U))
    e("v_mul_f32 v%d, %s, v%d" % (V_U + 1, f32(-LOG2E), V_U + 1))
    e("v_exp_f32 v%d, v%d" % (V_U, V_U))
    e("v_exp_f32 v%d, v%d" % (V_U + 1, V_U + 1))
    e("s_nop 0")
    e("v_add_f32 v%d, 1.0, v%d" % (V_U, V_U))
    e("v_add_f32 v%d, 1.0, v%d" % (V_U + 1, V_U + 1))
    e("v_rcp_f32 v%d, v%d" % (V_U, V_U))
    e("v_rcp_f32 v%d, v%d" % (V_U + 1, V_U + 1))
    e("s_nop 0")
    e("v_cvt_pk_bf16_f32 v%d, v%d, v%d" % (V_P, V_U, V_U + 1))
    lab(nosig)
    e("v_mov_b32 v%d, s%d" % (V_P + 1, S_T))
    e("s_not_b64 exec, s[%d:%d]" % (S_HI8, S_HI8 + 1))
    e("buffer_store_dwordx2 v[%d:%d], v%d, s[%d:%d], s85 offen sc1" % (V_P, V_P + 1, V_PUB, SRD_WS, SRD_WS + 3))
    e("s_mov_b64 exec, -1")
    stamp(11)
    lab("L_a_done")
    stamps_flush(V_U)
    e("s_endpgm")

gen()
open(OUT, "w").write("\n".join(lines) + "\n")
print("wrote", OUT, len(lines), "lines")
```

```python
import sys, struct

NAME = "sequential_preLN__sliding_block_cached__glu_gated_glu__decode"
DBGB = "--dbgB" in sys.argv
DBGA = "--dbgA" in sys.argv
STAMPS = "--stamps" in sys.argv or DBGA or DBGB
OUT = [a for a in sys.argv[1:] if not a.startswith("--")]
OUT = OUT[0] if OUT else "cdna_kernels/%s.s" % NAME

lines = []
def e(s): lines.append("    " + s)
def lab(s): lines.append(s + ":")
def cmt(s): lines.append("    ; " + s)
_uid = [0]
def uid(p):
    _uid[0] += 1
    return "L_%s_%d" % (p, _uid[0])
def f32(x): return "0x%08x" % struct.unpack("<I", struct.pack("<f", x))[0]

WS_EPOCH = 0x0
WS_TRIG = 0x4000
WS_H1 = 0x100000
WS_H2 = 0x200000
WS_H3B = 0x280000
WS_H4S = 0x290000
WS_H4U = 0x2B0000
WS_H3A = 0x300000
WS_H5 = 0x400000
WS_TS = 0x600000
WS_SIZE = 0x800000

L_W = 0
L_K = 65536
L_ACT = 131072
L_QB = 147456
L_PB = 149504
L_MX = 153600
L_SM = 153856
LDS_BYTES = 154112

S_X, S_K, S_V, S_WQ, S_WO, S_BX, S_WG, S_WU = 4, 6, 8, 10, 12, 14, 16, 18
S_WD, S_OUT, S_DBG, S_WS = 20, 22, 24, 26
S_WAVE, S_XCD, S_SLOT, S_T = 28, 29, 30, 31
SRD_W = 32
SRD_WS = 36
SRD_X = 40
SRD_O = 44
S_TT = 48
S_HI8 = 50
S_SPIN = 52
S_A, S_B, S_C, S_D = 53, 54, 55, 56
S_E, S_F = 57, 58
S_TM = 60
S_ST = 64
S_EX = 62

LOG2E = 1.4426950408889634

def srd(dst, ptr, nbytes):
    e("s_mov_b32 s%d, s%d" % (dst, ptr))
    e("s_and_b32 s%d, s%d, 0xffff" % (dst + 1, ptr + 1))
    e("s_mov_b32 s%d, 0x%x" % (dst + 2, nbytes))
    e("s_mov_b32 s%d, 0x20000" % (dst + 3))

def stamp(k):
    if not STAMPS: return
    e("s_memrealtime s[%d:%d]" % (S_TM, S_TM + 1))
    e("s_waitcnt lgkmcnt(0)")
    e("s_mov_b32 s%d, s%d" % (S_ST + k, S_TM))

def stamps_flush(vtmp, role):
    if not STAMPS: return
    e("s_mov_b64 exec, -1")
    if DBGA or DBGB:
        if (role == "A") != DBGA:
            for k in range(1, 16): e("s_mov_b32 s%d, 0" % (S_ST + k))
        e("s_not_b32 s%d, s%d" % (S_ST, S_ST))
        for k in range(16):
            e("v_writelane_b32 v%d, s%d, %d" % (vtmp, S_ST + k, k))
        srd(SRD_O, S_DBG, 256)
        e("v_lshlrev_b32 v%d, 2, v1" % (vtmp + 1))
        e("s_mov_b64 exec, 0xffff")
        e("buffer_atomic_umax v%d, v%d, s[%d:%d], 0 offen" % (vtmp, vtmp + 1, SRD_O, SRD_O + 3))
        e("s_mov_b64 exec, -1")
        return
    for k in range(16):
        e("v_writelane_b32 v%d, s%d, %d" % (vtmp, S_ST + k, k))
    e("s_lshl_b32 s%d, s2, 9" % S_A)
    e("s_lshl_b32 s%d, s%d, 6" % (S_B, S_WAVE))
    e("s_add_u32 s%d, s%d, s%d" % (S_A, S_A, S_B))
    e("s_add_u32 s%d, s%d, 0x%x" % (S_A, S_A, WS_TS))
    e("v_lshlrev_b32 v%d, 2, v1" % (vtmp + 1))
    e("s_mov_b64 exec, 0xffff")
    e("buffer_store_dword v%d, v%d, s[%d:%d], s%d offen" % (vtmp, vtmp + 1, SRD_WS, SRD_WS + 3, S_A))
    e("s_mov_b64 exec, -1")

def dpp_add(dst, src, ctrl, op="v_add_f32"):
    e("%s_dpp v%d, v%d, v%d %s row_mask:0xf bank_mask:0xf" % (op, dst, src, src, ctrl))

def wave_allreduce(v, t, op="v_add_f32"):
    for r in (8, 4, 2, 1):
        e("s_nop 1")
        dpp_add(v, v, "row_ror:%d" % r, op)
    xrow_allreduce(v, t, op)

def xrow_allreduce(v, t, op="v_add_f32"):
    e("v_mov_b32 v%d, v%d" % (t, v))
    e("s_nop 1")
    e("v_permlane16_swap_b32 v%d, v%d" % (v, t))
    e("s_nop 1")
    e("%s v%d, v%d, v%d" % (op, v, v, t))
    e("v_mov_b32 v%d, v%d" % (t, v))
    e("s_nop 1")
    e("v_permlane32_swap_b32 v%d, v%d" % (v, t))
    e("s_nop 1")
    e("%s v%d, v%d, v%d" % (op, v, v, t))

def bf16_round(v):
    e("v_cvt_pk_bf16_f32 v%d, v%d, v%d" % (v, v, v))
    e("v_lshlrev_b32 v%d, 16, v%d" % (v, v))

def unpack(lo, hi, src):
    e("v_lshlrev_b32 v%d, 16, v%d" % (lo, src))
    e("v_and_b32 v%d, 0xffff0000, v%d" % (hi, src))

def poll_begin():
    top = uid("poll")
    lab(top)
    return top

def poll_end(top, checks):
    ok = uid("ok")
    e("s_waitcnt vmcnt(0)")
    for c in checks: e(c)
    e("s_cmp_eq_u64 exec, -1")
    e("s_mov_b64 exec, -1")
    e("s_cbranch_scc1 %s" % ok)
    e("s_sub_u32 s%d, s%d, 1" % (S_SPIN, S_SPIN))
    e("s_cbranch_scc0 %s" % top)
    e("s_mov_b32 s%d, 0" % S_SPIN)
    lab(ok)

def chk64(v):
    return "v_cmpx_eq_u64 vcc, s[%d:%d], v[%d:%d]" % (S_TT, S_TT + 1, v, v + 1)
def chk32(v):
    return "v_cmpx_eq_u32 vcc, s%d, v%d" % (S_T, v)

def ln_stats(vals, vsum, vt, vmean, vrs, vsq):
    e("v_add_f32 v%d, v%d, v%d" % (vsum, vals[0], vals[1]))
    for i in range(2, 16):
        e("v_add_f32 v%d, v%d, v%d" % (vsum, vsum, vals[i]))
    wave_allreduce(vsum, vt)
    e("v_mul_f32 v%d, %s, v%d" % (vmean, f32(1.0 / 1024), vsum))
    e("v_sub_f32 v%d, v%d, v%d" % (vt, vals[0], vmean))
    e("v_mul_f32 v%d, v%d, v%d" % (vsum, vt, vt))
    for i in range(1, 16):
        e("v_sub_f32 v%d, v%d, v%d" % (vt, vals[i], vmean))
        e("v_fmac_f32 v%d, v%d, v%d" % (vsum, vt, vt))
    wave_allreduce(vsum, vt)
    e("v_mul_f32 v%d, %s, v%d" % (vsq, f32(1.0 / 1024), vsum))
    bf16_round(vsq)
    e("v_add_f32 v%d, %s, v%d" % (vsq, f32(1e-5), vsq))
    bf16_round(vsq)
    e("v_sqrt_f32 v%d, v%d" % (vsq, vsq))
    bf16_round(vmean)
    bf16_round(vsq)
    e("v_rcp_f32 v%d, v%d" % (vrs, vsq))
    e("s_nop 0")

def ln_apply_pair(dst, a, b, vmean, vrs, vsq, t0, t1):
    e("v_sub_f32 v%d, v%d, v%d" % (a, a, vmean))
    e("v_sub_f32 v%d, v%d, v%d" % (b, b, vmean))
    e("v_cvt_pk_bf16_f32 v%d, v%d, v%d" % (t0, a, b))
    unpack(a, b, t0)
    e("v_mul_f32 v%d, v%d, v%d" % (t0, a, vrs))
    e("v_mul_f32 v%d, v%d, v%d" % (t1, b, vrs))
    e("v_fma_f32 v%d, -v%d, v%d, v%d" % (a, t0, vsq, a))
    e("v_fma_f32 v%d, -v%d, v%d, v%d" % (b, t1, vsq, b))
    e("v_fmac_f32 v%d, v%d, v%d" % (t0, a, vrs))
    e("v_fmac_f32 v%d, v%d, v%d" % (t1, b, vrs))
    e("v_cvt_pk_bf16_f32 v%d, v%d, v%d" % (dst, t0, t1))

def sigma_of(dst, u, t):
    e("v_and_b32 v%d, 3, v%d" % (dst, u))
    e("v_lshlrev_b32 v%d, 1, v%d" % (dst, dst))
    e("v_bfe_u32 v%d, v%d, 2, 1" % (t, u))
    e("v_or_b32 v%d, v%d, v%d" % (dst, dst, t))

def dma256_voff(va, vb, pitch, t):
    e("v_bfe_u32 v%d, v1, 1, 3" % t)
    e("v_xor_b32 v%d, v3, v%d" % (t, t))
    e("v_lshlrev_b32 v%d, 5, v%d" % (t, t))
    e("v_and_b32 v%d, 1, v1" % va)
    e("v_lshl_add_u32 v%d, v%d, 4, v%d" % (t, va, t))
    e("v_mul_u32_u24 v%d, %d, v3" % (va, pitch))
    e("v_add_u32 v%d, v%d, v%d" % (va, va, t))
    e("v_xor_b32 v%d, 0x80, v%d" % (vb, va))

def dma256_issue(srd_, va, vb, s_base, pitch, ldsbase, nchunk=8):
    e("s_mul_i32 s%d, s%d, %d" % (S_A, S_WAVE, 32 * pitch))
    e("s_add_u32 s%d, s%d, s%d" % (S_A, S_A, s_base))
    e("s_lshl_b32 s%d, s%d, 13" % (S_B, S_WAVE))
    if ldsbase: e("s_add_u32 s%d, s%d, %d" % (S_B, S_B, ldsbase))
    for m in range(nchunk):
        e("s_mov_b32 m0, s%d" % S_B)
        if m < nchunk - 1: e("s_add_u32 s%d, s%d, 1024" % (S_B, S_B))
        else: e("s_nop 0")
        e("buffer_load_dwordx4 v%d, s[%d:%d], s%d offen nt lds" % (vb if (m & 2) else va, srd_, srd_ + 3, S_A))
        if m < nchunk - 1: e("s_add_u32 s%d, s%d, %d" % (S_A, S_A, 4 * pitch))

def tr256_addr(va, t, ldsbase):
    e("v_bfe_u32 v%d, v1, 2, 2" % t)
    e("v_and_b32 v%d, 1, v3" % va)
    e("v_lshl_or_b32 v%d, v%d, 2, v%d" % (va, va, t))
    e("v_xor_b32 v%d, s%d, v%d" % (va, S_WAVE, va))
    e("v_lshlrev_b32 v%d, 5, v%d" % (va, va))
    e("v_lshl_add_u32 v%d, v3, 3, v%d" % (t, t))
    e("v_lshl_add_u32 v%d, v%d, 8, v%d" % (va, t, va))
    e("v_and_b32 v%d, 3, v1" % t)
    e("v_lshl_add_u32 v%d, v%d, 3, v%d" % (va, t, va))
    if ldsbase: e("v_add_u32 v%d, %d, v%d" % (va, ldsbase, va))

def tr256_read(dst, va):
    for m in range(8):
        for h in range(2):
            e("ds_read_b64_tr_b16 v[%d:%d], v%d offset:%d" % (dst + 4 * m + 2 * h, dst + 4 * m + 2 * h + 1, va, m * 8192 + h * 1024))

def act_rd_addr(ve, vo, t, ldsbase):
    e("v_and_b32 v%d, 7, v1" % t)
    e("v_lshlrev_b32 v%d, 1, v3" % ve)
    e("v_xor_b32 v%d, v%d, v%d" % (ve, ve, t))
    e("v_lshlrev_b32 v%d, 4, v%d" % (ve, ve))
    e("v_lshl_add_u32 v%d, v3, 7, v%d" % (ve, ve))
    e("v_add_u32 v%d, %d, v%d" % (ve, ldsbase, ve))
    e("v_xor_b32 v%d, 16, v%d" % (vo, ve))

def gemv8(acc, wf, af, ve, vo, nstep=8):
    for m in range(nstep):
        e("ds_read_b128 v[%d:%d], v%d offset:%d" % (af + 4 * m, af + 4 * m + 3, vo if (m & 1) else ve, m * 512))
    for m in range(nstep):
        e("s_waitcnt lgkmcnt(%d)" % (nstep - 1 - m))
        c = "0" if m == 0 else "v[%d:%d]" % (acc, acc + 3)
        e("v_mfma_f32_16x16x32_bf16 v[%d:%d], v[%d:%d], v[%d:%d], %s" % (acc, acc + 3, wf + 4 * m, wf + 4 * m + 3, af + 4 * m, af + 4 * m + 3, c))

def gen():
    lines.append("; Fused decode layer: preLN + sliding-window GQA attention + preLN + GLU MLP (persistent, 1 WG per CU)")
    lines.append("; @launch grid=(256,1,1) block=(512,1,1) lds=%d" % LDS_BYTES)
    lines.append('.amdgcn_target "amdgcn-amd-amdhsa--gfx950"')
    lines.append(".text")
    lines.append(".globl %s_kernel" % NAME)
    lines.append(".p2align 8")
    lines.append(".type %s_kernel,@function" % NAME)
    lab("%s_kernel" % NAME)
    e("s_cmp_ge_u32 s2, 256")
    e("s_cbranch_scc1 L_end")
    e("s_load_dwordx16 s[4:19], s[0:1], 0")
    e("s_load_dwordx8 s[20:27], s[0:1], 64")
    if STAMPS:
        e("s_memrealtime s[%d:%d]" % (S_TM, S_TM + 1))
        for k in range(1, 16): e("s_mov_b32 s%d, 0" % (S_ST + k))
    e("v_lshrrev_b32 v4, 6, v0")
    e("v_and_b32 v1, 63, v0")
    e("v_readfirstlane_b32 s%d, v4" % S_WAVE)
    e("v_and_b32 v2, 15, v1")
    e("v_lshrrev_b32 v3, 4, v1")
    e("s_and_b32 s%d, s2, 7" % S_XCD)
    e("s_lshr_b32 s%d, s2, 4" % S_SLOT)
    e("s_mov_b32 s%d, 0x40000" % S_SPIN)
    e("s_mov_b32 s%d, 0xff00ff00" % S_HI8)
    e("s_mov_b32 s%d, 0xff00ff00" % (S_HI8 + 1))
    e("s_bitcmp1_b32 s2, 3")
    e("s_cbranch_scc1 L_roleA")
    role_b()
    lab("L_roleA")
    role_a()
    lab("L_end")
    e("s_endpgm")
    lines.append('.section .rodata,"a"')
    lines.append(".p2align 6")
    lines.append(".amdhsa_kernel %s_kernel" % NAME)
    lines.append("  .amdhsa_next_free_vgpr 256")
    lines.append("  .amdhsa_next_free_sgpr 96")
    lines.append("  .amdhsa_accum_offset 256")
    lines.append("  .amdhsa_group_segment_fixed_size 0")
    lines.append("  .amdhsa_kernarg_size 96")
    lines.append("  .amdhsa_user_sgpr_count 2")
    lines.append("  .amdhsa_user_sgpr_kernarg_segment_ptr 1")
    lines.append("  .amdhsa_system_sgpr_workgroup_id_x 1")
    lines.append(".end_amdhsa_kernel")

def make_tag(vE):
    e("v_readfirstlane_b32 s%d, v%d" % (S_F, vE))
    e("s_nop 3")
    e("s_mul_i32 s%d, s%d, 0x9e3779b1" % (S_T, S_F))
    e("s_add_u32 s%d, s%d, 0x85ebca6b" % (S_T, S_T))
    e("s_mov_b32 s%d, s%d" % (S_TT, S_T))
    e("s_mov_b32 s%d, s%d" % (S_TT + 1, S_T))
    e("s_add_u32 s%d, s%d, 1" % (S_F, S_F))

V_VA, V_VB = 4, 5
V_TR = 6
V_AE, V_AO = 7, 8
V_T0, V_T1, V_T2, V_T3 = 9, 10, 11, 12
V_PUB = 13
V_RED = 14
V_H = 15
V_XP = 16
V_AW = 17
V_G = 18
V_Z = 19
V_ACC = 20
V_P = 24
V_M, V_RS, V_SQ, V_SUM = 28, 29, 30, 31
V_L = 32
V_U = 64
V_WF = 96
V_AF = 128
V_KF = 192
V_X1 = 224

def publish_partial(s_off, sc="sc1"):
    e("s_nop 7")
    e("v_cndmask_b32 v%d, v%d, v%d, s[%d:%d]" % (V_P, V_ACC, V_ACC + 2, S_HI8, S_HI8 + 1))
    e("v_cndmask_b32 v%d, v%d, v%d, s[%d:%d]" % (V_P + 1, V_ACC + 1, V_ACC + 3, S_HI8, S_HI8 + 1))
    e("buffer_store_dwordx4 v[%d:%d], v%d, s[%d:%d], s%d offen %s" % (V_P, V_P + 3, V_PUB, SRD_WS, SRD_WS + 3, s_off, sc))

def reduce16(s_off):
    top = poll_begin()
    e("buffer_load_dwordx4 v[%d:%d], v%d, s[%d:%d], s%d offen sc1" % (V_L, V_L + 3, V_RED, SRD_WS, SRD_WS + 3, s_off))
    poll_end(top, [chk64(V_L + 2)])
    a, b = V_L, V_L + 1
    e("s_nop 3")
    dpp_add(a, a, "row_ror:4"); dpp_add(b, b, "row_ror:4")
    e("s_nop 0")
    dpp_add(a, a, "row_ror:8"); dpp_add(b, b, "row_ror:8")
    e("s_nop 1")
    e("v_permlane32_swap_b32 v%d, v%d" % (a, b))
    e("s_nop 1")
    e("v_add_f32 v%d, v%d, v%d" % (a, a, b))
    e("v_mov_b32 v%d, v%d" % (b, a))
    e("s_nop 1")
    e("v_permlane16_swap_b32 v%d, v%d" % (a, b))
    e("s_nop 1")
    e("v_add_f32 v%d, v%d, v%d" % (a, a, b))
    e("v_mov_b32 v%d, v%d" % (b, a))
    e("s_nop 1")
    e("v_permlane32_swap_b32 v%d, v%d" % (a, b))
    e("s_nop 1")

def role_b():
    cmt("================= role B =================")
    dma256_voff(V_VA, V_VB, 8192, V_T0)
    e("v_lshlrev_b32 v%d, 4, v1" % V_G)
    e("v_mov_b32 v%d, 0" % V_Z)
    e("s_and_b32 s%d, s%d, 3" % (S_C, S_SLOT))
    e("s_lshl_b32 s%d, s%d, 3" % (S_C, S_C))
    e("s_or_b32 s%d, s%d, s%d" % (S_C, S_C, S_XCD))
    e("s_lshr_b32 s%d, s%d, 2" % (S_D, S_SLOT))
    e("s_lshl_b32 s%d, s%d, 21" % (S_E, S_D))
    e("s_lshl_b32 s%d, s%d, 8" % (S_A, S_C))
    e("s_add_u32 s%d, s%d, s%d" % (S_E, S_E, S_A))
    e("s_waitcnt lgkmcnt(0)")
    if STAMPS: e("s_mov_b32 s%d, s%d" % (S_ST, S_TM))
    srd(SRD_X, S_X, 16384)
    srd(SRD_WS, S_WS, WS_SIZE)
    srd(SRD_W, S_WQ, 8 << 20)
    e("s_lshl_b32 s%d, s%d, 11" % (S_A, S_WAVE))
    e("buffer_load_dwordx4 v[%d:%d], v%d, s[%d:%d], s%d offen" % (V_L, V_L + 3, V_G, SRD_X, SRD_X + 3, S_A))
    e("buffer_load_dwordx4 v[%d:%d], v%d, s[%d:%d], s%d offen offset:1024" % (V_L + 4, V_L + 7, V_G, SRD_X, SRD_X + 3, S_A))
    e("s_lshl_b32 s%d, s%d, 9" % (S_B, S_D))
    e("s_add_u32 s%d, s%d, s%d" % (S_B, S_B, S_A))
    e("buffer_load_dwordx4 v[%d:%d], v%d, s[%d:%d], s%d offen" % (V_L + 8, V_L + 11, V_G, SRD_X, SRD_X + 3, S_B))
    e("buffer_load_dword v%d, v%d, s[%d:%d], 0 offen sc1" % (V_L + 12, V_Z, SRD_WS, SRD_WS + 3))
    dma256_issue(SRD_W, V_VA, V_VB, S_E, 8192, L_W)
    stamp(1)
    e("s_lshr_b32 s%d, s%d, 1" % (S_A, S_SLOT))
    e("s_lshl_b32 s%d, s%d, 11" % (S_A, S_A))
    e("s_lshl_b32 s%d, s%d, 8" % (S_B, S_XCD))
    e("s_add_u32 s%d, s%d, s%d" % (S_A, S_A, S_B))
    e("s_and_b32 s%d, s%d, 1" % (S_B, S_SLOT))
    e("s_lshl_b32 s%d, s%d, 7" % (S_B, S_B))
    e("s_add_u32 s%d, s%d, s%d" % (S_A, S_A, S_B))
    e("s_lshl_b32 s%d, s%d, 4" % (S_B, S_WAVE))
    e("s_add_u32 s%d, s%d, s%d" % (S_A, S_A, S_B))
    e("s_mov_b32 s80, s%d" % S_A)
    e("v_and_b32 v%d, 3, v1" % V_T0)
    e("v_lshlrev_b32 v%d, 2, v%d" % (V_X1, V_T0))
    e("buffer_load_dword v%d, v%d, s[%d:%d], s%d offen" % (V_XP, V_X1, SRD_X, SRD_X + 3, S_A))
    tr256_addr(V_TR, V_T0, L_W)
    act_rd_addr(V_AE, V_AO, V_T0, L_ACT)
    e("v_and_b32 v%d, 7, v1" % V_T0)
    e("v_lshlrev_b32 v%d, 10, v%d" % (V_PUB, V_T0))
    e("v_lshrrev_b32 v%d, 3, v2" % V_T0)
    e("v_lshl_add_u32 v%d, v3, 1, v%d" % (V_T0, V_T0))
    e("v_lshl_add_u32 v%d, v%d, 4, v%d" % (V_PUB, V_T0, V_PUB))
    e("s_lshl_b32 s%d, s%d, 7" % (S_A, S_WAVE))
    e("v_add_u32 v%d, s%d, v%d" % (V_PUB, S_A, V_PUB))
    e("v_lshrrev_b32 v%d, 2, v1" % V_T0)
    e("v_lshlrev_b32 v%d, 13, v%d" % (V_RED, V_T0))
    e("v_and_b32 v%d, 3, v1" % V_T0)
    e("v_lshl_add_u32 v%d, v%d, 4, v%d" % (V_RED, V_T0, V_RED))
    e("s_lshl_b32 s%d, s%d, 6" % (S_A, S_WAVE))
    e("v_add_u32 v%d, s%d, v%d" % (V_RED, S_A, V_RED))
    e("s_waitcnt vmcnt(9)")
    make_tag(V_L + 12)
    e("v_mov_b32 v%d, s%d" % (V_P + 2, S_T))
    e("v_mov_b32 v%d, s%d" % (V_P + 3, S_T))
    for i in range(8):
        unpack(V_U + 2 * i, V_U + 2 * i + 1, V_L + i)
    ln_stats([V_U + i for i in range(16)], V_SUM, V_T0, V_M, V_RS, V_SQ)
    for i in range(4):
        unpack(V_U + 2 * i, V_U + 2 * i + 1, V_L + 8 + i)
    for i in range(4):
        ln_apply_pair(V_L + 16 + i, V_U + 2 * i, V_U + 2 * i + 1, V_M, V_RS, V_SQ, V_T0, V_T1)
    e("v_and_b32 v%d, 7, v1" % V_T2)
    sigma_of(V_T0, V_T2, V_T1)
    e("v_xor_b32 v%d, s%d, v%d" % (V_T0, S_WAVE, V_T0))
    e("v_lshlrev_b32 v%d, 4, v%d" % (V_T0, V_T0))
    e("v_lshl_add_u32 v%d, v1, 7, v%d" % (V_T0, V_T0))
    e("v_add_u32 v%d, %d, v%d" % (V_T0, L_ACT, V_T0))
    e("s_mov_b64 exec, 0xffffffff")
    e("ds_write_b128 v%d, v[%d:%d]" % (V_T0, V_L + 16, V_L + 19))
    e("s_mov_b64 exec, -1")
    e("v_bfe_u32 v%d, v1, 1, 3" % V_T2)
    sigma_of(V_T0, V_T2, V_T1)
    e("v_xor_b32 v%d, s%d, v%d" % (V_T0, S_WAVE, V_T0))
    e("v_lshlrev_b32 v%d, 4, v%d" % (V_T0, V_T0))
    e("v_lshrrev_b32 v%d, 1, v1" % V_T1)
    e("v_lshl_add_u32 v%d, v%d, 7, v%d" % (V_T0, V_T1, V_T0))
    e("v_and_b32 v%d, 1, v1" % V_T1)
    e("v_lshl_add_u32 v%d, v%d, 3, v%d" % (V_T0, V_T1, V_T0))
    e("v_add_u32 v%d, %d, v%d" % (V_AW, L_ACT, V_T0))
    e("s_lshl_b32 s%d, s%d, 2" % (S_A, S_C))
    e("s_add_u32 s%d, s%d, s%d" % (S_A, S_A, S_D))
    e("s_lshl_b32 s%d, s%d, 13" % (S_A, S_A))
    e("s_add_u32 s81, s%d, 0x%x" % (S_A, WS_H1))
    stamp(2)
    e("s_waitcnt vmcnt(0) lgkmcnt(0)")
    e("s_barrier")
    stamp(3)
    tr256_read(V_WF, V_TR)
    gemv8(V_ACC, V_WF, V_AF, V_AE, V_AO)
    publish_partial(81)
    stamp(4)
    srd(SRD_W, S_WO, 8 << 20)
    dma256_voff(V_VA, V_VB, 2048, V_T0)
    e("s_lshl_b32 s%d, s%d, 3" % (S_A, S_SLOT))
    e("s_or_b32 s%d, s%d, s%d" % (S_A, S_A, S_XCD))
    e("s_lshl_b32 s%d, s%d, 7" % (S_A, S_A))
    e("s_add_u32 s%d, s%d, 0x%x" % (S_C, S_A, WS_TRIG))
    top = poll_begin()
    e("buffer_load_dwordx2 v[%d:%d], v%d, s[%d:%d], s%d offen sc1" % (V_L, V_L + 1, V_Z, SRD_WS, SRD_WS + 3, S_C))
    poll_end(top, [chk64(V_L)])
    e("s_barrier")
    e("s_lshl_b32 s%d, s%d, 19" % (S_E, S_SLOT))
    e("s_lshl_b32 s%d, s%d, 8" % (S_A, S_XCD))
    e("s_add_u32 s%d, s%d, s%d" % (S_E, S_E, S_A))
    dma256_issue(SRD_W, V_VA, V_VB, S_E, 2048, L_W)
    stamp(5)
    e("s_lshr_b32 s%d, s%d, 2" % (S_A, S_SLOT))
    e("s_lshl_b32 s%d, s%d, 3" % (S_A, S_A))
    e("s_add_u32 s%d, s%d, s%d" % (S_A, S_A, S_WAVE))
    e("s_lshl_b32 s%d, s%d, 14" % (S_A, S_A))
    e("s_and_b32 s%d, s%d, 3" % (S_B, S_SLOT))
    e("s_lshl_b32 s%d, s%d, 10" % (S_B, S_B))
    e("s_add_u32 s%d, s%d, s%d" % (S_A, S_A, S_B))
    e("s_add_u32 s82, s%d, 0x%x" % (S_A, WS_H2))
    e("s_add_u32 s83, s82, 4096")
    e("s_add_u32 s90, s82, 8192")
    e("s_add_u32 s91, s82, 12288")
    e("s_lshl_b32 s%d, s%d, 4" % (S_A, S_XCD))
    e("s_add_u32 s%d, s%d, s%d" % (S_A, S_A, S_SLOT))
    e("s_lshl_b32 s%d, s%d, 13" % (S_A, S_A))
    e("s_add_u32 s84, s%d, 0x%x" % (S_A, WS_H3A))
    e("s_lshl_b32 s%d, s%d, 17" % (S_A, S_XCD))
    e("s_lshl_b32 s%d, s%d, 9" % (S_B, S_SLOT))
    e("s_add_u32 s%d, s%d, s%d" % (S_A, S_A, S_B))
    e("s_add_u32 s85, s%d, 0x%x" % (S_A, WS_H3A))
    e("s_add_u32 s86, s%d, 0x%x" % (S_A, WS_H5))
    e("s_waitcnt vmcnt(0)")
    e("s_barrier")
    tr256_read(V_WF, V_TR)
    stamp(6)
    top = poll_begin()
    for s, sg in enumerate((82, 83, 90, 91)):
        e("buffer_load_dwordx4 v[%d:%d], v%d, s[%d:%d], s%d offen sc1" % (V_L + 4 * s, V_L + 4 * s + 3, V_G, SRD_WS, SRD_WS + 3, sg))
    poll_end(top, [chk32(V_L + 4 * s + 3) for s in range(4)])
    stamp(7)
    Ls = [V_L + 4 * s + 2 for s in range(4)]
    e("v_max3_f32 v%d, v%d, v%d, v%d" % (V_T0, Ls[0], Ls[1], Ls[2]))
    e("v_max_f32 v%d, v%d, v%d" % (V_T0, V_T0, Ls[3]))
    for s in range(4): e("v_sub_f32 v%d, v%d, v%d" % (Ls[s], Ls[s], V_T0))
    for s in range(4): e("v_exp_f32 v%d, v%d" % (Ls[s], Ls[s]))
    for s in range(4):
        unpack(V_U + 4 * s, V_U + 4 * s + 1, V_L + 4 * s)
        unpack(V_U + 4 * s + 2, V_U + 4 * s + 3, V_L + 4 * s + 1)
    e("v_add_f32 v%d, v%d, v%d" % (V_T0, Ls[0], Ls[1]))
    e("v_add_f32 v%d, v%d, v%d" % (V_T1, Ls[2], Ls[3]))
    e("v_add_f32 v%d, v%d, v%d" % (V_T0, V_T0, V_T1))
    e("v_rcp_f32 v%d, v%d" % (V_T0, V_T0))
    for k in range(4):
        e("v_mul_f32 v%d, v%d, v%d" % (V_U + k, V_U + k, Ls[0]))
    for s in range(1, 4):
        for k in range(4):
            e("v_fmac_f32 v%d, v%d, v%d" % (V_U + k, V_U + 4 * s + k, Ls[s]))
    for k in range(4):
        e("v_mul_f32 v%d, v%d, v%d" % (V_U + k, V_U + k, V_T0))
    e("v_cvt_pk_bf16_f32 v%d, v%d, v%d" % (V_U + 16, V_U, V_U + 1))
    e("v_cvt_pk_bf16_f32 v%d, v%d, v%d" % (V_U + 17, V_U + 2, V_U + 3))
    e("ds_write_b64 v%d, v[%d:%d]" % (V_AW, V_U + 16, V_U + 17))
    e("s_waitcnt lgkmcnt(0)")
    e("s_barrier")
    gemv8(V_ACC, V_WF, V_AF, V_AE, V_AO)
    publish_partial(84)
    stamp(8)
    reduce16(85)
    stamp(9)
    e("v_cvt_pk_bf16_f32 v%d, v%d, v%d" % (V_T0, V_L, V_L + 1))
    unpack(V_U, V_U + 1, V_T0)
    unpack(V_U + 2, V_U + 3, V_XP)
    e("v_add_f32 v%d, v%d, v%d" % (V_U, V_U, V_U + 2))
    e("v_add_f32 v%d, v%d, v%d" % (V_U + 1, V_U + 1, V_U + 3))
    e("v_cvt_pk_bf16_f32 v%d, v%d, v%d" % (V_U + 4, V_U, V_U + 1))
    e("v_mov_b32 v%d, s%d" % (V_U + 5, S_T))
    e("v_mov_b32 v%d, v%d" % (V_H, V_U + 4))
    e("s_lshl_b32 s%d, s80, 1" % S_A)
    e("s_add_u32 s%d, s%d, 0x%x" % (S_A, S_A, WS_H3B))
    e("v_lshlrev_b32 v%d, 1, v%d" % (V_T0, V_X1))
    e("s_mov_b64 exec, 0xf")
    e("buffer_store_dwordx2 v[%d:%d], v%d, s[%d:%d], s%d offen sc1" % (V_U + 4, V_U + 5, V_T0, SRD_WS, SRD_WS + 3, S_A))
    e("s_mov_b64 exec, -1")
    stamp(10)
    srd(SRD_W, S_WD, 3584 * 2048)
    e("s_lshr_b32 s%d, s%d, 3" % (S_C, S_SLOT))
    e("s_lshl_b32 s%d, s%d, 1" % (S_A, S_XCD))
    e("s_add_u32 s%d, s%d, s%d" % (S_C, S_C, S_A))
    e("s_and_b32 s%d, s%d, 7" % (S_D, S_SLOT))
    e("s_mul_i32 s%d, s%d, %d" % (S_E, S_C, 224 * 2048))
    e("s_lshl_b32 s%d, s%d, 8" % (S_A, S_D))
    e("s_add_u32 s%d, s%d, s%d" % (S_E, S_E, S_A))
    e("s_barrier")
    skip = uid("nod")
    e("s_cmp_eq_u32 s%d, 7" % S_WAVE)
    e("s_cbranch_scc1 %s" % skip)
    dma256_issue(SRD_W, V_VA, V_VB, S_E, 2048, L_W)
    lab(skip)
    e("v_mov_b32 v%d, 0" % (V_U + 8)); e("v_mov_b32 v%d, 0" % (V_U + 9)); e("v_mov_b32 v%d, 0" % (V_U + 10)); e("v_mov_b32 v%d, 0" % (V_U + 11))
    e("v_and_b32 v%d, 31, v1" % V_T0)
    e("v_lshlrev_b32 v%d, 4, v%d" % (V_T0, V_T0))
    e("v_add_u32 v%d, %d, v%d" % (V_T0, L_ACT + 28 * 128, V_T0))
    e("ds_write_b128 v%d, v[%d:%d]" % (V_T0, V_U + 8, V_U + 11))
    e("s_min_u32 s%d, s%d, 6" % (S_A, S_WAVE))
    e("s_lshl_b32 s%d, s%d, 10" % (S_B, S_A))
    e("s_mul_i32 s%d, s%d, 7168" % (S_E, S_C))
    e("s_add_u32 s%d, s%d, s%d" % (S_E, S_E, S_B))
    e("s_add_u32 s87, s%d, 0x%x" % (S_E, WS_H4S))
    e("s_add_u32 s88, s%d, 0x%x" % (S_E, WS_H4U))
    e("s_lshl_b32 s%d, s%d, 2" % (S_B, S_A))
    e("v_add_u32 v%d, s%d, v3" % (V_T3, S_B))
    e("v_and_b32 v%d, 7, v%d" % (V_T2, V_T3))
    sigma_of(V_T0, V_T2, V_T1)
    e("v_and_b32 v%d, 7, v1" % V_T1)
    e("v_xor_b32 v%d, v%d, v%d" % (V_T0, V_T0, V_T1))
    e("v_lshlrev_b32 v%d, 4, v%d" % (V_T0, V_T0))
    e("v_lshl_add_u32 v%d, v%d, 7, v%d" % (V_T0, V_T3, V_T0))
    e("v_bfe_u32 v%d, v1, 3, 1" % V_T1)
    e("v_lshl_add_u32 v%d, v%d, 3, v%d" % (V_T0, V_T1, V_T0))
    e("v_add_u32 v%d, %d, v%d" % (V_AW, L_ACT, V_T0))
    e("s_lshl_b32 s%d, s%d, 4" % (S_A, S_D))
    e("s_add_u32 s%d, s%d, s%d" % (S_A, S_A, S_C))
    e("s_lshl_b32 s%d, s%d, 13" % (S_A, S_A))
    e("s_add_u32 s89, s%d, 0x%x" % (S_A, WS_H5))
    srd(SRD_O, S_OUT, 16384)
    e("s_waitcnt vmcnt(0) lgkmcnt(0)")
    e("s_barrier")
    tr256_read(V_WF, V_TR)
    stamp(11)
    top = poll_begin()
    e("buffer_load_dwordx4 v[%d:%d], v%d, s[%d:%d], s87 offen sc1" % (V_L, V_L + 3, V_G, SRD_WS, SRD_WS + 3))
    e("buffer_load_dwordx4 v[%d:%d], v%d, s[%d:%d], s88 offen sc1" % (V_L + 4, V_L + 7, V_G, SRD_WS, SRD_WS + 3))
    poll_end(top, [chk32(V_L + 1), chk32(V_L + 3), chk32(V_L + 5), chk32(V_L + 7)])
    stamp(12)
    unpack(V_U, V_U + 1, V_L); unpack(V_U + 2, V_U + 3, V_L + 2)
    unpack(V_U + 4, V_U + 5, V_L + 4); unpack(V_U + 6, V_U + 7, V_L + 6)
    for k in range(4): e("v_mul_f32 v%d, v%d, v%d" % (V_U + k, V_U + k, V_U + 4 + k))
    e("v_cvt_pk_bf16_f32 v%d, v%d, v%d" % (V_U + 16, V_U, V_U + 1))
    e("v_cvt_pk_bf16_f32 v%d, v%d, v%d" % (V_U + 17, V_U + 2, V_U + 3))
    e("ds_write_b64 v%d, v[%d:%d]" % (V_AW, V_U + 16, V_U + 17))
    e("s_waitcnt lgkmcnt(0)")
    e("s_barrier")
    gemv8(V_ACC, V_WF, V_AF, V_AE, V_AO)
    publish_partial(89)
    stamp(13)
    reduce16(86)
    stamp(14)
    e("v_cvt_pk_bf16_f32 v%d, v%d, v%d" % (V_T0, V_L, V_L + 1))
    unpack(V_U, V_U + 1, V_T0)
    unpack(V_U + 2, V_U + 3, V_H)
    e("v_add_f32 v%d, v%d, v%d" % (V_U, V_U, V_U + 2))
    e("v_add_f32 v%d, v%d, v%d" % (V_U + 1, V_U + 1, V_U + 3))
    e("v_cvt_pk_bf16_f32 v%d, v%d, v%d" % (V_U + 4, V_U, V_U + 1))
    e("s_mov_b64 exec, 0xf")
    e("buffer_store_dword v%d, v%d, s[%d:%d], s80 offen" % (V_U + 4, V_X1, SRD_O, SRD_O + 3))
    noep = uid("noep")
    e("s_add_u32 s%d, s2, s%d" % (S_A, S_WAVE))
    e("s_cmp_lg_u32 s%d, 0" % S_A)
    e("s_cbranch_scc1 %s" % noep)
    e("s_mov_b64 exec, 1")
    e("v_mov_b32 v%d, s%d" % (V_T0, S_F))
    e("buffer_store_dword v%d, v%d, s[%d:%d], 0 offen sc1" % (V_T0, V_Z, SRD_WS, SRD_WS + 3))
    lab(noep)
    stamp(15)
    stamps_flush(V_U, "B")
    e("s_endpgm")

def role_a():
    cmt("================= role A =================")
    dma256_voff(V_VA, V_VB, 256, V_T0)
    e("v_mov_b32 v%d, 0" % V_Z)
    KO = V_X1
    e("v_xor_b32 v%d, v2, v3" % V_T0)
    e("v_lshlrev_b32 v%d, 4, v%d" % (V_T0, V_T0))
    e("v_lshl_add_u32 v%d, v3, 8, v%d" % (KO, V_T0))
    for i in range(1, 4): e("v_xor_b32 v%d, %d, v%d" % (KO + i, 64 * i, KO))
    e("s_lshl_b32 s%d, s%d, 22" % (S_E, S_XCD))
    e("s_lshr_b32 s%d, s%d, 2" % (S_C, S_SLOT))
    e("s_lshl_b32 s%d, s%d, 20" % (S_A, S_C))
    e("s_add_u32 s%d, s%d, s%d" % (S_E, S_E, S_A))
    e("s_and_b32 s%d, s%d, 3" % (S_D, S_SLOT))
    e("s_lshl_b32 s%d, s%d, 16" % (S_A, S_D))
    e("s_add_u32 s%d, s%d, s%d" % (S_E, S_E, S_A))
    e("s_add_u32 s%d, s%d, 0x%x" % (S_E, S_E, 3072 * 256))
    e("s_waitcnt lgkmcnt(0)")
    if STAMPS: e("s_mov_b32 s%d, s%d" % (S_ST, S_TM))
    srd(SRD_W, S_V, 32 << 20)
    srd(SRD_X, S_K, 32 << 20)
    srd(SRD_WS, S_WS, WS_SIZE)
    e("buffer_load_dword v%d, v%d, s[%d:%d], 0 offen sc1" % (V_L + 12, V_Z, SRD_WS, SRD_WS + 3))
    dma256_issue(SRD_W, V_VA, V_VB, S_E, 256, L_W)
    e("s_lshl_b32 s%d, s%d, 13" % (S_B, S_WAVE))
    e("s_add_u32 s%d, s%d, s%d" % (S_A, S_B, S_E))
    e("s_add_u32 s%d, s%d, %d" % (S_B, S_B, L_K))
    for m in range(8):
        e("s_mov_b32 m0, s%d" % S_B)
        e("s_add_u32 s%d, s%d, 1024" % (S_B, S_B))
        e("buffer_load_dwordx4 v%d, s[%d:%d], s%d offen nt lds" % (KO + (m & 3), SRD_X, SRD_X + 3, S_A))
        e("s_add_u32 s%d, s%d, 1024" % (S_A, S_A))
    stamp(1)
    e("v_lshlrev_b32 v%d, 4, v1" % V_G)
    tr256_addr(V_TR, V_T0, L_W)
    KA = V_X1 + 4
    e("v_xor_b32 v%d, v2, v3" % V_T0)
    e("v_lshlrev_b32 v%d, 4, v%d" % (V_T0, V_T0))
    e("v_lshl_add_u32 v%d, v2, 8, v%d" % (V_T0, V_T0))
    e("s_lshl_b32 s%d, s%d, 13" % (S_A, S_WAVE))
    e("s_add_u32 s%d, s%d, %d" % (S_A, S_A, L_K))
    e("v_add_u32 v%d, s%d, v%d" % (KA, S_A, V_T0))
    for i in range(1, 4): e("v_xor_b32 v%d, %d, v%d" % (KA + i, 64 * i, KA))
    QE, QO = V_X1 + 8, V_X1 + 9
    act_rd_addr(QE, QO, V_T0, L_QB)
    act_rd_addr(V_AE, V_AO, V_T0, L_PB)
    QW = V_X1 + 10
    e("v_bfe_u32 v%d, v1, 2, 3" % V_T2)
    sigma_of(V_T0, V_T2, V_T1)
    e("v_xor_b32 v%d, s%d, v%d" % (V_T0, S_WAVE, V_T0))
    e("v_lshlrev_b32 v%d, 4, v%d" % (V_T0, V_T0))
    e("v_lshrrev_b32 v%d, 2, v1" % V_T1)
    e("v_lshl_add_u32 v%d, v%d, 7, v%d" % (V_T0, V_T1, V_T0))
    e("v_and_b32 v%d, 3, v1" % V_T1)
    e("v_lshl_add_u32 v%d, v%d, 2, v%d" % (V_T0, V_T1, V_T0))
    e("v_add_u32 v%d, %d, v%d" % (QW, L_QB, V_T0))
    PW0, PW1 = V_X1 + 11, V_X1 + 12
    e("v_and_b32 v%d, 2, v3" % V_T0)
    e("s_and_b32 s%d, s%d, 1" % (S_A, S_WAVE))
    e("v_or_b32 v%d, s%d, v%d" % (V_T0, S_A, V_T0))
    e("v_and_b32 v%d, 7, v1" % V_T1)
    e("v_xor_b32 v%d, v%d, v%d" % (V_T0, V_T0, V_T1))
    e("v_lshlrev_b32 v%d, 4, v%d" % (V_T0, V_T0))
    e("v_lshrrev_b32 v%d, 1, v3" % V_T1)
    e("v_lshl_add_u32 v%d, v%d, 7, v%d" % (V_T0, V_T1, V_T0))
    e("v_and_b32 v%d, 1, v3" % V_T1)
    e("v_lshl_add_u32 v%d, v%d, 3, v%d" % (V_T0, V_T1, V_T0))
    e("s_lshl_b32 s%d, s%d, 9" % (S_A, S_WAVE))
    e("s_add_u32 s%d, s%d, %d" % (S_A, S_A, L_PB))
    e("v_add_u32 v%d, s%d, v%d" % (PW0, S_A, V_T0))
    e("v_xor_b32 v%d, 64, v%d" % (PW1, PW0))
    SW, SR = V_X1 + 13, V_X1 + 14
    e("v_and_b32 v%d, 7, v1" % V_T0)
    e("v_lshlrev_b32 v%d, 5, v%d" % (V_T0, V_T0))
    e("v_add_u32 v%d, %d, v%d" % (SR, L_MX, V_T0))
    e("s_lshl_b32 s%d, s%d, 2" % (S_A, S_WAVE))
    e("v_add_u32 v%d, s%d, v%d" % (SW, S_A, SR))
    e("s_lshl_b32 s%d, s%d, 3" % (S_A, S_C))
    e("s_add_u32 s%d, s%d, s%d" % (S_A, S_A, S_WAVE))
    e("s_lshl_b32 s%d, s%d, 15" % (S_A, S_A))
    e("s_lshl_b32 s%d, s%d, 10" % (S_B, S_XCD))
    e("s_add_u32 s%d, s%d, s%d" % (S_A, S_A, S_B))
    e("s_add_u32 s80, s%d, 0x%x" % (S_A, WS_H1))
    for i in range(1, 4): e("s_add_u32 s%d, s80, %d" % (80 + i, 8192 * i))
    e("s_lshl_b32 s%d, s%d, 3" % (S_A, S_C))
    e("s_add_u32 s%d, s%d, s%d" % (S_A, S_A, S_XCD))
    e("s_lshl_b32 s%d, s%d, 2" % (S_A, S_A))
    e("s_add_u32 s%d, s%d, s%d" % (S_A, S_A, S_D))
    e("s_lshl_b32 s%d, s%d, 12" % (S_A, S_A))
    e("s_lshl_b32 s%d, s%d, 6" % (S_B, S_WAVE))
    e("s_add_u32 s%d, s%d, s%d" % (S_A, S_A, S_B))
    e("s_add_u32 s84, s%d, 0x%x" % (S_A, WS_H2))
    e("v_and_b32 v%d, 7, v1" % V_T0)
    e("v_lshlrev_b32 v%d, 9, v%d" % (V_PUB, V_T0))
    e("v_lshl_add_u32 v%d, v3, 4, v%d" % (V_PUB, V_PUB))
    e("s_waitcnt vmcnt(16)")
    make_tag(V_L + 12)
    e("v_mov_b32 v%d, s%d" % (V_P + 3, S_T))
    e("v_mov_b32 v%d, s%d" % (V_P + 2, S_T))
    e("s_waitcnt vmcnt(8)")
    e("s_barrier")
    stamp(2)
    notr = uid("notr")
    e("s_cmp_lg_u32 s%d, 0" % S_WAVE)
    e("s_cbranch_scc1 %s" % notr)
    e("s_lshl_b32 s%d, s%d, 3" % (S_A, S_SLOT))
    e("s_or_b32 s%d, s%d, s%d" % (S_A, S_A, S_XCD))
    e("s_lshl_b32 s%d, s%d, 7" % (S_A, S_A))
    e("s_add_u32 s%d, s%d, 0x%x" % (S_A, S_A, WS_TRIG))
    e("s_mov_b64 exec, 1")
    e("buffer_store_dwordx2 v[%d:%d], v%d, s[%d:%d], s%d offen sc1" % (V_P + 2, V_P + 3, V_Z, SRD_WS, SRD_WS + 3, S_A))
    e("s_mov_b64 exec, -1")
    lab(notr)
    tr256_read(V_WF, V_TR)
    e("s_waitcnt vmcnt(0)")
    stamp(3)
    for t in range(2):
        for sg in range(4):
            r = V_KF + 16 * t + 4 * sg
            e("ds_read_b128 v[%d:%d], v%d offset:%d" % (r, r + 3, KA + sg, t * 4096))
    top = poll_begin()
    for k in range(4):
        e("buffer_load_dwordx4 v[%d:%d], v%d, s[%d:%d], s%d offen sc1" % (V_L + 4 * k, V_L + 4 * k + 3, V_G, SRD_WS, SRD_WS + 3, 80 + k))
    poll_end(top, [chk64(V_L + 4 * k + 2) for k in range(4)])
    stamp(4)
    e("v_add_f32 v%d, v%d, v%d" % (V_L, V_L, V_L + 4))
    e("v_add_f32 v%d, v%d, v%d" % (V_L + 1, V_L + 1, V_L + 5))
    e("v_add_f32 v%d, v%d, v%d" % (V_L + 8, V_L + 8, V_L + 12))
    e("v_add_f32 v%d, v%d, v%d" % (V_L + 9, V_L + 9, V_L + 13))
    e("v_add_f32 v%d, v%d, v%d" % (V_L, V_L, V_L + 8))
    e("v_add_f32 v%d, v%d, v%d" % (V_L + 1, V_L + 1, V_L + 9))
    e("v_cvt_pk_bf16_f32 v%d, v%d, v%d" % (V_T0, V_L, V_L + 1))
    e("ds_write_b32 v%d, v%d" % (QW, V_T0))
    e("s_waitcnt lgkmcnt(0)")
    e("s_barrier")
    for sg in range(4):
        e("ds_read_b128 v[%d:%d], v%d offset:%d" % (V_AF + 4 * sg, V_AF + 4 * sg + 3, QO if (sg & 1) else QE, sg * 512))
    S0, S1 = V_U, V_U + 4
    for sg in range(4):
        e("s_waitcnt lgkmcnt(%d)" % (3 - sg))
        for t, acc in ((0, S0), (1, S1)):
            c = "0" if sg == 0 else "v[%d:%d]" % (acc, acc + 3)
            r = V_KF + 16 * t + 4 * sg
            e("v_mfma_f32_16x16x32_bf16 v[%d:%d], v[%d:%d], v[%d:%d], %s" % (acc, acc + 3, r, r + 3, V_AF + 4 * sg, V_AF + 4 * sg + 3, c))
    e("s_nop 7")
    for i in range(4):
        e("v_cvt_pk_bf16_f32 v%d, v%d, v%d" % (V_L + i, V_U + 2 * i, V_U + 2 * i + 1))
    for i in range(4):
        unpack(V_U + 2 * i, V_U + 2 * i + 1, V_L + i)
    for i in range(8):
        e("v_mul_f32 v%d, %s, v%d" % (V_U + i, f32(128 ** -0.5), V_U + i))
    for i in range(4):
        e("v_cvt_pk_bf16_f32 v%d, v%d, v%d" % (V_L + i, V_U + 2 * i, V_U + 2 * i + 1))
    for i in range(4):
        unpack(V_U + 2 * i, V_U + 2 * i + 1, V_L + i)
    e("v_max3_f32 v%d, v%d, v%d, v%d" % (V_M, V_U, V_U + 1, V_U + 2))
    e("v_max3_f32 v%d, v%d, v%d, v%d" % (V_T0, V_U + 3, V_U + 4, V_U + 5))
    e("v_max3_f32 v%d, v%d, v%d, v%d" % (V_M, V_M, V_U + 6, V_U + 7))
    e("v_max_f32 v%d, v%d, v%d" % (V_M, V_M, V_T0))
    xrow_allreduce(V_M, V_T0, "v_max_f32")
    e("ds_write_b32 v%d, v%d" % (SW, V_M))
    e("s_waitcnt lgkmcnt(0)")
    e("s_barrier")
    e("ds_read_b128 v[%d:%d], v%d" % (V_L, V_L + 3, SR))
    e("ds_read_b128 v[%d:%d], v%d offset:16" % (V_L + 4, V_L + 7, SR))
    e("s_waitcnt lgkmcnt(0)")
    e("v_max3_f32 v%d, v%d, v%d, v%d" % (V_M, V_L, V_L + 1, V_L + 2))
    e("v_max3_f32 v%d, v%d, v%d, v%d" % (V_T0, V_L + 3, V_L + 4, V_L + 5))
    e("v_max3_f32 v%d, v%d, v%d, v%d" % (V_M, V_M, V_L + 6, V_L + 7))
    e("v_max_f32 v%d, v%d, v%d" % (V_M, V_M, V_T0))
    e("s_mov_b32 s%d, %s" % (S_A, f32(LOG2E)))
    for i in range(8):
        e("v_sub_f32 v%d, v%d, v%d" % (V_U + i, V_U + i, V_M))
    for i in range(8):
        e("v_mul_f32 v%d, s%d, v%d" % (V_U + i, S_A, V_U + i))
    for i in range(8):
        e("v_exp_f32 v%d, v%d" % (V_U + i, V_U + i))
    e("v_mul_f32 v%d, s%d, v%d" % (V_M, S_A, V_M))
    for i in range(4):
        e("v_cvt_pk_bf16_f32 v%d, v%d, v%d" % (V_L + i, V_U + 2 * i, V_U + 2 * i + 1))
    e("ds_write_b64 v%d, v[%d:%d]" % (PW0, V_L, V_L + 1))
    e("ds_write_b64 v%d, v[%d:%d] offset:256" % (PW1, V_L + 2, V_L + 3))
    e("v_add_f32 v%d, v%d, v%d" % (V_SUM, V_U, V_U + 1))
    for i in range(2, 8):
        e("v_add_f32 v%d, v%d, v%d" % (V_SUM, V_SUM, V_U + i))
    xrow_allreduce(V_SUM, V_T0)
    e("ds_write_b32 v%d, v%d offset:256" % (SW, V_SUM))
    e("s_waitcnt lgkmcnt(0)")
    e("s_barrier")
    stamp(5)
    e("ds_read_b128 v[%d:%d], v%d offset:256" % (V_L, V_L + 3, SR))
    e("ds_read_b128 v[%d:%d], v%d offset:272" % (V_L + 4, V_L + 7, SR))
    gemv8(V_ACC, V_WF, V_AF, V_AE, V_AO)
    e("v_add_f32 v%d, v%d, v%d" % (V_L, V_L, V_L + 1))
    e("v_add_f32 v%d, v%d, v%d" % (V_L + 2, V_L + 2, V_L + 3))
    e("v_add_f32 v%d, v%d, v%d" % (V_L + 4, V_L + 4, V_L + 5))
    e("v_add_f32 v%d, v%d, v%d" % (V_L + 6, V_L + 6, V_L + 7))
    e("v_add_f32 v%d, v%d, v%d" % (V_L, V_L, V_L + 2))
    e("v_add_f32 v%d, v%d, v%d" % (V_L + 4, V_L + 4, V_L + 6))
    e("v_add_f32 v%d, v%d, v%d" % (V_L, V_L, V_L + 4))
    e("v_rcp_f32 v%d, v%d" % (V_T0, V_L))
    e("v_log_f32 v%d, v%d" % (V_T1, V_L))
    e("s_nop 0")
    e("v_add_f32 v%d, v%d, v%d" % (V_P + 2, V_T1, V_M))
    for k in range(4):
        e("v_mul_f32 v%d, v%d, v%d" % (V_ACC + k, V_ACC + k, V_T0))
    e("v_cvt_pk_bf16_f32 v%d, v%d, v%d" % (V_P, V_ACC, V_ACC + 1))
    e("v_cvt_pk_bf16_f32 v%d, v%d, v%d" % (V_P + 1, V_ACC + 2, V_ACC + 3))
    e("s_not_b64 exec, s[%d:%d]" % (S_HI8, S_HI8 + 1))
    e("buffer_store_dwordx4 v[%d:%d], v%d, s[%d:%d], s84 offen sc1" % (V_P, V_P + 3, V_PUB, SRD_WS, SRD_WS + 3))
    e("s_mov_b64 exec, -1")
    stamp(6)
    e("s_cmp_ge_u32 s%d, 14" % S_SLOT)
    e("s_cbranch_scc1 L_a_done")
    e("s_cmp_ge_u32 s%d, 7" % S_SLOT)
    e("s_cselect_b32 s%d, s%d, s%d" % (SRD_W, S_WU, S_WG))
    e("s_cselect_b32 s%d, s%d, s%d" % (S_A, S_WU + 1, S_WG + 1))
    e("s_cselect_b32 s%d, 7, 0" % S_B)
    e("s_cselect_b32 s85, 0x%x, 0" % (WS_H4U - WS_H4S))
    e("s_add_u32 s85, s85, 0x%x" % WS_H4S)
    e("s_and_b32 s%d, s%d, 0xffff" % (SRD_W + 1, S_A))
    e("s_mov_b32 s%d, 0x%x" % (SRD_W + 2, 1024 * 7168))
    e("s_mov_b32 s%d, 0x20000" % (SRD_W + 3))
    e("s_sub_u32 s%d, s%d, s%d" % (S_C, S_SLOT, S_B))
    e("s_mul_i32 s%d, s%d, 7" % (S_A, S_XCD))
    e("s_add_u32 s%d, s%d, s%d" % (S_C, S_C, S_A))
    GO = V_X1
    e("v_lshrrev_b32 v%d, 3, v1" % V_T0)
    e("v_bfe_u32 v%d, v1, 4, 1" % V_T1)
    e("v_and_b32 v%d, 7, v1" % V_T2)
    e("v_xor_b32 v%d, v%d, v%d" % (V_T1, V_T1, V_T2))
    e("v_lshlrev_b32 v%d, 4, v%d" % (V_T1, V_T1))
    e("v_mul_u32_u24 v%d, 7168, v%d" % (GO, V_T0))
    e("v_add_u32 v%d, v%d, v%d" % (GO, GO, V_T1))
    for i in range(1, 4): e("v_xor_b32 v%d, %d, v%d" % (GO + i, 32 * i, GO))
    e("s_mul_i32 s%d, s%d, %d" % (S_A, S_WAVE, 16 * 8 * 7168))
    e("s_lshl_b32 s%d, s%d, 7" % (S_B, S_C))
    e("s_add_u32 s%d, s%d, s%d" % (S_A, S_A, S_B))
    e("s_lshl_b32 s%d, s%d, 14" % (S_B, S_WAVE))
    e("s_barrier")
    for m in range(16):
        e("s_mov_b32 m0, s%d" % S_B)
        e("s_add_u32 s%d, s%d, 1024" % (S_B, S_B))
        var = (m & 1) | (((m >> 2) & 1) << 1)
        e("buffer_load_dwordx4 v%d, s[%d:%d], s%d offen nt lds" % (GO + var, SRD_W, SRD_W + 3, S_A))
        e("s_add_u32 s%d, s%d, %d" % (S_A, S_A, 8 * 7168))
    stamp(7)
    e("v_bfe_u32 v%d, v1, 3, 1" % V_T0)
    e("v_and_b32 v%d, 1, v3" % V_T1)
    e("v_lshl_or_b32 v%d, v%d, 1, v%d" % (V_T0, V_T1, V_T0))
    e("v_bfe_u32 v%d, v1, 1, 1" % V_T1)
    e("v_lshl_or_b32 v%d, v%d, 2, v%d" % (V_T0, V_T1, V_T0))
    e("v_xor_b32 v%d, s%d, v%d" % (V_T0, S_WAVE, V_T0))
    e("v_lshlrev_b32 v%d, 4, v%d" % (V_T0, V_T0))
    e("v_bfe_u32 v%d, v1, 2, 2" % V_T2)
    e("v_lshl_add_u32 v%d, v3, 3, v%d" % (V_T2, V_T2))
    e("v_lshl_add_u32 v%d, v%d, 5, v%d" % (V_T2, V_T1, V_T2))
    e("v_lshl_add_u32 v%d, v%d, 7, v%d" % (V_T0, V_T2, V_T0))
    e("v_and_b32 v%d, 1, v1" % V_T1)
    e("v_lshl_add_u32 v%d, v%d, 3, v%d" % (V_TR, V_T1, V_T0))
    e("v_add_u32 v%d, 0x10000, v%d" % (V_VA, V_TR))
    e("v_lshrrev_b32 v%d, 3, v2" % V_T0)
    e("v_lshl_or_b32 v%d, v3, 1, v%d" % (V_T1, V_T0))
    e("v_and_b32 v%d, 7, v1" % V_T2)
    e("v_xor_b32 v%d, v%d, v%d" % (V_T1, V_T1, V_T2))
    e("v_lshlrev_b32 v%d, 4, v%d" % (V_T1, V_T1))
    e("v_lshl_add_u32 v%d, v%d, 2, v3" % (V_T0, V_T0))
    e("v_lshl_add_u32 v%d, v%d, 7, v%d" % (V_T1, V_T0, V_T1))
    e("v_add_u32 v%d, %d, v%d" % (V_AE, L_ACT, V_T1))
    e("v_bfe_u32 v%d, v1, 1, 3" % V_T2)
    sigma_of(V_T0, V_T2, V_T1)
    e("v_xor_b32 v%d, s%d, v%d" % (V_T0, S_WAVE, V_T0))
    e("v_lshlrev_b32 v%d, 4, v%d" % (V_T0, V_T0))
    e("v_lshrrev_b32 v%d, 1, v1" % V_T1)
    e("v_lshl_add_u32 v%d, v%d, 7, v%d" % (V_T0, V_T1, V_T0))
    e("v_and_b32 v%d, 1, v1" % V_T1)
    e("v_lshl_add_u32 v%d, v%d, 3, v%d" % (V_T0, V_T1, V_T0))
    e("v_add_u32 v%d, %d, v%d" % (V_AW, L_ACT, V_T0))
    e("s_lshl_b32 s%d, s%d, 12" % (S_A, S_WAVE))
    e("s_add_u32 s86, s%d, 0x%x" % (S_A, WS_H3B))
    e("s_lshl_b32 s%d, s%d, 11" % (S_A, S_C))
    e("s_lshl_b32 s%d, s%d, 8" % (S_B, S_WAVE))
    e("s_add_u32 s%d, s%d, s%d" % (S_A, S_A, S_B))
    e("s_add_u32 s85, s85, s%d" % S_A)
    e("v_and_b32 v%d, 1, v3" % V_T0)
    e("v_lshlrev_b32 v%d, 7, v%d" % (V_PUB, V_T0))
    e("v_and_b32 v%d, 7, v1" % V_T0)
    e("v_lshl_add_u32 v%d, v%d, 4, v%d" % (V_PUB, V_T0, V_PUB))
    e("v_lshrrev_b32 v%d, 1, v3" % V_T0)
    e("v_lshl_add_u32 v%d, v%d, 3, v%d" % (V_PUB, V_T0, V_PUB))
    e("s_waitcnt vmcnt(0)")
    e("s_barrier")
    GF = V_KF
    for m in range(16):
        for h in range(2):
            e("ds_read_b64_tr_b16 v[%d:%d], v%d offset:%d" % (GF + 4 * m + 2 * h, GF + 4 * m + 2 * h + 1, V_TR if m < 8 else V_VA, (m & 7) * 8192 + h * 512))
    stamp(8)
    top = poll_begin()
    for n in range(4):
        e("buffer_load_dwordx4 v[%d:%d], v%d, s[%d:%d], s86 offen offset:%d sc1" % (V_L + 4 * n, V_L + 4 * n + 3, V_G, SRD_WS, SRD_WS + 3, n * 1024))
    poll_end(top, [chk32(V_L + 2 * i + 1) for i in range(8)])
    stamp(9)
    for i in range(8):
        unpack(V_U + 2 * i, V_U + 2 * i + 1, V_L + 2 * i)
    ln_stats([V_U + i for i in range(16)], V_SUM, V_T0, V_M, V_RS, V_SQ)
    for i in range(8):
        ln_apply_pair(V_L + i, V_U + 2 * i, V_U + 2 * i + 1, V_M, V_RS, V_SQ, V_T0, V_T1)
    for n in range(4):
        e("ds_write_b64 v%d, v[%d:%d] offset:%d" % (V_AW, V_L + 2 * n, V_L + 2 * n + 1, n * 4096))
    e("s_waitcnt lgkmcnt(0)")
    e("s_barrier")
    stamp(10)
    for m in range(16):
        e("ds_read_b128 v[%d:%d], v%d offset:%d" % (V_AF + 4 * m, V_AF + 4 * m + 3, V_AE, m * 1024))
    for m in range(16):
        e("s_waitcnt lgkmcnt(%d)" % min(15, 15 - m))
        c = "0" if m == 0 else "v[%d:%d]" % (V_ACC, V_ACC + 3)
        e("v_mfma_f32_16x16x32_bf16 v[%d:%d], v[%d:%d], v[%d:%d], %s" % (V_ACC, V_ACC + 3, GF + 4 * m, GF + 4 * m + 3, V_AF + 4 * m, V_AF + 4 * m + 3, c))
    e("s_nop 7")
    e("v_permlane32_swap_b32 v%d, v%d" % (V_ACC, V_ACC + 2))
    e("v_permlane32_swap_b32 v%d, v%d" % (V_ACC + 1, V_ACC + 3))
    e("s_nop 1")
    e("v_add_f32_dpp v%d, v%d, v%d row_shl:8 row_mask:0xf bank_mask:0xf" % (V_ACC, V_ACC + 2, V_ACC))
    e("v_add_f32_dpp v%d, v%d, v%d row_shl:8 row_mask:0xf bank_mask:0xf" % (V_ACC + 1, V_ACC + 3, V_ACC + 1))
    e("v_cvt_pk_bf16_f32 v%d, v%d, v%d" % (V_P, V_ACC, V_ACC + 1))
    nosig = uid("nosig")
    e("s_cmp_ge_u32 s%d, 7" % S_SLOT)
    e("s_cbranch_scc1 %s" % nosig)
    unpack(V_U, V_U + 1, V_P)
    e("v_mul_f32 v%d, %s, v%d" % (V_U, f32(-LOG2E), V_U))
    e("v_mul_f32 v%d, %s, v%d" % (V_U + 1, f32(-LOG2E), V_U + 1))
    e("v_exp_f32 v%d, v%d" % (V_U, V_U))
    e("v_exp_f32 v%d, v%d" % (V_U + 1, V_U + 1))
    e("s_nop 0")
    e("v_add_f32 v%d, 1.0, v%d" % (V_U, V_U))
    e("v_add_f32 v%d, 1.0, v%d" % (V_U + 1, V_U + 1))
    e("v_rcp_f32 v%d, v%d" % (V_U, V_U))
    e("v_rcp_f32 v%d, v%d" % (V_U + 1, V_U + 1))
    e("s_nop 0")
    e("v_cvt_pk_bf16_f32 v%d, v%d, v%d" % (V_P, V_U, V_U + 1))
    lab(nosig)
    e("v_mov_b32 v%d, s%d" % (V_P + 1, S_T))
    e("s_not_b64 exec, s[%d:%d]" % (S_HI8, S_HI8 + 1))
    e("buffer_store_dwordx2 v[%d:%d], v%d, s[%d:%d], s85 offen sc1" % (V_P, V_P + 1, V_PUB, SRD_WS, SRD_WS + 3))
    e("s_mov_b64 exec, -1")
    stamp(11)
    lab("L_a_done")
    stamps_flush(V_U, "A")
    e("s_endpgm")

gen()
open(OUT, "w").write("\n".join(lines) + "\n")
print("wrote", OUT, len(lines), "lines")
```

```python
import sys, struct

NAME = "sequential_preLN__sliding_block_cached__glu_gated_glu__decode"
def opt(name, default):
    for a in sys.argv:
        if a.startswith("--%s=" % name): return a.split("=", 1)[1]
    return default
STSET = opt("st", None)
STAMPS = "--stamps" in sys.argv or STSET is not None
STSET = None if STSET is None else set(int(x) for x in STSET.split(","))
NOLOCAL = "--nolocal" in sys.argv
NODRY = "--nodry" in sys.argv
NOTOUCH = "--notouch" in sys.argv
NOBELL = "--nobell" in sys.argv
BELLSLEEP = int(opt("bellsleep", 2))
BELL5 = "--nobell5" not in sys.argv
BELL1 = "--bell1" in sys.argv
DEARLY = "--dearly" in sys.argv
NOCODEPF = "--nocodepf" in sys.argv
SLEEP = int(opt("sleep", 1))
QFIRST = int(opt("qfirst", 4))
AWIN = int(opt("awin", 4))
ATHR = int(opt("athr", 12))
TRIGV = int(opt("trigv", 16))
OUT = [a for a in sys.argv[1:] if not a.startswith("--")]
OUT = OUT[0] if OUT else "cdna_kernels/%s.s" % NAME

lines = []
def e(s): lines.append("    " + s)
def lab(s): lines.append(s + ":")
def cmt(s): lines.append("    ; " + s)
_uid = [0]
def uid(p):
    _uid[0] += 1
    return "L_%s_%d" % (p, _uid[0])
def f32(x): return "0x%08x" % struct.unpack("<I", struct.pack("<f", x))[0]

WS_TRIG = 0x4000
WS_H1 = 0x100000
WS_H2 = 0x200000
WS_H3B = 0x280000
WS_H4S = 0x290000
WS_H4U = 0x2B0000
WS_H2G = 0x2E0000
WS_H4P = 0x500000
WS_H3A = 0x300000
WS_H5 = 0x400000
WS_TS = 0x600000
WS_SIZE = 0x800000

L_W0 = 0
L_W1 = 65536
L_ACT = 131072
L_QB = 147456
L_PB = 149504
L_MX = 153600
LDS_BYTES = 154112

S_X, S_K, S_V, S_WQ, S_WO, S_BX, S_WG, S_WU = 4, 6, 8, 10, 12, 14, 16, 18
S_WD, S_OUT, S_DBG, S_WS = 20, 22, 24, 26
S_WAVE, S_XCD, S_SLOT, S_T = 28, 29, 30, 31
SRD_W, SRD_WS, SRD_X, SRD_O = 32, 36, 40, 44
S_TT = 48
S_HI8 = 50
S_SPIN = 52
S_A, S_B, S_C, S_D, S_E, S_F = 53, 54, 55, 56, 57, 58
S_DRY = 59
S_TM = 60
S_ML = 62
S_ST = 64
S_MG = 92
S_FULL = 94
S_XCC, S_XOFF = 97, 98

LOG2E = 1.4426950408889634

V_VA, V_VB = 4, 5
V_TR = 6
V_AE, V_AO = 7, 8
V_T0, V_T1, V_T2, V_T3 = 9, 10, 11, 12
V_PUB, V_RED, V_H, V_XP, V_AW, V_G, V_Z = 13, 14, 15, 16, 17, 18, 19
V_ACC = 20
V_P = 24
V_M, V_RS, V_SQ, V_SUM = 28, 29, 30, 31
V_L = 32
V_U = 64
V_WF = 96
V_AF = 128
V_KF = 192
V_X1 = 224

def srd(dst, ptr, nbytes):
    e("s_mov_b32 s%d, s%d" % (dst, ptr))
    e("s_and_b32 s%d, s%d, 0xffff" % (dst + 1, ptr + 1))
    e("s_mov_b32 s%d, 0x%x" % (dst + 2, nbytes))
    e("s_mov_b32 s%d, 0x20000" % (dst + 3))

def stamp(k):
    if not STAMPS or (STSET is not None and k not in STSET): return
    e("s_memrealtime s[%d:%d]" % (S_TM, S_TM + 1))
    e("s_waitcnt lgkmcnt(0)")
    e("s_mov_b32 s%d, s%d" % (S_ST + k, S_TM))

def stamps_flush(vtmp):
    if not STAMPS: return
    e("s_mov_b64 exec, -1")
    for k in range(16):
        e("v_writelane_b32 v%d, s%d, %d" % (vtmp, S_ST + k, k))
    e("s_lshl_b32 s%d, s2, 9" % S_A)
    e("s_lshl_b32 s%d, s%d, 6" % (S_B, S_WAVE))
    e("s_add_u32 s%d, s%d, s%d" % (S_A, S_A, S_B))
    e("s_add_u32 s%d, s%d, 0x%x" % (S_A, S_A, WS_TS))
    e("v_lshlrev_b32 v%d, 2, v1" % (vtmp + 1))
    e("s_mov_b64 exec, 0xffff")
    e("buffer_store_dword v%d, v%d, s[%d:%d], s%d offen" % (vtmp, vtmp + 1, SRD_WS, SRD_WS + 3, S_A))

def full(): e("s_mov_b64 exec, s[%d:%d]" % (S_FULL, S_FULL + 1))

def barrier(dry=False):
    if dry:
        l = uid("nb")
        e("s_cbranch_execz %s" % l)
        e("s_barrier")
        lab(l)
    else:
        e("s_barrier")

def set_dry():
    e("s_mov_b64 s[%d:%d], 0" % (S_FULL, S_FULL + 1))
    e("s_mov_b64 s[%d:%d], 0" % (S_ML, S_ML + 1))
    e("s_mov_b64 s[%d:%d], 0" % (S_MG, S_MG + 1))
    e("s_mov_b32 s%d, 1" % S_DRY)
    full()

def set_real():
    e("s_mov_b64 s[%d:%d], -1" % (S_FULL, S_FULL + 1))
    e("s_mov_b32 s%d, 0" % S_DRY)
    full()

def dpp_add(dst, src, ctrl, op="v_add_f32"):
    return "%s_dpp v%d, v%d, v%d %s row_mask:0xf bank_mask:0xf" % (op, dst, src, src, ctrl)

def xrow_ops(v, t, op="v_add_f32"):
    return ["v_mov_b32 v%d, v%d" % (t, v), "s_nop 1", "v_permlane16_swap_b32 v%d, v%d" % (v, t), "s_nop 0",
            "%s v%d, v%d, v%d" % (op, v, v, t),
            "v_mov_b32 v%d, v%d" % (t, v), "s_nop 1", "v_permlane32_swap_b32 v%d, v%d" % (v, t), "s_nop 0",
            "%s v%d, v%d, v%d" % (op, v, v, t)]

def wave_allreduce_ops(v, t, op="v_add_f32"):
    o = []
    for r in (8, 4, 2, 1):
        o += ["s_nop 1", dpp_add(v, v, "row_ror:%d" % r, op)]
    return o + xrow_ops(v, t, op)

def bf16_round_ops(v):
    return ["v_cvt_pk_bf16_f32 v%d, v%d, v%d" % (v, v, v), "v_lshlrev_b32 v%d, 16, v%d" % (v, v)]

def unpack_ops(lo, hi, src):
    return ["v_lshlrev_b32 v%d, 16, v%d" % (lo, src), "v_and_b32 v%d, 0xffff0000, v%d" % (hi, src)]
def unpack(lo, hi, src):
    for x in unpack_ops(lo, hi, src): e(x)
def emit(ops):
    for x in ops: e(x)

def poll_begin():
    top = uid("poll")
    lab(top)
    e("s_cbranch_execz %s_nl" % top)
    return top

def poll_mid(top):
    lab(top + "_nl")
    top2 = top + "x"
    e("s_cbranch_execz %s_nl" % top2)
    return top2

def poll_end(top, checks, last=None):
    ok = top + "_ok"
    e("s_waitcnt vmcnt(0)")
    lab((last or top) + "_nl")
    for c in checks: e(c)
    e("s_cmp_eq_u64 exec, s[%d:%d]" % (S_FULL, S_FULL + 1))
    full()
    e("s_cbranch_scc1 %s" % ok)
    if SLEEP: e("s_sleep %d" % SLEEP)
    e("s_sub_u32 s%d, s%d, 1" % (S_SPIN, S_SPIN))
    e("s_cbranch_scc0 %s" % top)
    e("s_mov_b32 s%d, 0" % S_SPIN)
    lab(ok)

def doorbell(va, so, tagpos, off=0):
    if NOBELL: return
    top = uid("bell")
    e("s_cbranch_execz %s_ok" % top)
    lab(top)
    e("s_mov_b64 exec, 1")
    e("buffer_load_dword v%d, v%d, s[%d:%d], s%d offen offset:%d sc1" % (V_T0, va, SRD_WS, SRD_WS + 3, so, off + 4 * tagpos))
    e("s_waitcnt vmcnt(0)")
    e("v_cmpx_eq_u32 vcc, s%d, v%d" % (S_T, V_T0))
    e("s_cbranch_execnz %s_ok" % top)
    e("s_sleep %d" % BELLSLEEP)
    e("s_sub_u32 s%d, s%d, 1" % (S_SPIN, S_SPIN))
    e("s_cbranch_scc0 %s" % top)
    e("s_mov_b32 s%d, 0" % S_SPIN)
    lab(top + "_ok")
    full()

def chk64(v): return "v_cmpx_eq_u64 vcc, s[%d:%d], v[%d:%d]" % (S_TT, S_TT + 1, v, v + 1)
def chk32(v): return "v_cmpx_eq_u32 vcc, s%d, v%d" % (S_T, v)

def _mask(m, lanemask):
    if lanemask is None: e("s_mov_b64 exec, s[%d:%d]" % (m, m + 1))
    elif lanemask == "lo8": e("s_andn2_b64 exec, s[%d:%d], s[%d:%d]" % (m, m + 1, S_HI8, S_HI8 + 1))
    else: e("s_and_b64 exec, s[%d:%d], %s" % (m, m + 1, lanemask))

def store_g(instr, lanemask=None, flags=" sc1"):
    l = uid("ns")
    if lanemask is not None: _mask(S_FULL, lanemask)
    e("s_cbranch_execz %s" % l)
    e(instr + flags)
    lab(l)
    if lanemask is not None: full()

def store_l(instr, lanemask=None):
    for m, fl in ((S_ML, ""), (S_MG, " sc1")):
        l = uid("ns")
        _mask(m, lanemask)
        e("s_cbranch_execz %s" % l)
        e(instr + fl)
        lab(l)
    full()

def xcc_publish(vt, srd_):
    e("s_getreg_b32 s%d, hwreg(HW_REG_XCC_ID, 0, 4)" % S_XCC)
    e("s_add_u32 s%d, s%d, 1" % (S_XCC, S_XCC))
    e("s_lshl_b32 s%d, s%d, 5" % (S_XOFF, S_XCD))
    skip = uid("noxcc")
    e("s_cmp_lg_u32 s%d, 4" % S_WAVE)
    e("s_cbranch_scc1 %s" % skip)
    e("s_lshr_b32 s%d, s2, 3" % S_B)
    e("s_add_u32 s%d, s%d, s%d" % (S_A, S_XOFF, S_B))
    e("v_mov_b32 v%d, s%d" % (vt, S_XCC))
    e("s_mov_b64 exec, 1")
    e("buffer_store_byte v%d, v%d, s[%d:%d], s%d offen sc1" % (vt, V_Z, srd_, srd_ + 3, S_A))
    e("s_mov_b64 exec, -1")
    lab(skip)
    e("s_mul_i32 s%d, s%d, 0x01010101" % (S_XCC, S_XCC))

def xcc_load(vd, vaddr, srd_):
    e("buffer_load_dword v%d, v%d, s[%d:%d], s%d offen sc1" % (vd, vaddr, srd_, srd_ + 3, S_XOFF))

def xcc_checks(vd, vt):
    return ["v_subrev_u32 v%d, 0x01010101, v%d" % (vt, vd),
            "v_bfi_b32 v%d, v%d, 0, v%d" % (vt, vd, vt),
            "v_and_b32 v%d, 0x80808080, v%d" % (vt, vt),
            "v_cmpx_eq_u32 vcc, 0, v%d" % vt]

def xcc_decide(vd):
    e("v_cmp_ne_u32 vcc, s%d, v%d" % (S_XCC, vd))
    e("s_nop 1")
    if NOLOCAL: e("s_cmp_eq_u32 s%d, 0" % S_XCC)
    else: e("s_cmp_eq_u64 vcc, 0")
    e("s_cselect_b64 s[%d:%d], s[%d:%d], 0" % (S_ML, S_ML + 1, S_FULL, S_FULL + 1))
    e("s_cselect_b64 s[%d:%d], 0, s[%d:%d]" % (S_MG, S_MG + 1, S_FULL, S_FULL + 1))

def ln_stats_ops(vals, vsum, vt, vmean, vrs, vsq):
    o = ["v_add_f32 v%d, v%d, v%d" % (vsum, vals[0], vals[1]), "v_add_f32 v%d, v%d, v%d" % (vt, vals[2], vals[3])]
    for i in range(4, 16, 2):
        o += ["v_add_f32 v%d, v%d, v%d" % (vsum, vsum, vals[i]), "v_add_f32 v%d, v%d, v%d" % (vt, vt, vals[i + 1])]
    o += ["v_add_f32 v%d, v%d, v%d" % (vsum, vsum, vt)]
    o += wave_allreduce_ops(vsum, vt)
    o += ["v_mul_f32 v%d, %s, v%d" % (vmean, f32(1.0 / 1024), vsum)]
    o += ["v_sub_f32 v%d, v%d, v%d" % (vt, vals[0], vmean), "v_mul_f32 v%d, v%d, v%d" % (vsum, vt, vt)]
    for i in range(1, 16):
        o += ["v_sub_f32 v%d, v%d, v%d" % (vt, vals[i], vmean), "v_fmac_f32 v%d, v%d, v%d" % (vsum, vt, vt)]
    o += wave_allreduce_ops(vsum, vt)
    o += ["v_mul_f32 v%d, %s, v%d" % (vsq, f32(1.0 / 1024), vsum)]
    o += bf16_round_ops(vsq)
    o += ["v_add_f32 v%d, %s, v%d" % (vsq, f32(1e-5), vsq)]
    o += bf16_round_ops(vsq)
    o += ["v_sqrt_f32 v%d, v%d" % (vsq, vsq)]
    o += bf16_round_ops(vmean)
    o += bf16_round_ops(vsq)
    o += ["v_rcp_f32 v%d, v%d" % (vrs, vsq), "s_nop 0"]
    return o

def ln_stats_dot_ops(pairs, one, s1, s2, vt, vmean, vrs):
    o = ["v_dot2_f32_bf16 v%d, v%d, v%d, 0" % (s1, pairs[0], one), "v_dot2_f32_bf16 v%d, v%d, v%d, 0" % (s2, pairs[0], pairs[0])]
    for p in pairs[1:]:
        o += ["v_dot2_f32_bf16 v%d, v%d, v%d, v%d" % (s1, p, one, s1), "v_dot2_f32_bf16 v%d, v%d, v%d, v%d" % (s2, p, p, s2)]
    o += ["s_nop 2"]
    for r in (8, 4, 2, 1):
        o += [dpp_add(s1, s1, "row_ror:%d" % r), dpp_add(s2, s2, "row_ror:%d" % r), "s_nop 0"]
    o += ["s_nop 0", "v_permlane32_swap_b32 v%d, v%d" % (s1, s2), "s_nop 0", "v_add_f32 v%d, v%d, v%d" % (s1, s1, s2),
          "v_mov_b32 v%d, v%d" % (s2, s1), "s_nop 1", "v_permlane16_swap_b32 v%d, v%d" % (s1, s2), "s_nop 0",
          "v_add_f32 v%d, v%d, v%d" % (s1, s1, s2), "v_mov_b32 v%d, v%d" % (s2, s1), "s_nop 1",
          "v_permlane32_swap_b32 v%d, v%d" % (s1, s2), "s_nop 0",
          "v_mul_f32 v%d, %s, v%d" % (vmean, f32(1.0 / 1024), s1),
          "v_mul_f32 v%d, %s, v%d" % (s2, f32(1.0 / 1024), s2),
          "v_fma_f32 v%d, -v%d, v%d, v%d" % (s2, vmean, vmean, s2),
          "v_max_f32 v%d, 0, v%d" % (s2, s2)]
    o += bf16_round_ops(s2)
    o += ["v_add_f32 v%d, %s, v%d" % (s2, f32(1e-5), s2)]
    o += bf16_round_ops(s2)
    o += ["v_sqrt_f32 v%d, v%d" % (s2, s2)]
    o += bf16_round_ops(vmean)
    o += bf16_round_ops(s2)
    o += ["v_rcp_f32 v%d, v%d" % (vrs, s2), "s_nop 0"]
    return o

def ln_apply_pair(dst, a, b, vmean, vrs, vsq, t0, t1):
    e("v_sub_f32 v%d, v%d, v%d" % (a, a, vmean))
    e("v_sub_f32 v%d, v%d, v%d" % (b, b, vmean))
    e("v_cvt_pk_bf16_f32 v%d, v%d, v%d" % (t0, a, b))
    unpack(a, b, t0)
    e("v_mul_f32 v%d, v%d, v%d" % (t0, a, vrs))
    e("v_mul_f32 v%d, v%d, v%d" % (t1, b, vrs))
    e("v_fma_f32 v%d, -v%d, v%d, v%d" % (a, t0, vsq, a))
    e("v_fma_f32 v%d, -v%d, v%d, v%d" % (b, t1, vsq, b))
    e("v_fmac_f32 v%d, v%d, v%d" % (t0, a, vrs))
    e("v_fmac_f32 v%d, v%d, v%d" % (t1, b, vrs))
    e("v_cvt_pk_bf16_f32 v%d, v%d, v%d" % (dst, t0, t1))

def sigma_of(dst, u, t):
    e("v_and_b32 v%d, 3, v%d" % (dst, u))
    e("v_lshlrev_b32 v%d, 1, v%d" % (dst, dst))
    e("v_bfe_u32 v%d, v%d, 2, 1" % (t, u))
    e("v_or_b32 v%d, v%d, v%d" % (dst, dst, t))

def dma256_voff(va, vb, pitch, t):
    e("v_bfe_u32 v%d, v1, 1, 3" % t)
    e("v_xor_b32 v%d, v3, v%d" % (t, t))
    e("v_lshlrev_b32 v%d, 5, v%d" % (t, t))
    e("v_and_b32 v%d, 1, v1" % va)
    e("v_lshl_add_u32 v%d, v%d, 4, v%d" % (t, va, t))
    e("v_mul_u32_u24 v%d, %d, v3" % (va, pitch))
    e("v_add_u32 v%d, v%d, v%d" % (va, va, t))
    e("v_xor_b32 v%d, 0x80, v%d" % (vb, va))

def dma_run(srd_, voffs, s_base, rowbytes, ldsbase, per_wave, m0, m1, pre=None):
    e("s_mul_i32 s%d, s%d, %d" % (S_A, S_WAVE, per_wave * rowbytes))
    e("s_add_u32 s%d, s%d, s%d" % (S_A, S_A, s_base))
    if m0: e("s_add_u32 s%d, s%d, %d" % (S_A, S_A, rowbytes * m0))
    e("s_mul_i32 s%d, s%d, %d" % (S_B, S_WAVE, per_wave * 1024))
    if ldsbase + m0: e("s_add_u32 s%d, s%d, %d" % (S_B, S_B, ldsbase + 1024 * m0))
    for m in range(m0, m1):
        e("s_mov_b32 m0, s%d" % S_B)
        if pre: pre(m)
        if m < m1 - 1: e("s_add_u32 s%d, s%d, 1024" % (S_B, S_B))
        else: e("s_nop 0")
        e("buffer_load_dwordx4 v%d, s[%d:%d], s%d offen nt lds" % (voffs(m), srd_, srd_ + 3, S_A))
        if m < m1 - 1: e("s_add_u32 s%d, s%d, %d" % (S_A, S_A, rowbytes))

def tr256_addr(va, t):
    e("v_bfe_u32 v%d, v1, 2, 2" % t)
    e("v_and_b32 v%d, 1, v3" % va)
    e("v_lshl_or_b32 v%d, v%d, 2, v%d" % (va, va, t))
    e("v_xor_b32 v%d, s%d, v%d" % (va, S_WAVE, va))
    e("v_lshlrev_b32 v%d, 5, v%d" % (va, va))
    e("v_lshl_add_u32 v%d, v3, 3, v%d" % (t, t))
    e("v_lshl_add_u32 v%d, v%d, 8, v%d" % (va, t, va))
    e("v_and_b32 v%d, 3, v1" % t)
    e("v_lshl_add_u32 v%d, v%d, 3, v%d" % (va, t, va))

def tr256_read(dst, va):
    for m in range(8):
        for h in range(2):
            e("ds_read_b64_tr_b16 v[%d:%d], v%d offset:%d" % (dst + 4 * m + 2 * h, dst + 4 * m + 2 * h + 1, va, m * 8192 + h * 1024))

def act_rd_addr(ve, vo, t, ldsbase):
    e("v_and_b32 v%d, 7, v1" % t)
    e("v_lshlrev_b32 v%d, 1, v3" % ve)
    e("v_xor_b32 v%d, v%d, v%d" % (ve, ve, t))
    e("v_lshlrev_b32 v%d, 4, v%d" % (ve, ve))
    e("v_lshl_add_u32 v%d, v3, 7, v%d" % (ve, ve))
    e("v_add_u32 v%d, %d, v%d" % (ve, ldsbase, ve))
    e("v_xor_b32 v%d, 16, v%d" % (vo, ve))

def mfma(d, a, b, c):
    cs = "0" if c is None else "v[%d:%d]" % (c, c + 3)
    return "v_mfma_f32_16x16x32_bf16 v[%d:%d], v[%d:%d], v[%d:%d], %s" % (d, d + 3, a, a + 3, b, b + 3, cs)

def gemv8(acc, wf, af, ve, vo):
    for m in range(8):
        e("ds_read_b128 v[%d:%d], v%d offset:%d" % (af + 4 * m, af + 4 * m + 3, vo if (m & 1) else ve, m * 512))
    for m in range(8):
        e("s_waitcnt lgkmcnt(%d)" % (7 - m))
        e(mfma(acc, wf + 4 * m, af + 4 * m, None if m == 0 else acc))

def touch(items):
    for i, (va, so, off) in enumerate(items):
        e("buffer_load_dword v%d, v%d, s[%d:%d], s%d offen offset:%d sc1" % (V_X1 + 20 + i, va, SRD_WS, SRD_WS + 3, so, off))

def make_tag(vE):
    e("v_readfirstlane_b32 s%d, v%d" % (S_F, vE))
    e("s_nop 3")
    e("s_mul_i32 s%d, s%d, 0x9e3779b1" % (S_T, S_F))
    e("s_add_u32 s%d, s%d, 0x85ebca6b" % (S_T, S_T))
    e("s_mov_b32 s%d, s%d" % (S_TT, S_T))
    e("s_mov_b32 s%d, s%d" % (S_TT + 1, S_T))
    e("s_add_u32 s%d, s%d, 1" % (S_F, S_F))
    e("v_mov_b32 v%d, s%d" % (V_P + 2, S_T))
    e("v_mov_b32 v%d, s%d" % (V_P + 3, S_T))

def publish_partial(s_off, local):
    e("s_nop 7")
    e("v_cndmask_b32 v%d, v%d, v%d, s[%d:%d]" % (V_P, V_ACC, V_ACC + 2, S_HI8, S_HI8 + 1))
    e("v_cndmask_b32 v%d, v%d, v%d, s[%d:%d]" % (V_P + 1, V_ACC + 1, V_ACC + 3, S_HI8, S_HI8 + 1))
    ins = "buffer_store_dwordx4 v[%d:%d], v%d, s[%d:%d], s%d offen" % (V_P, V_P + 3, V_PUB, SRD_WS, SRD_WS + 3, s_off)
    (store_l if local else store_g)(ins)

def reduce16(s_off):
    top = poll_begin()
    e("buffer_load_dwordx4 v[%d:%d], v%d, s[%d:%d], s%d offen sc1" % (V_L, V_L + 3, V_RED, SRD_WS, SRD_WS + 3, s_off))
    poll_end(top, [chk64(V_L + 2)])
    a, b = V_L, V_L + 1
    e("s_nop 1")
    e(dpp_add(a, a, "row_ror:4")); e(dpp_add(b, b, "row_ror:4"))
    e("s_nop 0")
    e(dpp_add(a, a, "row_ror:8")); e(dpp_add(b, b, "row_ror:8"))
    e("s_nop 1")
    e("v_permlane32_swap_b32 v%d, v%d" % (a, b))
    e("s_nop 0")
    e("v_add_f32 v%d, v%d, v%d" % (a, a, b))
    e("v_mov_b32 v%d, v%d" % (b, a))
    e("s_nop 1")
    e("v_permlane16_swap_b32 v%d, v%d" % (a, b))
    e("s_nop 0")
    e("v_add_f32 v%d, v%d, v%d" % (a, a, b))
    e("v_mov_b32 v%d, v%d" % (b, a))
    e("s_nop 1")
    e("v_permlane32_swap_b32 v%d, v%d" % (a, b))
    e("s_nop 0")

def residual_add(dst, vres):
    e("v_cvt_pk_bf16_f32 v%d, v%d, v%d" % (V_T0, V_L, V_L + 1))
    unpack(V_U + 2, V_U + 3, vres)
    unpack(V_U, V_U + 1, V_T0)
    e("v_add_f32 v%d, v%d, v%d" % (V_U, V_U, V_U + 2))
    e("v_add_f32 v%d, v%d, v%d" % (V_U + 1, V_U + 1, V_U + 3))
    e("v_cvt_pk_bf16_f32 v%d, v%d, v%d" % (dst, V_U, V_U + 1))

def pos_write_addr(dst, ldsbase):
    e("v_bfe_u32 v%d, v1, 1, 3" % V_T2)
    sigma_of(V_T0, V_T2, V_T1)
    e("v_xor_b32 v%d, s%d, v%d" % (V_T0, S_WAVE, V_T0))
    e("v_lshlrev_b32 v%d, 4, v%d" % (V_T0, V_T0))
    e("v_lshrrev_b32 v%d, 1, v1" % V_T1)
    e("v_lshl_add_u32 v%d, v%d, 7, v%d" % (V_T0, V_T1, V_T0))
    e("v_and_b32 v%d, 1, v1" % V_T1)
    e("v_lshl_add_u32 v%d, v%d, 3, v%d" % (V_T0, V_T1, V_T0))
    e("v_add_u32 v%d, %d, v%d" % (dst, ldsbase, V_T0))

def gen():
    lines.append("; Fused decode layer: preLN + sliding-window GQA attention + preLN + GLU MLP (persistent, 1 WG per CU)")
    lines.append("; @launch grid=(256,1,1) block=(512,1,1) lds=%d" % LDS_BYTES)
    lines.append('.amdgcn_target "amdgcn-amd-amdhsa--gfx950"')
    lines.append(".text")
    lines.append(".globl %s_kernel" % NAME)
    lines.append(".p2align 8")
    lines.append(".type %s_kernel,@function" % NAME)
    lab("%s_kernel" % NAME)
    e("s_cmp_ge_u32 s2, 256")
    e("s_cbranch_scc1 L_end")
    if STAMPS:
        e("s_memrealtime s[%d:%d]" % (S_TM, S_TM + 1))
        for k in range(1, 16): e("s_mov_b32 s%d, 0" % (S_ST + k))
    e("s_load_dwordx16 s[4:19], s[0:1], 0")
    e("s_load_dwordx8 s[20:27], s[0:1], 64")
    e("v_lshrrev_b32 v4, 6, v0")
    e("v_and_b32 v1, 63, v0")
    e("v_readfirstlane_b32 s%d, v4" % S_WAVE)
    e("v_and_b32 v2, 15, v1")
    e("v_lshrrev_b32 v3, 4, v1")
    e("s_and_b32 s%d, s2, 7" % S_XCD)
    e("s_lshr_b32 s%d, s2, 4" % S_SLOT)
    e("v_mov_b32 v%d, 0" % V_Z)
    code_prefetch()
    e("s_bitcmp1_b32 s2, 3")
    e("s_cbranch_scc1 L_roleA")
    role_b()
    lab("L_roleA")
    role_a()
    lab("L_end")
    e("s_endpgm")
    lines.append('.section .rodata,"a"')
    lines.append(".p2align 6")
    lines.append(".amdhsa_kernel %s_kernel" % NAME)
    lines.append("  .amdhsa_next_free_vgpr 256")
    lines.append("  .amdhsa_next_free_sgpr 100")
    lines.append("  .amdhsa_accum_offset 256")
    lines.append("  .amdhsa_group_segment_fixed_size 0")
    lines.append("  .amdhsa_kernarg_size 96")
    lines.append("  .amdhsa_user_sgpr_count 2")
    lines.append("  .amdhsa_user_sgpr_kernarg_segment_ptr 1")
    lines.append("  .amdhsa_system_sgpr_workgroup_id_x 1")
    lines.append(".end_amdhsa_kernel")

def code_prefetch():
    if NOCODEPF: return
    l = uid("nopf")
    e("s_lshl_b32 s%d, s%d, 3" % (S_A, S_SLOT))
    e("s_add_u32 s%d, s%d, s%d" % (S_A, S_A, S_WAVE))
    e("s_cmp_lg_u32 s%d, 5" % S_A)
    e("s_cbranch_scc1 %s" % l)
    e("s_getpc_b64 s[%d:%d]" % (S_ML, S_ML + 1))
    lab(l + "_pc")
    e("s_sub_u32 s%d, s%d, %s_pc-%s_kernel" % (S_ML, S_ML, l, NAME))
    e("s_subb_u32 s%d, s%d, 0" % (S_ML + 1, S_ML + 1))
    e("v_lshlrev_b32 v%d, 7, v1" % V_T0)
    e("global_load_dword v%d, v%d, s[%d:%d]" % (V_U, V_T0, S_ML, S_ML + 1))
    e("v_add_u32 v%d, 0x2000, v%d" % (V_T0, V_T0))
    e("v_min_u32 v%d, L_end-%s_kernel, v%d" % (V_T0, NAME, V_T0))
    e("global_load_dword v%d, v%d, s[%d:%d]" % (V_U + 1, V_T0, S_ML, S_ML + 1))
    lab(l)

def common_consts():
    e("s_mov_b32 s%d, 0x40000" % S_SPIN)
    e("s_mov_b32 s%d, 0xff00ff00" % S_HI8)
    e("s_mov_b32 s%d, 0xff00ff00" % (S_HI8 + 1))
    e("s_mov_b64 s[%d:%d], -1" % (S_FULL, S_FULL + 1))
    e("s_mov_b32 s%d, 0" % S_DRY)

def role_b():
    cmt("================= role B =================")
    V_AWD, V_XA, V_HO, V_ZA, V_TR1 = V_X1 + 1, V_X1 + 2, V_X1 + 3, V_X1 + 4, V_X1 + 5
    V_VC, V_VD = V_X1 + 6, V_X1 + 7
    V_ZQ = V_X1 + 8
    ab = lambda m: V_VB if (m & 2) else V_VA
    dma256_voff(V_VA, V_VB, 8192, V_T0)
    e("v_lshlrev_b32 v%d, 4, v1" % V_G)
    e("s_and_b32 s%d, s%d, 3" % (S_D, S_SLOT))
    e("s_lshr_b32 s%d, s%d, 2" % (S_A, S_SLOT))
    e("s_lshl_b32 s%d, s%d, 1" % (S_B, S_XCD))
    e("s_add_u32 s%d, s%d, s%d" % (S_B, S_B, S_A))
    e("s_lshl_b32 s%d, s%d, 2" % (S_C, S_B))
    e("s_add_u32 s%d, s%d, 1" % (S_C, S_C))
    e("s_sub_u32 s%d, s%d, 2" % (S_B, S_B))
    e("s_lshl_b32 s%d, s%d, 2" % (S_E, S_XCD))
    e("s_add_u32 s%d, s%d, s%d" % (S_E, S_E, S_A))
    e("s_sub_u32 s%d, s%d, 8" % (S_E, S_E))
    e("s_cmp_ge_u32 s%d, 4" % S_XCD)
    e("s_cselect_b32 s%d, s%d, s%d" % (S_B, S_E, S_B))
    e("s_cselect_b32 s%d, 2, s%d" % (S_A, S_A))
    e("s_mul_i32 s%d, s%d, 43" % (S_E, S_B))
    e("s_lshr_b32 s%d, s%d, 7" % (S_E, S_E))
    e("s_mul_i32 s%d, s%d, 3" % (S_F, S_E))
    e("s_sub_u32 s%d, s%d, s%d" % (S_F, S_B, S_F))
    e("s_lshl_b32 s%d, s%d, 2" % (S_E, S_E))
    e("s_add_u32 s%d, s%d, s%d" % (S_E, S_E, S_F))
    e("s_min_u32 s%d, s%d, 1" % (S_F, S_F))
    e("s_add_u32 s%d, s%d, s%d" % (S_E, S_E, S_F))
    e("s_cmp_ge_u32 s%d, 2" % S_A)
    e("s_cselect_b32 s%d, s%d, s%d" % (S_C, S_E, S_C))
    e("s_lshl_b32 s%d, s%d, 21" % (S_E, S_D))
    e("s_lshl_b32 s%d, s%d, 8" % (S_A, S_C))
    e("s_add_u32 s%d, s%d, s%d" % (S_E, S_E, S_A))
    e("s_lshl_b32 s82, s%d, 11" % S_WAVE)
    e("s_lshl_b32 s83, s%d, 9" % S_D)
    e("s_add_u32 s83, s83, s82")
    e("s_waitcnt lgkmcnt(0)")
    if STAMPS: e("s_mov_b32 s%d, s%d" % (S_ST, S_TM))
    srd(SRD_X, S_X, 16384)
    srd(SRD_W, S_WQ, 8 << 20)
    e("buffer_load_dwordx4 v[%d:%d], v%d, s[%d:%d], s82 offen" % (V_L, V_L + 3, V_G, SRD_X, SRD_X + 3))
    e("buffer_load_dwordx4 v[%d:%d], v%d, s[%d:%d], s82 offen offset:1024" % (V_L + 4, V_L + 7, V_G, SRD_X, SRD_X + 3))
    e("buffer_load_dwordx4 v[%d:%d], v%d, s[%d:%d], s83 offen" % (V_L + 8, V_L + 11, V_G, SRD_X, SRD_X + 3))
    dma_run(SRD_W, ab, S_E, 4 * 8192, L_W0, 8, 0, QFIRST)
    srd(SRD_WS, S_WS, WS_SIZE)
    e("buffer_load_dword v%d, v%d, s[%d:%d], 0 offen sc1" % (V_L + 12, V_Z, SRD_WS, SRD_WS + 3))
    stamp(1)
    common_consts()
    e("s_lshr_b32 s%d, s%d, 1" % (S_A, S_SLOT))
    e("s_lshl_b32 s%d, s%d, 11" % (S_A, S_A))
    e("s_lshl_b32 s%d, s%d, 8" % (S_B, S_XCD))
    e("s_add_u32 s%d, s%d, s%d" % (S_A, S_A, S_B))
    e("s_and_b32 s%d, s%d, 1" % (S_B, S_SLOT))
    e("s_lshl_b32 s%d, s%d, 7" % (S_B, S_B))
    e("s_add_u32 s%d, s%d, s%d" % (S_A, S_A, S_B))
    e("s_lshl_b32 s%d, s%d, 4" % (S_B, S_WAVE))
    e("s_add_u32 s80, s%d, s%d" % (S_A, S_B))
    e("v_and_b32 v%d, 3, v1" % V_T0)
    e("v_lshlrev_b32 v%d, 2, v%d" % (V_X1, V_T0))
    e("v_lshlrev_b32 v%d, 3, v%d" % (V_HO, V_T0))
    e("buffer_load_dword v%d, v%d, s[%d:%d], s80 offen" % (V_XP, V_X1, SRD_X, SRD_X + 3))
    e("s_waitcnt vmcnt(%d)" % (QFIRST + 2))
    for i in range(8):
        unpack(V_U + 2 * i, V_U + 2 * i + 1, V_L + i)
    emit(ln_stats_ops([V_U + i for i in range(16)], V_SUM, V_T0, V_M, V_RS, V_SQ))
    if QFIRST < 8:
        dma_run(SRD_W, ab, S_E, 4 * 8192, L_W0, 8, QFIRST, 8)
    for i in range(4):
        unpack(V_U + 2 * i, V_U + 2 * i + 1, V_L + 8 + i)
    for i in range(4):
        ln_apply_pair(V_L + 16 + i, V_U + 2 * i, V_U + 2 * i + 1, V_M, V_RS, V_SQ, V_T0, V_T1)
    e("v_and_b32 v%d, 7, v1" % V_T2)
    e("v_lshlrev_b32 v%d, 2, v%d" % (V_XA, V_T2))
    sigma_of(V_T0, V_T2, V_T1)
    e("v_xor_b32 v%d, s%d, v%d" % (V_T0, S_WAVE, V_T0))
    e("v_lshlrev_b32 v%d, 4, v%d" % (V_T0, V_T0))
    e("v_lshl_add_u32 v%d, v1, 7, v%d" % (V_T0, V_T0))
    e("v_add_u32 v%d, %d, v%d" % (V_T0, L_ACT, V_T0))
    e("s_mov_b64 exec, 0xffffffff")
    e("ds_write_b128 v%d, v[%d:%d]" % (V_T0, V_L + 16, V_L + 19))
    e("s_mov_b64 exec, -1")
    srd(SRD_X, S_DBG, 256)
    xcc_publish(V_T0, SRD_X)
    tr256_addr(V_TR, V_T0)
    act_rd_addr(V_AE, V_AO, V_T0, L_ACT)
    e("v_and_b32 v%d, 7, v1" % V_T0)
    e("v_lshlrev_b32 v%d, 10, v%d" % (V_PUB, V_T0))
    e("v_lshrrev_b32 v%d, 3, v2" % V_T0)
    e("v_lshl_add_u32 v%d, v3, 1, v%d" % (V_T0, V_T0))
    e("v_lshl_add_u32 v%d, v%d, 4, v%d" % (V_PUB, V_T0, V_PUB))
    e("s_lshl_b32 s%d, s%d, 7" % (S_A, S_WAVE))
    e("v_add_u32 v%d, s%d, v%d" % (V_PUB, S_A, V_PUB))
    e("s_lshl_b32 s%d, s%d, 2" % (S_A, S_C))
    e("s_add_u32 s%d, s%d, s%d" % (S_A, S_A, S_D))
    e("s_lshl_b32 s%d, s%d, 13" % (S_A, S_A))
    e("s_add_u32 s81, s%d, 0x%x" % (S_A, WS_H1))
    stamp(2)
    if NODRY: e("s_branch L_q_real")
    e("s_waitcnt lgkmcnt(0)")
    set_dry()
    lab("L_q_top")
    tr256_read(V_WF, V_TR)
    gemv8(V_ACC, V_WF, V_AF, V_AE, V_AO)
    publish_partial(81, False)
    e("s_cmp_eq_u32 s%d, 0" % S_DRY)
    e("s_cbranch_scc1 L_q_done")
    lab("L_q_real")
    set_real()
    e("s_waitcnt vmcnt(%d)" % (8 - QFIRST + 1))
    make_tag(V_L + 12)
    e("s_waitcnt vmcnt(0) lgkmcnt(0)")
    e("s_barrier")
    stamp(3)
    e("s_branch L_q_top")
    lab("L_q_done")
    stamp(4)
    dma256_voff(V_VA, V_VB, 2048, V_T0)
    e("v_add_u32 v%d, %d, v%d" % (V_TR1, L_W1, V_TR))
    e("s_and_b32 s%d, s%d, 1" % (S_A, S_WAVE))
    e("s_lshl_b32 s%d, s%d, 7" % (S_A, S_A))
    e("v_xor_b32 v%d, s%d, v%d" % (V_X1 + 14, S_A, V_VA))
    e("v_xor_b32 v%d, 0x80, v%d" % (V_X1 + 15, V_X1 + 14))
    pos_write_addr(V_AW, L_ACT)
    e("v_lshrrev_b32 v%d, 2, v1" % V_T0)
    e("v_lshlrev_b32 v%d, 13, v%d" % (V_RED, V_T0))
    e("v_and_b32 v%d, 3, v1" % V_T0)
    e("v_lshl_add_u32 v%d, v%d, 4, v%d" % (V_RED, V_T0, V_RED))
    e("s_lshl_b32 s%d, s%d, 6" % (S_A, S_WAVE))
    e("v_add_u32 v%d, s%d, v%d" % (V_RED, S_A, V_RED))
    e("s_lshl_b32 s%d, s%d, 3" % (S_A, S_SLOT))
    e("s_or_b32 s%d, s%d, s%d" % (S_A, S_A, S_XCD))
    e("s_lshl_b32 s%d, s%d, 7" % (S_A, S_A))
    e("s_add_u32 s83, s%d, 0x%x" % (S_A, WS_TRIG))
    e("s_lshl_b32 s%d, s%d, 3" % (S_A, S_SLOT))
    e("s_add_u32 s%d, s%d, s%d" % (S_A, S_A, S_WAVE))
    e("s_lshl_b32 s%d, s%d, 10" % (S_A, S_A))
    e("s_add_u32 s82, s%d, 0x%x" % (S_A, WS_H2G))
    e("s_lshl_b32 s%d, s%d, 4" % (S_A, S_XCD))
    e("s_add_u32 s%d, s%d, s%d" % (S_A, S_A, S_SLOT))
    e("s_lshl_b32 s%d, s%d, 13" % (S_A, S_A))
    e("s_add_u32 s84, s%d, 0x%x" % (S_A, WS_H3A))
    e("s_lshl_b32 s%d, s%d, 17" % (S_A, S_XCD))
    e("s_lshl_b32 s%d, s%d, 9" % (S_B, S_SLOT))
    e("s_add_u32 s%d, s%d, s%d" % (S_A, S_A, S_B))
    e("s_add_u32 s85, s%d, 0x%x" % (S_A, WS_H3A))
    e("s_add_u32 s86, s%d, 0x%x" % (S_A, WS_H5))
    e("s_lshl_b32 s%d, s80, 1" % S_A)
    e("s_add_u32 s90, s%d, 0x%x" % (S_A, WS_H3B))
    e("s_lshr_b32 s%d, s%d, 3" % (S_C, S_SLOT))
    e("s_lshl_b32 s%d, s%d, 1" % (S_A, S_XCD))
    e("s_add_u32 s%d, s%d, s%d" % (S_C, S_C, S_A))
    e("s_and_b32 s%d, s%d, 7" % (S_D, S_SLOT))
    e("s_mul_i32 s91, s%d, %d" % (S_C, 224 * 2048))
    e("s_lshl_b32 s%d, s%d, 8" % (S_A, S_D))
    e("s_add_u32 s91, s91, s%d" % S_A)
    e("s_min_u32 s%d, s%d, 6" % (S_A, S_WAVE))
    e("s_lshl_b32 s%d, s%d, 10" % (S_B, S_A))
    e("s_mul_i32 s%d, s%d, 7168" % (S_E, S_C))
    e("s_add_u32 s%d, s%d, s%d" % (S_E, S_E, S_B))
    e("s_add_u32 s87, s%d, 0x%x" % (S_E, WS_H4S))
    e("s_add_u32 s88, s%d, 0x%x" % (S_E, WS_H4U))
    e("s_lshl_b32 s%d, s%d, 2" % (S_B, S_A))
    e("v_add_u32 v%d, s%d, v3" % (V_T3, S_B))
    e("v_and_b32 v%d, 7, v%d" % (V_T2, V_T3))
    sigma_of(V_T0, V_T2, V_T1)
    e("v_and_b32 v%d, 7, v1" % V_T1)
    e("v_xor_b32 v%d, v%d, v%d" % (V_T0, V_T0, V_T1))
    e("v_lshlrev_b32 v%d, 4, v%d" % (V_T0, V_T0))
    e("v_lshl_add_u32 v%d, v%d, 7, v%d" % (V_T0, V_T3, V_T0))
    e("v_bfe_u32 v%d, v1, 3, 1" % V_T1)
    e("v_lshl_add_u32 v%d, v%d, 3, v%d" % (V_T0, V_T1, V_T0))
    e("v_add_u32 v%d, %d, v%d" % (V_AWD, L_ACT, V_T0))
    e("s_lshl_b32 s%d, s%d, 4" % (S_A, S_D))
    e("s_add_u32 s%d, s%d, s%d" % (S_A, S_A, S_C))
    e("s_lshl_b32 s%d, s%d, 13" % (S_A, S_A))
    e("s_add_u32 s89, s%d, 0x%x" % (S_A, WS_H5))
    e("v_and_b32 v%d, 31, v1" % V_T0)
    e("v_lshlrev_b32 v%d, 4, v%d" % (V_T0, V_T0))
    e("v_add_u32 v%d, %d, v%d" % (V_ZA, L_ACT + 28 * 128, V_T0))
    for k in range(4): e("v_mov_b32 v%d, 0" % (V_ZQ + k))
    srd(SRD_O, S_OUT, 16384)
    e("s_lshr_b32 s%d, s%d, 7" % (S_E, S_WG))
    e("s_mul_i32 s%d, s%d, 7" % (S_A, S_XCD))
    e("s_add_u32 s%d, s%d, s%d" % (S_E, S_E, S_A))
    e("s_sub_u32 s%d, 3, s%d" % (S_E, S_E))
    e("s_and_b32 s%d, s%d, 7" % (S_E, S_E))
    e("s_lshr_b32 s%d, s%d, 3" % (S_A, S_SLOT))
    e("s_mul_i32 s%d, s%d, 56" % (S_A, S_A))
    e("s_min_u32 s%d, s%d, 6" % (S_B, S_WAVE))
    e("s_lshl_b32 s%d, s%d, 3" % (S_B, S_B))
    e("s_add_u32 s%d, s%d, s%d" % (S_A, S_A, S_B))
    e("s_lshr_b32 s%d, s%d, 4" % (S_B, S_A))
    e("s_cmp_eq_u32 s%d, s%d" % (S_B, S_E))
    e("s_cselect_b32 s96, 1, 0")
    e("s_and_b32 s%d, s%d, 8" % (S_A, S_A))
    e("s_lshl_b32 s%d, s%d, 8" % (S_A, S_A))
    e("s_lshl_b32 s%d, s%d, 12" % (S_B, S_XCD))
    e("s_add_u32 s%d, s%d, s%d" % (S_A, S_A, S_B))
    e("s_add_u32 s81, s%d, 0x%x" % (S_A, WS_H4P))
    e("v_lshlrev_b32 v%d, 5, v1" % V_VC)
    e("v_add_u32 v%d, 0x8000, v%d" % (V_VD, V_VC))
    e("v_add_u32 v%d, 0x10000, v%d" % (V_X1 + 12, V_VC))
    e("v_add_u32 v%d, 0x18000, v%d" % (V_X1 + 13, V_VC))
    e("s_lshl_b32 s99, s%d, 19" % S_SLOT)
    e("s_lshl_b32 s%d, s%d, 8" % (S_A, S_XCD))
    e("s_add_u32 s99, s99, s%d" % S_A)
    e("s_barrier")
    e("s_cmp_ge_u32 s%d, 4" % S_WAVE)
    e("s_cbranch_scc1 L_b_warm")
    srd(SRD_W, S_WO, 8 << 20)
    top = poll_begin()
    e("buffer_load_dwordx2 v[%d:%d], v%d, s[%d:%d], s83 offen sc1" % (V_L, V_L + 1, V_Z, SRD_WS, SRD_WS + 3))
    poll_end(top, [chk64(V_L)])
    dma_run(SRD_W, ab, 99, 4 * 2048, L_W1, 16, 0, 16)
    if DEARLY:
        srd(SRD_W, S_WD, 3584 * 2048)
        dma_run(SRD_W, lambda m: V_X1 + 15 if (m & 2) else V_X1 + 14, 91, 4 * 2048, L_W0, 14, 0, 14)
    stamp(5)
    e("s_waitcnt vmcnt(%d)" % (14 if DEARLY else 0))
    e("s_branch L_b_real")
    lab("L_b_warm")
    if not NOTOUCH:
        e("s_cmp_lg_u32 s%d, 4" % S_WAVE)
        e("s_cbranch_scc1 L_b_notouch")
        e("v_lshlrev_b32 v%d, 7, v1" % V_T0)
        e("v_lshrrev_b32 v%d, 2, v1" % V_T1)
        e("v_lshlrev_b32 v%d, 13, v%d" % (V_T1, V_T1))
        e("v_and_b32 v%d, 3, v1" % V_T2)
        e("v_lshl_add_u32 v%d, v%d, 7, v%d" % (V_T1, V_T2, V_T1))
        e("s_sub_u32 s%d, s87, 4096" % S_A)
        e("s_sub_u32 s%d, s88, 4096" % S_B)
        e("s_lshl_b32 s%d, s%d, 12" % (S_C, S_XCD))
        e("s_add_u32 s%d, s%d, 0x%x" % (S_C, S_C, WS_H4P))
        e("v_and_b32 v%d, 31, v1" % V_T2)
        e("v_lshlrev_b32 v%d, 7, v%d" % (V_T2, V_T2))
        e("v_lshrrev_b32 v%d, 5, v1" % V_T3)
        e("v_lshl_add_u32 v%d, v%d, 15, v%d" % (V_T2, V_T3, V_T2))
        e("v_add_u32 v%d, 0x10000, v%d" % (V_T3, V_T2))
        touch([(V_T1, 85, 0), (V_T0, S_A, 0), (V_T0, S_B, 0), (V_T2, S_C, 0), (V_T3, S_C, 0), (V_Z, 82, 0), (V_Z, 86, 0), (V_Z, 89, 0), (V_Z, 90, 0)])
        lab("L_b_notouch")
    if NODRY: e("s_branch L_b_real")
    set_dry()
    e("s_branch L_b_tail")
    lab("L_b_real")
    set_real()
    e("s_barrier")
    lab("L_b_tail")
    tr256_read(V_WF, V_TR1)
    top = poll_begin()
    xcc_load(V_L, V_XA, SRD_X)
    poll_end(top, xcc_checks(V_L, V_T0))
    xcc_decide(V_L)
    stamp(6)
    doorbell(V_G, 82, 3)
    top = poll_begin()
    e("buffer_load_dwordx4 v[%d:%d], v%d, s[%d:%d], s82 offen sc1" % (V_L, V_L + 3, V_G, SRD_WS, SRD_WS + 3))
    poll_end(top, [chk64(V_L + 2)])
    e("ds_write_b64 v%d, v[%d:%d]" % (V_AW, V_L, V_L + 1))
    stamp(7)
    e("s_waitcnt lgkmcnt(0)")
    barrier(True)
    gemv8(V_ACC, V_WF, V_AF, V_AE, V_AO)
    publish_partial(84, True)
    stamp(8)
    reduce16(85)
    stamp(9)
    residual_add(V_U + 4, V_XP)
    e("v_mov_b32 v%d, s%d" % (V_U + 6, S_T))
    e("v_mov_b32 v%d, s%d" % (V_U + 7, S_T))
    e("v_mov_b32_dpp v%d, v%d quad_perm:[1,1,3,3] row_mask:0xf bank_mask:0xf" % (V_U + 5, V_U + 4))
    store_g("buffer_store_dwordx4 v[%d:%d], v%d, s[%d:%d], s90 offen" % (V_U + 4, V_U + 7, V_HO, SRD_WS, SRD_WS + 3), "5")
    e("v_mov_b32 v%d, v%d" % (V_H, V_U + 4))
    stamp(10)
    if DEARLY:
        barrier(True)
    else:
        e("s_cbranch_execz L_b_nod")
        e("s_barrier")
        srd(SRD_W, S_WD, 3584 * 2048)
        e("s_cmp_eq_u32 s%d, 7" % S_WAVE)
        e("s_cbranch_scc1 L_b_nod7")
        dma_run(SRD_W, ab, 91, 4 * 2048, L_W0, 8, 0, 8)
        lab("L_b_nod7")
        e("s_waitcnt vmcnt(0)")
        e("s_barrier")
        lab("L_b_nod")
    e("ds_write_b128 v%d, v[%d:%d]" % (V_ZA, V_ZQ, V_ZQ + 3))
    tr256_read(V_WF, V_TR)
    stamp(11)
    e("s_cmp_eq_u32 s96, 0")
    e("s_cbranch_scc0 L_b_split")
    lab("L_b_plain")
    doorbell(V_G, 88, 3)
    top = poll_begin()
    e("buffer_load_dwordx4 v[%d:%d], v%d, s[%d:%d], s87 offen sc1" % (V_L, V_L + 3, V_G, SRD_WS, SRD_WS + 3))
    e("buffer_load_dwordx4 v[%d:%d], v%d, s[%d:%d], s88 offen sc1" % (V_L + 4, V_L + 7, V_G, SRD_WS, SRD_WS + 3))
    poll_end(top, [chk32(V_L + 1), chk32(V_L + 3), chk32(V_L + 5), chk32(V_L + 7)])
    unpack(V_U, V_U + 1, V_L); unpack(V_U + 4, V_U + 5, V_L + 4)
    unpack(V_U + 2, V_U + 3, V_L + 2); unpack(V_U + 6, V_U + 7, V_L + 6)
    e("s_cbranch_execnz L_b_join")
    lab("L_b_split")
    doorbell(V_X1 + 12, 81, 3)
    top = poll_begin()
    for i, va in enumerate((V_VC, V_VD, V_X1 + 12, V_X1 + 13)):
        if i == 2: top2 = poll_mid(top)
        for h in range(2):
            r = V_L + 8 * i + 4 * h
            e("buffer_load_dwordx4 v[%d:%d], v%d, s[%d:%d], s81 offen offset:%d sc1" % (r, r + 3, va, SRD_WS, SRD_WS + 3, 16 * h))
    poll_end(top, [chk64(V_L + 4 * i + 2) for i in range(8)], last=top2)
    for mat in range(2):
        for h in range(2):
            for k in range(2):
                e("v_add_f32 v%d, v%d, v%d" % (V_U + 4 * mat + 2 * h + k, V_L + 16 * mat + 4 * h + k, V_L + 16 * mat + 8 + 4 * h + k))
    for i in range(4):
        e("v_cvt_pk_bf16_f32 v%d, v%d, v%d" % (V_L + i, V_U + 2 * i, V_U + 2 * i + 1))
    for i in range(4):
        unpack(V_U + 2 * i, V_U + 2 * i + 1, V_L + i)
    for k in range(4): e("v_mul_f32 v%d, %s, v%d" % (V_U + k, f32(-LOG2E), V_U + k))
    for k in range(4): e("v_exp_f32 v%d, v%d" % (V_U + k, V_U + k))
    for k in range(4): e("v_add_f32 v%d, 1.0, v%d" % (V_U + k, V_U + k))
    for k in range(4): e("v_rcp_f32 v%d, v%d" % (V_U + k, V_U + k))
    e("s_nop 0")
    for i in range(2):
        e("v_cvt_pk_bf16_f32 v%d, v%d, v%d" % (V_L + i, V_U + 2 * i, V_U + 2 * i + 1))
    for i in range(2):
        unpack(V_U + 2 * i, V_U + 2 * i + 1, V_L + i)
    lab("L_b_join")
    stamp(12)
    for k in range(4): e("v_mul_f32 v%d, v%d, v%d" % (V_U + k, V_U + k, V_U + 4 + k))
    e("v_cvt_pk_bf16_f32 v%d, v%d, v%d" % (V_U + 16, V_U, V_U + 1))
    e("v_cvt_pk_bf16_f32 v%d, v%d, v%d" % (V_U + 17, V_U + 2, V_U + 3))
    e("ds_write_b64 v%d, v[%d:%d]" % (V_AWD, V_U + 16, V_U + 17))
    e("s_waitcnt lgkmcnt(0)")
    barrier(True)
    gemv8(V_ACC, V_WF, V_AF, V_AE, V_AO)
    publish_partial(89, False)
    stamp(13)
    if BELL5: doorbell(V_RED, 86, 3)
    reduce16(86)
    stamp(14)
    residual_add(V_U + 4, V_H)
    store_g("buffer_store_dword v%d, v%d, s[%d:%d], s80 offen" % (V_U + 4, V_X1, SRD_O, SRD_O + 3), "0xf", flags="")
    e("s_cmp_lg_u32 s%d, 0" % S_DRY)
    e("s_cbranch_scc1 L_b_real")
    noep = uid("noep")
    e("s_add_u32 s%d, s2, s%d" % (S_A, S_WAVE))
    e("s_cmp_lg_u32 s%d, 0" % S_A)
    e("s_cbranch_scc1 %s" % noep)
    e("s_mov_b64 exec, 1")
    e("v_mov_b32 v%d, s%d" % (V_T0, S_F))
    e("buffer_store_dword v%d, v%d, s[%d:%d], 0 offen sc1" % (V_T0, V_Z, SRD_WS, SRD_WS + 3))
    lab(noep)
    stamp(15)
    stamps_flush(V_U)
    e("s_endpgm")

def role_a():
    cmt("================= role A =================")
    KO = V_X1
    KA = V_X1 + 4
    QE, QO, QW, PW0, PW1, SW, SR, XA, EP = [V_X1 + 8 + i for i in range(9)]
    ab = lambda m: V_VB if (m & 2) else V_VA
    dma256_voff(V_VA, V_VB, 256, V_T0)
    e("s_lshl_b32 s%d, s%d, 22" % (S_E, S_XCD))
    e("s_lshr_b32 s%d, s%d, 2" % (S_C, S_SLOT))
    e("s_lshl_b32 s%d, s%d, 20" % (S_A, S_C))
    e("s_add_u32 s%d, s%d, s%d" % (S_E, S_E, S_A))
    e("s_and_b32 s%d, s%d, 3" % (S_D, S_SLOT))
    e("s_lshl_b32 s%d, s%d, 16" % (S_A, S_D))
    e("s_add_u32 s%d, s%d, s%d" % (S_E, S_E, S_A))
    e("s_add_u32 s%d, s%d, 0x%x" % (S_E, S_E, 3072 * 256))
    e("v_xor_b32 v%d, v2, v3" % V_T0)
    e("v_lshlrev_b32 v%d, 4, v%d" % (V_T0, V_T0))
    e("v_lshl_add_u32 v%d, v3, 8, v%d" % (KO, V_T0))
    for i in range(1, 4): e("v_xor_b32 v%d, %d, v%d" % (KO + i, 64 * i, KO))
    e("s_waitcnt lgkmcnt(0)")
    if STAMPS: e("s_mov_b32 s%d, s%d" % (S_ST, S_TM))
    srd(SRD_WS, S_WS, WS_SIZE)
    e("buffer_load_dword v%d, v%d, s[%d:%d], 0 offen sc1" % (EP, V_Z, SRD_WS, SRD_WS + 3))
    e("s_cmp_ge_u32 s%d, 4" % S_WAVE)
    e("s_cbranch_scc1 L_a_noissue0")
    srd(SRD_W, S_V, 32 << 20)
    srd(SRD_X, S_K, 32 << 20)
    def thr(c):
        if AWIN <= c < ATHR: e("s_waitcnt vmcnt(%d)" % (AWIN - 1))
    dma_run(SRD_W, ab, S_E, 1024, L_W0, 16, 0, 16, pre=thr)
    dma_run(SRD_X, lambda m: KO + (m & 3), S_E, 1024, L_W1, 16, 0, 16, pre=lambda m: thr(16 + m))
    lab("L_a_noissue0")
    srd(SRD_O, S_DBG, 256)
    xcc_publish(V_T0, SRD_O)
    stamp(1)
    common_consts()
    e("v_lshlrev_b32 v%d, 4, v1" % V_G)
    tr256_addr(V_TR, V_T0)
    e("v_xor_b32 v%d, v2, v3" % V_T0)
    e("v_lshlrev_b32 v%d, 4, v%d" % (V_T0, V_T0))
    e("v_lshl_add_u32 v%d, v2, 8, v%d" % (V_T0, V_T0))
    e("s_lshl_b32 s%d, s%d, 13" % (S_A, S_WAVE))
    e("s_add_u32 s%d, s%d, %d" % (S_A, S_A, L_W1))
    e("v_add_u32 v%d, s%d, v%d" % (KA, S_A, V_T0))
    for i in range(1, 4): e("v_xor_b32 v%d, %d, v%d" % (KA + i, 64 * i, KA))
    act_rd_addr(QE, QO, V_T0, L_QB)
    act_rd_addr(V_AE, V_AO, V_T0, L_PB)
    e("v_bfe_u32 v%d, v1, 2, 3" % V_T2)
    sigma_of(V_T0, V_T2, V_T1)
    e("v_xor_b32 v%d, s%d, v%d" % (V_T0, S_WAVE, V_T0))
    e("v_lshlrev_b32 v%d, 4, v%d" % (V_T0, V_T0))
    e("v_lshrrev_b32 v%d, 2, v1" % V_T1)
    e("v_lshl_add_u32 v%d, v%d, 7, v%d" % (V_T0, V_T1, V_T0))
    e("v_and_b32 v%d, 3, v1" % V_T1)
    e("v_lshl_add_u32 v%d, v%d, 2, v%d" % (V_T0, V_T1, V_T0))
    e("v_add_u32 v%d, %d, v%d" % (QW, L_QB, V_T0))
    e("v_and_b32 v%d, 2, v3" % V_T0)
    e("s_and_b32 s%d, s%d, 1" % (S_A, S_WAVE))
    e("v_or_b32 v%d, s%d, v%d" % (V_T0, S_A, V_T0))
    e("v_and_b32 v%d, 7, v1" % V_T1)
    e("v_xor_b32 v%d, v%d, v%d" % (V_T0, V_T0, V_T1))
    e("v_lshlrev_b32 v%d, 4, v%d" % (V_T0, V_T0))
    e("v_lshrrev_b32 v%d, 1, v3" % V_T1)
    e("v_lshl_add_u32 v%d, v%d, 7, v%d" % (V_T0, V_T1, V_T0))
    e("v_and_b32 v%d, 1, v3" % V_T1)
    e("v_lshl_add_u32 v%d, v%d, 3, v%d" % (V_T0, V_T1, V_T0))
    e("s_lshl_b32 s%d, s%d, 9" % (S_A, S_WAVE))
    e("s_add_u32 s%d, s%d, %d" % (S_A, S_A, L_PB))
    e("v_add_u32 v%d, s%d, v%d" % (PW0, S_A, V_T0))
    e("v_xor_b32 v%d, 64, v%d" % (PW1, PW0))
    e("v_and_b32 v%d, 7, v1" % V_T0)
    e("v_lshlrev_b32 v%d, 2, v%d" % (XA, V_T0))
    e("v_lshlrev_b32 v%d, 6, v%d" % (V_T0, V_T0))
    e("v_add_u32 v%d, %d, v%d" % (SR, L_MX, V_T0))
    e("s_lshl_b32 s%d, s%d, 2" % (S_A, S_WAVE))
    e("v_add_u32 v%d, s%d, v%d" % (SW, S_A, SR))
    e("s_lshl_b32 s%d, s%d, 3" % (S_A, S_C))
    e("s_add_u32 s%d, s%d, s%d" % (S_A, S_A, S_WAVE))
    e("s_lshl_b32 s%d, s%d, 15" % (S_A, S_A))
    e("s_lshl_b32 s%d, s%d, 10" % (S_B, S_XCD))
    e("s_add_u32 s%d, s%d, s%d" % (S_A, S_A, S_B))
    e("s_add_u32 s80, s%d, 0x%x" % (S_A, WS_H1))
    for i in range(1, 4): e("s_add_u32 s%d, s80, %d" % (80 + i, 8192 * i))
    e("s_lshl_b32 s%d, s%d, 3" % (S_A, S_C))
    e("s_add_u32 s%d, s%d, s%d" % (S_A, S_A, S_XCD))
    e("s_lshl_b32 s%d, s%d, 14" % (S_A, S_A))
    e("s_add_u32 s%d, s%d, 0x%x" % (S_A, S_A, WS_H2))
    e("s_lshl_b32 s%d, s%d, 10" % (S_B, S_D))
    e("s_add_u32 s87, s%d, s%d" % (S_A, S_B))
    for i in range(1, 4): e("s_add_u32 s%d, s87, %d" % (87 + i, 4096 * i))
    e("s_lshl_b32 s%d, s%d, 12" % (S_B, S_D))
    e("s_add_u32 s%d, s%d, s%d" % (S_A, S_A, S_B))
    e("s_lshl_b32 s%d, s%d, 6" % (S_B, S_WAVE))
    e("s_add_u32 s84, s%d, s%d" % (S_A, S_B))
    e("v_and_b32 v%d, 7, v1" % V_T0)
    e("v_lshlrev_b32 v%d, 9, v%d" % (V_PUB, V_T0))
    e("v_lshl_add_u32 v%d, v3, 4, v%d" % (V_PUB, V_PUB))
    e("s_lshl_b32 s%d, s%d, 3" % (S_A, S_SLOT))
    e("s_add_u32 s%d, s%d, s%d" % (S_A, S_A, S_XCD))
    e("s_lshl_b32 s%d, s%d, 10" % (S_A, S_A))
    e("s_add_u32 s91, s%d, 0x%x" % (S_A, WS_H2G))
    e("s_mov_b32 s96, %s" % f32(LOG2E))
    e("s_cmp_lt_u32 s%d, 4" % S_WAVE)
    e("s_cbranch_scc1 L_a_real")
    if not NOTOUCH:
        e("s_cmp_lg_u32 s%d, 4" % S_WAVE)
        e("s_cbranch_scc1 L_a_notouch")
        e("v_and_b32 v%d, 7, v1" % V_T0)
        e("v_lshlrev_b32 v%d, 7, v%d" % (V_T0, V_T0))
        e("v_bfe_u32 v%d, v1, 3, 2" % V_T1)
        e("v_lshl_add_u32 v%d, v%d, 12, v%d" % (V_T0, V_T1, V_T0))
        touch([(V_T0, 87, 0), (V_Z, 80, 0), (V_Z, 91, 0)])
        lab("L_a_notouch")
    if NODRY: e("s_branch L_a_real0")
    set_dry()
    e("s_branch L_a_att")
    lab("L_a_real0")
    e("s_waitcnt vmcnt(0)")
    lab("L_a_real")
    set_real()
    e("s_waitcnt vmcnt(%d)" % TRIGV)
    make_tag(EP)
    notr = uid("notr")
    e("s_cmp_lg_u32 s%d, 0" % S_WAVE)
    e("s_cbranch_scc1 %s" % notr)
    e("s_lshl_b32 s%d, s%d, 3" % (S_A, S_SLOT))
    e("s_or_b32 s%d, s%d, s%d" % (S_A, S_A, S_XCD))
    e("s_lshl_b32 s%d, s%d, 7" % (S_A, S_A))
    e("s_add_u32 s%d, s%d, 0x%x" % (S_A, S_A, WS_TRIG))
    e("s_mov_b64 exec, 1")
    e("buffer_store_dwordx2 v[%d:%d], v%d, s[%d:%d], s%d offen sc1" % (V_P + 2, V_P + 3, V_Z, SRD_WS, SRD_WS + 3, S_A))
    e("s_mov_b64 exec, -1")
    lab(notr)
    e("s_waitcnt vmcnt(16)")
    e("s_barrier")
    stamp(2)
    tr256_read(V_WF, V_TR)
    lab("L_a_att")
    if BELL1: doorbell(V_G, 80, 3)
    top = poll_begin()
    for k in range(4):
        e("buffer_load_dwordx4 v[%d:%d], v%d, s[%d:%d], s%d offen sc1" % (V_L + 4 * k, V_L + 4 * k + 3, V_G, SRD_WS, SRD_WS + 3, 80 + k))
    xcc_load(V_L + 16, XA, SRD_O)
    poll_end(top, [chk64(V_L + 4 * k + 2) for k in range(4)] + xcc_checks(V_L + 16, V_T0))
    stamp(4)
    e("v_add_f32 v%d, v%d, v%d" % (V_L, V_L, V_L + 4))
    e("v_add_f32 v%d, v%d, v%d" % (V_L + 1, V_L + 1, V_L + 5))
    e("v_add_f32 v%d, v%d, v%d" % (V_L + 8, V_L + 8, V_L + 12))
    e("v_add_f32 v%d, v%d, v%d" % (V_L + 9, V_L + 9, V_L + 13))
    e("v_add_f32 v%d, v%d, v%d" % (V_L, V_L, V_L + 8))
    e("v_add_f32 v%d, v%d, v%d" % (V_L + 1, V_L + 1, V_L + 9))
    e("v_cvt_pk_bf16_f32 v%d, v%d, v%d" % (V_T0, V_L, V_L + 1))
    e("ds_write_b32 v%d, v%d" % (QW, V_T0))
    xcc_decide(V_L + 16)
    e("s_waitcnt lgkmcnt(0)")
    barrier(True)
    for sg in range(4):
        e("ds_read_b128 v[%d:%d], v%d offset:%d" % (V_AF + 4 * sg, V_AF + 4 * sg + 3, QO if (sg & 1) else QE, sg * 512))
        for t in range(2):
            r = V_KF + 16 * t + 4 * sg
            e("ds_read_b128 v[%d:%d], v%d offset:%d" % (r, r + 3, KA + sg, t * 4096))
    S0, S1 = V_U, V_U + 4
    for sg in range(4):
        for t, acc in ((0, S0), (1, S1)):
            e("s_waitcnt lgkmcnt(%d)" % (3 * (3 - sg) + 1 - t))
            e(mfma(acc, V_KF + 16 * t + 4 * sg, V_AF + 4 * sg, None if sg == 0 else acc))
    e("s_nop 6")
    W = V_U + 16
    for i in range(4):
        e("v_cvt_pk_bf16_f32 v%d, v%d, v%d" % (W + i, V_U + 2 * i, V_U + 2 * i + 1))
    for i in range(4):
        unpack(V_U + 2 * i, V_U + 2 * i + 1, W + i)
    for i in range(8):
        e("v_mul_f32 v%d, %s, v%d" % (V_U + i, f32(128 ** -0.5), V_U + i))
    for i in range(4):
        e("v_cvt_pk_bf16_f32 v%d, v%d, v%d" % (W + i, V_U + 2 * i, V_U + 2 * i + 1))
    for i in range(4):
        unpack(V_U + 2 * i, V_U + 2 * i + 1, W + i)
    e("v_max3_f32 v%d, v%d, v%d, v%d" % (V_M, V_U, V_U + 1, V_U + 2))
    e("v_max3_f32 v%d, v%d, v%d, v%d" % (V_T0, V_U + 3, V_U + 4, V_U + 5))
    e("v_max3_f32 v%d, v%d, v%d, v%d" % (V_M, V_M, V_U + 6, V_U + 7))
    e("v_max_f32 v%d, v%d, v%d" % (V_M, V_M, V_T0))
    emit(xrow_ops(V_M, V_T0, "v_max_f32"))
    for i in range(8):
        e("v_sub_f32 v%d, v%d, v%d" % (V_U + i, V_U + i, V_M))
    for i in range(8):
        e("v_mul_f32 v%d, s96, v%d" % (V_U + i, V_U + i))
    for i in range(8):
        e("v_exp_f32 v%d, v%d" % (V_U + i, V_U + i))
    e("v_mul_f32 v%d, s96, v%d" % (V_M, V_M))
    for i in range(4):
        e("v_cvt_pk_bf16_f32 v%d, v%d, v%d" % (W + i, V_U + 2 * i, V_U + 2 * i + 1))
    e("ds_write_b64 v%d, v[%d:%d]" % (PW0, W, W + 1))
    e("ds_write_b64 v%d, v[%d:%d] offset:256" % (PW1, W + 2, W + 3))
    e("v_add_f32 v%d, v%d, v%d" % (V_SUM, V_U, V_U + 1))
    e("v_add_f32 v%d, v%d, v%d" % (V_T1, V_U + 2, V_U + 3))
    e("v_add_f32 v%d, v%d, v%d" % (V_T2, V_U + 4, V_U + 5))
    e("v_add_f32 v%d, v%d, v%d" % (V_T3, V_U + 6, V_U + 7))
    e("v_add_f32 v%d, v%d, v%d" % (V_SUM, V_SUM, V_T1))
    e("v_add_f32 v%d, v%d, v%d" % (V_T2, V_T2, V_T3))
    e("v_add_f32 v%d, v%d, v%d" % (V_SUM, V_SUM, V_T2))
    emit(xrow_ops(V_SUM, V_T0))
    e("ds_write2_b32 v%d, v%d, v%d offset0:0 offset1:8" % (SW, V_M, V_SUM))
    e("s_waitcnt lgkmcnt(0)")
    barrier(True)
    stamp(5)
    MS, LS = V_L, V_L + 8
    for i in range(4):
        e("ds_read_b128 v[%d:%d], v%d offset:%d" % (V_L + 4 * i, V_L + 4 * i + 3, SR, 16 * i))
    for m in range(8):
        e("ds_read_b128 v[%d:%d], v%d offset:%d" % (V_AF + 4 * m, V_AF + 4 * m + 3, V_AO if (m & 1) else V_AE, m * 512))
    AC = V_U
    side = ["v_max3_f32 v%d, v%d, v%d, v%d" % (V_M, MS, MS + 1, MS + 2),
            "v_max3_f32 v%d, v%d, v%d, v%d" % (V_T0, MS + 3, MS + 4, MS + 5),
            "v_max3_f32 v%d, v%d, v%d, v%d" % (V_M, V_M, MS + 6, MS + 7),
            "v_max_f32 v%d, v%d, v%d" % (V_M, V_M, V_T0)]
    side += ["v_sub_f32 v%d, v%d, v%d" % (MS + i, MS + i, V_M) for i in range(8)]
    side += ["v_exp_f32 v%d, v%d" % (MS + i, MS + i) for i in range(8)]
    side += ["v_mul_f32 v%d, v%d, v%d" % (V_SUM, LS, MS)]
    side += ["v_fmac_f32 v%d, v%d, v%d" % (V_SUM, LS + i, MS + i) for i in range(1, 8)]
    side += ["v_rcp_f32 v%d, v%d" % (V_T0, V_SUM), "v_log_f32 v%d, v%d" % (V_T1, V_SUM), "s_nop 0",
             "v_add_f32 v%d, v%d, v%d" % (V_P + 2, V_T1, V_M)]
    per = (len(side) + 7) // 8
    for m in range(8):
        e("s_waitcnt lgkmcnt(%d)" % (7 - m))
        e(mfma(AC + 4 * m, V_WF + 4 * m, V_AF + 4 * m, None))
        emit(side[m * per:(m + 1) * per])
    for k in range(4):
        e("v_mul_f32 v%d, v%d, v%d" % (V_ACC + k, AC + k, MS))
    for m in range(1, 8):
        for k in range(4):
            e("v_fmac_f32 v%d, v%d, v%d" % (V_ACC + k, AC + 4 * m + k, MS + m))
    for k in range(4):
        e("v_mul_f32 v%d, v%d, v%d" % (V_ACC + k, V_ACC + k, V_T0))
    e("v_cvt_pk_bf16_f32 v%d, v%d, v%d" % (V_P, V_ACC, V_ACC + 1))
    e("v_cvt_pk_bf16_f32 v%d, v%d, v%d" % (V_P + 1, V_ACC + 2, V_ACC + 3))
    store_l("buffer_store_dwordx4 v[%d:%d], v%d, s[%d:%d], s84 offen" % (V_P, V_P + 3, V_PUB, SRD_WS, SRD_WS + 3), "lo8")
    stamp(6)
    e("s_sub_u32 s%d, s%d, 1" % (S_A, S_WAVE))
    e("s_cmp_lt_u32 s%d, 3" % S_A)
    e("s_cbranch_scc1 L_a_nocomb")
    e("s_cmp_lg_u32 s%d, 0" % S_DRY)
    e("s_cbranch_scc1 L_a_comb")
    e("s_cmp_lg_u32 s%d, 0" % S_WAVE)
    e("s_cbranch_scc1 L_a_nocomb")
    lab("L_a_comb")
    top = poll_begin()
    for s in range(4):
        e("buffer_load_dwordx4 v[%d:%d], v%d, s[%d:%d], s%d offen sc1" % (V_L + 4 * s, V_L + 4 * s + 3, V_G, SRD_WS, SRD_WS + 3, 87 + s))
    poll_end(top, [chk32(V_L + 4 * s + 3) for s in range(4)])
    Ls = [V_L + 4 * s + 2 for s in range(4)]
    e("v_max3_f32 v%d, v%d, v%d, v%d" % (V_T0, Ls[0], Ls[1], Ls[2]))
    e("v_max_f32 v%d, v%d, v%d" % (V_T0, V_T0, Ls[3]))
    for s in range(4): e("v_sub_f32 v%d, v%d, v%d" % (Ls[s], Ls[s], V_T0))
    for s in range(4): e("v_exp_f32 v%d, v%d" % (Ls[s], Ls[s]))
    for s in range(4):
        unpack(V_U + 4 * s, V_U + 4 * s + 1, V_L + 4 * s)
        unpack(V_U + 4 * s + 2, V_U + 4 * s + 3, V_L + 4 * s + 1)
    e("v_add_f32 v%d, v%d, v%d" % (V_T0, Ls[0], Ls[1]))
    e("v_add_f32 v%d, v%d, v%d" % (V_T1, Ls[2], Ls[3]))
    e("v_add_f32 v%d, v%d, v%d" % (V_T0, V_T0, V_T1))
    e("v_rcp_f32 v%d, v%d" % (V_T0, V_T0))
    for k in range(4):
        e("v_mul_f32 v%d, v%d, v%d" % (V_U + k, V_U + k, Ls[0]))
    for s in range(1, 4):
        for k in range(4):
            e("v_fmac_f32 v%d, v%d, v%d" % (V_U + k, V_U + 4 * s + k, Ls[s]))
    for k in range(4):
        e("v_mul_f32 v%d, v%d, v%d" % (V_U + k, V_U + k, V_T0))
    e("v_cvt_pk_bf16_f32 v%d, v%d, v%d" % (V_U + 16, V_U, V_U + 1))
    e("v_cvt_pk_bf16_f32 v%d, v%d, v%d" % (V_U + 17, V_U + 2, V_U + 3))
    e("v_mov_b32 v%d, s%d" % (V_U + 18, S_T))
    e("v_mov_b32 v%d, s%d" % (V_U + 19, S_T))
    store_g("buffer_store_dwordx4 v[%d:%d], v%d, s[%d:%d], s91 offen" % (V_U + 16, V_U + 19, V_G, SRD_WS, SRD_WS + 3))
    stamp(13)
    lab("L_a_nocomb")
    e("s_cmp_lg_u32 s%d, 0" % S_DRY)
    e("s_cbranch_scc1 L_a_real0")
    e("s_lshr_b32 s%d, s%d, 7" % (S_D, S_WG))
    e("s_mul_i32 s%d, s%d, 7" % (S_A, S_XCD))
    e("s_add_u32 s%d, s%d, s%d" % (S_D, S_D, S_A))
    e("s_sub_u32 s%d, 3, s%d" % (S_D, S_D))
    e("s_and_b32 s%d, s%d, 7" % (S_D, S_D))
    e("s_mov_b32 s99, 0")
    e("s_cmp_ge_u32 s%d, 7" % S_SLOT)
    e("s_cselect_b32 s%d, 7, 0" % S_B)
    e("s_cselect_b32 s%d, 1, 0" % S_E)
    e("s_sub_u32 s%d, s%d, s%d" % (S_C, S_SLOT, S_B))
    e("s_cmp_eq_u32 s%d, s%d" % (S_C, S_D))
    e("s_cselect_b32 s99, 1, 0")
    e("s_cmp_lt_u32 s%d, 14" % S_SLOT)
    e("s_cbranch_scc1 L_a_nohelp")
    e("s_cmp_eq_u32 s%d, 7" % S_D)
    e("s_cbranch_scc1 L_a_done")
    e("s_mov_b32 s%d, s%d" % (S_C, S_D))
    e("s_sub_u32 s%d, s%d, 14" % (S_E, S_SLOT))
    e("s_mov_b32 s99, 2")
    lab("L_a_nohelp")
    e("s_mov_b32 s96, s%d" % S_E)
    e("s_cmp_lg_u32 s%d, 0" % S_E)
    e("s_cselect_b32 s%d, s%d, s%d" % (SRD_W, S_WU, S_WG))
    e("s_cselect_b32 s%d, s%d, s%d" % (S_A, S_WU + 1, S_WG + 1))
    e("s_cselect_b32 s85, 0x%x, 0" % (WS_H4U - WS_H4S))
    e("s_add_u32 s85, s85, 0x%x" % WS_H4S)
    e("s_and_b32 s%d, s%d, 0xffff" % (SRD_W + 1, S_A))
    e("s_mov_b32 s%d, 0x%x" % (SRD_W + 2, 1024 * 7168))
    e("s_mov_b32 s%d, 0x20000" % (SRD_W + 3))
    e("s_mul_i32 s%d, s%d, 7" % (S_A, S_XCD))
    e("s_add_u32 s%d, s%d, s%d" % (S_C, S_C, S_A))
    GO = V_X1
    e("v_lshrrev_b32 v%d, 3, v1" % V_T0)
    e("v_bfe_u32 v%d, v1, 4, 1" % V_T1)
    e("v_and_b32 v%d, 7, v1" % V_T2)
    e("v_xor_b32 v%d, v%d, v%d" % (V_T1, V_T1, V_T2))
    e("v_lshlrev_b32 v%d, 4, v%d" % (V_T1, V_T1))
    e("v_mul_u32_u24 v%d, 7168, v%d" % (GO, V_T0))
    e("v_add_u32 v%d, v%d, v%d" % (GO, GO, V_T1))
    for i in range(1, 4): e("v_xor_b32 v%d, %d, v%d" % (GO + i, 32 * i, GO))
    e("s_lshl_b32 s%d, s%d, 5" % (S_E, S_WAVE))
    e("s_mov_b32 s%d, 4" % S_D)
    e("s_cmp_eq_u32 s99, 0")
    e("s_cbranch_scc1 L_a_whole")
    e("s_lshl_b32 s%d, s%d, 4" % (S_E, S_WAVE))
    e("s_sub_u32 s%d, s99, 1" % S_A)
    e("s_lshl_b32 s%d, s%d, 6" % (S_A, S_A))
    e("s_add_u32 s%d, s%d, s%d" % (S_E, S_E, S_A))
    e("s_mov_b32 s%d, 2" % S_D)
    lab("L_a_whole")
    e("s_mul_i32 s%d, s%d, %d" % (S_A, S_E, 8 * 7168))
    e("s_lshl_b32 s%d, s%d, 7" % (S_B, S_C))
    e("s_add_u32 s%d, s%d, s%d" % (S_A, S_A, S_B))
    e("s_lshl_b32 s%d, s%d, 10" % (S_B, S_E))
    e("s_barrier")
    e("s_cmp_ge_u32 s%d, 4" % S_WAVE)
    e("s_cbranch_scc1 L_a_gusetup")
    lab("L_a_guld")
    for m in range(8):
        e("s_mov_b32 m0, s%d" % S_B)
        e("s_add_u32 s%d, s%d, 1024" % (S_B, S_B))
        var = (m & 1) | (((m >> 2) & 1) << 1)
        e("buffer_load_dwordx4 v%d, s[%d:%d], s%d offen nt lds" % (GO + var, SRD_W, SRD_W + 3, S_A))
        e("s_add_u32 s%d, s%d, %d" % (S_A, S_A, 8 * 7168))
    e("s_sub_u32 s%d, s%d, 1" % (S_D, S_D))
    e("s_cmp_lg_u32 s%d, 0" % S_D)
    e("s_cbranch_scc1 L_a_guld")
    stamp(7)
    lab("L_a_gusetup")
    e("v_bfe_u32 v%d, v1, 3, 1" % V_T0)
    e("v_and_b32 v%d, 1, v3" % V_T1)
    e("v_lshl_or_b32 v%d, v%d, 1, v%d" % (V_T0, V_T1, V_T0))
    e("v_bfe_u32 v%d, v1, 1, 1" % V_T1)
    e("v_lshl_or_b32 v%d, v%d, 2, v%d" % (V_T0, V_T1, V_T0))
    e("v_xor_b32 v%d, s%d, v%d" % (V_T0, S_WAVE, V_T0))
    e("v_lshlrev_b32 v%d, 4, v%d" % (V_T0, V_T0))
    e("v_bfe_u32 v%d, v1, 2, 2" % V_T2)
    e("v_lshl_add_u32 v%d, v3, 3, v%d" % (V_T2, V_T2))
    e("v_lshl_add_u32 v%d, v%d, 5, v%d" % (V_T2, V_T1, V_T2))
    e("v_lshl_add_u32 v%d, v%d, 7, v%d" % (V_T0, V_T2, V_T0))
    e("v_and_b32 v%d, 1, v1" % V_T1)
    e("v_lshl_add_u32 v%d, v%d, 3, v%d" % (V_TR, V_T1, V_T0))
    e("v_add_u32 v%d, 0x10000, v%d" % (V_VA, V_TR))
    e("v_lshrrev_b32 v%d, 3, v2" % V_T0)
    e("v_lshl_or_b32 v%d, v3, 1, v%d" % (V_T1, V_T0))
    e("v_and_b32 v%d, 7, v1" % V_T2)
    e("v_xor_b32 v%d, v%d, v%d" % (V_T1, V_T1, V_T2))
    e("v_lshlrev_b32 v%d, 4, v%d" % (V_T1, V_T1))
    e("v_lshl_add_u32 v%d, v%d, 2, v3" % (V_T0, V_T0))
    e("v_lshl_add_u32 v%d, v%d, 7, v%d" % (V_T1, V_T0, V_T1))
    e("v_add_u32 v%d, %d, v%d" % (V_AE, L_ACT, V_T1))
    e("v_lshlrev_b32 v%d, 3, v%d" % (V_T2, V_T2))
    e("v_add_u32 v%d, %d, v%d" % (V_AO, L_MX, V_T2))
    e("s_lshl_b32 s%d, s%d, 3" % (S_A, S_WAVE))
    e("s_add_u32 s%d, s%d, %d" % (S_A, S_A, L_MX))
    e("v_mov_b32 v%d, s%d" % (V_RED, S_A))
    pos_write_addr(V_AW, L_ACT)
    e("s_lshl_b32 s%d, s%d, 12" % (S_A, S_WAVE))
    e("s_add_u32 s86, s%d, 0x%x" % (S_A, WS_H3B))
    e("s_lshl_b32 s%d, s%d, 11" % (S_A, S_C))
    e("s_lshl_b32 s%d, s%d, 8" % (S_B, S_WAVE))
    e("s_add_u32 s%d, s%d, s%d" % (S_A, S_A, S_B))
    e("s_add_u32 s85, s85, s%d" % S_A)
    e("v_and_b32 v%d, 1, v3" % V_T0)
    e("v_lshlrev_b32 v%d, 7, v%d" % (V_PUB, V_T0))
    e("v_and_b32 v%d, 7, v1" % V_T0)
    e("v_lshl_add_u32 v%d, v%d, 4, v%d" % (V_PUB, V_T0, V_PUB))
    e("v_lshrrev_b32 v%d, 1, v3" % V_T0)
    e("v_lshl_add_u32 v%d, v%d, 3, v%d" % (V_PUB, V_T0, V_PUB))
    e("s_lshl_b32 s%d, s96, 1" % S_A)
    e("s_add_u32 s%d, s%d, s99" % (S_A, S_A))
    e("s_sub_u32 s%d, s%d, 1" % (S_A, S_A))
    e("s_lshl_b32 s%d, s%d, 3" % (S_A, S_A))
    e("s_add_u32 s%d, s%d, s%d" % (S_A, S_A, S_XCD))
    e("s_lshl_b32 s%d, s%d, 12" % (S_A, S_A))
    e("s_lshl_b32 s%d, s%d, 9" % (S_B, S_WAVE))
    e("s_add_u32 s%d, s%d, s%d" % (S_A, S_A, S_B))
    e("s_add_u32 s84, s%d, 0x%x" % (S_A, WS_H4P))
    e("v_lshlrev_b32 v%d, 1, v%d" % (V_H, V_PUB))
    e("v_mov_b32 v%d, s%d" % (V_ACC + 6, S_T))
    e("v_mov_b32 v%d, s%d" % (V_ACC + 7, S_T))
    ONE = V_WF
    CS = V_WF + 4
    for k in range(4): e("v_mov_b32 v%d, 0x3f803f80" % (ONE + k))
    e("v_mov_b32 v%d, s%d" % (V_P + 1, S_T))
    e("s_mov_b64 s[%d:%d], s[%d:%d]" % (80, 81, S_ML, S_ML + 1))
    e("s_mov_b64 s[%d:%d], s[%d:%d]" % (82, 83, S_MG, S_MG + 1))
    e("s_cmp_lt_u32 s%d, 4" % S_WAVE)
    e("s_cbranch_scc1 L_a_gureal")
    if NODRY: e("s_branch L_a_gureal")
    set_dry()
    e("s_branch L_a_gutop")
    lab("L_a_gureal")
    set_real()
    e("s_mov_b64 s[%d:%d], s[%d:%d]" % (S_ML, S_ML + 1, 80, 81))
    e("s_mov_b64 s[%d:%d], s[%d:%d]" % (S_MG, S_MG + 1, 82, 83))
    e("s_waitcnt vmcnt(0)")
    e("s_barrier")
    lab("L_a_gutop")
    GF = V_KF
    for m in range(16):
        for h in range(2):
            e("ds_read_b64_tr_b16 v[%d:%d], v%d offset:%d" % (GF + 4 * m + 2 * h, GF + 4 * m + 2 * h + 1, V_TR if m < 8 else V_VA, (m & 7) * 8192 + h * 512))
    e("s_waitcnt lgkmcnt(0)")
    e("s_cmp_lg_u32 s99, 1")
    e("s_cbranch_scc1 L_a_z1")
    for k in range(32, 64): e("v_mov_b32 v%d, 0" % (GF + k))
    lab("L_a_z1")
    e("s_cmp_lg_u32 s99, 2")
    e("s_cbranch_scc1 L_a_z2")
    for k in range(0, 32): e("v_mov_b32 v%d, 0" % (GF + k))
    lab("L_a_z2")
    e("s_nop 1")
    for m in range(16):
        e(mfma(CS, GF + 4 * m, ONE, None if m == 0 else CS))
    e("s_nop 7")
    e("v_permlane32_swap_b32 v%d, v%d" % (CS, CS + 2))
    e("v_permlane32_swap_b32 v%d, v%d" % (CS + 1, CS + 3))
    e("s_nop 1")
    e("v_add_f32_dpp v%d, v%d, v%d row_shl:8 row_mask:0xf bank_mask:0xf" % (CS, CS + 2, CS))
    e("v_add_f32_dpp v%d, v%d, v%d row_shl:8 row_mask:0xf bank_mask:0xf" % (CS + 1, CS + 3, CS + 1))
    stamp(8)
    doorbell(V_G, 86, 3)
    top = poll_begin()
    for n in range(4):
        e("buffer_load_dwordx4 v[%d:%d], v%d, s[%d:%d], s86 offen offset:%d sc1" % (V_L + 4 * n, V_L + 4 * n + 3, V_G, SRD_WS, SRD_WS + 3, n * 1024))
    poll_end(top, [chk64(V_L + 4 * n + 2) for n in range(4)])
    for n in range(4):
        e("ds_write_b64 v%d, v[%d:%d] offset:%d" % (V_AW, V_L + 4 * n, V_L + 4 * n + 1, n * 4096))
    stamp(9)
    side = ln_stats_dot_ops([V_L + 4 * (i >> 1) + (i & 1) for i in range(8)], ONE, V_SUM, V_SQ, V_T0, V_M, V_RS)
    emit(side[:16])
    side = side[16:]
    e("s_waitcnt lgkmcnt(0)")
    barrier(True)
    stamp(10)
    for m in range(16):
        e("ds_read_b128 v[%d:%d], v%d offset:%d" % (V_AF + 4 * m, V_AF + 4 * m + 3, V_AE, m * 1024))
    per = (len(side) + 11) // 12
    for m in range(16):
        e("s_waitcnt lgkmcnt(%d)" % (15 - m))
        e(mfma(V_ACC, GF + 4 * m, V_AF + 4 * m, None if m == 0 else V_ACC))
        if m < 15: emit(side[m * per:(m + 1) * per])
    e("ds_write_b64 v%d, v[%d:%d]" % (V_RED, V_M, V_RS))
    e("s_waitcnt lgkmcnt(0)")
    barrier(True)
    e("ds_read_b64 v[%d:%d], v%d" % (V_M, V_RS, V_AO))
    e("s_nop 3")
    e("v_permlane32_swap_b32 v%d, v%d" % (V_ACC, V_ACC + 2))
    e("v_permlane32_swap_b32 v%d, v%d" % (V_ACC + 1, V_ACC + 3))
    e("s_nop 1")
    e("v_add_f32_dpp v%d, v%d, v%d row_shl:8 row_mask:0xf bank_mask:0xf" % (V_ACC, V_ACC + 2, V_ACC))
    e("v_add_f32_dpp v%d, v%d, v%d row_shl:8 row_mask:0xf bank_mask:0xf" % (V_ACC + 1, V_ACC + 3, V_ACC + 1))
    e("s_waitcnt lgkmcnt(0)")
    e("v_fma_f32 v%d, -v%d, v%d, v%d" % (V_ACC, V_M, CS, V_ACC))
    e("v_fma_f32 v%d, -v%d, v%d, v%d" % (V_ACC + 1, V_M, CS + 1, V_ACC + 1))
    e("v_mul_f32 v%d, v%d, v%d" % (V_ACC, V_ACC, V_RS))
    e("v_mul_f32 v%d, v%d, v%d" % (V_ACC + 1, V_ACC + 1, V_RS))
    e("s_cmp_lg_u32 s99, 0")
    e("s_cbranch_scc1 L_a_part")
    e("v_cvt_pk_bf16_f32 v%d, v%d, v%d" % (V_P, V_ACC, V_ACC + 1))
    nosig = uid("nosig")
    e("s_cmp_lg_u32 s96, 0")
    e("s_cbranch_scc1 %s" % nosig)
    unpack(V_U, V_U + 1, V_P)
    e("v_mul_f32 v%d, %s, v%d" % (V_U, f32(-LOG2E), V_U))
    e("v_mul_f32 v%d, %s, v%d" % (V_U + 1, f32(-LOG2E), V_U + 1))
    e("v_exp_f32 v%d, v%d" % (V_U, V_U))
    e("v_exp_f32 v%d, v%d" % (V_U + 1, V_U + 1))
    e("s_nop 0")
    e("v_add_f32 v%d, 1.0, v%d" % (V_U, V_U))
    e("v_add_f32 v%d, 1.0, v%d" % (V_U + 1, V_U + 1))
    e("v_rcp_f32 v%d, v%d" % (V_U, V_U))
    e("v_rcp_f32 v%d, v%d" % (V_U + 1, V_U + 1))
    e("s_nop 0")
    e("v_cvt_pk_bf16_f32 v%d, v%d, v%d" % (V_P, V_U, V_U + 1))
    lab(nosig)
    store_l("buffer_store_dwordx2 v[%d:%d], v%d, s[%d:%d], s85 offen" % (V_P, V_P + 1, V_PUB, SRD_WS, SRD_WS + 3), "lo8")
    e("s_branch L_a_pubd")
    lab("L_a_part")
    e("v_mov_b32 v%d, v%d" % (V_P, V_ACC))
    e("v_mov_b32 v%d, v%d" % (V_P + 1, V_ACC + 1))
    store_l("buffer_store_dwordx4 v[%d:%d], v%d, s[%d:%d], s84 offen" % (V_P, V_P + 3, V_H, SRD_WS, SRD_WS + 3), "lo8")
    lab("L_a_pubd")
    e("s_cmp_lg_u32 s%d, 0" % S_DRY)
    e("s_cbranch_scc1 L_a_gureal")
    stamp(11)
    lab("L_a_done")
    stamps_flush(V_U)
    e("s_endpgm")

gen()
open(OUT, "w").write("\n".join(lines) + "\n")
print("wrote", OUT, len(lines), "lines")
```

```python
import sys, struct

NAME = "sequential_preLN__sliding_block_cached__glu_gated_glu__decode"
def opt(name, default):
    for a in sys.argv:
        if a.startswith("--%s=" % name): return a.split("=", 1)[1]
    return default
STSET = opt("st", None)
STAMPS = "--stamps" in sys.argv or STSET is not None
STSET = None if STSET is None else set(int(x) for x in STSET.split(","))
NOLOCAL = "--nolocal" in sys.argv
NODRY = "--nodry" in sys.argv
NOTOUCH = "--notouch" in sys.argv
NOBELL = "--nobell" in sys.argv
BELLSLEEP = int(opt("bellsleep", 2))
BELL5 = "--nobell5" not in sys.argv
BELL1 = "--bell1" in sys.argv
TRIG2 = "--trig2" in sys.argv
NOCLEAN = "--clean-on" not in sys.argv
CLEAN = opt("clean", "ab")
NLD = int(opt("nld", 4))
BELLFIRST = "--belllast" not in sys.argv
T2V = int(opt("t2v", 12))
DEARLY = "--dearly" in sys.argv
NOCODEPF = "--nocodepf" in sys.argv
SLEEP = int(opt("sleep", 1))
QFIRST = int(opt("qfirst", 8))
AWIN = int(opt("awin", 8))
ATHR = int(opt("athr", 0))
TRIGV = int(opt("trigv", 8))
OUT = [a for a in sys.argv[1:] if not a.startswith("--")]
OUT = OUT[0] if OUT else "cdna_kernels/%s.s" % NAME

lines = []
def e(s): lines.append("    " + s)
def lab(s): lines.append(s + ":")
def cmt(s): lines.append("    ; " + s)
_uid = [0]
def uid(p):
    _uid[0] += 1
    return "L_%s_%d" % (p, _uid[0])
def f32(x): return "0x%08x" % struct.unpack("<I", struct.pack("<f", x))[0]

WS_TRIG = 0x4000
WS_H1 = 0x100000
WS_H2 = 0x200000
WS_H3B = 0x280000
WS_H4S = 0x290000
WS_H4U = 0x2B0000
WS_H2G = 0x2E0000
WS_H4P = 0x500000
WS_H3A = 0x300000
WS_H5 = 0x400000
WS_TS = 0x600000
WS_SIZE = 0x800000

L_W0 = 0
L_W1 = 65536
L_ACT = 131072
L_QB = 147456
L_PB = 149504
L_MX = 153600
LDS_BYTES = 154112

S_X, S_K, S_V, S_WQ, S_WO, S_BX, S_WG, S_WU = 4, 6, 8, 10, 12, 14, 16, 18
S_WD, S_OUT, S_DBG, S_WS = 20, 22, 24, 26
S_WAVE, S_XCD, S_SLOT, S_T = 28, 29, 30, 31
SRD_W, SRD_WS, SRD_X, SRD_O = 32, 36, 40, 44
S_TT = 48
S_HI8 = 50
S_SPIN = 52
S_A, S_B, S_C, S_D, S_E, S_F = 53, 54, 55, 56, 57, 58
S_DRY = 59
S_TM = 60
S_ML = 62
S_ST = 64
S_MG = 92
S_FULL = 94
S_XCC, S_XOFF = 97, 98

LOG2E = 1.4426950408889634

V_VA, V_VB = 4, 5
V_TR = 6
V_AE, V_AO = 7, 8
V_T0, V_T1, V_T2, V_T3 = 9, 10, 11, 12
V_PUB, V_RED, V_H, V_XP, V_AW, V_G, V_Z = 13, 14, 15, 16, 17, 18, 19
V_ACC = 20
V_P = 24
V_M, V_RS, V_SQ, V_SUM = 28, 29, 30, 31
V_L = 32
V_U = 64
V_WF = 96
V_AF = 128
V_KF = 192
V_X1 = 224

def srd(dst, ptr, nbytes):
    e("s_mov_b32 s%d, s%d" % (dst, ptr))
    e("s_and_b32 s%d, s%d, 0xffff" % (dst + 1, ptr + 1))
    e("s_mov_b32 s%d, 0x%x" % (dst + 2, nbytes))
    e("s_mov_b32 s%d, 0x20000" % (dst + 3))

def stamp(k):
    if not STAMPS or (STSET is not None and k not in STSET): return
    e("s_memrealtime s[%d:%d]" % (S_TM, S_TM + 1))
    e("s_waitcnt lgkmcnt(0)")
    e("s_mov_b32 s%d, s%d" % (S_ST + k, S_TM))

def stamps_flush(vtmp):
    if not STAMPS: return
    e("s_mov_b64 exec, -1")
    for k in range(16):
        e("v_writelane_b32 v%d, s%d, %d" % (vtmp, S_ST + k, k))
    e("s_lshl_b32 s%d, s2, 9" % S_A)
    e("s_lshl_b32 s%d, s%d, 6" % (S_B, S_WAVE))
    e("s_add_u32 s%d, s%d, s%d" % (S_A, S_A, S_B))
    e("s_add_u32 s%d, s%d, 0x%x" % (S_A, S_A, WS_TS))
    e("v_lshlrev_b32 v%d, 2, v1" % (vtmp + 1))
    e("s_mov_b64 exec, 0xffff")
    e("buffer_store_dword v%d, v%d, s[%d:%d], s%d offen" % (vtmp, vtmp + 1, SRD_WS, SRD_WS + 3, S_A))

def full(): e("s_mov_b64 exec, s[%d:%d]" % (S_FULL, S_FULL + 1))

def barrier(dry=False):
    if dry:
        l = uid("nb")
        e("s_cbranch_execz %s" % l)
        e("s_barrier")
        lab(l)
    else:
        e("s_barrier")

def set_dry():
    e("s_mov_b64 s[%d:%d], 0" % (S_FULL, S_FULL + 1))
    e("s_mov_b64 s[%d:%d], 0" % (S_ML, S_ML + 1))
    e("s_mov_b64 s[%d:%d], 0" % (S_MG, S_MG + 1))
    e("s_mov_b32 s%d, 1" % S_DRY)
    e("s_mov_b32 s3, 8")
    full()

def set_real():
    e("s_mov_b64 s[%d:%d], -1" % (S_FULL, S_FULL + 1))
    e("s_mov_b32 s%d, 0" % S_DRY)
    e("s_mov_b32 s3, 2")
    full()

def dpp_add(dst, src, ctrl, op="v_add_f32"):
    return "%s_dpp v%d, v%d, v%d %s row_mask:0xf bank_mask:0xf" % (op, dst, src, src, ctrl)

def xrow_ops(v, t, op="v_add_f32"):
    return ["v_mov_b32 v%d, v%d" % (t, v), "s_nop 1", "v_permlane16_swap_b32 v%d, v%d" % (v, t), "s_nop 0",
            "%s v%d, v%d, v%d" % (op, v, v, t),
            "v_mov_b32 v%d, v%d" % (t, v), "s_nop 1", "v_permlane32_swap_b32 v%d, v%d" % (v, t), "s_nop 0",
            "%s v%d, v%d, v%d" % (op, v, v, t)]

def wave_allreduce_ops(v, t, op="v_add_f32"):
    o = []
    for r in (8, 4, 2, 1):
        o += ["s_nop 1", dpp_add(v, v, "row_ror:%d" % r, op)]
    return o + xrow_ops(v, t, op)

def bf16_round_ops(v):
    return ["v_cvt_pk_bf16_f32 v%d, v%d, v%d" % (v, v, v), "v_lshlrev_b32 v%d, 16, v%d" % (v, v)]

def unpack_ops(lo, hi, src):
    return ["v_lshlrev_b32 v%d, 16, v%d" % (lo, src), "v_and_b32 v%d, 0xffff0000, v%d" % (hi, src)]
def unpack(lo, hi, src):
    for x in unpack_ops(lo, hi, src): e(x)
def emit(ops):
    for x in ops: e(x)

def poll_begin(bell=None):
    if bell and BELLFIRST: doorbell(*bell)
    top = uid("poll")
    lab(top)
    e("s_cbranch_execz %s_nl" % top)
    return top

def poll_mid(top):
    lab(top + "_nl")
    top2 = top + "x"
    e("s_cbranch_execz %s_nl" % top2)
    return top2

def poll_end(top, checks, last=None, bell=None):
    ok = top + "_ok"
    e("s_waitcnt vmcnt(0)")
    lab((last or top) + "_nl")
    for c in checks: e(c)
    e("s_cmp_eq_u64 exec, s[%d:%d]" % (S_FULL, S_FULL + 1))
    full()
    e("s_cbranch_scc1 %s" % ok)
    if SLEEP: e("s_sleep %d" % SLEEP)
    if bell and not BELLFIRST: doorbell(*bell)
    e("s_sub_u32 s%d, s%d, 1" % (S_SPIN, S_SPIN))
    e("s_cbranch_scc0 %s" % top)
    e("s_mov_b32 s%d, 0" % S_SPIN)
    lab(ok)

def doorbell(va, so, tagpos, off=0):
    if NOBELL: return
    top = uid("bell")
    e("s_cbranch_execz %s_ok" % top)
    lab(top)
    e("s_mov_b64 exec, 1")
    e("buffer_load_dword v%d, v%d, s[%d:%d], s%d offen offset:%d sc1" % (V_T0, va, SRD_WS, SRD_WS + 3, so, off + 4 * tagpos))
    e("s_waitcnt vmcnt(0)")
    e("v_cmpx_eq_u32 vcc, s%d, v%d" % (S_T, V_T0))
    e("s_cbranch_execnz %s_ok" % top)
    e("s_sleep %d" % BELLSLEEP)
    e("s_sub_u32 s%d, s%d, 1" % (S_SPIN, S_SPIN))
    e("s_cbranch_scc0 %s" % top)
    e("s_mov_b32 s%d, 0" % S_SPIN)
    lab(top + "_ok")
    full()

def chk64(v): return "v_cmpx_eq_u64 vcc, s[%d:%d], v[%d:%d]" % (S_TT, S_TT + 1, v, v + 1)
def chk32(v): return "v_cmpx_eq_u32 vcc, s%d, v%d" % (S_T, v)

def _mask(m, lanemask):
    if lanemask is None: e("s_mov_b64 exec, s[%d:%d]" % (m, m + 1))
    elif lanemask == "lo8": e("s_andn2_b64 exec, s[%d:%d], s[%d:%d]" % (m, m + 1, S_HI8, S_HI8 + 1))
    else: e("s_and_b64 exec, s[%d:%d], %s" % (m, m + 1, lanemask))

def store_g(instr, lanemask=None, flags=" sc1"):
    l = uid("ns")
    if lanemask is not None: _mask(S_FULL, lanemask)
    e("s_cbranch_execz %s" % l)
    e(instr + flags)
    lab(l)
    if lanemask is not None: full()

def store_l(instr, lanemask=None):
    for m, fl in ((S_ML, ""), (S_MG, " sc1")):
        l = uid("ns")
        _mask(m, lanemask)
        e("s_cbranch_execz %s" % l)
        e(instr + fl)
        lab(l)
    full()

def xcc_publish(vt, srd_):
    e("s_getreg_b32 s%d, hwreg(HW_REG_XCC_ID, 0, 4)" % S_XCC)
    e("s_add_u32 s%d, s%d, 1" % (S_XCC, S_XCC))
    e("s_lshl_b32 s%d, s%d, 5" % (S_XOFF, S_XCD))
    skip = uid("noxcc")
    e("s_cmp_lg_u32 s%d, 4" % S_WAVE)
    e("s_cbranch_scc1 %s" % skip)
    e("s_lshr_b32 s%d, s2, 3" % S_B)
    e("s_add_u32 s%d, s%d, s%d" % (S_A, S_XOFF, S_B))
    e("v_mov_b32 v%d, s%d" % (vt, S_XCC))
    e("s_mov_b64 exec, 1")
    e("buffer_store_byte v%d, v%d, s[%d:%d], s%d offen sc1" % (vt, V_Z, srd_, srd_ + 3, S_A))
    e("s_mov_b64 exec, -1")
    lab(skip)
    e("s_mul_i32 s%d, s%d, 0x01010101" % (S_XCC, S_XCC))

def xcc_load(vd, vaddr, srd_):
    e("buffer_load_dword v%d, v%d, s[%d:%d], s%d offen sc1" % (vd, vaddr, srd_, srd_ + 3, S_XOFF))

def xcc_checks(vd, vt):
    return ["v_subrev_u32 v%d, 0x01010101, v%d" % (vt, vd),
            "v_bfi_b32 v%d, v%d, 0, v%d" % (vt, vd, vt),
            "v_and_b32 v%d, 0x80808080, v%d" % (vt, vt),
            "v_cmpx_eq_u32 vcc, 0, v%d" % vt]

def xcc_decide(vd):
    e("v_cmp_ne_u32 vcc, s%d, v%d" % (S_XCC, vd))
    e("s_nop 1")
    if NOLOCAL: e("s_cmp_eq_u32 s%d, 0" % S_XCC)
    else: e("s_cmp_eq_u64 vcc, 0")
    e("s_cselect_b64 s[%d:%d], s[%d:%d], 0" % (S_ML, S_ML + 1, S_FULL, S_FULL + 1))
    e("s_cselect_b64 s[%d:%d], 0, s[%d:%d]" % (S_MG, S_MG + 1, S_FULL, S_FULL + 1))

def ln_stats_ops(vals, vsum, vt, vmean, vrs, vsq):
    o = ["v_add_f32 v%d, v%d, v%d" % (vsum, vals[0], vals[1]), "v_add_f32 v%d, v%d, v%d" % (vt, vals[2], vals[3])]
    for i in range(4, 16, 2):
        o += ["v_add_f32 v%d, v%d, v%d" % (vsum, vsum, vals[i]), "v_add_f32 v%d, v%d, v%d" % (vt, vt, vals[i + 1])]
    o += ["v_add_f32 v%d, v%d, v%d" % (vsum, vsum, vt)]
    o += wave_allreduce_ops(vsum, vt)
    o += ["v_mul_f32 v%d, %s, v%d" % (vmean, f32(1.0 / 1024), vsum)]
    o += ["v_sub_f32 v%d, v%d, v%d" % (vt, vals[0], vmean), "v_mul_f32 v%d, v%d, v%d" % (vsum, vt, vt)]
    for i in range(1, 16):
        o += ["v_sub_f32 v%d, v%d, v%d" % (vt, vals[i], vmean), "v_fmac_f32 v%d, v%d, v%d" % (vsum, vt, vt)]
    o += wave_allreduce_ops(vsum, vt)
    o += ["v_mul_f32 v%d, %s, v%d" % (vsq, f32(1.0 / 1024), vsum)]
    o += bf16_round_ops(vsq)
    o += ["v_add_f32 v%d, %s, v%d" % (vsq, f32(1e-5), vsq)]
    o += bf16_round_ops(vsq)
    o += ["v_sqrt_f32 v%d, v%d" % (vsq, vsq)]
    o += bf16_round_ops(vmean)
    o += bf16_round_ops(vsq)
    o += ["v_rcp_f32 v%d, v%d" % (vrs, vsq), "s_nop 0"]
    return o

def ln_stats_dot_ops(pairs, one, s1, s2, vt, vmean, vrs):
    o = ["v_dot2_f32_bf16 v%d, v%d, v%d, 0" % (s1, pairs[0], one), "v_dot2_f32_bf16 v%d, v%d, v%d, 0" % (s2, pairs[0], pairs[0])]
    for p in pairs[1:]:
        o += ["v_dot2_f32_bf16 v%d, v%d, v%d, v%d" % (s1, p, one, s1), "v_dot2_f32_bf16 v%d, v%d, v%d, v%d" % (s2, p, p, s2)]
    o += ["s_nop 2"]
    for r in (8, 4, 2, 1):
        o += [dpp_add(s1, s1, "row_ror:%d" % r), dpp_add(s2, s2, "row_ror:%d" % r), "s_nop 0"]
    o += ["s_nop 0", "v_permlane32_swap_b32 v%d, v%d" % (s1, s2), "s_nop 0", "v_add_f32 v%d, v%d, v%d" % (s1, s1, s2),
          "v_mov_b32 v%d, v%d" % (s2, s1), "s_nop 1", "v_permlane16_swap_b32 v%d, v%d" % (s1, s2), "s_nop 0",
          "v_add_f32 v%d, v%d, v%d" % (s1, s1, s2), "v_mov_b32 v%d, v%d" % (s2, s1), "s_nop 1",
          "v_permlane32_swap_b32 v%d, v%d" % (s1, s2), "s_nop 0",
          "v_mul_f32 v%d, %s, v%d" % (vmean, f32(1.0 / 1024), s1),
          "v_mul_f32 v%d, %s, v%d" % (s2, f32(1.0 / 1024), s2),
          "v_fma_f32 v%d, -v%d, v%d, v%d" % (s2, vmean, vmean, s2),
          "v_max_f32 v%d, 0, v%d" % (s2, s2)]
    o += bf16_round_ops(s2)
    o += ["v_add_f32 v%d, %s, v%d" % (s2, f32(1e-5), s2)]
    o += bf16_round_ops(s2)
    o += ["v_sqrt_f32 v%d, v%d" % (s2, s2)]
    o += bf16_round_ops(vmean)
    o += bf16_round_ops(s2)
    o += ["v_rcp_f32 v%d, v%d" % (vrs, s2), "s_nop 0"]
    return o

def ln_apply_pair(dst, a, b, vmean, vrs, vsq, t0, t1):
    e("v_sub_f32 v%d, v%d, v%d" % (a, a, vmean))
    e("v_sub_f32 v%d, v%d, v%d" % (b, b, vmean))
    e("v_cvt_pk_bf16_f32 v%d, v%d, v%d" % (t0, a, b))
    unpack(a, b, t0)
    e("v_mul_f32 v%d, v%d, v%d" % (t0, a, vrs))
    e("v_mul_f32 v%d, v%d, v%d" % (t1, b, vrs))
    e("v_fma_f32 v%d, -v%d, v%d, v%d" % (a, t0, vsq, a))
    e("v_fma_f32 v%d, -v%d, v%d, v%d" % (b, t1, vsq, b))
    e("v_fmac_f32 v%d, v%d, v%d" % (t0, a, vrs))
    e("v_fmac_f32 v%d, v%d, v%d" % (t1, b, vrs))
    e("v_cvt_pk_bf16_f32 v%d, v%d, v%d" % (dst, t0, t1))

def sigma_of(dst, u, t):
    e("v_and_b32 v%d, 3, v%d" % (dst, u))
    e("v_lshlrev_b32 v%d, 1, v%d" % (dst, dst))
    e("v_bfe_u32 v%d, v%d, 2, 1" % (t, u))
    e("v_or_b32 v%d, v%d, v%d" % (dst, dst, t))

def dma256_voff(va, vb, pitch, t):
    e("v_bfe_u32 v%d, v1, 1, 3" % t)
    e("v_xor_b32 v%d, v3, v%d" % (t, t))
    e("v_lshlrev_b32 v%d, 5, v%d" % (t, t))
    e("v_and_b32 v%d, 1, v1" % va)
    e("v_lshl_add_u32 v%d, v%d, 4, v%d" % (t, va, t))
    e("v_mul_u32_u24 v%d, %d, v3" % (va, pitch))
    e("v_add_u32 v%d, v%d, v%d" % (va, va, t))
    e("v_xor_b32 v%d, 0x80, v%d" % (vb, va))

SKIP = opt("skip", "").split(",")
def dma_run(srd_, voffs, s_base, rowbytes, ldsbase, per_wave, m0, m1, pre=None, name=None):
    if name in SKIP: return
    _dma_run(srd_, voffs, s_base, rowbytes, ldsbase, per_wave, m0, m1, pre)

def _dma_run(srd_, voffs, s_base, rowbytes, ldsbase, per_wave, m0, m1, pre=None):
    e("s_mul_i32 s%d, s%d, %d" % (S_A, S_WAVE, per_wave * rowbytes))
    e("s_add_u32 s%d, s%d, s%d" % (S_A, S_A, s_base))
    if m0: e("s_add_u32 s%d, s%d, %d" % (S_A, S_A, rowbytes * m0))
    e("s_mul_i32 s%d, s%d, %d" % (S_B, S_WAVE, per_wave * 1024))
    if ldsbase + m0: e("s_add_u32 s%d, s%d, %d" % (S_B, S_B, ldsbase + 1024 * m0))
    for m in range(m0, m1):
        e("s_mov_b32 m0, s%d" % S_B)
        if pre: pre(m)
        if m < m1 - 1: e("s_add_u32 s%d, s%d, 1024" % (S_B, S_B))
        else: e("s_nop 0")
        e("buffer_load_dwordx4 v%d, s[%d:%d], s%d offen nt lds" % (voffs(m), srd_, srd_ + 3, S_A))
        if m < m1 - 1: e("s_add_u32 s%d, s%d, %d" % (S_A, S_A, rowbytes))

def tr256_addr(va, t):
    e("v_bfe_u32 v%d, v1, 2, 2" % t)
    e("v_and_b32 v%d, 1, v3" % va)
    e("v_lshl_or_b32 v%d, v%d, 2, v%d" % (va, va, t))
    e("v_xor_b32 v%d, s%d, v%d" % (va, S_WAVE, va))
    e("v_lshlrev_b32 v%d, 5, v%d" % (va, va))
    e("v_lshl_add_u32 v%d, v3, 3, v%d" % (t, t))
    e("v_lshl_add_u32 v%d, v%d, 8, v%d" % (va, t, va))
    e("v_and_b32 v%d, 3, v1" % t)
    e("v_lshl_add_u32 v%d, v%d, 3, v%d" % (va, t, va))

def tr256_read(dst, va):
    for m in range(8):
        for h in range(2):
            e("ds_read_b64_tr_b16 v[%d:%d], v%d offset:%d" % (dst + 4 * m + 2 * h, dst + 4 * m + 2 * h + 1, va, m * 8192 + h * 1024))

def act_rd_addr(ve, vo, t, ldsbase):
    e("v_and_b32 v%d, 7, v1" % t)
    e("v_lshlrev_b32 v%d, 1, v3" % ve)
    e("v_xor_b32 v%d, v%d, v%d" % (ve, ve, t))
    e("v_lshlrev_b32 v%d, 4, v%d" % (ve, ve))
    e("v_lshl_add_u32 v%d, v3, 7, v%d" % (ve, ve))
    e("v_add_u32 v%d, %d, v%d" % (ve, ldsbase, ve))
    e("v_xor_b32 v%d, 16, v%d" % (vo, ve))

def mfma(d, a, b, c):
    cs = "0" if c is None else "v[%d:%d]" % (c, c + 3)
    return "v_mfma_f32_16x16x32_bf16 v[%d:%d], v[%d:%d], v[%d:%d], %s" % (d, d + 3, a, a + 3, b, b + 3, cs)

def gemv8(acc, wf, af, ve, vo):
    for m in range(8):
        e("ds_read_b128 v[%d:%d], v%d offset:%d" % (af + 4 * m, af + 4 * m + 3, vo if (m & 1) else ve, m * 512))
    for m in range(8):
        e("s_waitcnt lgkmcnt(%d)" % (7 - m))
        e(mfma(acc, wf + 4 * m, af + 4 * m, None if m == 0 else acc))

def touch(items):
    for i, (va, so, off) in enumerate(items):
        e("buffer_load_dword v%d, v%d, s[%d:%d], s%d offen offset:%d sc1" % (V_X1 + 20 + i, va, SRD_WS, SRD_WS + 3, so, off))

def clean(instr, lanemask=None):
    if NOCLEAN: return
    l = uid("nc")
    _mask(S_ML, lanemask)
    e("s_cbranch_execz %s" % l)
    e(instr + " sc1")
    lab(l)
    full()

def trig2():
    l = uid("nt2")
    e("s_cmp_lg_u32 s%d, 0" % S_WAVE)
    e("s_cbranch_scc1 %s" % l)
    e("s_lshl_b32 s%d, s%d, 3" % (S_A, S_SLOT))
    e("s_or_b32 s%d, s%d, s%d" % (S_A, S_A, S_XCD))
    e("s_lshl_b32 s%d, s%d, 7" % (S_A, S_A))
    e("s_add_u32 s%d, s%d, 0x%x" % (S_A, S_A, WS_TRIG))
    store_g("buffer_store_dword v%d, v%d, s[%d:%d], s%d offen offset:8" % (V_P + 3, V_Z, SRD_WS, SRD_WS + 3, S_A), "1")
    lab(l)

def make_tag(vE):
    e("v_readfirstlane_b32 s%d, v%d" % (S_F, vE))
    e("s_nop 3")
    e("s_mul_i32 s%d, s%d, 0x9e3779b1" % (S_T, S_F))
    e("s_add_u32 s%d, s%d, 0x85ebca6b" % (S_T, S_T))
    e("s_mov_b32 s%d, s%d" % (S_TT, S_T))
    e("s_mov_b32 s%d, s%d" % (S_TT + 1, S_T))
    e("s_add_u32 s%d, s%d, 1" % (S_F, S_F))
    e("v_mov_b32 v%d, s%d" % (V_P + 2, S_T))
    e("v_mov_b32 v%d, s%d" % (V_P + 3, S_T))

def publish_partial(s_off, local):
    e("s_nop 7")
    e("v_cndmask_b32 v%d, v%d, v%d, s[%d:%d]" % (V_P, V_ACC, V_ACC + 2, S_HI8, S_HI8 + 1))
    e("v_cndmask_b32 v%d, v%d, v%d, s[%d:%d]" % (V_P + 1, V_ACC + 1, V_ACC + 3, S_HI8, S_HI8 + 1))
    ins = "buffer_store_dwordx4 v[%d:%d], v%d, s[%d:%d], s%d offen" % (V_P, V_P + 3, V_PUB, SRD_WS, SRD_WS + 3, s_off)
    (store_l if local else store_g)(ins)

def reduce16(s0, bell=False):
    top = poll_begin((V_RED, s0, 3) if bell else None)
    for n in range(4):
        e("buffer_load_dwordx4 v[%d:%d], v%d, s[%d:%d], s%d offen sc1" % (V_L + 4 * n, V_L + 4 * n + 3, V_RED, SRD_WS, SRD_WS + 3, s0 + n))
    poll_end(top, [chk64(V_L + 4 * n + 2) for n in range(4)], bell=(V_RED, s0, 3) if bell else None)
    a, b = V_L, V_L + 1
    e("v_pk_add_f32 v[%d:%d], v[%d:%d], v[%d:%d]" % (a, b, a, b, V_L + 4, V_L + 5))
    e("v_pk_add_f32 v[%d:%d], v[%d:%d], v[%d:%d]" % (V_L + 8, V_L + 9, V_L + 8, V_L + 9, V_L + 12, V_L + 13))
    e("v_pk_add_f32 v[%d:%d], v[%d:%d], v[%d:%d]" % (a, b, a, b, V_L + 8, V_L + 9))
    e("s_nop 1")
    e("v_permlane32_swap_b32 v%d, v%d" % (a, b))
    e("s_nop 0")
    e("v_add_f32 v%d, v%d, v%d" % (a, a, b))
    e("v_mov_b32 v%d, v%d" % (b, a))
    e("s_nop 1")
    e("v_permlane16_swap_b32 v%d, v%d" % (a, b))
    e("s_nop 0")
    e("v_add_f32 v%d, v%d, v%d" % (a, a, b))
    e("v_mov_b32 v%d, v%d" % (b, a))
    e("s_nop 1")
    e("v_permlane32_swap_b32 v%d, v%d" % (a, b))
    e("s_nop 0")

def only_red(lbl):
    e("s_cmp_ge_u32 s%d, s3" % S_WAVE)
    e("s_cbranch_scc1 %s" % lbl)

def residual_add(dst, vres):
    e("v_cvt_pk_bf16_f32 v%d, v%d, v%d" % (V_T0, V_L, V_L + 1))
    unpack(V_U + 2, V_U + 3, vres)
    unpack(V_U, V_U + 1, V_T0)
    e("v_add_f32 v%d, v%d, v%d" % (V_U, V_U, V_U + 2))
    e("v_add_f32 v%d, v%d, v%d" % (V_U + 1, V_U + 1, V_U + 3))
    e("v_cvt_pk_bf16_f32 v%d, v%d, v%d" % (dst, V_U, V_U + 1))

def pos_write_addr(dst, ldsbase):
    e("v_bfe_u32 v%d, v1, 1, 3" % V_T2)
    sigma_of(V_T0, V_T2, V_T1)
    e("v_xor_b32 v%d, s%d, v%d" % (V_T0, S_WAVE, V_T0))
    e("v_lshlrev_b32 v%d, 4, v%d" % (V_T0, V_T0))
    e("v_lshrrev_b32 v%d, 1, v1" % V_T1)
    e("v_lshl_add_u32 v%d, v%d, 7, v%d" % (V_T0, V_T1, V_T0))
    e("v_and_b32 v%d, 1, v1" % V_T1)
    e("v_lshl_add_u32 v%d, v%d, 3, v%d" % (V_T0, V_T1, V_T0))
    e("v_add_u32 v%d, %d, v%d" % (dst, ldsbase, V_T0))

def gen():
    lines.append("; Fused decode layer: preLN + sliding-window GQA attention + preLN + GLU MLP (persistent, 1 WG per CU)")
    lines.append("; @launch grid=(256,1,1) block=(512,1,1) lds=%d" % LDS_BYTES)
    lines.append('.amdgcn_target "amdgcn-amd-amdhsa--gfx950"')
    lines.append(".text")
    lines.append(".globl %s_kernel" % NAME)
    lines.append(".p2align 8")
    lines.append(".type %s_kernel,@function" % NAME)
    lab("%s_kernel" % NAME)
    e("s_cmp_ge_u32 s2, 256")
    e("s_cbranch_scc1 L_end")
    if STAMPS:
        e("s_memrealtime s[%d:%d]" % (S_TM, S_TM + 1))
        for k in range(1, 16): e("s_mov_b32 s%d, 0" % (S_ST + k))
    e("s_load_dwordx16 s[4:19], s[0:1], 0")
    e("s_load_dwordx8 s[20:27], s[0:1], 64")
    e("v_lshrrev_b32 v4, 6, v0")
    e("v_and_b32 v1, 63, v0")
    e("v_readfirstlane_b32 s%d, v4" % S_WAVE)
    e("v_and_b32 v2, 15, v1")
    e("v_lshrrev_b32 v3, 4, v1")
    e("s_and_b32 s%d, s2, 7" % S_XCD)
    e("s_lshr_b32 s%d, s2, 4" % S_SLOT)
    e("v_mov_b32 v%d, 0" % V_Z)
    code_prefetch()
    e("s_bitcmp1_b32 s2, 3")
    e("s_cbranch_scc1 L_roleA")
    role_b()
    lab("L_roleA")
    role_a()
    lab("L_end")
    e("s_endpgm")
    lines.append('.section .rodata,"a"')
    lines.append(".p2align 6")
    lines.append(".amdhsa_kernel %s_kernel" % NAME)
    lines.append("  .amdhsa_next_free_vgpr 256")
    lines.append("  .amdhsa_next_free_sgpr 100")
    lines.append("  .amdhsa_accum_offset 256")
    lines.append("  .amdhsa_group_segment_fixed_size 0")
    lines.append("  .amdhsa_kernarg_size 96")
    lines.append("  .amdhsa_user_sgpr_count 2")
    lines.append("  .amdhsa_user_sgpr_kernarg_segment_ptr 1")
    lines.append("  .amdhsa_system_sgpr_workgroup_id_x 1")
    lines.append(".end_amdhsa_kernel")

def code_prefetch():
    if NOCODEPF: return
    l = uid("nopf")
    e("s_lshl_b32 s%d, s%d, 3" % (S_A, S_SLOT))
    e("s_add_u32 s%d, s%d, s%d" % (S_A, S_A, S_WAVE))
    e("s_cmp_lg_u32 s%d, 5" % S_A)
    e("s_cbranch_scc1 %s" % l)
    e("s_getpc_b64 s[%d:%d]" % (S_ML, S_ML + 1))
    lab(l + "_pc")
    e("s_sub_u32 s%d, s%d, %s_pc-%s_kernel" % (S_ML, S_ML, l, NAME))
    e("s_subb_u32 s%d, s%d, 0" % (S_ML + 1, S_ML + 1))
    e("v_lshlrev_b32 v%d, 7, v1" % V_T0)
    e("global_load_dword v%d, v%d, s[%d:%d]" % (V_U, V_T0, S_ML, S_ML + 1))
    e("v_add_u32 v%d, 0x2000, v%d" % (V_T0, V_T0))
    e("v_min_u32 v%d, L_end-%s_kernel, v%d" % (V_T0, NAME, V_T0))
    e("global_load_dword v%d, v%d, s[%d:%d]" % (V_U + 1, V_T0, S_ML, S_ML + 1))
    lab(l)

def common_consts():
    e("s_mov_b32 s%d, 0x40000" % S_SPIN)
    e("s_mov_b32 s%d, 0xff00ff00" % S_HI8)
    e("s_mov_b32 s%d, 0xff00ff00" % (S_HI8 + 1))
    e("s_mov_b64 s[%d:%d], -1" % (S_FULL, S_FULL + 1))
    e("s_mov_b32 s%d, 0" % S_DRY)

def role_b():
    cmt("================= role B =================")
    V_AWD, V_XA, V_HO, V_ZA, V_TR1 = V_X1 + 1, V_X1 + 2, V_X1 + 3, V_X1 + 4, V_X1 + 5
    V_VC, V_VD = V_X1 + 6, V_X1 + 7
    V_ZQ = V_X1 + 8
    ab = lambda m: V_VB if (m & 2) else V_VA
    dma256_voff(V_VA, V_VB, 8192, V_T0)
    e("v_lshlrev_b32 v%d, 4, v1" % V_G)
    e("s_and_b32 s%d, s%d, 3" % (S_D, S_SLOT))
    e("s_lshr_b32 s%d, s%d, 2" % (S_A, S_SLOT))
    e("s_lshl_b32 s%d, s%d, 1" % (S_B, S_XCD))
    e("s_add_u32 s%d, s%d, s%d" % (S_B, S_B, S_A))
    e("s_lshl_b32 s%d, s%d, 2" % (S_C, S_B))
    e("s_add_u32 s%d, s%d, 1" % (S_C, S_C))
    e("s_sub_u32 s%d, s%d, 2" % (S_B, S_B))
    e("s_lshl_b32 s%d, s%d, 2" % (S_E, S_XCD))
    e("s_add_u32 s%d, s%d, s%d" % (S_E, S_E, S_A))
    e("s_sub_u32 s%d, s%d, 8" % (S_E, S_E))
    e("s_cmp_ge_u32 s%d, 4" % S_XCD)
    e("s_cselect_b32 s%d, s%d, s%d" % (S_B, S_E, S_B))
    e("s_cselect_b32 s%d, 2, s%d" % (S_A, S_A))
    e("s_mul_i32 s%d, s%d, 43" % (S_E, S_B))
    e("s_lshr_b32 s%d, s%d, 7" % (S_E, S_E))
    e("s_mul_i32 s%d, s%d, 3" % (S_F, S_E))
    e("s_sub_u32 s%d, s%d, s%d" % (S_F, S_B, S_F))
    e("s_lshl_b32 s%d, s%d, 2" % (S_E, S_E))
    e("s_add_u32 s%d, s%d, s%d" % (S_E, S_E, S_F))
    e("s_min_u32 s%d, s%d, 1" % (S_F, S_F))
    e("s_add_u32 s%d, s%d, s%d" % (S_E, S_E, S_F))
    e("s_cmp_ge_u32 s%d, 2" % S_A)
    e("s_cselect_b32 s%d, s%d, s%d" % (S_C, S_E, S_C))
    e("s_lshl_b32 s%d, s%d, 21" % (S_E, S_D))
    e("s_lshl_b32 s%d, s%d, 8" % (S_A, S_C))
    e("s_add_u32 s%d, s%d, s%d" % (S_E, S_E, S_A))
    e("s_lshl_b32 s82, s%d, 11" % S_WAVE)
    e("s_lshl_b32 s83, s%d, 9" % S_D)
    e("s_add_u32 s83, s83, s82")
    e("s_waitcnt lgkmcnt(0)")
    if STAMPS: e("s_mov_b32 s%d, s%d" % (S_ST, S_TM))
    srd(SRD_X, S_X, 16384)
    srd(SRD_W, S_WQ, 8 << 20)
    e("buffer_load_dwordx4 v[%d:%d], v%d, s[%d:%d], s82 offen" % (V_L, V_L + 3, V_G, SRD_X, SRD_X + 3))
    e("buffer_load_dwordx4 v[%d:%d], v%d, s[%d:%d], s82 offen offset:1024" % (V_L + 4, V_L + 7, V_G, SRD_X, SRD_X + 3))
    e("buffer_load_dwordx4 v[%d:%d], v%d, s[%d:%d], s83 offen" % (V_L + 8, V_L + 11, V_G, SRD_X, SRD_X + 3))
    dma_run(SRD_W, ab, S_E, 4 * 8192, L_W0, 8, 0, QFIRST)
    srd(SRD_WS, S_WS, WS_SIZE)
    e("buffer_load_dword v%d, v%d, s[%d:%d], 0 offen sc1" % (V_L + 12, V_Z, SRD_WS, SRD_WS + 3))
    stamp(1)
    common_consts()
    e("s_lshr_b32 s%d, s%d, 1" % (S_A, S_SLOT))
    e("s_lshl_b32 s%d, s%d, 11" % (S_A, S_A))
    e("s_lshl_b32 s%d, s%d, 8" % (S_B, S_XCD))
    e("s_add_u32 s%d, s%d, s%d" % (S_A, S_A, S_B))
    e("s_and_b32 s%d, s%d, 1" % (S_B, S_SLOT))
    e("s_lshl_b32 s%d, s%d, 7" % (S_B, S_B))
    e("s_add_u32 s%d, s%d, s%d" % (S_A, S_A, S_B))
    e("s_and_b32 s%d, s%d, 1" % (S_B, S_WAVE))
    e("s_lshl_b32 s%d, s%d, 6" % (S_B, S_B))
    e("s_add_u32 s80, s%d, s%d" % (S_A, S_B))
    e("v_lshlrev_b32 v%d, 2, v2" % V_X1)
    e("v_lshlrev_b32 v%d, 3, v2" % V_HO)
    e("buffer_load_dword v%d, v%d, s[%d:%d], s80 offen" % (V_XP, V_X1, SRD_X, SRD_X + 3))
    e("s_waitcnt vmcnt(%d)" % (QFIRST + 2))
    for i in range(8):
        unpack(V_U + 2 * i, V_U + 2 * i + 1, V_L + i)
    emit(ln_stats_ops([V_U + i for i in range(16)], V_SUM, V_T0, V_M, V_RS, V_SQ))
    if QFIRST < 8:
        dma_run(SRD_W, ab, S_E, 4 * 8192, L_W0, 8, QFIRST, 8)
    for i in range(4):
        unpack(V_U + 2 * i, V_U + 2 * i + 1, V_L + 8 + i)
    for i in range(4):
        ln_apply_pair(V_L + 16 + i, V_U + 2 * i, V_U + 2 * i + 1, V_M, V_RS, V_SQ, V_T0, V_T1)
    e("v_and_b32 v%d, 7, v1" % V_T2)
    e("v_lshlrev_b32 v%d, 2, v%d" % (V_XA, V_T2))
    sigma_of(V_T0, V_T2, V_T1)
    e("v_xor_b32 v%d, s%d, v%d" % (V_T0, S_WAVE, V_T0))
    e("v_lshlrev_b32 v%d, 4, v%d" % (V_T0, V_T0))
    e("v_lshl_add_u32 v%d, v1, 7, v%d" % (V_T0, V_T0))
    e("v_add_u32 v%d, %d, v%d" % (V_T0, L_ACT, V_T0))
    e("s_mov_b64 exec, 0xffffffff")
    e("ds_write_b128 v%d, v[%d:%d]" % (V_T0, V_L + 16, V_L + 19))
    e("s_mov_b64 exec, -1")
    srd(SRD_X, S_DBG, 256)
    xcc_publish(V_T0, SRD_X)
    tr256_addr(V_TR, V_T0)
    act_rd_addr(V_AE, V_AO, V_T0, L_ACT)
    e("v_and_b32 v%d, 7, v1" % V_T0)
    e("v_lshlrev_b32 v%d, 10, v%d" % (V_PUB, V_T0))
    e("v_lshrrev_b32 v%d, 3, v2" % V_T0)
    e("v_lshl_add_u32 v%d, v3, 1, v%d" % (V_T0, V_T0))
    e("v_lshl_add_u32 v%d, v%d, 4, v%d" % (V_PUB, V_T0, V_PUB))
    e("s_lshl_b32 s%d, s%d, 7" % (S_A, S_WAVE))
    e("v_add_u32 v%d, s%d, v%d" % (V_PUB, S_A, V_PUB))
    e("s_lshl_b32 s%d, s%d, 2" % (S_A, S_C))
    e("s_add_u32 s%d, s%d, s%d" % (S_A, S_A, S_D))
    e("s_lshl_b32 s%d, s%d, 13" % (S_A, S_A))
    e("s_add_u32 s81, s%d, 0x%x" % (S_A, WS_H1))
    stamp(2)
    if NODRY: e("s_branch L_q_real")
    e("s_waitcnt lgkmcnt(0)")
    set_dry()
    lab("L_q_top")
    tr256_read(V_WF, V_TR)
    gemv8(V_ACC, V_WF, V_AF, V_AE, V_AO)
    publish_partial(81, False)
    e("s_cmp_eq_u32 s%d, 0" % S_DRY)
    e("s_cbranch_scc1 L_q_done")
    lab("L_q_real")
    set_real()
    e("s_waitcnt vmcnt(%d)" % (8 - QFIRST + 1))
    make_tag(V_L + 12)
    e("s_waitcnt vmcnt(0) lgkmcnt(0)")
    e("s_barrier")
    stamp(3)
    e("s_branch L_q_top")
    lab("L_q_done")
    stamp(4)
    dma256_voff(V_VA, V_VB, 2048, V_T0)
    e("v_add_u32 v%d, %d, v%d" % (V_TR1, L_W1, V_TR))
    e("s_and_b32 s%d, s%d, 1" % (S_A, S_WAVE))
    e("s_lshl_b32 s%d, s%d, 7" % (S_A, S_A))
    e("v_xor_b32 v%d, s%d, v%d" % (V_X1 + 14, S_A, V_VA))
    e("v_xor_b32 v%d, 0x80, v%d" % (V_X1 + 15, V_X1 + 14))
    pos_write_addr(V_AW, L_ACT)
    e("v_lshlrev_b32 v%d, 13, v3" % V_RED)
    e("v_lshl_add_u32 v%d, v2, 4, v%d" % (V_RED, V_RED))
    e("s_and_b32 s%d, s%d, 1" % (S_A, S_WAVE))
    e("s_lshl_b32 s%d, s%d, 8" % (S_A, S_A))
    e("v_add_u32 v%d, s%d, v%d" % (V_RED, S_A, V_RED))
    e("s_lshl_b32 s%d, s%d, 3" % (S_A, S_SLOT))
    e("s_or_b32 s%d, s%d, s%d" % (S_A, S_A, S_XCD))
    e("s_lshl_b32 s%d, s%d, 7" % (S_A, S_A))
    e("s_add_u32 s83, s%d, 0x%x" % (S_A, WS_TRIG))
    e("s_lshl_b32 s%d, s%d, 3" % (S_A, S_SLOT))
    e("s_add_u32 s%d, s%d, s%d" % (S_A, S_A, S_WAVE))
    e("s_lshl_b32 s%d, s%d, 10" % (S_A, S_A))
    e("s_add_u32 s82, s%d, 0x%x" % (S_A, WS_H2G))
    e("s_lshl_b32 s%d, s%d, 4" % (S_A, S_XCD))
    e("s_add_u32 s%d, s%d, s%d" % (S_A, S_A, S_SLOT))
    e("s_lshl_b32 s%d, s%d, 13" % (S_A, S_A))
    e("s_add_u32 s84, s%d, 0x%x" % (S_A, WS_H3A))
    e("s_lshl_b32 s%d, s%d, 17" % (S_A, S_XCD))
    e("s_lshl_b32 s%d, s%d, 9" % (S_B, S_SLOT))
    e("s_add_u32 s%d, s%d, s%d" % (S_A, S_A, S_B))
    e("s_add_u32 s85, s%d, 0x%x" % (S_A, WS_H3A))
    e("s_add_u32 s86, s%d, 0x%x" % (S_A, WS_H5))
    for n in range(4):
        e("s_add_u32 s%d, s85, %d" % (4 + n, 32768 * n))
        e("s_add_u32 s%d, s86, %d" % (8 + n, 32768 * n))
    e("s_lshl_b32 s%d, s80, 1" % S_A)
    e("s_add_u32 s90, s%d, 0x%x" % (S_A, WS_H3B))
    e("s_lshr_b32 s%d, s%d, 3" % (S_C, S_SLOT))
    e("s_lshl_b32 s%d, s%d, 1" % (S_A, S_XCD))
    e("s_add_u32 s%d, s%d, s%d" % (S_C, S_C, S_A))
    e("s_and_b32 s%d, s%d, 7" % (S_D, S_SLOT))
    e("s_mul_i32 s91, s%d, %d" % (S_C, 224 * 2048))
    e("s_lshl_b32 s%d, s%d, 8" % (S_A, S_D))
    e("s_add_u32 s91, s91, s%d" % S_A)
    e("s_min_u32 s%d, s%d, 6" % (S_A, S_WAVE))
    e("s_lshl_b32 s%d, s%d, 10" % (S_B, S_A))
    e("s_mul_i32 s%d, s%d, 7168" % (S_E, S_C))
    e("s_add_u32 s%d, s%d, s%d" % (S_E, S_E, S_B))
    e("s_add_u32 s87, s%d, 0x%x" % (S_E, WS_H4S))
    e("s_add_u32 s88, s%d, 0x%x" % (S_E, WS_H4U))
    e("s_lshl_b32 s%d, s%d, 2" % (S_B, S_A))
    e("v_add_u32 v%d, s%d, v3" % (V_T3, S_B))
    e("v_and_b32 v%d, 7, v%d" % (V_T2, V_T3))
    sigma_of(V_T0, V_T2, V_T1)
    e("v_and_b32 v%d, 7, v1" % V_T1)
    e("v_xor_b32 v%d, v%d, v%d" % (V_T0, V_T0, V_T1))
    e("v_lshlrev_b32 v%d, 4, v%d" % (V_T0, V_T0))
    e("v_lshl_add_u32 v%d, v%d, 7, v%d" % (V_T0, V_T3, V_T0))
    e("v_bfe_u32 v%d, v1, 3, 1" % V_T1)
    e("v_lshl_add_u32 v%d, v%d, 3, v%d" % (V_T0, V_T1, V_T0))
    e("v_add_u32 v%d, %d, v%d" % (V_AWD, L_ACT, V_T0))
    e("s_lshl_b32 s%d, s%d, 4" % (S_A, S_D))
    e("s_add_u32 s%d, s%d, s%d" % (S_A, S_A, S_C))
    e("s_lshl_b32 s%d, s%d, 13" % (S_A, S_A))
    e("s_add_u32 s89, s%d, 0x%x" % (S_A, WS_H5))
    e("v_and_b32 v%d, 31, v1" % V_T0)
    e("v_lshlrev_b32 v%d, 4, v%d" % (V_T0, V_T0))
    e("v_add_u32 v%d, %d, v%d" % (V_ZA, L_ACT + 28 * 128, V_T0))
    for k in range(4): e("v_mov_b32 v%d, 0" % (V_ZQ + k))
    srd(SRD_O, S_OUT, 16384)
    e("s_lshr_b32 s%d, s%d, 7" % (S_E, S_WG))
    e("s_mul_i32 s%d, s%d, 7" % (S_A, S_XCD))
    e("s_add_u32 s%d, s%d, s%d" % (S_E, S_E, S_A))
    e("s_sub_u32 s%d, 3, s%d" % (S_E, S_E))
    e("s_and_b32 s%d, s%d, 7" % (S_E, S_E))
    e("s_lshr_b32 s%d, s%d, 3" % (S_A, S_SLOT))
    e("s_mul_i32 s%d, s%d, 56" % (S_A, S_A))
    e("s_min_u32 s%d, s%d, 6" % (S_B, S_WAVE))
    e("s_lshl_b32 s%d, s%d, 3" % (S_B, S_B))
    e("s_add_u32 s%d, s%d, s%d" % (S_A, S_A, S_B))
    e("s_lshr_b32 s%d, s%d, 4" % (S_B, S_A))
    e("s_cmp_eq_u32 s%d, s%d" % (S_B, S_E))
    e("s_cselect_b32 s96, 1, 0")
    e("s_and_b32 s%d, s%d, 8" % (S_A, S_A))
    e("s_lshl_b32 s%d, s%d, 8" % (S_A, S_A))
    e("s_lshl_b32 s%d, s%d, 12" % (S_B, S_XCD))
    e("s_add_u32 s%d, s%d, s%d" % (S_A, S_A, S_B))
    e("s_add_u32 s81, s%d, 0x%x" % (S_A, WS_H4P))
    e("v_lshlrev_b32 v%d, 5, v1" % V_VC)
    e("v_add_u32 v%d, 0x8000, v%d" % (V_VD, V_VC))
    e("v_add_u32 v%d, 0x10000, v%d" % (V_X1 + 12, V_VC))
    e("v_add_u32 v%d, 0x18000, v%d" % (V_X1 + 13, V_VC))
    e("s_lshl_b32 s99, s%d, 19" % S_SLOT)
    e("s_lshl_b32 s%d, s%d, 8" % (S_A, S_XCD))
    e("s_add_u32 s99, s99, s%d" % S_A)
    e("s_barrier")
    e("s_cmp_ge_u32 s%d, 4" % S_WAVE)
    e("s_cbranch_scc1 L_b_warm")
    srd(SRD_W, S_WO, 8 << 20)
    top = poll_begin()
    e("buffer_load_dwordx2 v[%d:%d], v%d, s[%d:%d], s83 offen sc1" % (V_L, V_L + 1, V_Z, SRD_WS, SRD_WS + 3))
    poll_end(top, [chk64(V_L)])
    dma_run(SRD_W, ab, 99, 4 * 2048, L_W1, 16, 0, 16, name="wo")
    if DEARLY:
        srd(SRD_W, S_WD, 3584 * 2048)
        dma_run(SRD_W, lambda m: V_X1 + 15 if (m & 2) else V_X1 + 14, 91, 4 * 2048, L_W0, 14, 0, 14)
    stamp(5)
    e("s_waitcnt vmcnt(%d)" % (14 if DEARLY else 0))
    e("s_branch L_b_real")
    lab("L_b_warm")
    if not NOTOUCH:
        e("s_cmp_lg_u32 s%d, 4" % S_WAVE)
        e("s_cbranch_scc1 L_b_notouch")
        e("v_lshlrev_b32 v%d, 7, v1" % V_T0)
        e("v_lshrrev_b32 v%d, 2, v1" % V_T1)
        e("v_lshlrev_b32 v%d, 13, v%d" % (V_T1, V_T1))
        e("v_and_b32 v%d, 3, v1" % V_T2)
        e("v_lshl_add_u32 v%d, v%d, 7, v%d" % (V_T1, V_T2, V_T1))
        e("s_sub_u32 s%d, s87, 4096" % S_A)
        e("s_sub_u32 s%d, s88, 4096" % S_B)
        e("s_lshl_b32 s%d, s%d, 12" % (S_C, S_XCD))
        e("s_add_u32 s%d, s%d, 0x%x" % (S_C, S_C, WS_H4P))
        e("v_and_b32 v%d, 31, v1" % V_T2)
        e("v_lshlrev_b32 v%d, 7, v%d" % (V_T2, V_T2))
        e("v_lshrrev_b32 v%d, 5, v1" % V_T3)
        e("v_lshl_add_u32 v%d, v%d, 15, v%d" % (V_T2, V_T3, V_T2))
        e("v_add_u32 v%d, 0x10000, v%d" % (V_T3, V_T2))
        touch([(V_T1, 85, 0), (V_T0, S_A, 0), (V_T0, S_B, 0), (V_T2, S_C, 0), (V_T3, S_C, 0), (V_Z, 82, 0), (V_Z, 86, 0), (V_Z, 89, 0), (V_Z, 90, 0)])
        lab("L_b_notouch")
    if NODRY: e("s_branch L_b_real")
    set_dry()
    e("s_branch L_b_tail")
    lab("L_b_real")
    set_real()
    e("s_barrier")
    lab("L_b_tail")
    tr256_read(V_WF, V_TR1)
    top = poll_begin()
    xcc_load(V_L, V_XA, SRD_X)
    poll_end(top, xcc_checks(V_L, V_T0))
    xcc_decide(V_L)
    stamp(6)
    top = poll_begin((V_G, 82, 3))
    e("buffer_load_dwordx4 v[%d:%d], v%d, s[%d:%d], s82 offen sc1" % (V_L, V_L + 3, V_G, SRD_WS, SRD_WS + 3))
    poll_end(top, [chk64(V_L + 2)], bell=(V_G, 82, 3))
    e("ds_write_b64 v%d, v[%d:%d]" % (V_AW, V_L, V_L + 1))
    stamp(7)
    e("s_waitcnt lgkmcnt(0)")
    barrier(True)
    gemv8(V_ACC, V_WF, V_AF, V_AE, V_AO)
    publish_partial(84, True)
    stamp(8)
    only_red("L_b_nor3")
    reduce16(4)
    stamp(9)
    residual_add(V_U + 4, V_XP)
    e("v_mov_b32 v%d, s%d" % (V_U + 6, S_T))
    e("v_mov_b32 v%d, s%d" % (V_U + 7, S_T))
    e("v_mov_b32_dpp v%d, v%d quad_perm:[1,1,3,3] row_mask:0xf bank_mask:0xf" % (V_U + 5, V_U + 4))
    store_g("buffer_store_dwordx4 v[%d:%d], v%d, s[%d:%d], s90 offen" % (V_U + 4, V_U + 7, V_HO, SRD_WS, SRD_WS + 3), "0x5555")
    e("v_mov_b32 v%d, v%d" % (V_H, V_U + 4))
    stamp(10)
    lab("L_b_nor3")
    if DEARLY:
        barrier(True)
    else:
        e("s_cbranch_execz L_b_nod")
        e("s_barrier")
        srd(SRD_W, S_WD, 3584 * 2048)
        if TRIG2: doorbell(V_Z, 83, 2)
        e("s_cmp_eq_u32 s%d, 7" % S_WAVE)
        e("s_cbranch_scc1 L_b_nod7")
        dma_run(SRD_W, ab, 91, 4 * 2048, L_W0, 8, 0, 8, name="d")
        lab("L_b_nod7")
        e("s_waitcnt vmcnt(0)")
        e("s_barrier")
        lab("L_b_nod")
    e("ds_write_b128 v%d, v[%d:%d]" % (V_ZA, V_ZQ, V_ZQ + 3))
    tr256_read(V_WF, V_TR)
    stamp(11)
    e("s_cmp_eq_u32 s96, 0")
    e("s_cbranch_scc0 L_b_split")
    lab("L_b_plain")
    top = poll_begin((V_G, 88, 3))
    e("buffer_load_dwordx4 v[%d:%d], v%d, s[%d:%d], s87 offen sc1" % (V_L, V_L + 3, V_G, SRD_WS, SRD_WS + 3))
    e("buffer_load_dwordx4 v[%d:%d], v%d, s[%d:%d], s88 offen sc1" % (V_L + 4, V_L + 7, V_G, SRD_WS, SRD_WS + 3))
    poll_end(top, [chk32(V_L + 1), chk32(V_L + 3), chk32(V_L + 5), chk32(V_L + 7)], bell=(V_G, 88, 3))
    unpack(V_U, V_U + 1, V_L); unpack(V_U + 4, V_U + 5, V_L + 4)
    unpack(V_U + 2, V_U + 3, V_L + 2); unpack(V_U + 6, V_U + 7, V_L + 6)
    e("s_cbranch_execnz L_b_join")
    lab("L_b_split")
    top = poll_begin((V_X1 + 12, 81, 3))
    for i, va in enumerate((V_VC, V_VD, V_X1 + 12, V_X1 + 13)):
        if i == 2: top2 = poll_mid(top)
        for h in range(2):
            r = V_L + 8 * i + 4 * h
            e("buffer_load_dwordx4 v[%d:%d], v%d, s[%d:%d], s81 offen offset:%d sc1" % (r, r + 3, va, SRD_WS, SRD_WS + 3, 16 * h))
    poll_end(top, [chk64(V_L + 4 * i + 2) for i in range(8)], last=top2, bell=(V_X1 + 12, 81, 3))
    for mat in range(2):
        for h in range(2):
            for k in range(2):
                e("v_add_f32 v%d, v%d, v%d" % (V_U + 4 * mat + 2 * h + k, V_L + 16 * mat + 4 * h + k, V_L + 16 * mat + 8 + 4 * h + k))
    for i in range(4):
        e("v_cvt_pk_bf16_f32 v%d, v%d, v%d" % (V_L + i, V_U + 2 * i, V_U + 2 * i + 1))
    for i in range(4):
        unpack(V_U + 2 * i, V_U + 2 * i + 1, V_L + i)
    for k in range(4): e("v_mul_f32 v%d, %s, v%d" % (V_U + k, f32(-LOG2E), V_U + k))
    for k in range(4): e("v_exp_f32 v%d, v%d" % (V_U + k, V_U + k))
    for k in range(4): e("v_add_f32 v%d, 1.0, v%d" % (V_U + k, V_U + k))
    for k in range(4): e("v_rcp_f32 v%d, v%d" % (V_U + k, V_U + k))
    e("s_nop 0")
    for i in range(2):
        e("v_cvt_pk_bf16_f32 v%d, v%d, v%d" % (V_L + i, V_U + 2 * i, V_U + 2 * i + 1))
    for i in range(2):
        unpack(V_U + 2 * i, V_U + 2 * i + 1, V_L + i)
    lab("L_b_join")
    stamp(12)
    for k in range(4): e("v_mul_f32 v%d, v%d, v%d" % (V_U + k, V_U + k, V_U + 4 + k))
    e("v_cvt_pk_bf16_f32 v%d, v%d, v%d" % (V_U + 16, V_U, V_U + 1))
    e("v_cvt_pk_bf16_f32 v%d, v%d, v%d" % (V_U + 17, V_U + 2, V_U + 3))
    e("ds_write_b64 v%d, v[%d:%d]" % (V_AWD, V_U + 16, V_U + 17))
    e("s_waitcnt lgkmcnt(0)")
    barrier(True)
    gemv8(V_ACC, V_WF, V_AF, V_AE, V_AO)
    publish_partial(89, False)
    stamp(13)
    noep = uid("noep")
    e("s_add_u32 s%d, s2, s%d" % (S_A, S_WAVE))
    e("s_cmp_lg_u32 s%d, 0" % S_A)
    e("s_cbranch_scc1 %s" % noep)
    e("s_mov_b64 exec, 1")
    e("v_mov_b32 v%d, s%d" % (V_T0, S_F))
    e("buffer_store_dword v%d, v%d, s[%d:%d], 0 offen sc1" % (V_T0, V_Z, SRD_WS, SRD_WS + 3))
    e("s_mov_b64 exec, -1")
    lab(noep)
    only_red("L_b_end2")
    reduce16(8, BELL5)
    stamp(14)
    residual_add(V_U + 4, V_H)
    store_g("buffer_store_dword v%d, v%d, s[%d:%d], s80 offen" % (V_U + 4, V_X1, SRD_O, SRD_O + 3), "0xffff", flags="")
    e("s_cmp_lg_u32 s%d, 0" % S_DRY)
    e("s_cbranch_scc1 L_b_real")
    stamp(15)
    lab("L_b_end")
    stamps_flush(V_U)
    e("s_endpgm")
    lab("L_b_end2")
    if "b" in CLEAN: clean("buffer_store_dwordx4 v[%d:%d], v%d, s[%d:%d], s84 offen" % (V_P, V_P + 3, V_PUB, SRD_WS, SRD_WS + 3))
    e("s_branch L_b_end")

def role_a():
    cmt("================= role A =================")
    KO = V_X1
    KA = V_X1 + 4
    QE, QO, QW, PW0, PW1, SW, SR, XA, EP = [V_X1 + 8 + i for i in range(9)]
    ab = lambda m: V_VB if (m & 2) else V_VA
    dma256_voff(V_VA, V_VB, 256, V_T0)
    e("s_lshl_b32 s%d, s%d, 22" % (S_E, S_XCD))
    e("s_lshr_b32 s%d, s%d, 2" % (S_C, S_SLOT))
    e("s_lshl_b32 s%d, s%d, 20" % (S_A, S_C))
    e("s_add_u32 s%d, s%d, s%d" % (S_E, S_E, S_A))
    e("s_and_b32 s%d, s%d, 3" % (S_D, S_SLOT))
    e("s_lshl_b32 s%d, s%d, 16" % (S_A, S_D))
    e("s_add_u32 s%d, s%d, s%d" % (S_E, S_E, S_A))
    e("s_add_u32 s%d, s%d, 0x%x" % (S_E, S_E, 3072 * 256))
    e("v_xor_b32 v%d, v2, v3" % V_T0)
    e("v_lshlrev_b32 v%d, 4, v%d" % (V_T0, V_T0))
    e("v_lshl_add_u32 v%d, v3, 8, v%d" % (KO, V_T0))
    for i in range(1, 4): e("v_xor_b32 v%d, %d, v%d" % (KO + i, 64 * i, KO))
    e("s_waitcnt lgkmcnt(0)")
    if STAMPS: e("s_mov_b32 s%d, s%d" % (S_ST, S_TM))
    srd(SRD_WS, S_WS, WS_SIZE)
    e("buffer_load_dword v%d, v%d, s[%d:%d], 0 offen sc1" % (EP, V_Z, SRD_WS, SRD_WS + 3))
    e("s_cmp_ge_u32 s%d, %d" % (S_WAVE, NLD))
    e("s_cbranch_scc1 L_a_noissue0")
    srd(SRD_W, S_V, 32 << 20)
    srd(SRD_X, S_K, 32 << 20)
    def thr(c):
        if AWIN <= c < ATHR: e("s_waitcnt vmcnt(%d)" % (AWIN - 1))
    dma_run(SRD_W, ab, S_E, 1024, L_W0, 64 // NLD, 0, 64 // NLD, pre=thr, name="v")
    dma_run(SRD_X, lambda m: KO + (m & 3), S_E, 1024, L_W1, 64 // NLD, 0, 64 // NLD, pre=lambda m: thr(16 + m), name="k")
    lab("L_a_noissue0")
    srd(SRD_O, S_DBG, 256)
    xcc_publish(V_T0, SRD_O)
    stamp(1)
    common_consts()
    e("v_lshlrev_b32 v%d, 4, v1" % V_G)
    tr256_addr(V_TR, V_T0)
    e("v_xor_b32 v%d, v2, v3" % V_T0)
    e("v_lshlrev_b32 v%d, 4, v%d" % (V_T0, V_T0))
    e("v_lshl_add_u32 v%d, v2, 8, v%d" % (V_T0, V_T0))
    e("s_lshl_b32 s%d, s%d, 13" % (S_A, S_WAVE))
    e("s_add_u32 s%d, s%d, %d" % (S_A, S_A, L_W1))
    e("v_add_u32 v%d, s%d, v%d" % (KA, S_A, V_T0))
    for i in range(1, 4): e("v_xor_b32 v%d, %d, v%d" % (KA + i, 64 * i, KA))
    act_rd_addr(QE, QO, V_T0, L_QB)
    act_rd_addr(V_AE, V_AO, V_T0, L_PB)
    e("v_bfe_u32 v%d, v1, 2, 3" % V_T2)
    sigma_of(V_T0, V_T2, V_T1)
    e("v_xor_b32 v%d, s%d, v%d" % (V_T0, S_WAVE, V_T0))
    e("v_lshlrev_b32 v%d, 4, v%d" % (V_T0, V_T0))
    e("v_lshrrev_b32 v%d, 2, v1" % V_T1)
    e("v_lshl_add_u32 v%d, v%d, 7, v%d" % (V_T0, V_T1, V_T0))
    e("v_and_b32 v%d, 3, v1" % V_T1)
    e("v_lshl_add_u32 v%d, v%d, 2, v%d" % (V_T0, V_T1, V_T0))
    e("v_add_u32 v%d, %d, v%d" % (QW, L_QB, V_T0))
    e("v_and_b32 v%d, 2, v3" % V_T0)
    e("s_and_b32 s%d, s%d, 1" % (S_A, S_WAVE))
    e("v_or_b32 v%d, s%d, v%d" % (V_T0, S_A, V_T0))
    e("v_and_b32 v%d, 7, v1" % V_T1)
    e("v_xor_b32 v%d, v%d, v%d" % (V_T0, V_T0, V_T1))
    e("v_lshlrev_b32 v%d, 4, v%d" % (V_T0, V_T0))
    e("v_lshrrev_b32 v%d, 1, v3" % V_T1)
    e("v_lshl_add_u32 v%d, v%d, 7, v%d" % (V_T0, V_T1, V_T0))
    e("v_and_b32 v%d, 1, v3" % V_T1)
    e("v_lshl_add_u32 v%d, v%d, 3, v%d" % (V_T0, V_T1, V_T0))
    e("s_lshl_b32 s%d, s%d, 9" % (S_A, S_WAVE))
    e("s_add_u32 s%d, s%d, %d" % (S_A, S_A, L_PB))
    e("v_add_u32 v%d, s%d, v%d" % (PW0, S_A, V_T0))
    e("v_xor_b32 v%d, 64, v%d" % (PW1, PW0))
    e("v_add_u32 v%d, 0x100, v%d" % (PW1, PW1))
    e("v_cndmask_b32 v%d, v%d, v%d, s[%d:%d]" % (PW0, PW0, PW1, S_HI8, S_HI8 + 1))
    e("v_and_b32 v%d, 7, v1" % V_T0)
    e("v_lshlrev_b32 v%d, 2, v%d" % (XA, V_T0))
    e("v_lshlrev_b32 v%d, 6, v%d" % (V_T0, V_T0))
    e("v_add_u32 v%d, %d, v%d" % (SR, L_MX, V_T0))
    e("s_lshl_b32 s%d, s%d, 2" % (S_A, S_WAVE))
    e("v_add_u32 v%d, s%d, v%d" % (SW, S_A, SR))
    e("s_lshl_b32 s%d, s%d, 3" % (S_A, S_C))
    e("s_add_u32 s%d, s%d, s%d" % (S_A, S_A, S_WAVE))
    e("s_lshl_b32 s%d, s%d, 15" % (S_A, S_A))
    e("s_lshl_b32 s%d, s%d, 10" % (S_B, S_XCD))
    e("s_add_u32 s%d, s%d, s%d" % (S_A, S_A, S_B))
    e("s_add_u32 s80, s%d, 0x%x" % (S_A, WS_H1))
    for i in range(1, 4): e("s_add_u32 s%d, s80, %d" % (80 + i, 8192 * i))
    e("s_lshl_b32 s%d, s%d, 3" % (S_A, S_C))
    e("s_add_u32 s%d, s%d, s%d" % (S_A, S_A, S_XCD))
    e("s_lshl_b32 s%d, s%d, 14" % (S_A, S_A))
    e("s_add_u32 s%d, s%d, 0x%x" % (S_A, S_A, WS_H2))
    e("s_lshl_b32 s%d, s%d, 10" % (S_B, S_D))
    e("s_add_u32 s87, s%d, s%d" % (S_A, S_B))
    for i in range(1, 4): e("s_add_u32 s%d, s87, %d" % (87 + i, 4096 * i))
    e("s_lshl_b32 s%d, s%d, 12" % (S_B, S_D))
    e("s_add_u32 s%d, s%d, s%d" % (S_A, S_A, S_B))
    e("s_lshl_b32 s%d, s%d, 6" % (S_B, S_WAVE))
    e("s_add_u32 s84, s%d, s%d" % (S_A, S_B))
    e("v_and_b32 v%d, 7, v1" % V_T0)
    e("v_lshlrev_b32 v%d, 9, v%d" % (V_PUB, V_T0))
    e("v_lshl_add_u32 v%d, v3, 4, v%d" % (V_PUB, V_PUB))
    e("s_lshl_b32 s%d, s%d, 3" % (S_A, S_SLOT))
    e("s_add_u32 s%d, s%d, s%d" % (S_A, S_A, S_XCD))
    e("s_lshl_b32 s%d, s%d, 10" % (S_A, S_A))
    e("s_add_u32 s91, s%d, 0x%x" % (S_A, WS_H2G))
    e("s_mov_b32 s96, %s" % f32(LOG2E))
    e("s_cmp_lt_u32 s%d, %d" % (S_WAVE, NLD))
    e("s_cbranch_scc1 L_a_real")
    if not NOTOUCH:
        e("s_cmp_lg_u32 s%d, 4" % S_WAVE)
        e("s_cbranch_scc1 L_a_notouch")
        e("v_and_b32 v%d, 7, v1" % V_T0)
        e("v_lshlrev_b32 v%d, 7, v%d" % (V_T0, V_T0))
        e("v_bfe_u32 v%d, v1, 3, 2" % V_T1)
        e("v_lshl_add_u32 v%d, v%d, 12, v%d" % (V_T0, V_T1, V_T0))
        touch([(V_T0, 87, 0), (V_Z, 80, 0), (V_Z, 91, 0)])
        lab("L_a_notouch")
    if NODRY: e("s_branch L_a_real0")
    set_dry()
    e("s_branch L_a_att")
    lab("L_a_real0")
    e("s_waitcnt vmcnt(0)")
    lab("L_a_real")
    set_real()
    e("s_waitcnt vmcnt(%d)" % (TRIGV * 4 // NLD))
    make_tag(EP)
    notr = uid("notr")
    e("s_cmp_lg_u32 s%d, 0" % S_WAVE)
    e("s_cbranch_scc1 %s" % notr)
    e("s_lshl_b32 s%d, s%d, 3" % (S_A, S_SLOT))
    e("s_or_b32 s%d, s%d, s%d" % (S_A, S_A, S_XCD))
    e("s_lshl_b32 s%d, s%d, 7" % (S_A, S_A))
    e("s_add_u32 s%d, s%d, 0x%x" % (S_A, S_A, WS_TRIG))
    e("s_mov_b64 exec, 1")
    e("buffer_store_dwordx2 v[%d:%d], v%d, s[%d:%d], s%d offen sc1" % (V_P + 2, V_P + 3, V_Z, SRD_WS, SRD_WS + 3, S_A))
    e("s_mov_b64 exec, -1")
    lab(notr)
    e("s_waitcnt vmcnt(%d)" % (64 // NLD))
    e("s_barrier")
    stamp(2)
    tr256_read(V_WF, V_TR)
    lab("L_a_att")
    def h1_loads():
        for k in range(4):
            e("buffer_load_dwordx4 v[%d:%d], v%d, s[%d:%d], s%d offen sc1" % (V_L + 4 * k, V_L + 4 * k + 3, V_G, SRD_WS, SRD_WS + 3, 80 + k))
        xcc_load(V_L + 16, XA, SRD_O)
    e("s_cbranch_execz L_a_h1k")
    h1_loads()
    e("s_waitcnt vmcnt(5)")
    e("s_barrier")
    lab("L_a_h1k")
    for sg in range(4):
        for t in range(2):
            r = V_KF + 16 * t + 4 * sg
            e("ds_read_b128 v[%d:%d], v%d offset:%d" % (r, r + 3, KA + sg, t * 4096))
    e("s_cbranch_execz L_a_h1_nl")
    e("s_branch L_a_h1w")
    lab("L_a_h1")
    h1_loads()
    lab("L_a_h1w")
    poll_end("L_a_h1", [chk64(V_L + 4 * k + 2) for k in range(4)] + xcc_checks(V_L + 16, V_T0))
    stamp(4)
    e("v_pk_add_f32 v[%d:%d], v[%d:%d], v[%d:%d]" % (V_L, V_L + 1, V_L, V_L + 1, V_L + 4, V_L + 5))
    e("v_pk_add_f32 v[%d:%d], v[%d:%d], v[%d:%d]" % (V_L + 8, V_L + 9, V_L + 8, V_L + 9, V_L + 12, V_L + 13))
    e("v_pk_add_f32 v[%d:%d], v[%d:%d], v[%d:%d]" % (V_L, V_L + 1, V_L, V_L + 1, V_L + 8, V_L + 9))
    e("v_cvt_pk_bf16_f32 v%d, v%d, v%d" % (V_T0, V_L, V_L + 1))
    e("ds_write_b32 v%d, v%d" % (QW, V_T0))
    xcc_decide(V_L + 16)
    e("s_waitcnt lgkmcnt(0)")
    barrier(True)
    for sg in range(4):
        e("ds_read_b128 v[%d:%d], v%d offset:%d" % (V_AF + 4 * sg, V_AF + 4 * sg + 3, QO if (sg & 1) else QE, sg * 512))
    S0, S1 = V_U, V_U + 4
    for sg in range(4):
        e("s_waitcnt lgkmcnt(%d)" % (3 - sg))
        for t, acc in ((0, S0), (1, S1)):
            e(mfma(acc, V_KF + 16 * t + 4 * sg, V_AF + 4 * sg, None if sg == 0 else acc))
    e("s_nop 7")
    X = V_U + 8
    W = V_U + 16
    for k in range(4):
        e("v_cndmask_b32 v%d, v%d, v%d, s[%d:%d]" % (X + k, S0 + k, S1 + k, S_HI8, S_HI8 + 1))
    for rnd in range(2):
        for i2 in range(2):
            e("v_cvt_pk_bf16_f32 v%d, v%d, v%d" % (W + i2, X + 2 * i2, X + 2 * i2 + 1))
        for i2 in range(2):
            unpack(X + 2 * i2, X + 2 * i2 + 1, W + i2)
        if rnd == 0:
            for k in range(4):
                e("v_mul_f32 v%d, %s, v%d" % (X + k, f32(128 ** -0.5), X + k))
    e("v_max3_f32 v%d, v%d, v%d, v%d" % (V_M, X, X + 1, X + 2))
    e("v_max_f32 v%d, v%d, v%d" % (V_M, V_M, X + 3))
    e("s_nop 1")
    e(dpp_add(V_M, V_M, "row_ror:8", "v_max_f32"))
    emit(xrow_ops(V_M, V_T0, "v_max_f32"))
    e("v_mul_f32 v%d, s96, v%d" % (V_M, V_M))
    for k in range(4):
        e("v_fma_f32 v%d, v%d, s96, -v%d" % (X + k, X + k, V_M))
    for k in range(4):
        e("v_exp_f32 v%d, v%d" % (X + k, X + k))
    e("s_nop 0")
    e("v_cvt_pk_bf16_f32 v%d, v%d, v%d" % (W, X, X + 1))
    e("v_cvt_pk_bf16_f32 v%d, v%d, v%d" % (W + 1, X + 2, X + 3))
    e("v_add_f32 v%d, v%d, v%d" % (V_SUM, X, X + 1))
    e("v_add_f32 v%d, v%d, v%d" % (V_T1, X + 2, X + 3))
    e("ds_write_b64 v%d, v[%d:%d]" % (PW0, W, W + 1))
    e("v_add_f32 v%d, v%d, v%d" % (V_SUM, V_SUM, V_T1))
    e("s_nop 1")
    e(dpp_add(V_SUM, V_SUM, "row_ror:8"))
    emit(xrow_ops(V_SUM, V_T0))
    e("ds_write2_b32 v%d, v%d, v%d offset0:0 offset1:8" % (SW, V_M, V_SUM))
    e("s_waitcnt lgkmcnt(0)")
    barrier(True)
    stamp(5)
    MS, LS = V_L, V_L + 8
    for i2 in range(4):
        e("ds_read_b128 v[%d:%d], v%d offset:%d" % (V_L + 4 * i2, V_L + 4 * i2 + 3, SR, 16 * i2))
    for m in range(8):
        e("ds_read_b128 v[%d:%d], v%d offset:%d" % (V_AF + 4 * m, V_AF + 4 * m + 3, V_AO if (m & 1) else V_AE, m * 512))
    AC = V_U
    side = ["v_max3_f32 v%d, v%d, v%d, v%d" % (V_M, MS, MS + 1, MS + 2),
            "v_max3_f32 v%d, v%d, v%d, v%d" % (V_T0, MS + 3, MS + 4, MS + 5),
            "v_max3_f32 v%d, v%d, v%d, v%d" % (V_M, V_M, MS + 6, MS + 7),
            "v_max_f32 v%d, v%d, v%d" % (V_M, V_M, V_T0)]
    side += ["v_sub_f32 v%d, v%d, v%d" % (MS + i2, MS + i2, V_M) for i2 in range(8)]
    side += ["v_exp_f32 v%d, v%d" % (MS + i2, MS + i2) for i2 in range(8)]
    side += ["v_mul_f32 v%d, v%d, v%d" % (V_SUM, LS, MS), "v_mul_f32 v%d, v%d, v%d" % (V_T1, LS + 1, MS + 1)]
    for i2 in range(2, 8, 2):
        side += ["v_fmac_f32 v%d, v%d, v%d" % (V_SUM, LS + i2, MS + i2), "v_fmac_f32 v%d, v%d, v%d" % (V_T1, LS + i2 + 1, MS + i2 + 1)]
    side += ["v_add_f32 v%d, v%d, v%d" % (V_SUM, V_SUM, V_T1),
             "v_rcp_f32 v%d, v%d" % (V_RS, V_SUM), "v_log_f32 v%d, v%d" % (V_T1, V_SUM), "s_nop 0",
             "v_add_f32 v%d, v%d, v%d" % (V_P + 2, V_T1, V_M)]
    per = (len(side) + 7) // 8
    for m in range(8):
        e("s_waitcnt lgkmcnt(%d)" % (7 - m))
        e(mfma(AC + 4 * m, V_WF + 4 * m, V_AF + 4 * m, None))
        emit(side[m * per:(m + 1) * per])
    def bsel(r):
        return (r & ~1, "op_sel:[0,%d,0] op_sel_hi:[1,%d,1]" % (r & 1, r & 1), "op_sel:[0,%d] op_sel_hi:[1,%d]" % (r & 1, r & 1))
    for m in range(8):
        fb, sel, sel2 = bsel(MS + m)
        for h in range(2):
            a = V_ACC + 2 * h
            if m == 0:
                e("v_pk_mul_f32 v[%d:%d], v[%d:%d], v[%d:%d] %s" % (a, a + 1, AC + 2 * h, AC + 2 * h + 1, fb, fb + 1, sel2))
            else:
                e("v_pk_fma_f32 v[%d:%d], v[%d:%d], v[%d:%d], v[%d:%d] %s" % (a, a + 1, AC + 4 * m + 2 * h, AC + 4 * m + 2 * h + 1, fb, fb + 1, a, a + 1, sel))
    fb, sel, sel2 = bsel(V_RS)
    for h in range(2):
        a = V_ACC + 2 * h
        e("v_pk_mul_f32 v[%d:%d], v[%d:%d], v[%d:%d] %s" % (a, a + 1, a, a + 1, fb, fb + 1, sel2))
    e("v_cvt_pk_bf16_f32 v%d, v%d, v%d" % (V_P, V_ACC, V_ACC + 1))
    e("v_cvt_pk_bf16_f32 v%d, v%d, v%d" % (V_P + 1, V_ACC + 2, V_ACC + 3))
    store_l("buffer_store_dwordx4 v[%d:%d], v%d, s[%d:%d], s84 offen" % (V_P, V_P + 3, V_PUB, SRD_WS, SRD_WS + 3), "lo8")
    stamp(6)
    e("s_sub_u32 s%d, s%d, 1" % (S_A, S_WAVE))
    e("s_cmp_lt_u32 s%d, 3" % S_A)
    e("s_cbranch_scc1 L_a_nocomb")
    e("s_cmp_lg_u32 s%d, 0" % S_DRY)
    e("s_cbranch_scc1 L_a_comb")
    e("s_cmp_lg_u32 s%d, 0" % S_WAVE)
    e("s_cbranch_scc1 L_a_nocomb")
    lab("L_a_comb")
    top = poll_begin()
    for s in range(4):
        e("buffer_load_dwordx4 v[%d:%d], v%d, s[%d:%d], s%d offen sc1" % (V_L + 4 * s, V_L + 4 * s + 3, V_G, SRD_WS, SRD_WS + 3, 87 + s))
    poll_end(top, [chk32(V_L + 4 * s + 3) for s in range(4)])
    Ls = [V_L + 4 * s + 2 for s in range(4)]
    e("v_max3_f32 v%d, v%d, v%d, v%d" % (V_T0, Ls[0], Ls[1], Ls[2]))
    e("v_max_f32 v%d, v%d, v%d" % (V_T0, V_T0, Ls[3]))
    for s in range(4): e("v_sub_f32 v%d, v%d, v%d" % (Ls[s], Ls[s], V_T0))
    for s in range(4): e("v_exp_f32 v%d, v%d" % (Ls[s], Ls[s]))
    for s in range(4):
        unpack(V_U + 4 * s, V_U + 4 * s + 1, V_L + 4 * s)
        unpack(V_U + 4 * s + 2, V_U + 4 * s + 3, V_L + 4 * s + 1)
    e("v_add_f32 v%d, v%d, v%d" % (V_T0, Ls[0], Ls[1]))
    e("v_add_f32 v%d, v%d, v%d" % (V_T1, Ls[2], Ls[3]))
    e("v_add_f32 v%d, v%d, v%d" % (V_T0, V_T0, V_T1))
    e("v_rcp_f32 v%d, v%d" % (V_T0, V_T0))
    for k in range(4):
        e("v_mul_f32 v%d, v%d, v%d" % (V_U + k, V_U + k, Ls[0]))
    for s in range(1, 4):
        for k in range(4):
            e("v_fmac_f32 v%d, v%d, v%d" % (V_U + k, V_U + 4 * s + k, Ls[s]))
    for k in range(4):
        e("v_mul_f32 v%d, v%d, v%d" % (V_U + k, V_U + k, V_T0))
    e("v_cvt_pk_bf16_f32 v%d, v%d, v%d" % (V_U + 16, V_U, V_U + 1))
    e("v_cvt_pk_bf16_f32 v%d, v%d, v%d" % (V_U + 17, V_U + 2, V_U + 3))
    e("v_mov_b32 v%d, s%d" % (V_U + 18, S_T))
    e("v_mov_b32 v%d, s%d" % (V_U + 19, S_T))
    store_g("buffer_store_dwordx4 v[%d:%d], v%d, s[%d:%d], s91 offen" % (V_U + 16, V_U + 19, V_G, SRD_WS, SRD_WS + 3))
    stamp(13)
    lab("L_a_nocomb")
    e("s_cmp_lg_u32 s%d, 0" % S_DRY)
    e("s_cbranch_scc1 L_a_real0")
    e("s_lshr_b32 s%d, s%d, 7" % (S_D, S_WG))
    e("s_mul_i32 s%d, s%d, 7" % (S_A, S_XCD))
    e("s_add_u32 s%d, s%d, s%d" % (S_D, S_D, S_A))
    e("s_sub_u32 s%d, 3, s%d" % (S_D, S_D))
    e("s_and_b32 s%d, s%d, 7" % (S_D, S_D))
    e("s_mov_b32 s99, 0")
    e("s_cmp_ge_u32 s%d, 7" % S_SLOT)
    e("s_cselect_b32 s%d, 7, 0" % S_B)
    e("s_cselect_b32 s%d, 1, 0" % S_E)
    e("s_sub_u32 s%d, s%d, s%d" % (S_C, S_SLOT, S_B))
    e("s_cmp_eq_u32 s%d, s%d" % (S_C, S_D))
    e("s_cselect_b32 s99, 1, 0")
    e("s_cmp_lt_u32 s%d, 14" % S_SLOT)
    e("s_cbranch_scc1 L_a_nohelp")
    e("s_cmp_eq_u32 s%d, 7" % S_D)
    e("s_cbranch_scc1 L_a_idle")
    e("s_mov_b32 s%d, s%d" % (S_C, S_D))
    e("s_sub_u32 s%d, s%d, 14" % (S_E, S_SLOT))
    e("s_mov_b32 s99, 2")
    lab("L_a_nohelp")
    e("s_mov_b32 s96, s%d" % S_E)
    e("s_cmp_lg_u32 s%d, 0" % S_E)
    e("s_cselect_b32 s%d, s%d, s%d" % (SRD_W, S_WU, S_WG))
    e("s_cselect_b32 s%d, s%d, s%d" % (S_A, S_WU + 1, S_WG + 1))
    e("s_cselect_b32 s85, 0x%x, 0" % (WS_H4U - WS_H4S))
    e("s_add_u32 s85, s85, 0x%x" % WS_H4S)
    e("s_and_b32 s%d, s%d, 0xffff" % (SRD_W + 1, S_A))
    e("s_mov_b32 s%d, 0x%x" % (SRD_W + 2, 1024 * 7168))
    e("s_mov_b32 s%d, 0x20000" % (SRD_W + 3))
    e("s_mul_i32 s%d, s%d, 7" % (S_A, S_XCD))
    e("s_add_u32 s%d, s%d, s%d" % (S_C, S_C, S_A))
    GO = V_X1
    e("v_lshrrev_b32 v%d, 3, v1" % V_T0)
    e("v_bfe_u32 v%d, v1, 4, 1" % V_T1)
    e("v_and_b32 v%d, 7, v1" % V_T2)
    e("v_xor_b32 v%d, v%d, v%d" % (V_T1, V_T1, V_T2))
    e("v_lshlrev_b32 v%d, 4, v%d" % (V_T1, V_T1))
    e("v_mul_u32_u24 v%d, 7168, v%d" % (GO, V_T0))
    e("v_add_u32 v%d, v%d, v%d" % (GO, GO, V_T1))
    for i in range(1, 4): e("v_xor_b32 v%d, %d, v%d" % (GO + i, 32 * i, GO))
    e("s_lshl_b32 s%d, s%d, 5" % (S_E, S_WAVE))
    e("s_mov_b32 s%d, 4" % S_D)
    e("s_cmp_eq_u32 s99, 0")
    e("s_cbranch_scc1 L_a_whole")
    e("s_lshl_b32 s%d, s%d, 4" % (S_E, S_WAVE))
    e("s_sub_u32 s%d, s99, 1" % S_A)
    e("s_lshl_b32 s%d, s%d, 6" % (S_A, S_A))
    e("s_add_u32 s%d, s%d, s%d" % (S_E, S_E, S_A))
    e("s_mov_b32 s%d, 2" % S_D)
    lab("L_a_whole")
    e("s_mul_i32 s%d, s%d, %d" % (S_A, S_E, 8 * 7168))
    e("s_lshl_b32 s%d, s%d, 7" % (S_B, S_C))
    e("s_add_u32 s%d, s%d, s%d" % (S_A, S_A, S_B))
    e("s_lshl_b32 s%d, s%d, 10" % (S_B, S_E))
    e("s_barrier")
    for k in range(4): e("v_mov_b32 v%d, v%d" % (V_WF + 8 + k, V_P + k))
    e("v_mov_b32 v%d, v%d" % (V_WF + 12, V_PUB))
    e("s_mov_b32 s87, s84")
    e("s_cmp_ge_u32 s%d, %d" % (S_WAVE, 0 if "gu" in SKIP else 4))
    e("s_cbranch_scc1 L_a_gusetup")
    lab("L_a_guld")
    for m in range(8):
        e("s_mov_b32 m0, s%d" % S_B)
        e("s_add_u32 s%d, s%d, 1024" % (S_B, S_B))
        var = (m & 1) | (((m >> 2) & 1) << 1)
        e("buffer_load_dwordx4 v%d, s[%d:%d], s%d offen nt lds" % (GO + var, SRD_W, SRD_W + 3, S_A))
        e("s_add_u32 s%d, s%d, %d" % (S_A, S_A, 8 * 7168))
    e("s_sub_u32 s%d, s%d, 1" % (S_D, S_D))
    e("s_cmp_lg_u32 s%d, 0" % S_D)
    e("s_cbranch_scc1 L_a_guld")
    stamp(7)
    lab("L_a_gusetup")
    e("v_bfe_u32 v%d, v1, 3, 1" % V_T0)
    e("v_and_b32 v%d, 1, v3" % V_T1)
    e("v_lshl_or_b32 v%d, v%d, 1, v%d" % (V_T0, V_T1, V_T0))
    e("v_bfe_u32 v%d, v1, 1, 1" % V_T1)
    e("v_lshl_or_b32 v%d, v%d, 2, v%d" % (V_T0, V_T1, V_T0))
    e("v_xor_b32 v%d, s%d, v%d" % (V_T0, S_WAVE, V_T0))
    e("v_lshlrev_b32 v%d, 4, v%d" % (V_T0, V_T0))
    e("v_bfe_u32 v%d, v1, 2, 2" % V_T2)
    e("v_lshl_add_u32 v%d, v3, 3, v%d" % (V_T2, V_T2))
    e("v_lshl_add_u32 v%d, v%d, 5, v%d" % (V_T2, V_T1, V_T2))
    e("v_lshl_add_u32 v%d, v%d, 7, v%d" % (V_T0, V_T2, V_T0))
    e("v_and_b32 v%d, 1, v1" % V_T1)
    e("v_lshl_add_u32 v%d, v%d, 3, v%d" % (V_TR, V_T1, V_T0))
    e("v_add_u32 v%d, 0x10000, v%d" % (V_VA, V_TR))
    e("v_lshrrev_b32 v%d, 3, v2" % V_T0)
    e("v_lshl_or_b32 v%d, v3, 1, v%d" % (V_T1, V_T0))
    e("v_and_b32 v%d, 7, v1" % V_T2)
    e("v_xor_b32 v%d, v%d, v%d" % (V_T1, V_T1, V_T2))
    e("v_lshlrev_b32 v%d, 4, v%d" % (V_T1, V_T1))
    e("v_lshl_add_u32 v%d, v%d, 2, v3" % (V_T0, V_T0))
    e("v_lshl_add_u32 v%d, v%d, 7, v%d" % (V_T1, V_T0, V_T1))
    e("v_add_u32 v%d, %d, v%d" % (V_AE, L_ACT, V_T1))
    e("v_lshlrev_b32 v%d, 3, v%d" % (V_T2, V_T2))
    e("v_add_u32 v%d, %d, v%d" % (V_AO, L_MX, V_T2))
    e("s_lshl_b32 s%d, s%d, 3" % (S_A, S_WAVE))
    e("s_add_u32 s%d, s%d, %d" % (S_A, S_A, L_MX))
    e("v_mov_b32 v%d, s%d" % (V_RED, S_A))
    pos_write_addr(V_AW, L_ACT)
    e("s_lshl_b32 s%d, s%d, 12" % (S_A, S_WAVE))
    e("s_add_u32 s86, s%d, 0x%x" % (S_A, WS_H3B))
    e("s_lshl_b32 s%d, s%d, 11" % (S_A, S_C))
    e("s_lshl_b32 s%d, s%d, 8" % (S_B, S_WAVE))
    e("s_add_u32 s%d, s%d, s%d" % (S_A, S_A, S_B))
    e("s_add_u32 s85, s85, s%d" % S_A)
    e("v_and_b32 v%d, 1, v3" % V_T0)
    e("v_lshlrev_b32 v%d, 7, v%d" % (V_PUB, V_T0))
    e("v_and_b32 v%d, 7, v1" % V_T0)
    e("v_lshl_add_u32 v%d, v%d, 4, v%d" % (V_PUB, V_T0, V_PUB))
    e("v_lshrrev_b32 v%d, 1, v3" % V_T0)
    e("v_lshl_add_u32 v%d, v%d, 3, v%d" % (V_PUB, V_T0, V_PUB))
    e("s_lshl_b32 s%d, s96, 1" % S_A)
    e("s_add_u32 s%d, s%d, s99" % (S_A, S_A))
    e("s_sub_u32 s%d, s%d, 1" % (S_A, S_A))
    e("s_lshl_b32 s%d, s%d, 3" % (S_A, S_A))
    e("s_add_u32 s%d, s%d, s%d" % (S_A, S_A, S_XCD))
    e("s_lshl_b32 s%d, s%d, 12" % (S_A, S_A))
    e("s_lshl_b32 s%d, s%d, 9" % (S_B, S_WAVE))
    e("s_add_u32 s%d, s%d, s%d" % (S_A, S_A, S_B))
    e("s_add_u32 s84, s%d, 0x%x" % (S_A, WS_H4P))
    e("v_lshlrev_b32 v%d, 1, v%d" % (V_H, V_PUB))
    e("v_mov_b32 v%d, s%d" % (V_ACC + 6, S_T))
    e("v_mov_b32 v%d, s%d" % (V_ACC + 7, S_T))
    ONE = V_WF
    CS = V_WF + 4
    for k in range(4): e("v_mov_b32 v%d, 0x3f803f80" % (ONE + k))
    e("v_mov_b32 v%d, s%d" % (V_P + 1, S_T))
    e("s_mov_b64 s[%d:%d], s[%d:%d]" % (80, 81, S_ML, S_ML + 1))
    e("s_mov_b64 s[%d:%d], s[%d:%d]" % (82, 83, S_MG, S_MG + 1))
    e("s_cmp_lt_u32 s%d, 4" % S_WAVE)
    e("s_cbranch_scc1 L_a_gureal")
    if NODRY: e("s_branch L_a_gureal")
    set_dry()
    e("s_branch L_a_gutop")
    lab("L_a_gureal")
    set_real()
    e("s_mov_b64 s[%d:%d], s[%d:%d]" % (S_ML, S_ML + 1, 80, 81))
    e("s_mov_b64 s[%d:%d], s[%d:%d]" % (S_MG, S_MG + 1, 82, 83))
    e("s_waitcnt vmcnt(%d)" % T2V)
    if TRIG2: trig2()
    e("s_waitcnt vmcnt(0)")
    e("s_barrier")
    lab("L_a_gutop")
    GF = V_KF
    for m in range(16):
        for h in range(2):
            e("ds_read_b64_tr_b16 v[%d:%d], v%d offset:%d" % (GF + 4 * m + 2 * h, GF + 4 * m + 2 * h + 1, V_TR if m < 8 else V_VA, (m & 7) * 8192 + h * 512))
    e("s_waitcnt lgkmcnt(0)")
    e("s_cmp_lg_u32 s99, 1")
    e("s_cbranch_scc1 L_a_z1")
    for k in range(32, 64): e("v_mov_b32 v%d, 0" % (GF + k))
    lab("L_a_z1")
    e("s_cmp_lg_u32 s99, 2")
    e("s_cbranch_scc1 L_a_z2")
    for k in range(0, 32): e("v_mov_b32 v%d, 0" % (GF + k))
    lab("L_a_z2")
    e("s_nop 1")
    for m in range(16):
        e(mfma(CS, GF + 4 * m, ONE, None if m == 0 else CS))
    e("s_nop 7")
    e("v_permlane32_swap_b32 v%d, v%d" % (CS, CS + 2))
    e("v_permlane32_swap_b32 v%d, v%d" % (CS + 1, CS + 3))
    e("s_nop 1")
    e("v_add_f32_dpp v%d, v%d, v%d row_shl:8 row_mask:0xf bank_mask:0xf" % (CS, CS + 2, CS))
    e("v_add_f32_dpp v%d, v%d, v%d row_shl:8 row_mask:0xf bank_mask:0xf" % (CS + 1, CS + 3, CS + 1))
    stamp(8)
    top = poll_begin((V_G, 86, 3))
    for n in range(4):
        e("buffer_load_dwordx4 v[%d:%d], v%d, s[%d:%d], s86 offen offset:%d sc1" % (V_L + 4 * n, V_L + 4 * n + 3, V_G, SRD_WS, SRD_WS + 3, n * 1024))
    poll_end(top, [chk64(V_L + 4 * n + 2) for n in range(4)], bell=(V_G, 86, 3))
    for n in range(4):
        e("ds_write_b64 v%d, v[%d:%d] offset:%d" % (V_AW, V_L + 4 * n, V_L + 4 * n + 1, n * 4096))
    stamp(9)
    side = ln_stats_dot_ops([V_L + 4 * (i >> 1) + (i & 1) for i in range(8)], ONE, V_SUM, V_SQ, V_T0, V_M, V_RS)
    emit(side[:16])
    side = side[16:]
    e("s_waitcnt lgkmcnt(0)")
    barrier(True)
    stamp(10)
    for m in range(16):
        e("ds_read_b128 v[%d:%d], v%d offset:%d" % (V_AF + 4 * m, V_AF + 4 * m + 3, V_AE, m * 1024))
    per = (len(side) + 11) // 12
    for m in range(16):
        e("s_waitcnt lgkmcnt(%d)" % (15 - m))
        e(mfma(V_ACC, GF + 4 * m, V_AF + 4 * m, None if m == 0 else V_ACC))
        if m < 15: emit(side[m * per:(m + 1) * per])
    e("ds_write_b64 v%d, v[%d:%d]" % (V_RED, V_M, V_RS))
    e("s_waitcnt lgkmcnt(0)")
    barrier(True)
    e("ds_read_b64 v[%d:%d], v%d" % (V_M, V_RS, V_AO))
    e("s_nop 3")
    e("v_permlane32_swap_b32 v%d, v%d" % (V_ACC, V_ACC + 2))
    e("v_permlane32_swap_b32 v%d, v%d" % (V_ACC + 1, V_ACC + 3))
    e("s_nop 1")
    e("v_add_f32_dpp v%d, v%d, v%d row_shl:8 row_mask:0xf bank_mask:0xf" % (V_ACC, V_ACC + 2, V_ACC))
    e("v_add_f32_dpp v%d, v%d, v%d row_shl:8 row_mask:0xf bank_mask:0xf" % (V_ACC + 1, V_ACC + 3, V_ACC + 1))
    e("s_waitcnt lgkmcnt(0)")
    e("v_fma_f32 v%d, -v%d, v%d, v%d" % (V_ACC, V_M, CS, V_ACC))
    e("v_fma_f32 v%d, -v%d, v%d, v%d" % (V_ACC + 1, V_M, CS + 1, V_ACC + 1))
    e("v_mul_f32 v%d, v%d, v%d" % (V_ACC, V_ACC, V_RS))
    e("v_mul_f32 v%d, v%d, v%d" % (V_ACC + 1, V_ACC + 1, V_RS))
    e("s_cmp_lg_u32 s99, 0")
    e("s_cbranch_scc1 L_a_part")
    e("v_cvt_pk_bf16_f32 v%d, v%d, v%d" % (V_P, V_ACC, V_ACC + 1))
    nosig = uid("nosig")
    e("s_cmp_lg_u32 s96, 0")
    e("s_cbranch_scc1 %s" % nosig)
    unpack(V_U, V_U + 1, V_P)
    e("v_mul_f32 v%d, %s, v%d" % (V_U, f32(-LOG2E), V_U))
    e("v_mul_f32 v%d, %s, v%d" % (V_U + 1, f32(-LOG2E), V_U + 1))
    e("v_exp_f32 v%d, v%d" % (V_U, V_U))
    e("v_exp_f32 v%d, v%d" % (V_U + 1, V_U + 1))
    e("s_nop 0")
    e("v_add_f32 v%d, 1.0, v%d" % (V_U, V_U))
    e("v_add_f32 v%d, 1.0, v%d" % (V_U + 1, V_U + 1))
    e("v_rcp_f32 v%d, v%d" % (V_U, V_U))
    e("v_rcp_f32 v%d, v%d" % (V_U + 1, V_U + 1))
    e("s_nop 0")
    e("v_cvt_pk_bf16_f32 v%d, v%d, v%d" % (V_P, V_U, V_U + 1))
    lab(nosig)
    store_l("buffer_store_dwordx2 v[%d:%d], v%d, s[%d:%d], s85 offen" % (V_P, V_P + 1, V_PUB, SRD_WS, SRD_WS + 3), "lo8")
    e("s_branch L_a_pubd")
    lab("L_a_part")
    e("v_mov_b32 v%d, v%d" % (V_P, V_ACC))
    e("v_mov_b32 v%d, v%d" % (V_P + 1, V_ACC + 1))
    store_l("buffer_store_dwordx4 v[%d:%d], v%d, s[%d:%d], s84 offen" % (V_P, V_P + 3, V_H, SRD_WS, SRD_WS + 3), "lo8")
    lab("L_a_pubd")
    e("s_cmp_lg_u32 s%d, 0" % S_DRY)
    e("s_cbranch_scc1 L_a_gureal")
    stamp(11)
    if "a" in CLEAN: clean("buffer_store_dwordx4 v[%d:%d], v%d, s[%d:%d], s87 offen" % (V_WF + 8, V_WF + 11, V_WF + 12, SRD_WS, SRD_WS + 3), "lo8")
    lab("L_a_done")
    stamps_flush(V_U)
    e("s_endpgm")
    lab("L_a_idle")
    if TRIG2: trig2()
    e("s_branch L_a_done")

gen()
open(OUT, "w").write("\n".join(lines) + "\n")
print("wrote", OUT, len(lines), "lines")
```

```python
import sys, struct

NAME = "sequential_preLN__sliding_block_cached__glu_gated_glu__decode"
def opt(name, default):
    for a in sys.argv:
        if a.startswith("--%s=" % name): return a.split("=", 1)[1]
    return default
STSET = opt("st", None)
STAMPS = "--stamps" in sys.argv or STSET is not None
STSET = None if STSET is None else set(int(x) for x in STSET.split(","))
NOLOCAL = "--nolocal" in sys.argv
NODRY = "--nodry" in sys.argv
NOTOUCH = "--notouch" in sys.argv
NOBELL = "--nobell" in sys.argv
BELLSLEEP = int(opt("bellsleep", 2))
BELL5 = "--nobell5" not in sys.argv
BELL1 = "--bell1" in sys.argv
TRIG2 = "--trig2" in sys.argv
NOCLEAN = "--clean-on" not in sys.argv
CLEAN = opt("clean", "ab")
NLD = 4
KFIRST = False
PFK = int(opt("pfk", 0))
H1V = int(opt("h1v", -1))
H1LATE = H1V >= 0
GE = int(opt("ge", 0))
GE1 = int(opt("ge1", GE // 2))
VP = int(opt("vp", 8))
BELLFIRST = "--belllast" not in sys.argv
T2V = int(opt("t2v", 12))
DEARLY = "--dearly" in sys.argv
NOCODEPF = "--nocodepf" in sys.argv
SLEEP = int(opt("sleep", 1))
QFIRST = int(opt("qfirst", 8))
AWIN = int(opt("awin", 8))
ATHR = int(opt("athr", 0))
TRIGV = int(opt("trigv", 8))
OUT = [a for a in sys.argv[1:] if not a.startswith("--")]
OUT = OUT[0] if OUT else "cdna_kernels/%s.s" % NAME

lines = []
def e(s): lines.append("    " + s)
def lab(s): lines.append(s + ":")
def cmt(s): lines.append("    ; " + s)
_uid = [0]
def uid(p):
    _uid[0] += 1
    return "L_%s_%d" % (p, _uid[0])
def f32(x): return "0x%08x" % struct.unpack("<I", struct.pack("<f", x))[0]

WS_TRIG = 0x4000
WS_H1 = 0x100000
WS_H2 = 0x200000
WS_H3B = 0x280000
WS_H4S = 0x290000
WS_H4U = 0x2B0000
WS_H2G = 0x2E0000
WS_H4P = 0x500000
WS_H3A = 0x300000
WS_H5 = 0x400000
WS_TS = 0x600000
WS_SIZE = 0x800000

L_W0 = 0
L_W1 = 65536
L_ACT = 131072
L_QB = 147456
L_PB = 149504
L_MX = 153600
LDS_BYTES = 154112

S_X, S_K, S_V, S_WQ, S_WO, S_BX, S_WG, S_WU = 4, 6, 8, 10, 12, 14, 16, 18
S_WD, S_OUT, S_DBG, S_WS = 20, 22, 24, 26
S_WAVE, S_XCD, S_SLOT, S_T = 28, 29, 30, 31
SRD_W, SRD_WS, SRD_X, SRD_O = 32, 36, 40, 44
S_TT = 48
S_HI8 = 50
S_SPIN = 52
S_A, S_B, S_C, S_D, S_E, S_F = 53, 54, 55, 56, 57, 58
S_DRY = 59
S_TM = 60
S_ML = 62
S_ST = 64
S_MG = 92
S_FULL = 94
S_XCC, S_XOFF = 97, 98

LOG2E = 1.4426950408889634

V_VA, V_VB = 4, 5
V_TR = 6
V_AE, V_AO = 7, 8
V_T0, V_T1, V_T2, V_T3 = 9, 10, 11, 12
V_PUB, V_RED, V_H, V_XP, V_AW, V_G, V_Z = 13, 14, 15, 16, 17, 18, 19
V_ACC = 20
V_P = 24
V_M, V_RS, V_SQ, V_SUM = 28, 29, 30, 31
V_L = 32
V_U = 64
V_WF = 96
V_AF = 128
V_KF = 192
V_X1 = 224
V_GO = 248

def srd(dst, ptr, nbytes):
    e("s_mov_b32 s%d, s%d" % (dst, ptr))
    e("s_and_b32 s%d, s%d, 0xffff" % (dst + 1, ptr + 1))
    e("s_mov_b32 s%d, 0x%x" % (dst + 2, nbytes))
    e("s_mov_b32 s%d, 0x20000" % (dst + 3))

def stamp(k):
    if not STAMPS or (STSET is not None and k not in STSET): return
    e("s_memrealtime s[%d:%d]" % (S_TM, S_TM + 1))
    e("s_waitcnt lgkmcnt(0)")
    e("s_mov_b32 s%d, s%d" % (S_ST + k, S_TM))

def stamps_flush(vtmp):
    if not STAMPS: return
    e("s_mov_b64 exec, -1")
    for k in range(16):
        e("v_writelane_b32 v%d, s%d, %d" % (vtmp, S_ST + k, k))
    e("s_lshl_b32 s%d, s2, 9" % S_A)
    e("s_lshl_b32 s%d, s%d, 6" % (S_B, S_WAVE))
    e("s_add_u32 s%d, s%d, s%d" % (S_A, S_A, S_B))
    e("s_add_u32 s%d, s%d, 0x%x" % (S_A, S_A, WS_TS))
    e("v_lshlrev_b32 v%d, 2, v1" % (vtmp + 1))
    e("s_mov_b64 exec, 0xffff")
    e("buffer_store_dword v%d, v%d, s[%d:%d], s%d offen" % (vtmp, vtmp + 1, SRD_WS, SRD_WS + 3, S_A))

def full(): e("s_mov_b64 exec, s[%d:%d]" % (S_FULL, S_FULL + 1))

def barrier(dry=False):
    if dry:
        l = uid("nb")
        e("s_cbranch_execz %s" % l)
        e("s_barrier")
        lab(l)
    else:
        e("s_barrier")

def set_dry():
    e("s_mov_b64 s[%d:%d], 0" % (S_FULL, S_FULL + 1))
    e("s_mov_b64 s[%d:%d], 0" % (S_ML, S_ML + 1))
    e("s_mov_b64 s[%d:%d], 0" % (S_MG, S_MG + 1))
    e("s_mov_b32 s%d, 1" % S_DRY)
    e("s_mov_b32 s3, 8")
    full()

def set_real():
    e("s_mov_b64 s[%d:%d], -1" % (S_FULL, S_FULL + 1))
    e("s_mov_b32 s%d, 0" % S_DRY)
    e("s_mov_b32 s3, 2")
    full()

def dpp_add(dst, src, ctrl, op="v_add_f32"):
    return "%s_dpp v%d, v%d, v%d %s row_mask:0xf bank_mask:0xf" % (op, dst, src, src, ctrl)

def xrow_ops(v, t, op="v_add_f32"):
    return ["v_mov_b32 v%d, v%d" % (t, v), "s_nop 1", "v_permlane16_swap_b32 v%d, v%d" % (v, t), "s_nop 0",
            "%s v%d, v%d, v%d" % (op, v, v, t),
            "v_mov_b32 v%d, v%d" % (t, v), "s_nop 1", "v_permlane32_swap_b32 v%d, v%d" % (v, t), "s_nop 0",
            "%s v%d, v%d, v%d" % (op, v, v, t)]

def wave_allreduce_ops(v, t, op="v_add_f32"):
    o = []
    for r in (8, 4, 2, 1):
        o += ["s_nop 1", dpp_add(v, v, "row_ror:%d" % r, op)]
    return o + xrow_ops(v, t, op)

def bf16_round_ops(v):
    return ["v_cvt_pk_bf16_f32 v%d, v%d, v%d" % (v, v, v), "v_lshlrev_b32 v%d, 16, v%d" % (v, v)]

def unpack_ops(lo, hi, src):
    return ["v_lshlrev_b32 v%d, 16, v%d" % (lo, src), "v_and_b32 v%d, 0xffff0000, v%d" % (hi, src)]
def unpack(lo, hi, src):
    for x in unpack_ops(lo, hi, src): e(x)
def emit(ops):
    for x in ops: e(x)

def poll_begin(bell=None):
    if bell and BELLFIRST: doorbell(*bell)
    top = uid("poll")
    lab(top)
    e("s_cbranch_execz %s_nl" % top)
    return top

def poll_mid(top):
    lab(top + "_nl")
    top2 = top + "x"
    e("s_cbranch_execz %s_nl" % top2)
    return top2

def poll_end(top, checks, last=None, bell=None):
    ok = top + "_ok"
    e("s_waitcnt vmcnt(0)")
    lab((last or top) + "_nl")
    for c in checks: e(c)
    e("s_cmp_eq_u64 exec, s[%d:%d]" % (S_FULL, S_FULL + 1))
    full()
    e("s_cbranch_scc1 %s" % ok)
    if SLEEP: e("s_sleep %d" % SLEEP)
    if bell and not BELLFIRST: doorbell(*bell)
    e("s_sub_u32 s%d, s%d, 1" % (S_SPIN, S_SPIN))
    e("s_cbranch_scc0 %s" % top)
    e("s_mov_b32 s%d, 0" % S_SPIN)
    lab(ok)

def doorbell(va, so, tagpos, off=0):
    if NOBELL: return
    top = uid("bell")
    e("s_cbranch_execz %s_ok" % top)
    lab(top)
    e("s_mov_b64 exec, 1")
    e("buffer_load_dword v%d, v%d, s[%d:%d], s%d offen offset:%d sc1" % (V_T0, va, SRD_WS, SRD_WS + 3, so, off + 4 * tagpos))
    e("s_waitcnt vmcnt(0)")
    e("v_cmpx_eq_u32 vcc, s%d, v%d" % (S_T, V_T0))
    e("s_cbranch_execnz %s_ok" % top)
    e("s_sleep %d" % BELLSLEEP)
    e("s_sub_u32 s%d, s%d, 1" % (S_SPIN, S_SPIN))
    e("s_cbranch_scc0 %s" % top)
    e("s_mov_b32 s%d, 0" % S_SPIN)
    lab(top + "_ok")
    full()

def chk64(v): return "v_cmpx_eq_u64 vcc, s[%d:%d], v[%d:%d]" % (S_TT, S_TT + 1, v, v + 1)
def chk32(v): return "v_cmpx_eq_u32 vcc, s%d, v%d" % (S_T, v)

def _mask(m, lanemask):
    if lanemask is None: e("s_mov_b64 exec, s[%d:%d]" % (m, m + 1))
    elif lanemask == "lo8": e("s_andn2_b64 exec, s[%d:%d], s[%d:%d]" % (m, m + 1, S_HI8, S_HI8 + 1))
    else: e("s_and_b64 exec, s[%d:%d], %s" % (m, m + 1, lanemask))

def store_g(instr, lanemask=None, flags=" sc1"):
    l = uid("ns")
    if lanemask is not None: _mask(S_FULL, lanemask)
    e("s_cbranch_execz %s" % l)
    e(instr + flags)
    lab(l)
    if lanemask is not None: full()

def store_l(instr, lanemask=None):
    for m, fl in ((S_ML, ""), (S_MG, " sc1")):
        l = uid("ns")
        _mask(m, lanemask)
        e("s_cbranch_execz %s" % l)
        e(instr + fl)
        lab(l)
    full()

def xcc_publish(vt, srd_):
    e("s_getreg_b32 s%d, hwreg(HW_REG_XCC_ID, 0, 4)" % S_XCC)
    e("s_add_u32 s%d, s%d, 1" % (S_XCC, S_XCC))
    e("s_lshl_b32 s%d, s%d, 5" % (S_XOFF, S_XCD))
    skip = uid("noxcc")
    e("s_cmp_lg_u32 s%d, 4" % S_WAVE)
    e("s_cbranch_scc1 %s" % skip)
    e("s_lshr_b32 s%d, s2, 3" % S_B)
    e("s_add_u32 s%d, s%d, s%d" % (S_A, S_XOFF, S_B))
    e("v_mov_b32 v%d, s%d" % (vt, S_XCC))
    e("s_mov_b64 exec, 1")
    e("buffer_store_byte v%d, v%d, s[%d:%d], s%d offen sc1" % (vt, V_Z, srd_, srd_ + 3, S_A))
    e("s_mov_b64 exec, -1")
    lab(skip)
    e("s_mul_i32 s%d, s%d, 0x01010101" % (S_XCC, S_XCC))

def xcc_load(vd, vaddr, srd_):
    e("buffer_load_dword v%d, v%d, s[%d:%d], s%d offen sc1" % (vd, vaddr, srd_, srd_ + 3, S_XOFF))

def xcc_checks(vd, vt):
    return ["v_subrev_u32 v%d, 0x01010101, v%d" % (vt, vd),
            "v_bfi_b32 v%d, v%d, 0, v%d" % (vt, vd, vt),
            "v_and_b32 v%d, 0x80808080, v%d" % (vt, vt),
            "v_cmpx_eq_u32 vcc, 0, v%d" % vt]

def xcc_decide(vd):
    e("v_cmp_ne_u32 vcc, s%d, v%d" % (S_XCC, vd))
    e("s_nop 1")
    if NOLOCAL: e("s_cmp_eq_u32 s%d, 0" % S_XCC)
    else: e("s_cmp_eq_u64 vcc, 0")
    e("s_cselect_b64 s[%d:%d], s[%d:%d], 0" % (S_ML, S_ML + 1, S_FULL, S_FULL + 1))
    e("s_cselect_b64 s[%d:%d], 0, s[%d:%d]" % (S_MG, S_MG + 1, S_FULL, S_FULL + 1))

def ln_stats_ops(vals, vsum, vt, vmean, vrs, vsq):
    o = ["v_add_f32 v%d, v%d, v%d" % (vsum, vals[0], vals[1]), "v_add_f32 v%d, v%d, v%d" % (vt, vals[2], vals[3])]
    for i in range(4, 16, 2):
        o += ["v_add_f32 v%d, v%d, v%d" % (vsum, vsum, vals[i]), "v_add_f32 v%d, v%d, v%d" % (vt, vt, vals[i + 1])]
    o += ["v_add_f32 v%d, v%d, v%d" % (vsum, vsum, vt)]
    o += wave_allreduce_ops(vsum, vt)
    o += ["v_mul_f32 v%d, %s, v%d" % (vmean, f32(1.0 / 1024), vsum)]
    o += ["v_sub_f32 v%d, v%d, v%d" % (vt, vals[0], vmean), "v_mul_f32 v%d, v%d, v%d" % (vsum, vt, vt)]
    for i in range(1, 16):
        o += ["v_sub_f32 v%d, v%d, v%d" % (vt, vals[i], vmean), "v_fmac_f32 v%d, v%d, v%d" % (vsum, vt, vt)]
    o += wave_allreduce_ops(vsum, vt)
    o += ["v_mul_f32 v%d, %s, v%d" % (vsq, f32(1.0 / 1024), vsum)]
    o += bf16_round_ops(vsq)
    o += ["v_add_f32 v%d, %s, v%d" % (vsq, f32(1e-5), vsq)]
    o += bf16_round_ops(vsq)
    o += ["v_sqrt_f32 v%d, v%d" % (vsq, vsq)]
    o += bf16_round_ops(vmean)
    o += bf16_round_ops(vsq)
    o += ["v_rcp_f32 v%d, v%d" % (vrs, vsq), "s_nop 0"]
    return o

def ln_stats_dot_ops(pairs, one, s1, s2, vt, vmean, vrs):
    o = ["v_dot2_f32_bf16 v%d, v%d, v%d, 0" % (s1, pairs[0], one), "v_dot2_f32_bf16 v%d, v%d, v%d, 0" % (s2, pairs[0], pairs[0])]
    for p in pairs[1:]:
        o += ["v_dot2_f32_bf16 v%d, v%d, v%d, v%d" % (s1, p, one, s1), "v_dot2_f32_bf16 v%d, v%d, v%d, v%d" % (s2, p, p, s2)]
    o += ["s_nop 2"]
    for r in (8, 4, 2, 1):
        o += [dpp_add(s1, s1, "row_ror:%d" % r), dpp_add(s2, s2, "row_ror:%d" % r), "s_nop 0"]
    o += ["s_nop 0", "v_permlane32_swap_b32 v%d, v%d" % (s1, s2), "s_nop 0", "v_add_f32 v%d, v%d, v%d" % (s1, s1, s2),
          "v_mov_b32 v%d, v%d" % (s2, s1), "s_nop 1", "v_permlane16_swap_b32 v%d, v%d" % (s1, s2), "s_nop 0",
          "v_add_f32 v%d, v%d, v%d" % (s1, s1, s2), "v_mov_b32 v%d, v%d" % (s2, s1), "s_nop 1",
          "v_permlane32_swap_b32 v%d, v%d" % (s1, s2), "s_nop 0",
          "v_mul_f32 v%d, %s, v%d" % (vmean, f32(1.0 / 1024), s1),
          "v_mul_f32 v%d, %s, v%d" % (s2, f32(1.0 / 1024), s2),
          "v_fma_f32 v%d, -v%d, v%d, v%d" % (s2, vmean, vmean, s2),
          "v_max_f32 v%d, 0, v%d" % (s2, s2)]
    o += bf16_round_ops(s2)
    o += ["v_add_f32 v%d, %s, v%d" % (s2, f32(1e-5), s2)]
    o += bf16_round_ops(s2)
    o += ["v_sqrt_f32 v%d, v%d" % (s2, s2)]
    o += bf16_round_ops(vmean)
    o += bf16_round_ops(s2)
    o += ["v_rcp_f32 v%d, v%d" % (vrs, s2), "s_nop 0"]
    return o

def ln_apply_pair(dst, a, b, vmean, vrs, vsq, t0, t1):
    e("v_sub_f32 v%d, v%d, v%d" % (a, a, vmean))
    e("v_sub_f32 v%d, v%d, v%d" % (b, b, vmean))
    e("v_cvt_pk_bf16_f32 v%d, v%d, v%d" % (t0, a, b))
    unpack(a, b, t0)
    e("v_mul_f32 v%d, v%d, v%d" % (t0, a, vrs))
    e("v_mul_f32 v%d, v%d, v%d" % (t1, b, vrs))
    e("v_fma_f32 v%d, -v%d, v%d, v%d" % (a, t0, vsq, a))
    e("v_fma_f32 v%d, -v%d, v%d, v%d" % (b, t1, vsq, b))
    e("v_fmac_f32 v%d, v%d, v%d" % (t0, a, vrs))
    e("v_fmac_f32 v%d, v%d, v%d" % (t1, b, vrs))
    e("v_cvt_pk_bf16_f32 v%d, v%d, v%d" % (dst, t0, t1))

def sigma_of(dst, u, t):
    e("v_and_b32 v%d, 3, v%d" % (dst, u))
    e("v_lshlrev_b32 v%d, 1, v%d" % (dst, dst))
    e("v_bfe_u32 v%d, v%d, 2, 1" % (t, u))
    e("v_or_b32 v%d, v%d, v%d" % (dst, dst, t))

def dma256_voff(va, vb, pitch, t):
    e("v_bfe_u32 v%d, v1, 1, 3" % t)
    e("v_xor_b32 v%d, v3, v%d" % (t, t))
    e("v_lshlrev_b32 v%d, 5, v%d" % (t, t))
    e("v_and_b32 v%d, 1, v1" % va)
    e("v_lshl_add_u32 v%d, v%d, 4, v%d" % (t, va, t))
    e("v_mul_u32_u24 v%d, %d, v3" % (va, pitch))
    e("v_add_u32 v%d, v%d, v%d" % (va, va, t))
    e("v_xor_b32 v%d, 0x80, v%d" % (vb, va))

SKIP = opt("skip", "").split(",")
def dma_run(srd_, voffs, s_base, rowbytes, ldsbase, per_wave, m0, m1, pre=None, name=None):
    if name in SKIP: return
    _dma_run(srd_, voffs, s_base, rowbytes, ldsbase, per_wave, m0, m1, pre)

def _dma_run(srd_, voffs, s_base, rowbytes, ldsbase, per_wave, m0, m1, pre=None):
    e("s_mul_i32 s%d, s%d, %d" % (S_A, S_WAVE, per_wave * rowbytes))
    e("s_add_u32 s%d, s%d, s%d" % (S_A, S_A, s_base))
    if m0: e("s_add_u32 s%d, s%d, %d" % (S_A, S_A, rowbytes * m0))
    e("s_mul_i32 s%d, s%d, %d" % (S_B, S_WAVE, per_wave * 1024))
    if ldsbase + m0: e("s_add_u32 s%d, s%d, %d" % (S_B, S_B, ldsbase + 1024 * m0))
    for m in range(m0, m1):
        e("s_mov_b32 m0, s%d" % S_B)
        if pre: pre(m)
        if m < m1 - 1: e("s_add_u32 s%d, s%d, 1024" % (S_B, S_B))
        else: e("s_nop 0")
        e("buffer_load_dwordx4 v%d, s[%d:%d], s%d offen nt lds" % (voffs(m), srd_, srd_ + 3, S_A))
        if m < m1 - 1: e("s_add_u32 s%d, s%d, %d" % (S_A, S_A, rowbytes))

def tr256_addr(va, t):
    e("v_bfe_u32 v%d, v1, 2, 2" % t)
    e("v_and_b32 v%d, 1, v3" % va)
    e("v_lshl_or_b32 v%d, v%d, 2, v%d" % (va, va, t))
    e("v_xor_b32 v%d, s%d, v%d" % (va, S_WAVE, va))
    e("v_lshlrev_b32 v%d, 5, v%d" % (va, va))
    e("v_lshl_add_u32 v%d, v3, 3, v%d" % (t, t))
    e("v_lshl_add_u32 v%d, v%d, 8, v%d" % (va, t, va))
    e("v_and_b32 v%d, 3, v1" % t)
    e("v_lshl_add_u32 v%d, v%d, 3, v%d" % (va, t, va))

def tr256_read(dst, va):
    for m in range(8):
        for h in range(2):
            e("ds_read_b64_tr_b16 v[%d:%d], v%d offset:%d" % (dst + 4 * m + 2 * h, dst + 4 * m + 2 * h + 1, va, m * 8192 + h * 1024))

def act_rd_addr(ve, vo, t, ldsbase):
    e("v_and_b32 v%d, 7, v1" % t)
    e("v_lshlrev_b32 v%d, 1, v3" % ve)
    e("v_xor_b32 v%d, v%d, v%d" % (ve, ve, t))
    e("v_lshlrev_b32 v%d, 4, v%d" % (ve, ve))
    e("v_lshl_add_u32 v%d, v3, 7, v%d" % (ve, ve))
    e("v_add_u32 v%d, %d, v%d" % (ve, ldsbase, ve))
    e("v_xor_b32 v%d, 16, v%d" % (vo, ve))

def mfma(d, a, b, c):
    cs = "0" if c is None else "v[%d:%d]" % (c, c + 3)
    return "v_mfma_f32_16x16x32_bf16 v[%d:%d], v[%d:%d], v[%d:%d], %s" % (d, d + 3, a, a + 3, b, b + 3, cs)

def gemv8(acc, wf, af, ve, vo):
    for m in range(8):
        e("ds_read_b128 v[%d:%d], v%d offset:%d" % (af + 4 * m, af + 4 * m + 3, vo if (m & 1) else ve, m * 512))
    for m in range(8):
        e("s_waitcnt lgkmcnt(%d)" % (7 - m))
        e(mfma(acc, wf + 4 * m, af + 4 * m, None if m == 0 else acc))

def touch(items):
    for i, (va, so, off) in enumerate(items):
        e("buffer_load_dword v%d, v%d, s[%d:%d], s%d offen offset:%d sc1" % (V_X1 + 20 + i, va, SRD_WS, SRD_WS + 3, so, off))

def clean(instr, lanemask=None):
    if NOCLEAN: return
    l = uid("nc")
    _mask(S_ML, lanemask)
    e("s_cbranch_execz %s" % l)
    e(instr + " sc1")
    lab(l)
    full()

def trig2():
    l = uid("nt2")
    e("s_cmp_lg_u32 s%d, 0" % S_WAVE)
    e("s_cbranch_scc1 %s" % l)
    e("s_lshl_b32 s%d, s%d, 3" % (S_A, S_SLOT))
    e("s_or_b32 s%d, s%d, s%d" % (S_A, S_A, S_XCD))
    e("s_lshl_b32 s%d, s%d, 7" % (S_A, S_A))
    e("s_add_u32 s%d, s%d, 0x%x" % (S_A, S_A, WS_TRIG))
    store_g("buffer_store_dword v%d, v%d, s[%d:%d], s%d offen offset:8" % (V_P + 3, V_Z, SRD_WS, SRD_WS + 3, S_A), "1")
    lab(l)

def make_tag(vE):
    e("v_readfirstlane_b32 s%d, v%d" % (S_F, vE))
    e("s_nop 3")
    e("s_mul_i32 s%d, s%d, 0x9e3779b1" % (S_T, S_F))
    e("s_add_u32 s%d, s%d, 0x85ebca6b" % (S_T, S_T))
    e("s_mov_b32 s%d, s%d" % (S_TT, S_T))
    e("s_mov_b32 s%d, s%d" % (S_TT + 1, S_T))
    e("s_add_u32 s%d, s%d, 1" % (S_F, S_F))
    e("v_mov_b32 v%d, s%d" % (V_P + 2, S_T))
    e("v_mov_b32 v%d, s%d" % (V_P + 3, S_T))

def publish_partial(s_off, local):
    e("s_nop 7")
    e("v_cndmask_b32 v%d, v%d, v%d, s[%d:%d]" % (V_P, V_ACC, V_ACC + 2, S_HI8, S_HI8 + 1))
    e("v_cndmask_b32 v%d, v%d, v%d, s[%d:%d]" % (V_P + 1, V_ACC + 1, V_ACC + 3, S_HI8, S_HI8 + 1))
    ins = "buffer_store_dwordx4 v[%d:%d], v%d, s[%d:%d], s%d offen" % (V_P, V_P + 3, V_PUB, SRD_WS, SRD_WS + 3, s_off)
    (store_l if local else store_g)(ins)

def reduce16(s0, bell=False):
    top = poll_begin((V_RED, s0, 3) if bell else None)
    for n in range(4):
        e("buffer_load_dwordx4 v[%d:%d], v%d, s[%d:%d], s%d offen sc1" % (V_L + 4 * n, V_L + 4 * n + 3, V_RED, SRD_WS, SRD_WS + 3, s0 + n))
    poll_end(top, [chk64(V_L + 4 * n + 2) for n in range(4)], bell=(V_RED, s0, 3) if bell else None)
    a, b = V_L, V_L + 1
    e("v_pk_add_f32 v[%d:%d], v[%d:%d], v[%d:%d]" % (a, b, a, b, V_L + 4, V_L + 5))
    e("v_pk_add_f32 v[%d:%d], v[%d:%d], v[%d:%d]" % (V_L + 8, V_L + 9, V_L + 8, V_L + 9, V_L + 12, V_L + 13))
    e("v_pk_add_f32 v[%d:%d], v[%d:%d], v[%d:%d]" % (a, b, a, b, V_L + 8, V_L + 9))
    e("s_nop 1")
    e("v_permlane32_swap_b32 v%d, v%d" % (a, b))
    e("s_nop 0")
    e("v_add_f32 v%d, v%d, v%d" % (a, a, b))
    e("v_mov_b32 v%d, v%d" % (b, a))
    e("s_nop 1")
    e("v_permlane16_swap_b32 v%d, v%d" % (a, b))
    e("s_nop 0")
    e("v_add_f32 v%d, v%d, v%d" % (a, a, b))
    e("v_mov_b32 v%d, v%d" % (b, a))
    e("s_nop 1")
    e("v_permlane32_swap_b32 v%d, v%d" % (a, b))
    e("s_nop 0")

def only_red(lbl):
    e("s_cmp_ge_u32 s%d, s3" % S_WAVE)
    e("s_cbranch_scc1 %s" % lbl)

def residual_add(dst, vres):
    e("v_cvt_pk_bf16_f32 v%d, v%d, v%d" % (V_T0, V_L, V_L + 1))
    unpack(V_U + 2, V_U + 3, vres)
    unpack(V_U, V_U + 1, V_T0)
    e("v_add_f32 v%d, v%d, v%d" % (V_U, V_U, V_U + 2))
    e("v_add_f32 v%d, v%d, v%d" % (V_U + 1, V_U + 1, V_U + 3))
    e("v_cvt_pk_bf16_f32 v%d, v%d, v%d" % (dst, V_U, V_U + 1))

def pos_write_addr(dst, ldsbase):
    e("v_bfe_u32 v%d, v1, 1, 3" % V_T2)
    sigma_of(V_T0, V_T2, V_T1)
    e("v_xor_b32 v%d, s%d, v%d" % (V_T0, S_WAVE, V_T0))
    e("v_lshlrev_b32 v%d, 4, v%d" % (V_T0, V_T0))
    e("v_lshrrev_b32 v%d, 1, v1" % V_T1)
    e("v_lshl_add_u32 v%d, v%d, 7, v%d" % (V_T0, V_T1, V_T0))
    e("v_and_b32 v%d, 1, v1" % V_T1)
    e("v_lshl_add_u32 v%d, v%d, 3, v%d" % (V_T0, V_T1, V_T0))
    e("v_add_u32 v%d, %d, v%d" % (dst, ldsbase, V_T0))

def gen():
    lines.append("; Fused decode layer: preLN + sliding-window GQA attention + preLN + GLU MLP (persistent, 1 WG per CU)")
    lines.append("; @launch grid=(256,1,1) block=(512,1,1) lds=%d" % LDS_BYTES)
    lines.append('.amdgcn_target "amdgcn-amd-amdhsa--gfx950"')
    lines.append(".text")
    lines.append(".globl %s_kernel" % NAME)
    lines.append(".p2align 8")
    lines.append(".type %s_kernel,@function" % NAME)
    lab("%s_kernel" % NAME)
    e("s_cmp_ge_u32 s2, 256")
    e("s_cbranch_scc1 L_end")
    if STAMPS:
        e("s_memrealtime s[%d:%d]" % (S_TM, S_TM + 1))
        for k in range(1, 16): e("s_mov_b32 s%d, 0" % (S_ST + k))
    e("s_load_dwordx16 s[4:19], s[0:1], 0")
    e("s_load_dwordx8 s[20:27], s[0:1], 64")
    e("v_lshrrev_b32 v4, 6, v0")
    e("v_and_b32 v1, 63, v0")
    e("v_readfirstlane_b32 s%d, v4" % S_WAVE)
    e("v_and_b32 v2, 15, v1")
    e("v_lshrrev_b32 v3, 4, v1")
    e("s_and_b32 s%d, s2, 7" % S_XCD)
    e("s_lshr_b32 s%d, s2, 4" % S_SLOT)
    e("v_mov_b32 v%d, 0" % V_Z)
    code_prefetch()
    e("s_bitcmp1_b32 s2, 3")
    e("s_cbranch_scc1 L_roleA")
    role_b()
    lab("L_roleA")
    role_a()
    lab("L_end")
    e("s_endpgm")
    lines.append('.section .rodata,"a"')
    lines.append(".p2align 6")
    lines.append(".amdhsa_kernel %s_kernel" % NAME)
    lines.append("  .amdhsa_next_free_vgpr 256")
    lines.append("  .amdhsa_next_free_sgpr 102")
    lines.append("  .amdhsa_accum_offset 256")
    lines.append("  .amdhsa_group_segment_fixed_size 0")
    lines.append("  .amdhsa_kernarg_size 96")
    lines.append("  .amdhsa_user_sgpr_count 2")
    lines.append("  .amdhsa_user_sgpr_kernarg_segment_ptr 1")
    lines.append("  .amdhsa_system_sgpr_workgroup_id_x 1")
    lines.append(".end_amdhsa_kernel")

def code_prefetch():
    if NOCODEPF: return
    l = uid("nopf")
    e("s_lshl_b32 s%d, s%d, 3" % (S_A, S_SLOT))
    e("s_add_u32 s%d, s%d, s%d" % (S_A, S_A, S_WAVE))
    e("s_cmp_lg_u32 s%d, 5" % S_A)
    e("s_cbranch_scc1 %s" % l)
    e("s_getpc_b64 s[%d:%d]" % (S_ML, S_ML + 1))
    lab(l + "_pc")
    e("s_sub_u32 s%d, s%d, %s_pc-%s_kernel" % (S_ML, S_ML, l, NAME))
    e("s_subb_u32 s%d, s%d, 0" % (S_ML + 1, S_ML + 1))
    e("v_lshlrev_b32 v%d, 7, v1" % V_T0)
    e("global_load_dword v%d, v%d, s[%d:%d]" % (V_U, V_T0, S_ML, S_ML + 1))
    e("v_add_u32 v%d, 0x2000, v%d" % (V_T0, V_T0))
    e("v_min_u32 v%d, L_end-%s_kernel, v%d" % (V_T0, NAME, V_T0))
    e("global_load_dword v%d, v%d, s[%d:%d]" % (V_U + 1, V_T0, S_ML, S_ML + 1))
    lab(l)

def common_consts():
    e("s_mov_b32 s%d, 0x40000" % S_SPIN)
    e("s_mov_b32 s%d, 0xff00ff00" % S_HI8)
    e("s_mov_b32 s%d, 0xff00ff00" % (S_HI8 + 1))
    e("s_mov_b64 s[%d:%d], -1" % (S_FULL, S_FULL + 1))
    e("s_mov_b32 s%d, 0" % S_DRY)

def role_b():
    cmt("================= role B =================")
    V_AWD, V_XA, V_HO, V_ZA, V_TR1 = V_X1 + 1, V_X1 + 2, V_X1 + 3, V_X1 + 4, V_X1 + 5
    V_VC, V_VD = V_X1 + 6, V_X1 + 7
    V_ZQ = V_X1 + 8
    ab = lambda m: V_VB if (m & 2) else V_VA
    dma256_voff(V_VA, V_VB, 8192, V_T0)
    e("v_lshlrev_b32 v%d, 4, v1" % V_G)
    e("s_and_b32 s%d, s%d, 3" % (S_D, S_SLOT))
    e("s_lshr_b32 s%d, s%d, 2" % (S_A, S_SLOT))
    e("s_lshl_b32 s%d, s%d, 1" % (S_B, S_XCD))
    e("s_add_u32 s%d, s%d, s%d" % (S_B, S_B, S_A))
    e("s_lshl_b32 s%d, s%d, 2" % (S_C, S_B))
    e("s_add_u32 s%d, s%d, 1" % (S_C, S_C))
    e("s_sub_u32 s%d, s%d, 2" % (S_B, S_B))
    e("s_lshl_b32 s%d, s%d, 2" % (S_E, S_XCD))
    e("s_add_u32 s%d, s%d, s%d" % (S_E, S_E, S_A))
    e("s_sub_u32 s%d, s%d, 8" % (S_E, S_E))
    e("s_cmp_ge_u32 s%d, 4" % S_XCD)
    e("s_cselect_b32 s%d, s%d, s%d" % (S_B, S_E, S_B))
    e("s_cselect_b32 s%d, 2, s%d" % (S_A, S_A))
    e("s_mul_i32 s%d, s%d, 43" % (S_E, S_B))
    e("s_lshr_b32 s%d, s%d, 7" % (S_E, S_E))
    e("s_mul_i32 s%d, s%d, 3" % (S_F, S_E))
    e("s_sub_u32 s%d, s%d, s%d" % (S_F, S_B, S_F))
    e("s_lshl_b32 s%d, s%d, 2" % (S_E, S_E))
    e("s_add_u32 s%d, s%d, s%d" % (S_E, S_E, S_F))
    e("s_min_u32 s%d, s%d, 1" % (S_F, S_F))
    e("s_add_u32 s%d, s%d, s%d" % (S_E, S_E, S_F))
    e("s_cmp_ge_u32 s%d, 2" % S_A)
    e("s_cselect_b32 s%d, s%d, s%d" % (S_C, S_E, S_C))
    e("s_lshl_b32 s%d, s%d, 21" % (S_E, S_D))
    e("s_lshl_b32 s%d, s%d, 8" % (S_A, S_C))
    e("s_add_u32 s%d, s%d, s%d" % (S_E, S_E, S_A))
    e("s_lshl_b32 s82, s%d, 11" % S_WAVE)
    e("s_lshl_b32 s83, s%d, 9" % S_D)
    e("s_add_u32 s83, s83, s82")
    e("s_waitcnt lgkmcnt(0)")
    if STAMPS: e("s_mov_b32 s%d, s%d" % (S_ST, S_TM))
    srd(SRD_X, S_X, 16384)
    srd(SRD_W, S_WQ, 8 << 20)
    e("buffer_load_dwordx4 v[%d:%d], v%d, s[%d:%d], s82 offen" % (V_L, V_L + 3, V_G, SRD_X, SRD_X + 3))
    e("buffer_load_dwordx4 v[%d:%d], v%d, s[%d:%d], s82 offen offset:1024" % (V_L + 4, V_L + 7, V_G, SRD_X, SRD_X + 3))
    e("buffer_load_dwordx4 v[%d:%d], v%d, s[%d:%d], s83 offen" % (V_L + 8, V_L + 11, V_G, SRD_X, SRD_X + 3))
    dma_run(SRD_W, ab, S_E, 4 * 8192, L_W0, 8, 0, QFIRST)
    srd(SRD_WS, S_WS, WS_SIZE)
    e("buffer_load_dword v%d, v%d, s[%d:%d], 0 offen sc1" % (V_L + 12, V_Z, SRD_WS, SRD_WS + 3))
    stamp(1)
    common_consts()
    e("s_lshr_b32 s%d, s%d, 1" % (S_A, S_SLOT))
    e("s_lshl_b32 s%d, s%d, 11" % (S_A, S_A))
    e("s_lshl_b32 s%d, s%d, 8" % (S_B, S_XCD))
    e("s_add_u32 s%d, s%d, s%d" % (S_A, S_A, S_B))
    e("s_and_b32 s%d, s%d, 1" % (S_B, S_SLOT))
    e("s_lshl_b32 s%d, s%d, 7" % (S_B, S_B))
    e("s_add_u32 s%d, s%d, s%d" % (S_A, S_A, S_B))
    e("s_and_b32 s%d, s%d, 1" % (S_B, S_WAVE))
    e("s_lshl_b32 s%d, s%d, 6" % (S_B, S_B))
    e("s_add_u32 s80, s%d, s%d" % (S_A, S_B))
    e("v_lshlrev_b32 v%d, 2, v2" % V_X1)
    e("v_lshlrev_b32 v%d, 3, v2" % V_HO)
    e("buffer_load_dword v%d, v%d, s[%d:%d], s80 offen" % (V_XP, V_X1, SRD_X, SRD_X + 3))
    e("s_waitcnt vmcnt(%d)" % (QFIRST + 2))
    for i in range(8):
        unpack(V_U + 2 * i, V_U + 2 * i + 1, V_L + i)
    emit(ln_stats_ops([V_U + i for i in range(16)], V_SUM, V_T0, V_M, V_RS, V_SQ))
    if QFIRST < 8:
        dma_run(SRD_W, ab, S_E, 4 * 8192, L_W0, 8, QFIRST, 8)
    for i in range(4):
        unpack(V_U + 2 * i, V_U + 2 * i + 1, V_L + 8 + i)
    for i in range(4):
        ln_apply_pair(V_L + 16 + i, V_U + 2 * i, V_U + 2 * i + 1, V_M, V_RS, V_SQ, V_T0, V_T1)
    e("v_and_b32 v%d, 7, v1" % V_T2)
    e("v_lshlrev_b32 v%d, 2, v%d" % (V_XA, V_T2))
    sigma_of(V_T0, V_T2, V_T1)
    e("v_xor_b32 v%d, s%d, v%d" % (V_T0, S_WAVE, V_T0))
    e("v_lshlrev_b32 v%d, 4, v%d" % (V_T0, V_T0))
    e("v_lshl_add_u32 v%d, v1, 7, v%d" % (V_T0, V_T0))
    e("v_add_u32 v%d, %d, v%d" % (V_T0, L_ACT, V_T0))
    e("s_mov_b64 exec, 0xffffffff")
    e("ds_write_b128 v%d, v[%d:%d]" % (V_T0, V_L + 16, V_L + 19))
    e("s_mov_b64 exec, -1")
    srd(SRD_X, S_DBG, 256)
    xcc_publish(V_T0, SRD_X)
    if PFK:
        srd(SRD_O, S_K, 32 << 20)
        e("s_lshl_b32 s84, s%d, 22" % S_XCD)
        e("s_lshl_b32 s%d, s%d, 18" % (S_A, S_SLOT))
        e("s_and_b32 s%d, s%d, 0x300000" % (S_A, S_A))
        e("s_add_u32 s84, s84, s%d" % S_A)
        e("s_and_b32 s%d, s%d, 3" % (S_A, S_SLOT))
        e("s_lshl_b32 s%d, s%d, 16" % (S_A, S_A))
        e("s_add_u32 s84, s84, s%d" % S_A)
        e("s_add_u32 s84, s84, 0x%x" % (3072 * 256 + 65536 - 8192 * PFK))
        dma_run(SRD_O, lambda m: V_G, 84, 1024, L_W1, PFK, 0, PFK)
    tr256_addr(V_TR, V_T0)
    act_rd_addr(V_AE, V_AO, V_T0, L_ACT)
    e("v_and_b32 v%d, 7, v1" % V_T0)
    e("v_lshlrev_b32 v%d, 10, v%d" % (V_PUB, V_T0))
    e("v_lshrrev_b32 v%d, 3, v2" % V_T0)
    e("v_lshl_add_u32 v%d, v3, 1, v%d" % (V_T0, V_T0))
    e("v_lshl_add_u32 v%d, v%d, 4, v%d" % (V_PUB, V_T0, V_PUB))
    e("s_lshl_b32 s%d, s%d, 7" % (S_A, S_WAVE))
    e("v_add_u32 v%d, s%d, v%d" % (V_PUB, S_A, V_PUB))
    e("s_lshl_b32 s%d, s%d, 2" % (S_A, S_C))
    e("s_add_u32 s%d, s%d, s%d" % (S_A, S_A, S_D))
    e("s_lshl_b32 s%d, s%d, 13" % (S_A, S_A))
    e("s_add_u32 s81, s%d, 0x%x" % (S_A, WS_H1))
    stamp(2)
    if NODRY: e("s_branch L_q_real")
    e("s_waitcnt lgkmcnt(0)")
    set_dry()
    lab("L_q_top")
    tr256_read(V_WF, V_TR)
    gemv8(V_ACC, V_WF, V_AF, V_AE, V_AO)
    publish_partial(81, False)
    e("s_cmp_eq_u32 s%d, 0" % S_DRY)
    e("s_cbranch_scc1 L_q_done")
    lab("L_q_real")
    set_real()
    e("s_waitcnt vmcnt(%d)" % (8 - QFIRST + 1 + PFK))
    make_tag(V_L + 12)
    e("s_waitcnt vmcnt(%d) lgkmcnt(0)" % PFK)
    e("s_barrier")
    stamp(3)
    e("s_branch L_q_top")
    lab("L_q_done")
    stamp(4)
    dma256_voff(V_VA, V_VB, 2048, V_T0)
    e("v_add_u32 v%d, %d, v%d" % (V_TR1, L_W1, V_TR))
    e("s_and_b32 s%d, s%d, 1" % (S_A, S_WAVE))
    e("s_lshl_b32 s%d, s%d, 7" % (S_A, S_A))
    e("v_xor_b32 v%d, s%d, v%d" % (V_X1 + 14, S_A, V_VA))
    e("v_xor_b32 v%d, 0x80, v%d" % (V_X1 + 15, V_X1 + 14))
    pos_write_addr(V_AW, L_ACT)
    e("v_lshlrev_b32 v%d, 13, v3" % V_RED)
    e("v_lshl_add_u32 v%d, v2, 4, v%d" % (V_RED, V_RED))
    e("s_and_b32 s%d, s%d, 1" % (S_A, S_WAVE))
    e("s_lshl_b32 s%d, s%d, 8" % (S_A, S_A))
    e("v_add_u32 v%d, s%d, v%d" % (V_RED, S_A, V_RED))
    e("s_lshl_b32 s%d, s%d, 3" % (S_A, S_SLOT))
    e("s_or_b32 s%d, s%d, s%d" % (S_A, S_A, S_XCD))
    e("s_lshl_b32 s%d, s%d, 7" % (S_A, S_A))
    e("s_add_u32 s83, s%d, 0x%x" % (S_A, WS_TRIG))
    e("s_lshl_b32 s%d, s%d, 3" % (S_A, S_SLOT))
    e("s_add_u32 s%d, s%d, s%d" % (S_A, S_A, S_WAVE))
    e("s_lshl_b32 s%d, s%d, 10" % (S_A, S_A))
    e("s_add_u32 s82, s%d, 0x%x" % (S_A, WS_H2G))
    e("s_lshl_b32 s%d, s%d, 4" % (S_A, S_XCD))
    e("s_add_u32 s%d, s%d, s%d" % (S_A, S_A, S_SLOT))
    e("s_lshl_b32 s%d, s%d, 13" % (S_A, S_A))
    e("s_add_u32 s84, s%d, 0x%x" % (S_A, WS_H3A))
    e("s_lshl_b32 s%d, s%d, 17" % (S_A, S_XCD))
    e("s_lshl_b32 s%d, s%d, 9" % (S_B, S_SLOT))
    e("s_add_u32 s%d, s%d, s%d" % (S_A, S_A, S_B))
    e("s_add_u32 s85, s%d, 0x%x" % (S_A, WS_H3A))
    e("s_add_u32 s86, s%d, 0x%x" % (S_A, WS_H5))
    for n in range(4):
        e("s_add_u32 s%d, s85, %d" % (4 + n, 32768 * n))
        e("s_add_u32 s%d, s86, %d" % (8 + n, 32768 * n))
    e("s_lshl_b32 s%d, s80, 1" % S_A)
    e("s_add_u32 s90, s%d, 0x%x" % (S_A, WS_H3B))
    e("s_lshr_b32 s%d, s%d, 3" % (S_C, S_SLOT))
    e("s_lshl_b32 s%d, s%d, 1" % (S_A, S_XCD))
    e("s_add_u32 s%d, s%d, s%d" % (S_C, S_C, S_A))
    e("s_and_b32 s%d, s%d, 7" % (S_D, S_SLOT))
    e("s_mul_i32 s91, s%d, %d" % (S_C, 224 * 2048))
    e("s_lshl_b32 s%d, s%d, 8" % (S_A, S_D))
    e("s_add_u32 s91, s91, s%d" % S_A)
    e("s_min_u32 s%d, s%d, 6" % (S_A, S_WAVE))
    e("s_lshl_b32 s%d, s%d, 10" % (S_B, S_A))
    e("s_mul_i32 s%d, s%d, 7168" % (S_E, S_C))
    e("s_add_u32 s%d, s%d, s%d" % (S_E, S_E, S_B))
    e("s_add_u32 s87, s%d, 0x%x" % (S_E, WS_H4S))
    e("s_add_u32 s88, s%d, 0x%x" % (S_E, WS_H4U))
    e("s_lshl_b32 s%d, s%d, 2" % (S_B, S_A))
    e("v_add_u32 v%d, s%d, v3" % (V_T3, S_B))
    e("v_and_b32 v%d, 7, v%d" % (V_T2, V_T3))
    sigma_of(V_T0, V_T2, V_T1)
    e("v_and_b32 v%d, 7, v1" % V_T1)
    e("v_xor_b32 v%d, v%d, v%d" % (V_T0, V_T0, V_T1))
    e("v_lshlrev_b32 v%d, 4, v%d" % (V_T0, V_T0))
    e("v_lshl_add_u32 v%d, v%d, 7, v%d" % (V_T0, V_T3, V_T0))
    e("v_bfe_u32 v%d, v1, 3, 1" % V_T1)
    e("v_lshl_add_u32 v%d, v%d, 3, v%d" % (V_T0, V_T1, V_T0))
    e("v_add_u32 v%d, %d, v%d" % (V_AWD, L_ACT, V_T0))
    e("s_lshl_b32 s%d, s%d, 4" % (S_A, S_D))
    e("s_add_u32 s%d, s%d, s%d" % (S_A, S_A, S_C))
    e("s_lshl_b32 s%d, s%d, 13" % (S_A, S_A))
    e("s_add_u32 s89, s%d, 0x%x" % (S_A, WS_H5))
    e("v_and_b32 v%d, 31, v1" % V_T0)
    e("v_lshlrev_b32 v%d, 4, v%d" % (V_T0, V_T0))
    e("v_add_u32 v%d, %d, v%d" % (V_ZA, L_ACT + 28 * 128, V_T0))
    for k in range(4): e("v_mov_b32 v%d, 0" % (V_ZQ + k))
    srd(SRD_O, S_OUT, 16384)
    e("s_lshr_b32 s%d, s%d, 7" % (S_E, S_WG))
    e("s_mul_i32 s%d, s%d, 7" % (S_A, S_XCD))
    e("s_add_u32 s%d, s%d, s%d" % (S_E, S_E, S_A))
    e("s_sub_u32 s%d, 3, s%d" % (S_E, S_E))
    e("s_and_b32 s%d, s%d, 7" % (S_E, S_E))
    e("s_lshr_b32 s%d, s%d, 3" % (S_A, S_SLOT))
    e("s_mul_i32 s%d, s%d, 56" % (S_A, S_A))
    e("s_min_u32 s%d, s%d, 6" % (S_B, S_WAVE))
    e("s_lshl_b32 s%d, s%d, 3" % (S_B, S_B))
    e("s_add_u32 s%d, s%d, s%d" % (S_A, S_A, S_B))
    e("s_lshr_b32 s%d, s%d, 4" % (S_B, S_A))
    e("s_cmp_eq_u32 s%d, s%d" % (S_B, S_E))
    e("s_cselect_b32 s96, 1, 0")
    e("s_and_b32 s%d, s%d, 8" % (S_A, S_A))
    e("s_lshl_b32 s%d, s%d, 8" % (S_A, S_A))
    e("s_lshl_b32 s%d, s%d, 12" % (S_B, S_XCD))
    e("s_add_u32 s%d, s%d, s%d" % (S_A, S_A, S_B))
    e("s_add_u32 s81, s%d, 0x%x" % (S_A, WS_H4P))
    e("v_lshlrev_b32 v%d, 5, v1" % V_VC)
    e("v_add_u32 v%d, 0x8000, v%d" % (V_VD, V_VC))
    e("v_add_u32 v%d, 0x10000, v%d" % (V_X1 + 12, V_VC))
    e("v_add_u32 v%d, 0x18000, v%d" % (V_X1 + 13, V_VC))
    e("s_lshl_b32 s99, s%d, 19" % S_SLOT)
    e("s_lshl_b32 s%d, s%d, 8" % (S_A, S_XCD))
    e("s_add_u32 s99, s99, s%d" % S_A)
    e("s_barrier")
    e("s_cmp_ge_u32 s%d, 4" % S_WAVE)
    e("s_cbranch_scc1 L_b_warm")
    srd(SRD_W, S_WO, 8 << 20)
    top = poll_begin()
    e("buffer_load_dwordx2 v[%d:%d], v%d, s[%d:%d], s83 offen sc1" % (V_L, V_L + 1, V_Z, SRD_WS, SRD_WS + 3))
    poll_end(top, [chk64(V_L)])
    dma_run(SRD_W, ab, 99, 4 * 2048, L_W1, 16, 0, 16, name="wo")
    if DEARLY:
        srd(SRD_W, S_WD, 3584 * 2048)
        dma_run(SRD_W, lambda m: V_X1 + 15 if (m & 2) else V_X1 + 14, 91, 4 * 2048, L_W0, 14, 0, 14)
    stamp(5)
    e("s_waitcnt vmcnt(%d)" % (14 if DEARLY else 0))
    e("s_branch L_b_real")
    lab("L_b_warm")
    if not NOTOUCH:
        e("s_cmp_lg_u32 s%d, 4" % S_WAVE)
        e("s_cbranch_scc1 L_b_notouch")
        e("v_lshlrev_b32 v%d, 7, v1" % V_T0)
        e("v_lshrrev_b32 v%d, 2, v1" % V_T1)
        e("v_lshlrev_b32 v%d, 13, v%d" % (V_T1, V_T1))
        e("v_and_b32 v%d, 3, v1" % V_T2)
        e("v_lshl_add_u32 v%d, v%d, 7, v%d" % (V_T1, V_T2, V_T1))
        e("s_sub_u32 s%d, s87, 4096" % S_A)
        e("s_sub_u32 s%d, s88, 4096" % S_B)
        e("s_lshl_b32 s%d, s%d, 12" % (S_C, S_XCD))
        e("s_add_u32 s%d, s%d, 0x%x" % (S_C, S_C, WS_H4P))
        e("v_and_b32 v%d, 31, v1" % V_T2)
        e("v_lshlrev_b32 v%d, 7, v%d" % (V_T2, V_T2))
        e("v_lshrrev_b32 v%d, 5, v1" % V_T3)
        e("v_lshl_add_u32 v%d, v%d, 15, v%d" % (V_T2, V_T3, V_T2))
        e("v_add_u32 v%d, 0x10000, v%d" % (V_T3, V_T2))
        touch([(V_T1, 85, 0), (V_T0, S_A, 0), (V_T0, S_B, 0), (V_T2, S_C, 0), (V_T3, S_C, 0), (V_Z, 82, 0), (V_Z, 86, 0), (V_Z, 89, 0), (V_Z, 90, 0)])
        lab("L_b_notouch")
    if NODRY: e("s_branch L_b_real")
    set_dry()
    e("s_branch L_b_tail")
    lab("L_b_real")
    set_real()
    e("s_barrier")
    lab("L_b_tail")
    tr256_read(V_WF, V_TR1)
    top = poll_begin()
    xcc_load(V_L, V_XA, SRD_X)
    poll_end(top, xcc_checks(V_L, V_T0))
    xcc_decide(V_L)
    stamp(6)
    top = poll_begin((V_G, 82, 3))
    e("buffer_load_dwordx4 v[%d:%d], v%d, s[%d:%d], s82 offen sc1" % (V_L, V_L + 3, V_G, SRD_WS, SRD_WS + 3))
    poll_end(top, [chk64(V_L + 2)], bell=(V_G, 82, 3))
    e("ds_write_b64 v%d, v[%d:%d]" % (V_AW, V_L, V_L + 1))
    stamp(7)
    e("s_waitcnt lgkmcnt(0)")
    barrier(True)
    gemv8(V_ACC, V_WF, V_AF, V_AE, V_AO)
    publish_partial(84, True)
    stamp(8)
    only_red("L_b_nor3")
    reduce16(4)
    stamp(9)
    residual_add(V_U + 4, V_XP)
    e("v_mov_b32 v%d, s%d" % (V_U + 6, S_T))
    e("v_mov_b32 v%d, s%d" % (V_U + 7, S_T))
    e("v_mov_b32_dpp v%d, v%d quad_perm:[1,1,3,3] row_mask:0xf bank_mask:0xf" % (V_U + 5, V_U + 4))
    store_g("buffer_store_dwordx4 v[%d:%d], v%d, s[%d:%d], s90 offen" % (V_U + 4, V_U + 7, V_HO, SRD_WS, SRD_WS + 3), "0x5555")
    e("v_mov_b32 v%d, v%d" % (V_H, V_U + 4))
    stamp(10)
    lab("L_b_nor3")
    if DEARLY:
        barrier(True)
    else:
        e("s_cbranch_execz L_b_nod")
        e("s_barrier")
        srd(SRD_W, S_WD, 3584 * 2048)
        if TRIG2: doorbell(V_Z, 83, 2)
        e("s_cmp_eq_u32 s%d, 7" % S_WAVE)
        e("s_cbranch_scc1 L_b_nod7")
        dma_run(SRD_W, ab, 91, 4 * 2048, L_W0, 8, 0, 8, name="d")
        lab("L_b_nod7")
        e("s_waitcnt vmcnt(0)")
        e("s_barrier")
        lab("L_b_nod")
    e("ds_write_b128 v%d, v[%d:%d]" % (V_ZA, V_ZQ, V_ZQ + 3))
    tr256_read(V_WF, V_TR)
    stamp(11)
    e("s_cmp_eq_u32 s96, 0")
    e("s_cbranch_scc0 L_b_split")
    lab("L_b_plain")
    top = poll_begin((V_G, 88, 3))
    e("buffer_load_dwordx4 v[%d:%d], v%d, s[%d:%d], s87 offen sc1" % (V_L, V_L + 3, V_G, SRD_WS, SRD_WS + 3))
    e("buffer_load_dwordx4 v[%d:%d], v%d, s[%d:%d], s88 offen sc1" % (V_L + 4, V_L + 7, V_G, SRD_WS, SRD_WS + 3))
    poll_end(top, [chk32(V_L + 1), chk32(V_L + 3), chk32(V_L + 5), chk32(V_L + 7)], bell=(V_G, 88, 3))
    unpack(V_U, V_U + 1, V_L); unpack(V_U + 4, V_U + 5, V_L + 4)
    unpack(V_U + 2, V_U + 3, V_L + 2); unpack(V_U + 6, V_U + 7, V_L + 6)
    e("s_cbranch_execnz L_b_join")
    lab("L_b_split")
    top = poll_begin((V_X1 + 12, 81, 3))
    for i, va in enumerate((V_VC, V_VD, V_X1 + 12, V_X1 + 13)):
        if i == 2: top2 = poll_mid(top)
        for h in range(2):
            r = V_L + 8 * i + 4 * h
            e("buffer_load_dwordx4 v[%d:%d], v%d, s[%d:%d], s81 offen offset:%d sc1" % (r, r + 3, va, SRD_WS, SRD_WS + 3, 16 * h))
    poll_end(top, [chk64(V_L + 4 * i + 2) for i in range(8)], last=top2, bell=(V_X1 + 12, 81, 3))
    for mat in range(2):
        for h in range(2):
            for k in range(2):
                e("v_add_f32 v%d, v%d, v%d" % (V_U + 4 * mat + 2 * h + k, V_L + 16 * mat + 4 * h + k, V_L + 16 * mat + 8 + 4 * h + k))
    for i in range(4):
        e("v_cvt_pk_bf16_f32 v%d, v%d, v%d" % (V_L + i, V_U + 2 * i, V_U + 2 * i + 1))
    for i in range(4):
        unpack(V_U + 2 * i, V_U + 2 * i + 1, V_L + i)
    for k in range(4): e("v_mul_f32 v%d, %s, v%d" % (V_U + k, f32(-LOG2E), V_U + k))
    for k in range(4): e("v_exp_f32 v%d, v%d" % (V_U + k, V_U + k))
    for k in range(4): e("v_add_f32 v%d, 1.0, v%d" % (V_U + k, V_U + k))
    for k in range(4): e("v_rcp_f32 v%d, v%d" % (V_U + k, V_U + k))
    e("s_nop 0")
    for i in range(2):
        e("v_cvt_pk_bf16_f32 v%d, v%d, v%d" % (V_L + i, V_U + 2 * i, V_U + 2 * i + 1))
    for i in range(2):
        unpack(V_U + 2 * i, V_U + 2 * i + 1, V_L + i)
    lab("L_b_join")
    stamp(12)
    for k in range(4): e("v_mul_f32 v%d, v%d, v%d" % (V_U + k, V_U + k, V_U + 4 + k))
    e("v_cvt_pk_bf16_f32 v%d, v%d, v%d" % (V_U + 16, V_U, V_U + 1))
    e("v_cvt_pk_bf16_f32 v%d, v%d, v%d" % (V_U + 17, V_U + 2, V_U + 3))
    e("ds_write_b64 v%d, v[%d:%d]" % (V_AWD, V_U + 16, V_U + 17))
    e("s_waitcnt lgkmcnt(0)")
    barrier(True)
    gemv8(V_ACC, V_WF, V_AF, V_AE, V_AO)
    publish_partial(89, False)
    stamp(13)
    noep = uid("noep")
    e("s_add_u32 s%d, s2, s%d" % (S_A, S_WAVE))
    e("s_cmp_lg_u32 s%d, 0" % S_A)
    e("s_cbranch_scc1 %s" % noep)
    e("s_mov_b64 exec, 1")
    e("v_mov_b32 v%d, s%d" % (V_T0, S_F))
    e("buffer_store_dword v%d, v%d, s[%d:%d], 0 offen sc1" % (V_T0, V_Z, SRD_WS, SRD_WS + 3))
    e("s_mov_b64 exec, -1")
    lab(noep)
    only_red("L_b_end2")
    reduce16(8, BELL5)
    stamp(14)
    residual_add(V_U + 4, V_H)
    store_g("buffer_store_dword v%d, v%d, s[%d:%d], s80 offen" % (V_U + 4, V_X1, SRD_O, SRD_O + 3), "0xffff", flags="")
    e("s_cmp_lg_u32 s%d, 0" % S_DRY)
    e("s_cbranch_scc1 L_b_real")
    stamp(15)
    lab("L_b_end")
    stamps_flush(V_U)
    e("s_endpgm")
    lab("L_b_end2")
    if "b" in CLEAN: clean("buffer_store_dwordx4 v[%d:%d], v%d, s[%d:%d], s84 offen" % (V_P, V_P + 3, V_PUB, SRD_WS, SRD_WS + 3))
    e("s_branch L_b_end")

def role_a():
    cmt("================= role A =================")
    KO = V_X1
    KA = V_X1 + 4
    QE, QO, QW, PW0, PW1, SW, SR, XA, EP = [V_X1 + 8 + i for i in range(9)]
    ab = lambda m: V_VB if (m & 2) else V_VA
    dma256_voff(V_VA, V_VB, 256, V_T0)
    e("s_lshl_b32 s%d, s%d, 22" % (S_E, S_XCD))
    e("s_lshr_b32 s%d, s%d, 2" % (S_C, S_SLOT))
    e("s_lshl_b32 s%d, s%d, 20" % (S_A, S_C))
    e("s_add_u32 s%d, s%d, s%d" % (S_E, S_E, S_A))
    e("s_and_b32 s%d, s%d, 3" % (S_D, S_SLOT))
    e("s_lshl_b32 s%d, s%d, 16" % (S_A, S_D))
    e("s_add_u32 s%d, s%d, s%d" % (S_E, S_E, S_A))
    e("s_add_u32 s%d, s%d, 0x%x" % (S_E, S_E, 3072 * 256))
    e("v_xor_b32 v%d, v2, v3" % V_T0)
    e("v_lshlrev_b32 v%d, 4, v%d" % (V_T0, V_T0))
    e("v_lshl_add_u32 v%d, v3, 8, v%d" % (KO, V_T0))
    for i in range(1, 4): e("v_xor_b32 v%d, %d, v%d" % (KO + i, 64 * i, KO))
    e("s_waitcnt lgkmcnt(0)")
    if STAMPS: e("s_mov_b32 s%d, s%d" % (S_ST, S_TM))
    srd(SRD_WS, S_WS, WS_SIZE)
    e("buffer_load_dword v%d, v%d, s[%d:%d], 0 offen sc1" % (EP, V_Z, SRD_WS, SRD_WS + 3))
    e("s_cmp_ge_u32 s%d, %d" % (S_WAVE, NLD))
    e("s_cbranch_scc1 L_a_noissue0")
    srd(SRD_X, S_K, 32 << 20)
    def thr(c):
        if AWIN <= c < ATHR: e("s_waitcnt vmcnt(%d)" % (AWIN - 1))
    if KFIRST:
        dma_run(SRD_X, lambda m: KO + (m & 3), S_E, 1024, L_W1, 16, 0, 16, pre=thr, name="k")
    else:
        srd(SRD_W, S_V, 32 << 20)
        dma_run(SRD_W, ab, S_E, 1024, L_W0, 16, 0, 16, pre=thr, name="v")
        dma_run(SRD_X, lambda m: KO + (m & 3), S_E, 1024, L_W1, 8, 0, 8, pre=lambda m: thr(16 + m), name="k")
        dma_run(SRD_X, lambda m: KO + (m & 3), S_E, 1024, L_W1, 8, 32, 40, name="k")
    lab("L_a_noissue0")
    if KFIRST: srd(SRD_W, S_V, 32 << 20)
    srd(SRD_O, S_DBG, 256)
    xcc_publish(V_T0, SRD_O)
    stamp(1)
    common_consts()
    e("v_lshlrev_b32 v%d, 4, v1" % V_G)
    tr256_addr(V_TR, V_T0)
    e("v_xor_b32 v%d, v2, v3" % V_T0)
    e("v_lshlrev_b32 v%d, 4, v%d" % (V_T0, V_T0))
    e("v_lshl_add_u32 v%d, v2, 8, v%d" % (V_T0, V_T0))
    e("s_lshl_b32 s%d, s%d, 13" % (S_A, S_WAVE))
    e("s_add_u32 s%d, s%d, %d" % (S_A, S_A, L_W1))
    e("v_add_u32 v%d, s%d, v%d" % (KA, S_A, V_T0))
    for i in range(1, 4): e("v_xor_b32 v%d, %d, v%d" % (KA + i, 64 * i, KA))
    act_rd_addr(QE, QO, V_T0, L_QB)
    act_rd_addr(V_AE, V_AO, V_T0, L_PB)
    e("v_bfe_u32 v%d, v1, 2, 3" % V_T2)
    sigma_of(V_T0, V_T2, V_T1)
    e("v_xor_b32 v%d, s%d, v%d" % (V_T0, S_WAVE, V_T0))
    e("v_lshlrev_b32 v%d, 4, v%d" % (V_T0, V_T0))
    e("v_lshrrev_b32 v%d, 2, v1" % V_T1)
    e("v_lshl_add_u32 v%d, v%d, 7, v%d" % (V_T0, V_T1, V_T0))
    e("v_and_b32 v%d, 3, v1" % V_T1)
    e("v_lshl_add_u32 v%d, v%d, 2, v%d" % (V_T0, V_T1, V_T0))
    e("v_add_u32 v%d, %d, v%d" % (QW, L_QB, V_T0))
    e("v_and_b32 v%d, 2, v3" % V_T0)
    e("s_and_b32 s%d, s%d, 1" % (S_A, S_WAVE))
    e("v_or_b32 v%d, s%d, v%d" % (V_T0, S_A, V_T0))
    e("v_and_b32 v%d, 7, v1" % V_T1)
    e("v_xor_b32 v%d, v%d, v%d" % (V_T0, V_T0, V_T1))
    e("v_lshlrev_b32 v%d, 4, v%d" % (V_T0, V_T0))
    e("v_lshrrev_b32 v%d, 1, v3" % V_T1)
    e("v_lshl_add_u32 v%d, v%d, 7, v%d" % (V_T0, V_T1, V_T0))
    e("v_and_b32 v%d, 1, v3" % V_T1)
    e("v_lshl_add_u32 v%d, v%d, 3, v%d" % (V_T0, V_T1, V_T0))
    e("s_lshl_b32 s%d, s%d, 9" % (S_A, S_WAVE))
    e("s_add_u32 s%d, s%d, %d" % (S_A, S_A, L_PB))
    e("v_add_u32 v%d, s%d, v%d" % (PW0, S_A, V_T0))
    e("v_xor_b32 v%d, 64, v%d" % (PW1, PW0))
    e("v_add_u32 v%d, 0x100, v%d" % (PW1, PW1))
    e("v_cndmask_b32 v%d, v%d, v%d, s[%d:%d]" % (PW0, PW0, PW1, S_HI8, S_HI8 + 1))
    e("v_and_b32 v%d, 7, v1" % V_T0)
    e("v_lshlrev_b32 v%d, 2, v%d" % (XA, V_T0))
    e("v_lshlrev_b32 v%d, 6, v%d" % (V_T0, V_T0))
    e("v_add_u32 v%d, %d, v%d" % (SR, L_MX, V_T0))
    e("s_lshl_b32 s%d, s%d, 2" % (S_A, S_WAVE))
    e("v_add_u32 v%d, s%d, v%d" % (SW, S_A, SR))
    e("s_lshl_b32 s%d, s%d, 3" % (S_A, S_C))
    e("s_add_u32 s%d, s%d, s%d" % (S_A, S_A, S_WAVE))
    e("s_lshl_b32 s%d, s%d, 15" % (S_A, S_A))
    e("s_lshl_b32 s%d, s%d, 10" % (S_B, S_XCD))
    e("s_add_u32 s%d, s%d, s%d" % (S_A, S_A, S_B))
    e("s_add_u32 s80, s%d, 0x%x" % (S_A, WS_H1))
    for i in range(1, 4): e("s_add_u32 s%d, s80, %d" % (80 + i, 8192 * i))
    e("s_lshl_b32 s%d, s%d, 3" % (S_A, S_C))
    e("s_add_u32 s%d, s%d, s%d" % (S_A, S_A, S_XCD))
    e("s_lshl_b32 s%d, s%d, 14" % (S_A, S_A))
    e("s_add_u32 s%d, s%d, 0x%x" % (S_A, S_A, WS_H2))
    e("s_lshl_b32 s%d, s%d, 10" % (S_B, S_D))
    e("s_add_u32 s87, s%d, s%d" % (S_A, S_B))
    for i in range(1, 4): e("s_add_u32 s%d, s87, %d" % (87 + i, 4096 * i))
    e("s_lshl_b32 s%d, s%d, 12" % (S_B, S_D))
    e("s_add_u32 s%d, s%d, s%d" % (S_A, S_A, S_B))
    e("s_lshl_b32 s%d, s%d, 6" % (S_B, S_WAVE))
    e("s_add_u32 s84, s%d, s%d" % (S_A, S_B))
    e("v_and_b32 v%d, 7, v1" % V_T0)
    e("v_lshlrev_b32 v%d, 9, v%d" % (V_PUB, V_T0))
    e("v_lshl_add_u32 v%d, v3, 4, v%d" % (V_PUB, V_PUB))
    e("s_lshl_b32 s%d, s%d, 3" % (S_A, S_SLOT))
    e("s_add_u32 s%d, s%d, s%d" % (S_A, S_A, S_XCD))
    e("s_lshl_b32 s%d, s%d, 10" % (S_A, S_A))
    e("s_add_u32 s91, s%d, 0x%x" % (S_A, WS_H2G))
    e("s_mov_b32 s96, %s" % f32(LOG2E))
    e("s_cmp_lt_u32 s%d, %d" % (S_WAVE, NLD))
    e("s_cbranch_scc1 L_a_real")
    if not NOTOUCH:
        e("s_cmp_lg_u32 s%d, 4" % S_WAVE)
        e("s_cbranch_scc1 L_a_notouch")
        e("v_and_b32 v%d, 7, v1" % V_T0)
        e("v_lshlrev_b32 v%d, 7, v%d" % (V_T0, V_T0))
        e("v_bfe_u32 v%d, v1, 3, 2" % V_T1)
        e("v_lshl_add_u32 v%d, v%d, 12, v%d" % (V_T0, V_T1, V_T0))
        touch([(V_T0, 87, 0), (V_Z, 80, 0), (V_Z, 91, 0)])
        lab("L_a_notouch")
    if NODRY: e("s_branch L_a_real0")
    set_dry()
    e("s_branch L_a_att")
    def gu_scalar_setup():
        GO = V_GO
        e("s_lshr_b32 s%d, s%d, 7" % (S_D, S_WG))
        e("s_mul_i32 s%d, s%d, 7" % (S_A, S_XCD))
        e("s_add_u32 s%d, s%d, s%d" % (S_D, S_D, S_A))
        e("s_sub_u32 s%d, 3, s%d" % (S_D, S_D))
        e("s_and_b32 s%d, s%d, 7" % (S_D, S_D))
        e("s_mov_b32 s101, 0")
        e("s_cmp_ge_u32 s%d, 7" % S_SLOT)
        e("s_cselect_b32 s%d, 7, 0" % S_B)
        e("s_cselect_b32 s100, 1, 0")
        e("s_sub_u32 s%d, s%d, s%d" % (S_C, S_SLOT, S_B))
        e("s_cmp_eq_u32 s%d, s%d" % (S_C, S_D))
        e("s_cselect_b32 s99, 1, 0")
        e("s_cmp_lt_u32 s%d, 14" % S_SLOT)
        e("s_cbranch_scc1 L_a_nohelp")
        e("s_cmp_eq_u32 s%d, 7" % S_D)
        e("s_cselect_b32 s101, 1, 0")
        e("s_mov_b32 s%d, s%d" % (S_C, S_D))
        e("s_sub_u32 s100, s%d, 14" % S_SLOT)
        e("s_mov_b32 s99, 2")
        lab("L_a_nohelp")
        e("s_cmp_lg_u32 s100, 0")
        e("s_cselect_b32 s%d, s%d, s%d" % (SRD_W, S_WU, S_WG))
        e("s_cselect_b32 s%d, s%d, s%d" % (S_A, S_WU + 1, S_WG + 1))
        e("s_cselect_b32 s85, 0x%x, 0" % (WS_H4U - WS_H4S))
        e("s_add_u32 s85, s85, 0x%x" % WS_H4S)
        e("s_and_b32 s%d, s%d, 0xffff" % (SRD_W + 1, S_A))
        e("s_cmp_lg_u32 s101, 0")
        e("s_cselect_b32 s%d, 0, 0x%x" % (SRD_W + 2, 1024 * 7168))
        e("s_mov_b32 s%d, 0x20000" % (SRD_W + 3))
        e("s_mul_i32 s%d, s%d, 7" % (S_A, S_XCD))
        e("s_add_u32 s%d, s%d, s%d" % (S_C, S_C, S_A))
        e("v_lshrrev_b32 v%d, 3, v1" % V_T0)
        e("v_bfe_u32 v%d, v1, 4, 1" % V_T1)
        e("v_and_b32 v%d, 7, v1" % V_T2)
        e("v_xor_b32 v%d, v%d, v%d" % (V_T1, V_T1, V_T2))
        e("v_lshlrev_b32 v%d, 4, v%d" % (V_T1, V_T1))
        e("v_mul_u32_u24 v%d, 7168, v%d" % (GO, V_T0))
        e("v_add_u32 v%d, v%d, v%d" % (GO, GO, V_T1))
        for i in range(1, 4): e("v_xor_b32 v%d, %d, v%d" % (GO + i, 32 * i, GO))
        e("s_and_b32 s%d, s%d, 1" % (S_A, S_WAVE))
        e("s_lshl_b32 s%d, s%d, 6" % (S_A, S_A))
        e("v_xor_b32 v%d, s%d, v%d" % (GO + 4, S_A, GO))
        e("v_xor_b32 v%d, 32, v%d" % (GO + 5, GO + 4))
        NE = 8 * GE
        e("s_cmp_eq_u32 s99, 2")
        e("s_cselect_b32 s%d, 64, 0" % S_B)
        e("s_mul_i32 s%d, s%d, %d" % (S_A, S_WAVE, GE))
        e("s_add_u32 s%d, s%d, s%d" % (S_A, S_A, S_B))
        e("s_lshl_b32 s9, s%d, 10" % S_A)
        e("s_mul_i32 s8, s%d, %d" % (S_A, 8 * 7168))
        e("s_lshl_b32 s%d, s%d, 7" % (S_E, S_C))
        e("s_add_u32 s8, s8, s%d" % S_E)
        e("s_cmp_eq_u32 s99, 0")
        e("s_cselect_b32 s%d, %d, %d" % (S_A, (128 - NE) // 4, (64 - NE) // 4))
        e("s_cselect_b32 s6, %d, %d" % ((128 - NE) // 32, (64 - NE) // 32))
        e("s_mul_i32 s%d, s%d, s%d" % (S_A, S_A, S_WAVE))
        e("s_add_u32 s%d, s%d, s%d" % (S_A, S_A, S_B))
        e("s_add_u32 s%d, s%d, %d" % (S_A, S_A, NE))
        e("s_lshl_b32 s5, s%d, 10" % S_A)
        e("s_mul_i32 s4, s%d, %d" % (S_A, 8 * 7168))
        e("s_add_u32 s4, s4, s%d" % S_E)
    def gu_early(ms):
        if not ms or "gu" in SKIP: return
        l = uid("nge")
        e("s_cbranch_execz %s" % l)
        for m in ms:
            e("s_mov_b32 m0, s9")
            e("s_add_u32 s9, s9, 1024")
            e("buffer_load_dwordx4 v%d, s[%d:%d], s8 offen nt lds" % (V_GO + 4 + (m & 1) if GE == 4 else V_GO + ((m & 1) | (((m >> 2) & 1) << 1)), SRD_W, SRD_W + 3))
            e("s_add_u32 s8, s8, %d" % (8 * 7168))
        lab(l)
    def h1_loads():
        for k in range(4):
            e("buffer_load_dwordx4 v[%d:%d], v%d, s[%d:%d], s%d offen sc1" % (V_L + 4 * k, V_L + 4 * k + 3, V_G, SRD_WS, SRD_WS + 3, 80 + k))
        xcc_load(V_L + 16, XA, SRD_O)
    def trig1(w):
        notr = uid("notr")
        e("s_cmp_lg_u32 s%d, %d" % (S_WAVE, w))
        e("s_cbranch_scc1 %s" % notr)
        e("s_lshl_b32 s%d, s%d, 3" % (S_A, S_SLOT))
        e("s_or_b32 s%d, s%d, s%d" % (S_A, S_A, S_XCD))
        e("s_lshl_b32 s%d, s%d, 7" % (S_A, S_A))
        e("s_add_u32 s%d, s%d, 0x%x" % (S_A, S_A, WS_TRIG))
        e("s_mov_b64 exec, 1")
        e("buffer_store_dwordx2 v[%d:%d], v%d, s[%d:%d], s%d offen sc1" % (V_T2 + 1, V_T2 + 2, V_Z, SRD_WS, SRD_WS + 3, S_A) if False else
          "buffer_store_dwordx2 v[%d:%d], v%d, s[%d:%d], s%d offen sc1" % (V_X1 + 18, V_X1 + 19, V_Z, SRD_WS, SRD_WS + 3, S_A))
        full()
        lab(notr)
    if KFIRST:
        lab("L_a_real0")
        e("s_waitcnt vmcnt(0)")
        e("s_branch L_a_sync")
        lab("L_a_real")
        dma_run(SRD_W, ab, S_E, 1024, L_W0, 16, 0, VP, pre=lambda m: thr(16 + m), name="v")
        e("s_waitcnt vmcnt(%d)" % VP)
        lab("L_a_sync")
        set_real()
        make_tag(EP)
        e("v_mov_b32 v%d, s%d" % (V_X1 + 18, S_T))
        e("v_mov_b32 v%d, s%d" % (V_X1 + 19, S_T))
        e("s_barrier")
        stamp(2)
        lab("L_a_att")
        e("s_cbranch_execz L_a_h1k")
        h1_loads()
        e("s_cmp_ge_u32 s%d, 4" % S_WAVE)
        e("s_cbranch_scc1 L_a_h1k")
        if VP < 16:
            dma_run(SRD_W, ab, S_E, 1024, L_W0, 16, VP, 16, name="v")
        lab("L_a_h1k")
    else:
        lab("L_a_real0")
        e("s_waitcnt vmcnt(0)")
        lab("L_a_real")
        set_real()
        e("s_waitcnt vmcnt(%d)" % (TRIGV * 4 // NLD))
        make_tag(EP)
        gu_scalar_setup()
        notr = uid("notr")
        e("s_cmp_lg_u32 s%d, 0" % S_WAVE)
        e("s_cbranch_scc1 %s" % notr)
        e("s_lshl_b32 s%d, s%d, 3" % (S_A, S_SLOT))
        e("s_or_b32 s%d, s%d, s%d" % (S_A, S_A, S_XCD))
        e("s_lshl_b32 s%d, s%d, 7" % (S_A, S_A))
        e("s_add_u32 s%d, s%d, 0x%x" % (S_A, S_A, WS_TRIG))
        e("s_mov_b64 exec, 1")
        e("buffer_store_dwordx2 v[%d:%d], v%d, s[%d:%d], s%d offen sc1" % (V_P + 2, V_P + 3, V_Z, SRD_WS, SRD_WS + 3, S_A))
        e("s_mov_b64 exec, -1")
        lab(notr)
        e("s_waitcnt vmcnt(%d)" % (64 // NLD))
        e("s_barrier")
        stamp(2)
        tr256_read(V_WF, V_TR)
        lab("L_a_att")
        e("s_cbranch_execz L_a_h1k")
        if H1LATE:
            e("s_waitcnt vmcnt(%d)" % H1V)
            e("s_barrier")
            h1_loads()
            e("s_waitcnt vmcnt(5)")
            e("s_barrier")
        else:
            h1_loads()
            e("s_waitcnt vmcnt(5)")
            e("s_barrier")
        lab("L_a_h1k")
        stamp(3)
    for sg in range(4):
        for t in range(2):
            r = V_KF + 16 * t + 4 * sg
            e("ds_read_b128 v[%d:%d], v%d offset:%d" % (r, r + 3, KA + sg, t * 4096))
    e("s_cbranch_execz L_a_h1_nl")
    if KFIRST:
        e("s_cmp_ge_u32 s%d, 4" % S_WAVE)
        e("s_cbranch_scc1 L_a_h1w")
        e("s_waitcnt vmcnt(%d)" % (16 - VP))
        e("s_branch L_a_h1_nl")
    else:
        e("s_branch L_a_h1w")
    lab("L_a_h1")
    h1_loads()
    lab("L_a_h1w")
    poll_end("L_a_h1", [chk64(V_L + 4 * k + 2) for k in range(4)] + xcc_checks(V_L + 16, V_T0))
    stamp(4)
    e("v_pk_add_f32 v[%d:%d], v[%d:%d], v[%d:%d]" % (V_L, V_L + 1, V_L, V_L + 1, V_L + 4, V_L + 5))
    e("v_pk_add_f32 v[%d:%d], v[%d:%d], v[%d:%d]" % (V_L + 8, V_L + 9, V_L + 8, V_L + 9, V_L + 12, V_L + 13))
    e("v_pk_add_f32 v[%d:%d], v[%d:%d], v[%d:%d]" % (V_L, V_L + 1, V_L, V_L + 1, V_L + 8, V_L + 9))
    e("v_cvt_pk_bf16_f32 v%d, v%d, v%d" % (V_T0, V_L, V_L + 1))
    e("ds_write_b32 v%d, v%d" % (QW, V_T0))
    xcc_decide(V_L + 16)
    e("s_waitcnt lgkmcnt(0)")
    barrier(True)
    for sg in range(4):
        e("ds_read_b128 v[%d:%d], v%d offset:%d" % (V_AF + 4 * sg, V_AF + 4 * sg + 3, QO if (sg & 1) else QE, sg * 512))
    S0, S1 = V_U, V_U + 4
    gu_early(range(0, GE1))
    for sg in range(4):
        e("s_waitcnt lgkmcnt(%d)" % (3 - sg))
        for t, acc in ((0, S0), (1, S1)):
            e(mfma(acc, V_KF + 16 * t + 4 * sg, V_AF + 4 * sg, None if sg == 0 else acc))
    gu_early(range(GE1, GE))
    e("s_nop 7")
    X = V_U + 8
    W = V_U + 16
    for k in range(4):
        e("v_cndmask_b32 v%d, v%d, v%d, s[%d:%d]" % (X + k, S0 + k, S1 + k, S_HI8, S_HI8 + 1))
    for rnd in range(2):
        for i2 in range(2):
            e("v_cvt_pk_bf16_f32 v%d, v%d, v%d" % (W + i2, X + 2 * i2, X + 2 * i2 + 1))
        for i2 in range(2):
            unpack(X + 2 * i2, X + 2 * i2 + 1, W + i2)
        if rnd == 0:
            for k in range(4):
                e("v_mul_f32 v%d, %s, v%d" % (X + k, f32(128 ** -0.5), X + k))
    e("v_max3_f32 v%d, v%d, v%d, v%d" % (V_M, X, X + 1, X + 2))
    e("v_max_f32 v%d, v%d, v%d" % (V_M, V_M, X + 3))
    e("s_nop 1")
    e(dpp_add(V_M, V_M, "row_ror:8", "v_max_f32"))
    emit(xrow_ops(V_M, V_T0, "v_max_f32"))
    e("v_mul_f32 v%d, s96, v%d" % (V_M, V_M))
    for k in range(4):
        e("v_fma_f32 v%d, v%d, s96, -v%d" % (X + k, X + k, V_M))
    for k in range(4):
        e("v_exp_f32 v%d, v%d" % (X + k, X + k))
    e("s_nop 0")
    e("v_cvt_pk_bf16_f32 v%d, v%d, v%d" % (W, X, X + 1))
    e("v_cvt_pk_bf16_f32 v%d, v%d, v%d" % (W + 1, X + 2, X + 3))
    e("v_add_f32 v%d, v%d, v%d" % (V_SUM, X, X + 1))
    e("v_add_f32 v%d, v%d, v%d" % (V_T1, X + 2, X + 3))
    e("ds_write_b64 v%d, v[%d:%d]" % (PW0, W, W + 1))
    e("v_add_f32 v%d, v%d, v%d" % (V_SUM, V_SUM, V_T1))
    e("s_nop 1")
    e(dpp_add(V_SUM, V_SUM, "row_ror:8"))
    emit(xrow_ops(V_SUM, V_T0))
    e("ds_write2_b32 v%d, v%d, v%d offset0:0 offset1:8" % (SW, V_M, V_SUM))
    if KFIRST:
        e("s_cbranch_execz L_a_nov")
        trig1(4)
        e("s_waitcnt vmcnt(0) lgkmcnt(0)")
        e("s_barrier")
        lab("L_a_nov")
    else:
        e("s_waitcnt lgkmcnt(0)")
        barrier(True)
    stamp(5)
    MS, LS = V_L, V_L + 8
    for i2 in range(4):
        e("ds_read_b128 v[%d:%d], v%d offset:%d" % (V_L + 4 * i2, V_L + 4 * i2 + 3, SR, 16 * i2))
    def pv_reads(m):
        if KFIRST:
            for h in range(2):
                e("ds_read_b64_tr_b16 v[%d:%d], v%d offset:%d" % (V_WF + 4 * m + 2 * h, V_WF + 4 * m + 2 * h + 1, V_TR, m * 8192 + h * 1024))
        e("ds_read_b128 v[%d:%d], v%d offset:%d" % (V_AF + 4 * m, V_AF + 4 * m + 3, V_AO if (m & 1) else V_AE, m * 512))
    for m in range(4 if KFIRST else 8): pv_reads(m)
    AC = V_U
    side = ["v_max3_f32 v%d, v%d, v%d, v%d" % (V_M, MS, MS + 1, MS + 2),
            "v_max3_f32 v%d, v%d, v%d, v%d" % (V_T0, MS + 3, MS + 4, MS + 5),
            "v_max3_f32 v%d, v%d, v%d, v%d" % (V_M, V_M, MS + 6, MS + 7),
            "v_max_f32 v%d, v%d, v%d" % (V_M, V_M, V_T0)]
    side += ["v_sub_f32 v%d, v%d, v%d" % (MS + i2, MS + i2, V_M) for i2 in range(8)]
    side += ["v_exp_f32 v%d, v%d" % (MS + i2, MS + i2) for i2 in range(8)]
    side += ["v_mul_f32 v%d, v%d, v%d" % (V_SUM, LS, MS), "v_mul_f32 v%d, v%d, v%d" % (V_T1, LS + 1, MS + 1)]
    for i2 in range(2, 8, 2):
        side += ["v_fmac_f32 v%d, v%d, v%d" % (V_SUM, LS + i2, MS + i2), "v_fmac_f32 v%d, v%d, v%d" % (V_T1, LS + i2 + 1, MS + i2 + 1)]
    side += ["v_add_f32 v%d, v%d, v%d" % (V_SUM, V_SUM, V_T1),
             "v_rcp_f32 v%d, v%d" % (V_RS, V_SUM), "v_log_f32 v%d, v%d" % (V_T1, V_SUM), "s_nop 0",
             "v_add_f32 v%d, v%d, v%d" % (V_P + 2, V_T1, V_M)]
    per = (len(side) + 7) // 8
    for m in range(8):
        e("s_waitcnt lgkmcnt(%d)" % ((9 if m < 5 else 3 * (7 - m)) if KFIRST else 7 - m))
        e(mfma(AC + 4 * m, V_WF + 4 * m, V_AF + 4 * m, None))
        if KFIRST and m < 4: pv_reads(m + 4)
        emit(side[m * per:(m + 1) * per])
    def bsel(r):
        return (r & ~1, "op_sel:[0,%d,0] op_sel_hi:[1,%d,1]" % (r & 1, r & 1), "op_sel:[0,%d] op_sel_hi:[1,%d]" % (r & 1, r & 1))
    for m in range(8):
        fb, sel, sel2 = bsel(MS + m)
        for h in range(2):
            a = V_ACC + 2 * h
            if m == 0:
                e("v_pk_mul_f32 v[%d:%d], v[%d:%d], v[%d:%d] %s" % (a, a + 1, AC + 2 * h, AC + 2 * h + 1, fb, fb + 1, sel2))
            else:
                e("v_pk_fma_f32 v[%d:%d], v[%d:%d], v[%d:%d], v[%d:%d] %s" % (a, a + 1, AC + 4 * m + 2 * h, AC + 4 * m + 2 * h + 1, fb, fb + 1, a, a + 1, sel))
    fb, sel, sel2 = bsel(V_RS)
    for h in range(2):
        a = V_ACC + 2 * h
        e("v_pk_mul_f32 v[%d:%d], v[%d:%d], v[%d:%d] %s" % (a, a + 1, a, a + 1, fb, fb + 1, sel2))
    e("v_cvt_pk_bf16_f32 v%d, v%d, v%d" % (V_P, V_ACC, V_ACC + 1))
    e("v_cvt_pk_bf16_f32 v%d, v%d, v%d" % (V_P + 1, V_ACC + 2, V_ACC + 3))
    store_l("buffer_store_dwordx4 v[%d:%d], v%d, s[%d:%d], s84 offen" % (V_P, V_P + 3, V_PUB, SRD_WS, SRD_WS + 3), "lo8")
    stamp(6)
    e("s_sub_u32 s%d, s%d, 1" % (S_A, S_WAVE))
    e("s_cmp_lt_u32 s%d, 3" % S_A)
    e("s_cbranch_scc1 L_a_nocomb")
    e("s_cmp_lg_u32 s%d, 0" % S_DRY)
    e("s_cbranch_scc1 L_a_comb")
    e("s_cmp_lg_u32 s%d, 0" % S_WAVE)
    e("s_cbranch_scc1 L_a_nocomb")
    lab("L_a_comb")
    top = poll_begin()
    for s in range(4):
        e("buffer_load_dwordx4 v[%d:%d], v%d, s[%d:%d], s%d offen sc1" % (V_L + 4 * s, V_L + 4 * s + 3, V_G, SRD_WS, SRD_WS + 3, 87 + s))
    poll_end(top, [chk32(V_L + 4 * s + 3) for s in range(4)])
    Ls = [V_L + 4 * s + 2 for s in range(4)]
    e("v_max3_f32 v%d, v%d, v%d, v%d" % (V_T0, Ls[0], Ls[1], Ls[2]))
    e("v_max_f32 v%d, v%d, v%d" % (V_T0, V_T0, Ls[3]))
    for s in range(4): e("v_sub_f32 v%d, v%d, v%d" % (Ls[s], Ls[s], V_T0))
    for s in range(4): e("v_exp_f32 v%d, v%d" % (Ls[s], Ls[s]))
    for s in range(4):
        unpack(V_U + 4 * s, V_U + 4 * s + 1, V_L + 4 * s)
        unpack(V_U + 4 * s + 2, V_U + 4 * s + 3, V_L + 4 * s + 1)
    e("v_add_f32 v%d, v%d, v%d" % (V_T0, Ls[0], Ls[1]))
    e("v_add_f32 v%d, v%d, v%d" % (V_T1, Ls[2], Ls[3]))
    e("v_add_f32 v%d, v%d, v%d" % (V_T0, V_T0, V_T1))
    e("v_rcp_f32 v%d, v%d" % (V_T0, V_T0))
    for k in range(4):
        e("v_mul_f32 v%d, v%d, v%d" % (V_U + k, V_U + k, Ls[0]))
    for s in range(1, 4):
        for k in range(4):
            e("v_fmac_f32 v%d, v%d, v%d" % (V_U + k, V_U + 4 * s + k, Ls[s]))
    for k in range(4):
        e("v_mul_f32 v%d, v%d, v%d" % (V_U + k, V_U + k, V_T0))
    e("v_cvt_pk_bf16_f32 v%d, v%d, v%d" % (V_U + 16, V_U, V_U + 1))
    e("v_cvt_pk_bf16_f32 v%d, v%d, v%d" % (V_U + 17, V_U + 2, V_U + 3))
    e("v_mov_b32 v%d, s%d" % (V_U + 18, S_T))
    e("v_mov_b32 v%d, s%d" % (V_U + 19, S_T))
    store_g("buffer_store_dwordx4 v[%d:%d], v%d, s[%d:%d], s91 offen" % (V_U + 16, V_U + 19, V_G, SRD_WS, SRD_WS + 3))
    stamp(13)
    lab("L_a_nocomb")
    e("s_cmp_lg_u32 s%d, 0" % S_DRY)
    e("s_cbranch_scc1 L_a_real0")
    e("s_cmp_lg_u32 s101, 0")
    e("s_cbranch_scc1 L_a_idle")
    e("s_mov_b32 s96, s100")
    e("s_mov_b32 s%d, s4" % S_A)
    e("s_mov_b32 s%d, s5" % S_B)
    e("s_mov_b32 s%d, s6" % S_D)
    e("s_barrier")
    e("s_cmp_ge_u32 s%d, %d" % (S_WAVE, 0 if "gu" in SKIP else 4))
    e("s_cbranch_scc1 L_a_gusetup")
    e("s_cmp_eq_u32 s%d, 0" % S_D)
    e("s_cbranch_scc1 L_a_gusetup")
    lab("L_a_guld")
    for m in range(8):
        e("s_mov_b32 m0, s%d" % S_B)
        e("s_add_u32 s%d, s%d, 1024" % (S_B, S_B))
        var = (m & 1) | (((m >> 2) & 1) << 1)
        e("buffer_load_dwordx4 v%d, s[%d:%d], s%d offen nt lds" % (V_GO + var, SRD_W, SRD_W + 3, S_A))
        e("s_add_u32 s%d, s%d, %d" % (S_A, S_A, 8 * 7168))
    e("s_sub_u32 s%d, s%d, 1" % (S_D, S_D))
    e("s_cmp_lg_u32 s%d, 0" % S_D)
    e("s_cbranch_scc1 L_a_guld")
    stamp(7)
    lab("L_a_gusetup")
    e("v_bfe_u32 v%d, v1, 3, 1" % V_T0)
    e("v_and_b32 v%d, 1, v3" % V_T1)
    e("v_lshl_or_b32 v%d, v%d, 1, v%d" % (V_T0, V_T1, V_T0))
    e("v_bfe_u32 v%d, v1, 1, 1" % V_T1)
    e("v_lshl_or_b32 v%d, v%d, 2, v%d" % (V_T0, V_T1, V_T0))
    e("v_xor_b32 v%d, s%d, v%d" % (V_T0, S_WAVE, V_T0))
    e("v_lshlrev_b32 v%d, 4, v%d" % (V_T0, V_T0))
    e("v_bfe_u32 v%d, v1, 2, 2" % V_T2)
    e("v_lshl_add_u32 v%d, v3, 3, v%d" % (V_T2, V_T2))
    e("v_lshl_add_u32 v%d, v%d, 5, v%d" % (V_T2, V_T1, V_T2))
    e("v_lshl_add_u32 v%d, v%d, 7, v%d" % (V_T0, V_T2, V_T0))
    e("v_and_b32 v%d, 1, v1" % V_T1)
    e("v_lshl_add_u32 v%d, v%d, 3, v%d" % (V_TR, V_T1, V_T0))
    e("v_add_u32 v%d, 0x10000, v%d" % (V_VA, V_TR))
    e("v_lshrrev_b32 v%d, 3, v2" % V_T0)
    e("v_lshl_or_b32 v%d, v3, 1, v%d" % (V_T1, V_T0))
    e("v_and_b32 v%d, 7, v1" % V_T2)
    e("v_xor_b32 v%d, v%d, v%d" % (V_T1, V_T1, V_T2))
    e("v_lshlrev_b32 v%d, 4, v%d" % (V_T1, V_T1))
    e("v_lshl_add_u32 v%d, v%d, 2, v3" % (V_T0, V_T0))
    e("v_lshl_add_u32 v%d, v%d, 7, v%d" % (V_T1, V_T0, V_T1))
    e("v_add_u32 v%d, %d, v%d" % (V_AE, L_ACT, V_T1))
    e("v_lshlrev_b32 v%d, 3, v%d" % (V_T2, V_T2))
    e("v_add_u32 v%d, %d, v%d" % (V_AO, L_MX, V_T2))
    e("s_lshl_b32 s%d, s%d, 3" % (S_A, S_WAVE))
    e("s_add_u32 s%d, s%d, %d" % (S_A, S_A, L_MX))
    e("v_mov_b32 v%d, s%d" % (V_RED, S_A))
    pos_write_addr(V_AW, L_ACT)
    e("s_lshl_b32 s%d, s%d, 12" % (S_A, S_WAVE))
    e("s_add_u32 s86, s%d, 0x%x" % (S_A, WS_H3B))
    e("s_lshl_b32 s%d, s%d, 11" % (S_A, S_C))
    e("s_lshl_b32 s%d, s%d, 8" % (S_B, S_WAVE))
    e("s_add_u32 s%d, s%d, s%d" % (S_A, S_A, S_B))
    e("s_add_u32 s85, s85, s%d" % S_A)
    e("v_and_b32 v%d, 1, v3" % V_T0)
    e("v_lshlrev_b32 v%d, 7, v%d" % (V_PUB, V_T0))
    e("v_and_b32 v%d, 7, v1" % V_T0)
    e("v_lshl_add_u32 v%d, v%d, 4, v%d" % (V_PUB, V_T0, V_PUB))
    e("v_lshrrev_b32 v%d, 1, v3" % V_T0)
    e("v_lshl_add_u32 v%d, v%d, 3, v%d" % (V_PUB, V_T0, V_PUB))
    e("s_lshl_b32 s%d, s96, 1" % S_A)
    e("s_add_u32 s%d, s%d, s99" % (S_A, S_A))
    e("s_sub_u32 s%d, s%d, 1" % (S_A, S_A))
    e("s_lshl_b32 s%d, s%d, 3" % (S_A, S_A))
    e("s_add_u32 s%d, s%d, s%d" % (S_A, S_A, S_XCD))
    e("s_lshl_b32 s%d, s%d, 12" % (S_A, S_A))
    e("s_lshl_b32 s%d, s%d, 9" % (S_B, S_WAVE))
    e("s_add_u32 s%d, s%d, s%d" % (S_A, S_A, S_B))
    e("s_add_u32 s84, s%d, 0x%x" % (S_A, WS_H4P))
    e("v_lshlrev_b32 v%d, 1, v%d" % (V_H, V_PUB))
    e("v_mov_b32 v%d, s%d" % (V_ACC + 6, S_T))
    e("v_mov_b32 v%d, s%d" % (V_ACC + 7, S_T))
    ONE = V_WF
    CS = V_WF + 4
    for k in range(4): e("v_mov_b32 v%d, 0x3f803f80" % (ONE + k))
    e("v_mov_b32 v%d, s%d" % (V_P + 1, S_T))
    e("s_mov_b64 s[%d:%d], s[%d:%d]" % (80, 81, S_ML, S_ML + 1))
    e("s_mov_b64 s[%d:%d], s[%d:%d]" % (82, 83, S_MG, S_MG + 1))
    e("s_cmp_lt_u32 s%d, 4" % S_WAVE)
    e("s_cbranch_scc1 L_a_gureal")
    if NODRY: e("s_branch L_a_gureal")
    set_dry()
    e("s_branch L_a_gutop")
    lab("L_a_gureal")
    set_real()
    e("s_mov_b64 s[%d:%d], s[%d:%d]" % (S_ML, S_ML + 1, 80, 81))
    e("s_mov_b64 s[%d:%d], s[%d:%d]" % (S_MG, S_MG + 1, 82, 83))
    e("s_waitcnt vmcnt(%d)" % T2V)
    if TRIG2: trig2()
    e("s_waitcnt vmcnt(0)")
    e("s_barrier")
    lab("L_a_gutop")
    GF = V_KF
    for m in range(16):
        for h in range(2):
            e("ds_read_b64_tr_b16 v[%d:%d], v%d offset:%d" % (GF + 4 * m + 2 * h, GF + 4 * m + 2 * h + 1, V_TR if m < 8 else V_VA, (m & 7) * 8192 + h * 512))
    e("s_waitcnt lgkmcnt(0)")
    e("s_cmp_lg_u32 s99, 1")
    e("s_cbranch_scc1 L_a_z1")
    for k in range(32, 64): e("v_mov_b32 v%d, 0" % (GF + k))
    lab("L_a_z1")
    e("s_cmp_lg_u32 s99, 2")
    e("s_cbranch_scc1 L_a_z2")
    for k in range(0, 32): e("v_mov_b32 v%d, 0" % (GF + k))
    lab("L_a_z2")
    e("s_nop 1")
    for m in range(16):
        e(mfma(CS, GF + 4 * m, ONE, None if m == 0 else CS))
    e("s_nop 7")
    e("v_permlane32_swap_b32 v%d, v%d" % (CS, CS + 2))
    e("v_permlane32_swap_b32 v%d, v%d" % (CS + 1, CS + 3))
    e("s_nop 1")
    e("v_add_f32_dpp v%d, v%d, v%d row_shl:8 row_mask:0xf bank_mask:0xf" % (CS, CS + 2, CS))
    e("v_add_f32_dpp v%d, v%d, v%d row_shl:8 row_mask:0xf bank_mask:0xf" % (CS + 1, CS + 3, CS + 1))
    stamp(8)
    top = poll_begin((V_G, 86, 3))
    for n in range(4):
        e("buffer_load_dwordx4 v[%d:%d], v%d, s[%d:%d], s86 offen offset:%d sc1" % (V_L + 4 * n, V_L + 4 * n + 3, V_G, SRD_WS, SRD_WS + 3, n * 1024))
    poll_end(top, [chk64(V_L + 4 * n + 2) for n in range(4)], bell=(V_G, 86, 3))
    for n in range(4):
        e("ds_write_b64 v%d, v[%d:%d] offset:%d" % (V_AW, V_L + 4 * n, V_L + 4 * n + 1, n * 4096))
    stamp(9)
    side = ln_stats_dot_ops([V_L + 4 * (i >> 1) + (i & 1) for i in range(8)], ONE, V_SUM, V_SQ, V_T0, V_M, V_RS)
    emit(side[:16])
    side = side[16:]
    e("s_waitcnt lgkmcnt(0)")
    barrier(True)
    stamp(10)
    for m in range(16):
        e("ds_read_b128 v[%d:%d], v%d offset:%d" % (V_AF + 4 * m, V_AF + 4 * m + 3, V_AE, m * 1024))
    per = (len(side) + 11) // 12
    for m in range(16):
        e("s_waitcnt lgkmcnt(%d)" % (15 - m))
        e(mfma(V_ACC, GF + 4 * m, V_AF + 4 * m, None if m == 0 else V_ACC))
        if m < 15: emit(side[m * per:(m + 1) * per])
    e("ds_write_b64 v%d, v[%d:%d]" % (V_RED, V_M, V_RS))
    e("s_waitcnt lgkmcnt(0)")
    barrier(True)
    e("ds_read_b64 v[%d:%d], v%d" % (V_M, V_RS, V_AO))
    e("s_nop 3")
    e("v_permlane32_swap_b32 v%d, v%d" % (V_ACC, V_ACC + 2))
    e("v_permlane32_swap_b32 v%d, v%d" % (V_ACC + 1, V_ACC + 3))
    e("s_nop 1")
    e("v_add_f32_dpp v%d, v%d, v%d row_shl:8 row_mask:0xf bank_mask:0xf" % (V_ACC, V_ACC + 2, V_ACC))
    e("v_add_f32_dpp v%d, v%d, v%d row_shl:8 row_mask:0xf bank_mask:0xf" % (V_ACC + 1, V_ACC + 3, V_ACC + 1))
    e("s_waitcnt lgkmcnt(0)")
    e("v_fma_f32 v%d, -v%d, v%d, v%d" % (V_ACC, V_M, CS, V_ACC))
    e("v_fma_f32 v%d, -v%d, v%d, v%d" % (V_ACC + 1, V_M, CS + 1, V_ACC + 1))
    e("v_mul_f32 v%d, v%d, v%d" % (V_ACC, V_ACC, V_RS))
    e("v_mul_f32 v%d, v%d, v%d" % (V_ACC + 1, V_ACC + 1, V_RS))
    e("s_cmp_lg_u32 s99, 0")
    e("s_cbranch_scc1 L_a_part")
    e("v_cvt_pk_bf16_f32 v%d, v%d, v%d" % (V_P, V_ACC, V_ACC + 1))
    nosig = uid("nosig")
    e("s_cmp_lg_u32 s96, 0")
    e("s_cbranch_scc1 %s" % nosig)
    unpack(V_U, V_U + 1, V_P)
    e("v_mul_f32 v%d, %s, v%d" % (V_U, f32(-LOG2E), V_U))
    e("v_mul_f32 v%d, %s, v%d" % (V_U + 1, f32(-LOG2E), V_U + 1))
    e("v_exp_f32 v%d, v%d" % (V_U, V_U))
    e("v_exp_f32 v%d, v%d" % (V_U + 1, V_U + 1))
    e("s_nop 0")
    e("v_add_f32 v%d, 1.0, v%d" % (V_U, V_U))
    e("v_add_f32 v%d, 1.0, v%d" % (V_U + 1, V_U + 1))
    e("v_rcp_f32 v%d, v%d" % (V_U, V_U))
    e("v_rcp_f32 v%d, v%d" % (V_U + 1, V_U + 1))
    e("s_nop 0")
    e("v_cvt_pk_bf16_f32 v%d, v%d, v%d" % (V_P, V_U, V_U + 1))
    lab(nosig)
    store_l("buffer_store_dwordx2 v[%d:%d], v%d, s[%d:%d], s85 offen" % (V_P, V_P + 1, V_PUB, SRD_WS, SRD_WS + 3), "lo8")
    e("s_branch L_a_pubd")
    lab("L_a_part")
    e("v_mov_b32 v%d, v%d" % (V_P, V_ACC))
    e("v_mov_b32 v%d, v%d" % (V_P + 1, V_ACC + 1))
    store_l("buffer_store_dwordx4 v[%d:%d], v%d, s[%d:%d], s84 offen" % (V_P, V_P + 3, V_H, SRD_WS, SRD_WS + 3), "lo8")
    lab("L_a_pubd")
    e("s_cmp_lg_u32 s%d, 0" % S_DRY)
    e("s_cbranch_scc1 L_a_gureal")
    stamp(11)
    if "a" in CLEAN: clean("buffer_store_dwordx4 v[%d:%d], v%d, s[%d:%d], s87 offen" % (V_WF + 8, V_WF + 11, V_WF + 12, SRD_WS, SRD_WS + 3), "lo8")
    lab("L_a_done")
    stamps_flush(V_U)
    e("s_endpgm")
    lab("L_a_idle")
    if TRIG2: trig2()
    e("s_branch L_a_done")

gen()
open(OUT, "w").write("\n".join(lines) + "\n")
print("wrote", OUT, len(lines), "lines")
```

```python
import sys, struct

NAME = "sequential_preLN__sliding_block_cached__glu_gated_glu__decode"
def opt(name, default):
    for a in sys.argv:
        if a.startswith("--%s=" % name): return a.split("=", 1)[1]
    return default
STSET = opt("st", None)
STAMPS = "--stamps" in sys.argv or STSET is not None
STSET = None if STSET is None else set(int(x) for x in STSET.split(","))
NOLOCAL = "--nolocal" in sys.argv
NODRY = "--nodry" in sys.argv
NOTOUCH = "--notouch" in sys.argv
NOBELL = "--nobell" in sys.argv
BELLSLEEP = int(opt("bellsleep", 2))
NB = opt("nb", "")
PRIO = "--prio" in sys.argv
DSPLIT = "--dsplit" in sys.argv
XBAR = "--xbar" in sys.argv
AT = opt("at", "")
BELL5 = "5" not in NB
BELL1 = "--bell1" in sys.argv
TRIG2 = "--trig2" in sys.argv
NOCLEAN = "--clean-on" not in sys.argv
CLEAN = opt("clean", "ab")
NLD = 4
KFIRST = False
PFK = int(opt("pfk", 0))
H1V = int(opt("h1v", -1))
H1LATE = H1V >= 0
GE = int(opt("ge", 0))
GE1 = int(opt("ge1", GE // 2))
VP = int(opt("vp", 8))
BELLFIRST = "--belllast" not in sys.argv
T2V = int(opt("t2v", 12))
DEARLY = "--dearly" in sys.argv
NOCODEPF = "--nocodepf" in sys.argv
SLEEP = int(opt("sleep", 1))
QFIRST = int(opt("qfirst", 8))
AWIN = int(opt("awin", 8))
ATHR = int(opt("athr", 0))
TRIGV = int(opt("trigv", 8))
OUT = [a for a in sys.argv[1:] if not a.startswith("--")]
OUT = OUT[0] if OUT else "cdna_kernels/%s.s" % NAME

lines = []
def e(s): lines.append("    " + s)
def lab(s): lines.append(s + ":")
def cmt(s): lines.append("    ; " + s)
_uid = [0]
def uid(p):
    _uid[0] += 1
    return "L_%s_%d" % (p, _uid[0])
def f32(x): return "0x%08x" % struct.unpack("<I", struct.pack("<f", x))[0]

WS_TRIG = 0x4000
WS_H1 = 0x100000
WS_H2 = 0x200000
WS_H3B = 0x280000
WS_H4S = 0x290000
WS_H4U = 0x2B0000
WS_H2G = 0x2E0000
WS_H4P = 0x500000
WS_H3A = 0x300000
WS_H5 = 0x400000
WS_TS = 0x600000
WS_SIZE = 0x800000

L_W0 = 0
L_W1 = 65536
L_ACT = 131072
L_QB = 147456
L_PB = 149504
L_MX = 153600
LDS_BYTES = 154112

S_X, S_K, S_V, S_WQ, S_WO, S_BX, S_WG, S_WU = 4, 6, 8, 10, 12, 14, 16, 18
S_WD, S_OUT, S_DBG, S_WS = 20, 22, 24, 26
S_WAVE, S_XCD, S_SLOT, S_T = 28, 29, 30, 31
SRD_W, SRD_WS, SRD_X, SRD_O = 32, 36, 40, 44
S_TT = 48
S_HI8 = 50
S_SPIN = 52
S_A, S_B, S_C, S_D, S_E, S_F = 53, 54, 55, 56, 57, 58
S_DRY = 59
S_TM = 60
S_ML = 62
S_ST = 64
S_MG = 92
S_FULL = 94
S_XCC, S_XOFF = 97, 98

LOG2E = 1.4426950408889634

V_VA, V_VB = 4, 5
V_TR = 6
V_AE, V_AO = 7, 8
V_T0, V_T1, V_T2, V_T3 = 9, 10, 11, 12
V_PUB, V_RED, V_H, V_XP, V_AW, V_G, V_Z = 13, 14, 15, 16, 17, 18, 19
V_ACC = 20
V_P = 24
V_M, V_RS, V_SQ, V_SUM = 28, 29, 30, 31
V_L = 32
V_U = 64
V_WF = 96
V_AF = 128
V_KF = 192
V_X1 = 224
V_GO = 248

def srd(dst, ptr, nbytes):
    e("s_mov_b32 s%d, s%d" % (dst, ptr))
    e("s_and_b32 s%d, s%d, 0xffff" % (dst + 1, ptr + 1))
    e("s_mov_b32 s%d, 0x%x" % (dst + 2, nbytes))
    e("s_mov_b32 s%d, 0x20000" % (dst + 3))

def stamp(k):
    if not STAMPS or (STSET is not None and k not in STSET): return
    e("s_memrealtime s[%d:%d]" % (S_TM, S_TM + 1))
    e("s_waitcnt lgkmcnt(0)")
    e("s_mov_b32 s%d, s%d" % (S_ST + k, S_TM))

def stamps_flush(vtmp):
    if not STAMPS: return
    e("s_mov_b64 exec, -1")
    for k in range(16):
        e("v_writelane_b32 v%d, s%d, %d" % (vtmp, S_ST + k, k))
    e("s_lshl_b32 s%d, s2, 9" % S_A)
    e("s_lshl_b32 s%d, s%d, 6" % (S_B, S_WAVE))
    e("s_add_u32 s%d, s%d, s%d" % (S_A, S_A, S_B))
    e("s_add_u32 s%d, s%d, 0x%x" % (S_A, S_A, WS_TS))
    e("v_lshlrev_b32 v%d, 2, v1" % (vtmp + 1))
    e("s_mov_b64 exec, 0xffff")
    e("buffer_store_dword v%d, v%d, s[%d:%d], s%d offen" % (vtmp, vtmp + 1, SRD_WS, SRD_WS + 3, S_A))

def full(): e("s_mov_b64 exec, s[%d:%d]" % (S_FULL, S_FULL + 1))

def barrier(dry=False):
    if dry:
        l = uid("nb")
        e("s_cbranch_execz %s" % l)
        e("s_barrier")
        lab(l)
    else:
        e("s_barrier")

def set_dry():
    e("s_mov_b64 s[%d:%d], 0" % (S_FULL, S_FULL + 1))
    e("s_mov_b64 s[%d:%d], 0" % (S_ML, S_ML + 1))
    e("s_mov_b64 s[%d:%d], 0" % (S_MG, S_MG + 1))
    e("s_mov_b32 s%d, 1" % S_DRY)
    e("s_mov_b32 s3, 8")
    if PRIO: e("s_setprio 0")
    full()

def set_real():
    e("s_mov_b64 s[%d:%d], -1" % (S_FULL, S_FULL + 1))
    e("s_mov_b32 s%d, 0" % S_DRY)
    e("s_mov_b32 s3, 2")
    if PRIO: e("s_setprio 3")
    full()

def dpp_add(dst, src, ctrl, op="v_add_f32"):
    return "%s_dpp v%d, v%d, v%d %s row_mask:0xf bank_mask:0xf" % (op, dst, src, src, ctrl)

def xrow_ops(v, t, op="v_add_f32"):
    return ["v_mov_b32 v%d, v%d" % (t, v), "s_nop 1", "v_permlane16_swap_b32 v%d, v%d" % (v, t), "s_nop 0",
            "%s v%d, v%d, v%d" % (op, v, v, t),
            "v_mov_b32 v%d, v%d" % (t, v), "s_nop 1", "v_permlane32_swap_b32 v%d, v%d" % (v, t), "s_nop 0",
            "%s v%d, v%d, v%d" % (op, v, v, t)]

def wave_allreduce_ops(v, t, op="v_add_f32"):
    o = []
    for r in (8, 4, 2, 1):
        o += ["s_nop 1", dpp_add(v, v, "row_ror:%d" % r, op)]
    return o + xrow_ops(v, t, op)

def bf16_round_ops(v):
    return ["v_cvt_pk_bf16_f32 v%d, v%d, v%d" % (v, v, v), "v_lshlrev_b32 v%d, 16, v%d" % (v, v)]

def unpack_ops(lo, hi, src):
    return ["v_lshlrev_b32 v%d, 16, v%d" % (lo, src), "v_and_b32 v%d, 0xffff0000, v%d" % (hi, src)]
def unpack(lo, hi, src):
    for x in unpack_ops(lo, hi, src): e(x)
def emit(ops):
    for x in ops: e(x)

def poll_begin(bell=None):
    if bell and BELLFIRST: doorbell(*bell)
    top = uid("poll")
    lab(top)
    e("s_cbranch_execz %s_nl" % top)
    return top

def poll_mid(top):
    lab(top + "_nl")
    top2 = top + "x"
    e("s_cbranch_execz %s_nl" % top2)
    return top2

def poll_end(top, checks, last=None, bell=None):
    ok = top + "_ok"
    e("s_waitcnt vmcnt(0)")
    lab((last or top) + "_nl")
    for c in checks: e(c)
    e("s_cmp_eq_u64 exec, s[%d:%d]" % (S_FULL, S_FULL + 1))
    full()
    e("s_cbranch_scc1 %s" % ok)
    if SLEEP: e("s_sleep %d" % SLEEP)
    if bell and not BELLFIRST: doorbell(*bell)
    e("s_sub_u32 s%d, s%d, 1" % (S_SPIN, S_SPIN))
    e("s_cbranch_scc0 %s" % top)
    e("s_mov_b32 s%d, 0" % S_SPIN)
    lab(ok)

def doorbell(va, so, tagpos, off=0, atomic=False):
    if NOBELL: return
    top = uid("bell")
    e("s_cbranch_execz %s_ok" % top)
    lab(top)
    e("s_mov_b64 exec, 1")
    if atomic:
        e("v_mov_b32 v%d, 0" % V_T0)
        e("buffer_atomic_add v%d, v%d, s[%d:%d], s%d offen offset:%d sc0" % (V_T0, va, SRD_WS, SRD_WS + 3, so, off + 4 * tagpos))
    else:
        e("buffer_load_dword v%d, v%d, s[%d:%d], s%d offen offset:%d sc1" % (V_T0, va, SRD_WS, SRD_WS + 3, so, off + 4 * tagpos))
    e("s_waitcnt vmcnt(0)")
    e("v_cmpx_eq_u32 vcc, s%d, v%d" % (S_T, V_T0))
    e("s_cbranch_execnz %s_ok" % top)
    e("s_sleep %d" % BELLSLEEP)
    e("s_sub_u32 s%d, s%d, 1" % (S_SPIN, S_SPIN))
    e("s_cbranch_scc0 %s" % top)
    e("s_mov_b32 s%d, 0" % S_SPIN)
    lab(top + "_ok")
    full()

def chk64(v): return "v_cmpx_eq_u64 vcc, s[%d:%d], v[%d:%d]" % (S_TT, S_TT + 1, v, v + 1)
def chk32(v): return "v_cmpx_eq_u32 vcc, s%d, v%d" % (S_T, v)

def _mask(m, lanemask):
    if lanemask is None: e("s_mov_b64 exec, s[%d:%d]" % (m, m + 1))
    elif lanemask == "lo8": e("s_andn2_b64 exec, s[%d:%d], s[%d:%d]" % (m, m + 1, S_HI8, S_HI8 + 1))
    else: e("s_and_b64 exec, s[%d:%d], %s" % (m, m + 1, lanemask))

def store_g(instr, lanemask=None, flags=" sc1"):
    l = uid("ns")
    if lanemask is not None: _mask(S_FULL, lanemask)
    e("s_cbranch_execz %s" % l)
    e(instr + flags)
    lab(l)
    if lanemask is not None: full()

def store_l(instr, lanemask=None):
    for m, fl in ((S_ML, ""), (S_MG, " sc1")):
        l = uid("ns")
        _mask(m, lanemask)
        e("s_cbranch_execz %s" % l)
        e(instr + fl)
        lab(l)
    full()

def xcc_publish(vt, srd_):
    e("s_getreg_b32 s%d, hwreg(HW_REG_XCC_ID, 0, 4)" % S_XCC)
    e("s_add_u32 s%d, s%d, 1" % (S_XCC, S_XCC))
    e("s_lshl_b32 s%d, s%d, 5" % (S_XOFF, S_XCD))
    skip = uid("noxcc")
    e("s_cmp_lg_u32 s%d, 4" % S_WAVE)
    e("s_cbranch_scc1 %s" % skip)
    e("s_lshr_b32 s%d, s2, 3" % S_B)
    e("s_add_u32 s%d, s%d, s%d" % (S_A, S_XOFF, S_B))
    e("v_mov_b32 v%d, s%d" % (vt, S_XCC))
    e("s_mov_b64 exec, 1")
    e("buffer_store_byte v%d, v%d, s[%d:%d], s%d offen sc1" % (vt, V_Z, srd_, srd_ + 3, S_A))
    e("s_mov_b64 exec, -1")
    lab(skip)
    e("s_mul_i32 s%d, s%d, 0x01010101" % (S_XCC, S_XCC))

def xcc_load(vd, vaddr, srd_):
    e("buffer_load_dword v%d, v%d, s[%d:%d], s%d offen sc1" % (vd, vaddr, srd_, srd_ + 3, S_XOFF))

def xcc_checks(vd, vt):
    return ["v_subrev_u32 v%d, 0x01010101, v%d" % (vt, vd),
            "v_bfi_b32 v%d, v%d, 0, v%d" % (vt, vd, vt),
            "v_and_b32 v%d, 0x80808080, v%d" % (vt, vt),
            "v_cmpx_eq_u32 vcc, 0, v%d" % vt]

def xcc_decide(vd):
    e("v_cmp_ne_u32 vcc, s%d, v%d" % (S_XCC, vd))
    e("s_nop 1")
    if NOLOCAL: e("s_cmp_eq_u32 s%d, 0" % S_XCC)
    else: e("s_cmp_eq_u64 vcc, 0")
    e("s_cselect_b64 s[%d:%d], s[%d:%d], 0" % (S_ML, S_ML + 1, S_FULL, S_FULL + 1))
    e("s_cselect_b64 s[%d:%d], 0, s[%d:%d]" % (S_MG, S_MG + 1, S_FULL, S_FULL + 1))

def ln_stats_ops(vals, vsum, vt, vmean, vrs, vsq):
    o = ["v_add_f32 v%d, v%d, v%d" % (vsum, vals[0], vals[1]), "v_add_f32 v%d, v%d, v%d" % (vt, vals[2], vals[3])]
    for i in range(4, 16, 2):
        o += ["v_add_f32 v%d, v%d, v%d" % (vsum, vsum, vals[i]), "v_add_f32 v%d, v%d, v%d" % (vt, vt, vals[i + 1])]
    o += ["v_add_f32 v%d, v%d, v%d" % (vsum, vsum, vt)]
    o += wave_allreduce_ops(vsum, vt)
    o += ["v_mul_f32 v%d, %s, v%d" % (vmean, f32(1.0 / 1024), vsum)]
    o += ["v_sub_f32 v%d, v%d, v%d" % (vt, vals[0], vmean), "v_mul_f32 v%d, v%d, v%d" % (vsum, vt, vt)]
    for i in range(1, 16):
        o += ["v_sub_f32 v%d, v%d, v%d" % (vt, vals[i], vmean), "v_fmac_f32 v%d, v%d, v%d" % (vsum, vt, vt)]
    o += wave_allreduce_ops(vsum, vt)
    o += ["v_mul_f32 v%d, %s, v%d" % (vsq, f32(1.0 / 1024), vsum)]
    o += bf16_round_ops(vsq)
    o += ["v_add_f32 v%d, %s, v%d" % (vsq, f32(1e-5), vsq)]
    o += bf16_round_ops(vsq)
    o += ["v_sqrt_f32 v%d, v%d" % (vsq, vsq)]
    o += bf16_round_ops(vmean)
    o += bf16_round_ops(vsq)
    o += ["v_rcp_f32 v%d, v%d" % (vrs, vsq), "s_nop 0"]
    return o

def ln_stats_dot_ops(pairs, one, s1, s2, vt, vmean, vrs):
    o = ["v_dot2_f32_bf16 v%d, v%d, v%d, 0" % (s1, pairs[0], one), "v_dot2_f32_bf16 v%d, v%d, v%d, 0" % (s2, pairs[0], pairs[0])]
    for p in pairs[1:]:
        o += ["v_dot2_f32_bf16 v%d, v%d, v%d, v%d" % (s1, p, one, s1), "v_dot2_f32_bf16 v%d, v%d, v%d, v%d" % (s2, p, p, s2)]
    o += ["s_nop 2"]
    for r in (8, 4, 2, 1):
        o += [dpp_add(s1, s1, "row_ror:%d" % r), dpp_add(s2, s2, "row_ror:%d" % r), "s_nop 0"]
    o += ["s_nop 0", "v_permlane32_swap_b32 v%d, v%d" % (s1, s2), "s_nop 0", "v_add_f32 v%d, v%d, v%d" % (s1, s1, s2),
          "v_mov_b32 v%d, v%d" % (s2, s1), "s_nop 1", "v_permlane16_swap_b32 v%d, v%d" % (s1, s2), "s_nop 0",
          "v_add_f32 v%d, v%d, v%d" % (s1, s1, s2), "v_mov_b32 v%d, v%d" % (s2, s1), "s_nop 1",
          "v_permlane32_swap_b32 v%d, v%d" % (s1, s2), "s_nop 0",
          "v_mul_f32 v%d, %s, v%d" % (vmean, f32(1.0 / 1024), s1),
          "v_mul_f32 v%d, %s, v%d" % (s2, f32(1.0 / 1024), s2),
          "v_fma_f32 v%d, -v%d, v%d, v%d" % (s2, vmean, vmean, s2),
          "v_max_f32 v%d, 0, v%d" % (s2, s2)]
    o += bf16_round_ops(s2)
    o += ["v_add_f32 v%d, %s, v%d" % (s2, f32(1e-5), s2)]
    o += bf16_round_ops(s2)
    o += ["v_sqrt_f32 v%d, v%d" % (s2, s2)]
    o += bf16_round_ops(vmean)
    o += bf16_round_ops(s2)
    o += ["v_rcp_f32 v%d, v%d" % (vrs, s2), "s_nop 0"]
    return o

def ln_apply_pair(dst, a, b, vmean, vrs, vsq, t0, t1):
    e("v_sub_f32 v%d, v%d, v%d" % (a, a, vmean))
    e("v_sub_f32 v%d, v%d, v%d" % (b, b, vmean))
    e("v_cvt_pk_bf16_f32 v%d, v%d, v%d" % (t0, a, b))
    unpack(a, b, t0)
    e("v_mul_f32 v%d, v%d, v%d" % (t0, a, vrs))
    e("v_mul_f32 v%d, v%d, v%d" % (t1, b, vrs))
    e("v_fma_f32 v%d, -v%d, v%d, v%d" % (a, t0, vsq, a))
    e("v_fma_f32 v%d, -v%d, v%d, v%d" % (b, t1, vsq, b))
    e("v_fmac_f32 v%d, v%d, v%d" % (t0, a, vrs))
    e("v_fmac_f32 v%d, v%d, v%d" % (t1, b, vrs))
    e("v_cvt_pk_bf16_f32 v%d, v%d, v%d" % (dst, t0, t1))

def sigma_of(dst, u, t):
    e("v_and_b32 v%d, 3, v%d" % (dst, u))
    e("v_lshlrev_b32 v%d, 1, v%d" % (dst, dst))
    e("v_bfe_u32 v%d, v%d, 2, 1" % (t, u))
    e("v_or_b32 v%d, v%d, v%d" % (dst, dst, t))

def dma256_voff(va, vb, pitch, t):
    e("v_bfe_u32 v%d, v1, 1, 3" % t)
    e("v_xor_b32 v%d, v3, v%d" % (t, t))
    e("v_lshlrev_b32 v%d, 5, v%d" % (t, t))
    e("v_and_b32 v%d, 1, v1" % va)
    e("v_lshl_add_u32 v%d, v%d, 4, v%d" % (t, va, t))
    e("v_mul_u32_u24 v%d, %d, v3" % (va, pitch))
    e("v_add_u32 v%d, v%d, v%d" % (va, va, t))
    e("v_xor_b32 v%d, 0x80, v%d" % (vb, va))

SKIP = opt("skip", "").split(",")
def dma_run(srd_, voffs, s_base, rowbytes, ldsbase, per_wave, m0, m1, pre=None, name=None):
    if name in SKIP: return
    _dma_run(srd_, voffs, s_base, rowbytes, ldsbase, per_wave, m0, m1, pre)

def _dma_run(srd_, voffs, s_base, rowbytes, ldsbase, per_wave, m0, m1, pre=None):
    e("s_mul_i32 s%d, s%d, %d" % (S_A, S_WAVE, per_wave * rowbytes))
    e("s_add_u32 s%d, s%d, s%d" % (S_A, S_A, s_base))
    if m0: e("s_add_u32 s%d, s%d, %d" % (S_A, S_A, rowbytes * m0))
    e("s_mul_i32 s%d, s%d, %d" % (S_B, S_WAVE, per_wave * 1024))
    if ldsbase + m0: e("s_add_u32 s%d, s%d, %d" % (S_B, S_B, ldsbase + 1024 * m0))
    for m in range(m0, m1):
        e("s_mov_b32 m0, s%d" % S_B)
        if pre: pre(m)
        if m < m1 - 1: e("s_add_u32 s%d, s%d, 1024" % (S_B, S_B))
        else: e("s_nop 0")
        e("buffer_load_dwordx4 v%d, s[%d:%d], s%d offen nt lds" % (voffs(m), srd_, srd_ + 3, S_A))
        if m < m1 - 1: e("s_add_u32 s%d, s%d, %d" % (S_A, S_A, rowbytes))

def tr256_addr(va, t):
    e("v_bfe_u32 v%d, v1, 2, 2" % t)
    e("v_and_b32 v%d, 1, v3" % va)
    e("v_lshl_or_b32 v%d, v%d, 2, v%d" % (va, va, t))
    e("v_xor_b32 v%d, s%d, v%d" % (va, S_WAVE, va))
    e("v_lshlrev_b32 v%d, 5, v%d" % (va, va))
    e("v_lshl_add_u32 v%d, v3, 3, v%d" % (t, t))
    e("v_lshl_add_u32 v%d, v%d, 8, v%d" % (va, t, va))
    e("v_and_b32 v%d, 3, v1" % t)
    e("v_lshl_add_u32 v%d, v%d, 3, v%d" % (va, t, va))

def tr256_read(dst, va):
    for m in range(8):
        for h in range(2):
            e("ds_read_b64_tr_b16 v[%d:%d], v%d offset:%d" % (dst + 4 * m + 2 * h, dst + 4 * m + 2 * h + 1, va, m * 8192 + h * 1024))

def act_rd_addr(ve, vo, t, ldsbase):
    e("v_and_b32 v%d, 7, v1" % t)
    e("v_lshlrev_b32 v%d, 1, v3" % ve)
    e("v_xor_b32 v%d, v%d, v%d" % (ve, ve, t))
    e("v_lshlrev_b32 v%d, 4, v%d" % (ve, ve))
    e("v_lshl_add_u32 v%d, v3, 7, v%d" % (ve, ve))
    e("v_add_u32 v%d, %d, v%d" % (ve, ldsbase, ve))
    e("v_xor_b32 v%d, 16, v%d" % (vo, ve))

def mfma(d, a, b, c):
    cs = "0" if c is None else "v[%d:%d]" % (c, c + 3)
    return "v_mfma_f32_16x16x32_bf16 v[%d:%d], v[%d:%d], v[%d:%d], %s" % (d, d + 3, a, a + 3, b, b + 3, cs)

def gemv8(acc, wf, af, ve, vo):
    for m in range(8):
        e("ds_read_b128 v[%d:%d], v%d offset:%d" % (af + 4 * m, af + 4 * m + 3, vo if (m & 1) else ve, m * 512))
    for m in range(8):
        e("s_waitcnt lgkmcnt(%d)" % (7 - m))
        e(mfma(acc, wf + 4 * m, af + 4 * m, None if m == 0 else acc))

def touch(items):
    for i, (va, so, off) in enumerate(items):
        e("buffer_load_dword v%d, v%d, s[%d:%d], s%d offen offset:%d sc1" % (V_X1 + 20 + i, va, SRD_WS, SRD_WS + 3, so, off))

def clean(instr, lanemask=None):
    if NOCLEAN: return
    l = uid("nc")
    _mask(S_ML, lanemask)
    e("s_cbranch_execz %s" % l)
    e(instr + " sc1")
    lab(l)
    full()

def trig2():
    l = uid("nt2")
    e("s_cmp_lg_u32 s%d, 0" % S_WAVE)
    e("s_cbranch_scc1 %s" % l)
    e("s_lshl_b32 s%d, s%d, 3" % (S_A, S_SLOT))
    e("s_or_b32 s%d, s%d, s%d" % (S_A, S_A, S_XCD))
    e("s_lshl_b32 s%d, s%d, 7" % (S_A, S_A))
    e("s_add_u32 s%d, s%d, 0x%x" % (S_A, S_A, WS_TRIG))
    store_g("buffer_store_dword v%d, v%d, s[%d:%d], s%d offen offset:8" % (V_P + 3, V_Z, SRD_WS, SRD_WS + 3, S_A), "1")
    lab(l)

def make_tag(vE):
    e("v_readfirstlane_b32 s%d, v%d" % (S_F, vE))
    e("s_nop 3")
    e("s_mul_i32 s%d, s%d, 0x9e3779b1" % (S_T, S_F))
    e("s_add_u32 s%d, s%d, 0x85ebca6b" % (S_T, S_T))
    e("s_mov_b32 s%d, s%d" % (S_TT, S_T))
    e("s_mov_b32 s%d, s%d" % (S_TT + 1, S_T))
    e("s_add_u32 s%d, s%d, 1" % (S_F, S_F))
    e("v_mov_b32 v%d, s%d" % (V_P + 2, S_T))
    e("v_mov_b32 v%d, s%d" % (V_P + 3, S_T))

def publish_partial(s_off, local):
    e("s_nop 7")
    e("v_cndmask_b32 v%d, v%d, v%d, s[%d:%d]" % (V_P, V_ACC, V_ACC + 2, S_HI8, S_HI8 + 1))
    e("v_cndmask_b32 v%d, v%d, v%d, s[%d:%d]" % (V_P + 1, V_ACC + 1, V_ACC + 3, S_HI8, S_HI8 + 1))
    ins = "buffer_store_dwordx4 v[%d:%d], v%d, s[%d:%d], s%d offen" % (V_P, V_P + 3, V_PUB, SRD_WS, SRD_WS + 3, s_off)
    (store_l if local else store_g)(ins)

def reduce16(s0, bell=False):
    top = poll_begin((V_RED, s0, 3, 0, "5" in AT) if bell else None)
    for n in range(4):
        e("buffer_load_dwordx4 v[%d:%d], v%d, s[%d:%d], s%d offen sc1" % (V_L + 4 * n, V_L + 4 * n + 3, V_RED, SRD_WS, SRD_WS + 3, s0 + n))
    poll_end(top, [chk64(V_L + 4 * n + 2) for n in range(4)], bell=(V_RED, s0, 3) if bell else None)
    a, b = V_L, V_L + 1
    e("v_pk_add_f32 v[%d:%d], v[%d:%d], v[%d:%d]" % (a, b, a, b, V_L + 4, V_L + 5))
    e("v_pk_add_f32 v[%d:%d], v[%d:%d], v[%d:%d]" % (V_L + 8, V_L + 9, V_L + 8, V_L + 9, V_L + 12, V_L + 13))
    e("v_pk_add_f32 v[%d:%d], v[%d:%d], v[%d:%d]" % (a, b, a, b, V_L + 8, V_L + 9))
    e("s_nop 1")
    e("v_permlane32_swap_b32 v%d, v%d" % (a, b))
    e("s_nop 0")
    e("v_add_f32 v%d, v%d, v%d" % (a, a, b))
    e("v_mov_b32 v%d, v%d" % (b, a))
    e("s_nop 1")
    e("v_permlane16_swap_b32 v%d, v%d" % (a, b))
    e("s_nop 0")
    e("v_add_f32 v%d, v%d, v%d" % (a, a, b))
    e("v_mov_b32 v%d, v%d" % (b, a))
    e("s_nop 1")
    e("v_permlane32_swap_b32 v%d, v%d" % (a, b))
    e("s_nop 0")

def only_red(lbl):
    e("s_cmp_ge_u32 s%d, s3" % S_WAVE)
    e("s_cbranch_scc1 %s" % lbl)

def residual_add(dst, vres):
    e("v_cvt_pk_bf16_f32 v%d, v%d, v%d" % (V_T0, V_L, V_L + 1))
    unpack(V_U + 2, V_U + 3, vres)
    unpack(V_U, V_U + 1, V_T0)
    e("v_add_f32 v%d, v%d, v%d" % (V_U, V_U, V_U + 2))
    e("v_add_f32 v%d, v%d, v%d" % (V_U + 1, V_U + 1, V_U + 3))
    e("v_cvt_pk_bf16_f32 v%d, v%d, v%d" % (dst, V_U, V_U + 1))

def pos_write_addr(dst, ldsbase):
    e("v_bfe_u32 v%d, v1, 1, 3" % V_T2)
    sigma_of(V_T0, V_T2, V_T1)
    e("v_xor_b32 v%d, s%d, v%d" % (V_T0, S_WAVE, V_T0))
    e("v_lshlrev_b32 v%d, 4, v%d" % (V_T0, V_T0))
    e("v_lshrrev_b32 v%d, 1, v1" % V_T1)
    e("v_lshl_add_u32 v%d, v%d, 7, v%d" % (V_T0, V_T1, V_T0))
    e("v_and_b32 v%d, 1, v1" % V_T1)
    e("v_lshl_add_u32 v%d, v%d, 3, v%d" % (V_T0, V_T1, V_T0))
    e("v_add_u32 v%d, %d, v%d" % (dst, ldsbase, V_T0))

def gen():
    for l in """Fused decode layer: preLN + sliding-window GQA attention + residual + preLN + GLU MLP + residual.
Kernarg (96 bytes, pointers only): 0 A_x, 8 A_k_cache, 16 A_v_cache, 24 A_wq, 32 A_wo, 40 B_x (unused), 48 B_w_gate,
  56 B_w_up, 64 B_w_down, 72 d_out, 80 d_debug, 88 d_ws.
One persistent launch, 256 workgroups x 8 waves, one workgroup per CU.  role = (wg>>3)&1:
  B: LN1 + Q-proj tile -> O-proj tile -> h reduce -> down-proj tile -> final reduce
  A: attention for (batch, kv head, 256-key split) -> split combine -> gate/up tile (LN2 folded in)
Weights / K / V stream HBM -> LDS (LDS-DMA, swizzled images) and feed MFMA through transposing LDS reads.
Hand-offs between workgroups are 8/16-byte granules in d_ws that carry a per-launch tag (hash of an epoch word
  kept in d_ws).  Groups of workgroups that find (via the XCC id table in d_debug) that they share an XCD
  exchange through L2 with plain stores; otherwise every hand-off is written through.  All spins are bounded.
Waves 4-7 run upcoming latency-critical code once with EXEC=0 (memory instructions branched around) so that it
  is resident in the instruction cache while waves 0-3 issue the streams.
Generated by a script (work/gen.py).""".split("\n"):
        lines.append("; " + l)
    lines.append("; @launch grid=(256,1,1) block=(512,1,1) lds=%d" % LDS_BYTES)
    lines.append('.amdgcn_target "amdgcn-amd-amdhsa--gfx950"')
    lines.append(".text")
    lines.append(".globl %s_kernel" % NAME)
    lines.append(".p2align 8")
    lines.append(".type %s_kernel,@function" % NAME)
    lab("%s_kernel" % NAME)
    e("s_cmp_ge_u32 s2, 256")
    e("s_cbranch_scc1 L_end")
    if STAMPS:
        e("s_memrealtime s[%d:%d]" % (S_TM, S_TM + 1))
        for k in range(1, 16): e("s_mov_b32 s%d, 0" % (S_ST + k))
    e("s_load_dwordx16 s[4:19], s[0:1], 0")
    e("s_load_dwordx8 s[20:27], s[0:1], 64")
    e("v_lshrrev_b32 v4, 6, v0")
    e("v_and_b32 v1, 63, v0")
    e("v_readfirstlane_b32 s%d, v4" % S_WAVE)
    e("v_and_b32 v2, 15, v1")
    e("v_lshrrev_b32 v3, 4, v1")
    e("s_and_b32 s%d, s2, 7" % S_XCD)
    e("s_lshr_b32 s%d, s2, 4" % S_SLOT)
    e("v_mov_b32 v%d, 0" % V_Z)
    if PRIO: e("s_setprio 3")
    code_prefetch()
    e("s_bitcmp1_b32 s2, 3")
    e("s_cbranch_scc1 L_roleA")
    role_b()
    lab("L_roleA")
    role_a()
    lab("L_end")
    e("s_endpgm")
    lines.append('.section .rodata,"a"')
    lines.append(".p2align 6")
    lines.append(".amdhsa_kernel %s_kernel" % NAME)
    lines.append("  .amdhsa_next_free_vgpr 256")
    lines.append("  .amdhsa_next_free_sgpr 102")
    lines.append("  .amdhsa_accum_offset 256")
    lines.append("  .amdhsa_group_segment_fixed_size 0")
    lines.append("  .amdhsa_kernarg_size 96")
    lines.append("  .amdhsa_user_sgpr_count 2")
    lines.append("  .amdhsa_user_sgpr_kernarg_segment_ptr 1")
    lines.append("  .amdhsa_system_sgpr_workgroup_id_x 1")
    lines.append(".end_amdhsa_kernel")

def code_prefetch():
    if NOCODEPF: return
    l = uid("nopf")
    e("s_lshl_b32 s%d, s%d, 3" % (S_A, S_SLOT))
    e("s_add_u32 s%d, s%d, s%d" % (S_A, S_A, S_WAVE))
    e("s_cmp_lg_u32 s%d, 5" % S_A)
    e("s_cbranch_scc1 %s" % l)
    e("s_getpc_b64 s[%d:%d]" % (S_ML, S_ML + 1))
    lab(l + "_pc")
    e("s_sub_u32 s%d, s%d, %s_pc-%s_kernel" % (S_ML, S_ML, l, NAME))
    e("s_subb_u32 s%d, s%d, 0" % (S_ML + 1, S_ML + 1))
    e("v_lshlrev_b32 v%d, 7, v1" % V_T0)
    e("global_load_dword v%d, v%d, s[%d:%d]" % (V_U, V_T0, S_ML, S_ML + 1))
    e("v_add_u32 v%d, 0x2000, v%d" % (V_T0, V_T0))
    e("v_min_u32 v%d, L_end-%s_kernel, v%d" % (V_T0, NAME, V_T0))
    e("global_load_dword v%d, v%d, s[%d:%d]" % (V_U + 1, V_T0, S_ML, S_ML + 1))
    lab(l)

def common_consts():
    e("s_mov_b32 s%d, 0x40000" % S_SPIN)
    e("s_mov_b32 s%d, 0xff00ff00" % S_HI8)
    e("s_mov_b32 s%d, 0xff00ff00" % (S_HI8 + 1))
    e("s_mov_b64 s[%d:%d], -1" % (S_FULL, S_FULL + 1))
    e("s_mov_b32 s%d, 0" % S_DRY)

def role_b():
    cmt("================= role B =================")
    V_AWD, V_XA, V_HO, V_ZA, V_TR1 = V_X1 + 1, V_X1 + 2, V_X1 + 3, V_X1 + 4, V_X1 + 5
    V_VC, V_VD = V_X1 + 6, V_X1 + 7
    V_ZQ = V_X1 + 8
    ab = lambda m: V_VB if (m & 2) else V_VA
    dma256_voff(V_VA, V_VB, 8192, V_T0)
    e("v_lshlrev_b32 v%d, 4, v1" % V_G)
    e("s_and_b32 s%d, s%d, 3" % (S_D, S_SLOT))
    e("s_lshr_b32 s%d, s%d, 2" % (S_A, S_SLOT))
    e("s_lshl_b32 s%d, s%d, 1" % (S_B, S_XCD))
    e("s_add_u32 s%d, s%d, s%d" % (S_B, S_B, S_A))
    e("s_lshl_b32 s%d, s%d, 2" % (S_C, S_B))
    e("s_add_u32 s%d, s%d, 1" % (S_C, S_C))
    e("s_sub_u32 s%d, s%d, 2" % (S_B, S_B))
    e("s_lshl_b32 s%d, s%d, 2" % (S_E, S_XCD))
    e("s_add_u32 s%d, s%d, s%d" % (S_E, S_E, S_A))
    e("s_sub_u32 s%d, s%d, 8" % (S_E, S_E))
    e("s_cmp_ge_u32 s%d, 4" % S_XCD)
    e("s_cselect_b32 s%d, s%d, s%d" % (S_B, S_E, S_B))
    e("s_cselect_b32 s%d, 2, s%d" % (S_A, S_A))
    e("s_mul_i32 s%d, s%d, 43" % (S_E, S_B))
    e("s_lshr_b32 s%d, s%d, 7" % (S_E, S_E))
    e("s_mul_i32 s%d, s%d, 3" % (S_F, S_E))
    e("s_sub_u32 s%d, s%d, s%d" % (S_F, S_B, S_F))
    e("s_lshl_b32 s%d, s%d, 2" % (S_E, S_E))
    e("s_add_u32 s%d, s%d, s%d" % (S_E, S_E, S_F))
    e("s_min_u32 s%d, s%d, 1" % (S_F, S_F))
    e("s_add_u32 s%d, s%d, s%d" % (S_E, S_E, S_F))
    e("s_cmp_ge_u32 s%d, 2" % S_A)
    e("s_cselect_b32 s%d, s%d, s%d" % (S_C, S_E, S_C))
    e("s_lshl_b32 s%d, s%d, 21" % (S_E, S_D))
    e("s_lshl_b32 s%d, s%d, 8" % (S_A, S_C))
    e("s_add_u32 s%d, s%d, s%d" % (S_E, S_E, S_A))
    e("s_lshl_b32 s82, s%d, 11" % S_WAVE)
    e("s_lshl_b32 s83, s%d, 9" % S_D)
    e("s_add_u32 s83, s83, s82")
    e("s_waitcnt lgkmcnt(0)")
    if STAMPS: e("s_mov_b32 s%d, s%d" % (S_ST, S_TM))
    srd(SRD_X, S_X, 16384)
    srd(SRD_W, S_WQ, 8 << 20)
    e("buffer_load_dwordx4 v[%d:%d], v%d, s[%d:%d], s82 offen" % (V_L, V_L + 3, V_G, SRD_X, SRD_X + 3))
    e("buffer_load_dwordx4 v[%d:%d], v%d, s[%d:%d], s82 offen offset:1024" % (V_L + 4, V_L + 7, V_G, SRD_X, SRD_X + 3))
    e("buffer_load_dwordx4 v[%d:%d], v%d, s[%d:%d], s83 offen" % (V_L + 8, V_L + 11, V_G, SRD_X, SRD_X + 3))
    if XBAR: e("s_barrier")
    dma_run(SRD_W, ab, S_E, 4 * 8192, L_W0, 8, 0, QFIRST)
    srd(SRD_WS, S_WS, WS_SIZE)
    e("buffer_load_dword v%d, v%d, s[%d:%d], 0 offen sc1" % (V_L + 12, V_Z, SRD_WS, SRD_WS + 3))
    stamp(1)
    common_consts()
    e("s_lshr_b32 s%d, s%d, 1" % (S_A, S_SLOT))
    e("s_lshl_b32 s%d, s%d, 11" % (S_A, S_A))
    e("s_lshl_b32 s%d, s%d, 8" % (S_B, S_XCD))
    e("s_add_u32 s%d, s%d, s%d" % (S_A, S_A, S_B))
    e("s_and_b32 s%d, s%d, 1" % (S_B, S_SLOT))
    e("s_lshl_b32 s%d, s%d, 7" % (S_B, S_B))
    e("s_add_u32 s%d, s%d, s%d" % (S_A, S_A, S_B))
    e("s_and_b32 s%d, s%d, 1" % (S_B, S_WAVE))
    e("s_lshl_b32 s%d, s%d, 6" % (S_B, S_B))
    e("s_add_u32 s80, s%d, s%d" % (S_A, S_B))
    e("v_lshlrev_b32 v%d, 2, v2" % V_X1)
    e("v_lshlrev_b32 v%d, 3, v2" % V_HO)
    e("buffer_load_dword v%d, v%d, s[%d:%d], s80 offen" % (V_XP, V_X1, SRD_X, SRD_X + 3))
    e("s_waitcnt vmcnt(%d)" % (QFIRST + 2))
    for i in range(8):
        unpack(V_U + 2 * i, V_U + 2 * i + 1, V_L + i)
    emit(ln_stats_ops([V_U + i for i in range(16)], V_SUM, V_T0, V_M, V_RS, V_SQ))
    if QFIRST < 8:
        dma_run(SRD_W, ab, S_E, 4 * 8192, L_W0, 8, QFIRST, 8)
    for i in range(4):
        unpack(V_U + 2 * i, V_U + 2 * i + 1, V_L + 8 + i)
    for i in range(4):
        ln_apply_pair(V_L + 16 + i, V_U + 2 * i, V_U + 2 * i + 1, V_M, V_RS, V_SQ, V_T0, V_T1)
    e("v_and_b32 v%d, 7, v1" % V_T2)
    e("v_lshlrev_b32 v%d, 2, v%d" % (V_XA, V_T2))
    sigma_of(V_T0, V_T2, V_T1)
    e("v_xor_b32 v%d, s%d, v%d" % (V_T0, S_WAVE, V_T0))
    e("v_lshlrev_b32 v%d, 4, v%d" % (V_T0, V_T0))
    e("v_lshl_add_u32 v%d, v1, 7, v%d" % (V_T0, V_T0))
    e("v_add_u32 v%d, %d, v%d" % (V_T0, L_ACT, V_T0))
    e("s_mov_b64 exec, 0xffffffff")
    e("ds_write_b128 v%d, v[%d:%d]" % (V_T0, V_L + 16, V_L + 19))
    e("s_mov_b64 exec, -1")
    srd(SRD_X, S_DBG, 256)
    xcc_publish(V_T0, SRD_X)
    if PFK:
        srd(SRD_O, S_K, 32 << 20)
        e("s_lshl_b32 s84, s%d, 22" % S_XCD)
        e("s_lshl_b32 s%d, s%d, 18" % (S_A, S_SLOT))
        e("s_and_b32 s%d, s%d, 0x300000" % (S_A, S_A))
        e("s_add_u32 s84, s84, s%d" % S_A)
        e("s_and_b32 s%d, s%d, 3" % (S_A, S_SLOT))
        e("s_lshl_b32 s%d, s%d, 16" % (S_A, S_A))
        e("s_add_u32 s84, s84, s%d" % S_A)
        e("s_add_u32 s84, s84, 0x%x" % (3072 * 256 + 65536 - 8192 * PFK))
        dma_run(SRD_O, lambda m: V_G, 84, 1024, L_W1, PFK, 0, PFK)
    tr256_addr(V_TR, V_T0)
    act_rd_addr(V_AE, V_AO, V_T0, L_ACT)
    e("v_and_b32 v%d, 7, v1" % V_T0)
    e("v_lshlrev_b32 v%d, 10, v%d" % (V_PUB, V_T0))
    e("v_lshrrev_b32 v%d, 3, v2" % V_T0)
    e("v_lshl_add_u32 v%d, v3, 1, v%d" % (V_T0, V_T0))
    e("v_lshl_add_u32 v%d, v%d, 4, v%d" % (V_PUB, V_T0, V_PUB))
    e("s_lshl_b32 s%d, s%d, 7" % (S_A, S_WAVE))
    e("v_add_u32 v%d, s%d, v%d" % (V_PUB, S_A, V_PUB))
    e("s_lshl_b32 s%d, s%d, 2" % (S_A, S_C))
    e("s_add_u32 s%d, s%d, s%d" % (S_A, S_A, S_D))
    e("s_lshl_b32 s%d, s%d, 13" % (S_A, S_A))
    e("s_add_u32 s81, s%d, 0x%x" % (S_A, WS_H1))
    stamp(2)
    if NODRY: e("s_branch L_q_real")
    e("s_waitcnt lgkmcnt(0)")
    set_dry()
    lab("L_q_top")
    tr256_read(V_WF, V_TR)
    gemv8(V_ACC, V_WF, V_AF, V_AE, V_AO)
    publish_partial(81, False)
    e("s_cmp_eq_u32 s%d, 0" % S_DRY)
    e("s_cbranch_scc1 L_q_done")
    lab("L_q_real")
    set_real()
    e("s_waitcnt vmcnt(%d)" % (8 - QFIRST + 1 + PFK))
    make_tag(V_L + 12)
    e("s_waitcnt vmcnt(%d) lgkmcnt(0)" % PFK)
    e("s_barrier")
    stamp(3)
    e("s_branch L_q_top")
    lab("L_q_done")
    stamp(4)
    dma256_voff(V_VA, V_VB, 2048, V_T0)
    e("v_add_u32 v%d, %d, v%d" % (V_TR1, L_W1, V_TR))
    e("s_and_b32 s%d, s%d, 1" % (S_A, S_WAVE))
    e("s_lshl_b32 s%d, s%d, 7" % (S_A, S_A))
    e("v_xor_b32 v%d, s%d, v%d" % (V_X1 + 14, S_A, V_VA))
    e("v_xor_b32 v%d, 0x80, v%d" % (V_X1 + 15, V_X1 + 14))
    pos_write_addr(V_AW, L_ACT)
    e("v_lshlrev_b32 v%d, 13, v3" % V_RED)
    e("v_lshl_add_u32 v%d, v2, 4, v%d" % (V_RED, V_RED))
    e("s_and_b32 s%d, s%d, 1" % (S_A, S_WAVE))
    e("s_lshl_b32 s%d, s%d, 8" % (S_A, S_A))
    e("v_add_u32 v%d, s%d, v%d" % (V_RED, S_A, V_RED))
    e("s_lshl_b32 s%d, s%d, 3" % (S_A, S_SLOT))
    e("s_or_b32 s%d, s%d, s%d" % (S_A, S_A, S_XCD))
    e("s_lshl_b32 s%d, s%d, 7" % (S_A, S_A))
    e("s_add_u32 s83, s%d, 0x%x" % (S_A, WS_TRIG))
    e("s_lshl_b32 s%d, s%d, 3" % (S_A, S_SLOT))
    e("s_add_u32 s%d, s%d, s%d" % (S_A, S_A, S_WAVE))
    e("s_lshl_b32 s%d, s%d, 10" % (S_A, S_A))
    e("s_add_u32 s82, s%d, 0x%x" % (S_A, WS_H2G))
    e("s_lshl_b32 s%d, s%d, 4" % (S_A, S_XCD))
    e("s_add_u32 s%d, s%d, s%d" % (S_A, S_A, S_SLOT))
    e("s_lshl_b32 s%d, s%d, 13" % (S_A, S_A))
    e("s_add_u32 s84, s%d, 0x%x" % (S_A, WS_H3A))
    e("s_lshl_b32 s%d, s%d, 17" % (S_A, S_XCD))
    e("s_lshl_b32 s%d, s%d, 9" % (S_B, S_SLOT))
    e("s_add_u32 s%d, s%d, s%d" % (S_A, S_A, S_B))
    e("s_add_u32 s85, s%d, 0x%x" % (S_A, WS_H3A))
    e("s_add_u32 s86, s%d, 0x%x" % (S_A, WS_H5))
    for n in range(4):
        e("s_add_u32 s%d, s85, %d" % (4 + n, 32768 * n))
        e("s_add_u32 s%d, s86, %d" % (8 + n, 32768 * n))
    e("s_lshl_b32 s%d, s80, 1" % S_A)
    e("s_add_u32 s90, s%d, 0x%x" % (S_A, WS_H3B))
    e("s_lshr_b32 s%d, s%d, 3" % (S_C, S_SLOT))
    e("s_lshl_b32 s%d, s%d, 1" % (S_A, S_XCD))
    e("s_add_u32 s%d, s%d, s%d" % (S_C, S_C, S_A))
    e("s_and_b32 s%d, s%d, 7" % (S_D, S_SLOT))
    e("s_mul_i32 s91, s%d, %d" % (S_C, 224 * 2048))
    e("s_lshl_b32 s%d, s%d, 8" % (S_A, S_D))
    e("s_add_u32 s91, s91, s%d" % S_A)
    e("s_min_u32 s%d, s%d, 6" % (S_A, S_WAVE))
    e("s_lshl_b32 s%d, s%d, 10" % (S_B, S_A))
    e("s_mul_i32 s%d, s%d, 7168" % (S_E, S_C))
    e("s_add_u32 s%d, s%d, s%d" % (S_E, S_E, S_B))
    e("s_add_u32 s87, s%d, 0x%x" % (S_E, WS_H4S))
    e("s_add_u32 s88, s%d, 0x%x" % (S_E, WS_H4U))
    e("s_lshl_b32 s%d, s%d, 2" % (S_B, S_A))
    e("v_add_u32 v%d, s%d, v3" % (V_T3, S_B))
    e("v_and_b32 v%d, 7, v%d" % (V_T2, V_T3))
    sigma_of(V_T0, V_T2, V_T1)
    e("v_and_b32 v%d, 7, v1" % V_T1)
    e("v_xor_b32 v%d, v%d, v%d" % (V_T0, V_T0, V_T1))
    e("v_lshlrev_b32 v%d, 4, v%d" % (V_T0, V_T0))
    e("v_lshl_add_u32 v%d, v%d, 7, v%d" % (V_T0, V_T3, V_T0))
    e("v_bfe_u32 v%d, v1, 3, 1" % V_T1)
    e("v_lshl_add_u32 v%d, v%d, 3, v%d" % (V_T0, V_T1, V_T0))
    e("v_add_u32 v%d, %d, v%d" % (V_AWD, L_ACT, V_T0))
    e("s_lshl_b32 s%d, s%d, 4" % (S_A, S_D))
    e("s_add_u32 s%d, s%d, s%d" % (S_A, S_A, S_C))
    e("s_lshl_b32 s%d, s%d, 13" % (S_A, S_A))
    e("s_add_u32 s89, s%d, 0x%x" % (S_A, WS_H5))
    e("v_and_b32 v%d, 31, v1" % V_T0)
    e("v_lshlrev_b32 v%d, 4, v%d" % (V_T0, V_T0))
    e("v_add_u32 v%d, %d, v%d" % (V_ZA, L_ACT + 28 * 128, V_T0))
    for k in range(4): e("v_mov_b32 v%d, 0" % (V_ZQ + k))
    srd(SRD_O, S_OUT, 16384)
    e("s_lshr_b32 s%d, s%d, 7" % (S_E, S_WG))
    e("s_mul_i32 s%d, s%d, 7" % (S_A, S_XCD))
    e("s_add_u32 s%d, s%d, s%d" % (S_E, S_E, S_A))
    e("s_sub_u32 s%d, 3, s%d" % (S_E, S_E))
    e("s_and_b32 s%d, s%d, 7" % (S_E, S_E))
    e("s_lshr_b32 s%d, s%d, 3" % (S_A, S_SLOT))
    e("s_mul_i32 s%d, s%d, 56" % (S_A, S_A))
    e("s_min_u32 s%d, s%d, 6" % (S_B, S_WAVE))
    e("s_lshl_b32 s%d, s%d, 3" % (S_B, S_B))
    e("s_add_u32 s%d, s%d, s%d" % (S_A, S_A, S_B))
    e("s_lshr_b32 s%d, s%d, 4" % (S_B, S_A))
    e("s_cmp_eq_u32 s%d, s%d" % (S_B, S_E))
    e("s_cselect_b32 s96, 1, 0")
    e("s_and_b32 s%d, s%d, 8" % (S_A, S_A))
    e("s_lshl_b32 s%d, s%d, 8" % (S_A, S_A))
    e("s_lshl_b32 s%d, s%d, 12" % (S_B, S_XCD))
    e("s_add_u32 s%d, s%d, s%d" % (S_A, S_A, S_B))
    e("s_add_u32 s81, s%d, 0x%x" % (S_A, WS_H4P))
    e("v_lshlrev_b32 v%d, 5, v1" % V_VC)
    e("v_add_u32 v%d, 0x8000, v%d" % (V_VD, V_VC))
    e("v_add_u32 v%d, 0x10000, v%d" % (V_X1 + 12, V_VC))
    e("v_add_u32 v%d, 0x18000, v%d" % (V_X1 + 13, V_VC))
    e("s_lshl_b32 s99, s%d, 19" % S_SLOT)
    e("s_lshl_b32 s%d, s%d, 8" % (S_A, S_XCD))
    e("s_add_u32 s99, s99, s%d" % S_A)
    e("s_barrier")
    e("s_cmp_ge_u32 s%d, 4" % S_WAVE)
    e("s_cbranch_scc1 L_b_warm")
    srd(SRD_W, S_WO, 8 << 20)
    top = poll_begin()
    e("buffer_load_dwordx2 v[%d:%d], v%d, s[%d:%d], s83 offen sc1" % (V_L, V_L + 1, V_Z, SRD_WS, SRD_WS + 3))
    poll_end(top, [chk64(V_L)])
    dma_run(SRD_W, ab, 99, 4 * 2048, L_W1, 16, 0, 16, name="wo")
    if DEARLY:
        srd(SRD_W, S_WD, 3584 * 2048)
        dma_run(SRD_W, lambda m: V_X1 + 15 if (m & 2) else V_X1 + 14, 91, 4 * 2048, L_W0, 14, 0, 14)
    if DSPLIT:
        srd(SRD_W, S_WD, 3584 * 2048)
        dma_run(SRD_W, ab, 91, 4 * 2048, L_W0, 8, 0, 8)
    stamp(5)
    e("s_waitcnt vmcnt(%d)" % (14 if DEARLY else 8 if DSPLIT else 0))
    e("s_branch L_b_real")
    lab("L_b_warm")
    if not NOTOUCH:
        e("s_cmp_lg_u32 s%d, 4" % S_WAVE)
        e("s_cbranch_scc1 L_b_notouch")
        e("v_lshlrev_b32 v%d, 7, v1" % V_T0)
        e("v_lshrrev_b32 v%d, 2, v1" % V_T1)
        e("v_lshlrev_b32 v%d, 13, v%d" % (V_T1, V_T1))
        e("v_and_b32 v%d, 3, v1" % V_T2)
        e("v_lshl_add_u32 v%d, v%d, 7, v%d" % (V_T1, V_T2, V_T1))
        e("s_sub_u32 s%d, s87, 4096" % S_A)
        e("s_sub_u32 s%d, s88, 4096" % S_B)
        e("s_lshl_b32 s%d, s%d, 12" % (S_C, S_XCD))
        e("s_add_u32 s%d, s%d, 0x%x" % (S_C, S_C, WS_H4P))
        e("v_and_b32 v%d, 31, v1" % V_T2)
        e("v_lshlrev_b32 v%d, 7, v%d" % (V_T2, V_T2))
        e("v_lshrrev_b32 v%d, 5, v1" % V_T3)
        e("v_lshl_add_u32 v%d, v%d, 15, v%d" % (V_T2, V_T3, V_T2))
        e("v_add_u32 v%d, 0x10000, v%d" % (V_T3, V_T2))
        touch([(V_T1, 85, 0), (V_T0, S_A, 0), (V_T0, S_B, 0), (V_T2, S_C, 0), (V_T3, S_C, 0), (V_Z, 82, 0), (V_Z, 86, 0), (V_Z, 89, 0), (V_Z, 90, 0)])
        lab("L_b_notouch")
    if NODRY: e("s_branch L_b_real")
    set_dry()
    e("s_branch L_b_tail")
    lab("L_b_real")
    set_real()
    e("s_barrier")
    lab("L_b_tail")
    tr256_read(V_WF, V_TR1)
    top = poll_begin()
    xcc_load(V_L, V_XA, SRD_X)
    poll_end(top, xcc_checks(V_L, V_T0))
    xcc_decide(V_L)
    stamp(6)
    top = poll_begin((V_G, 82, 3, 0, "2" in AT))
    e("buffer_load_dwordx4 v[%d:%d], v%d, s[%d:%d], s82 offen sc1" % (V_L, V_L + 3, V_G, SRD_WS, SRD_WS + 3))
    poll_end(top, [chk64(V_L + 2)], bell=(V_G, 82, 3))
    e("ds_write_b64 v%d, v[%d:%d]" % (V_AW, V_L, V_L + 1))
    stamp(7)
    e("s_waitcnt lgkmcnt(0)")
    barrier(True)
    gemv8(V_ACC, V_WF, V_AF, V_AE, V_AO)
    publish_partial(84, True)
    stamp(8)
    only_red("L_b_nor3")
    reduce16(4)
    stamp(9)
    residual_add(V_U + 4, V_XP)
    e("v_mov_b32 v%d, s%d" % (V_U + 6, S_T))
    e("v_mov_b32 v%d, s%d" % (V_U + 7, S_T))
    e("v_mov_b32_dpp v%d, v%d quad_perm:[1,1,3,3] row_mask:0xf bank_mask:0xf" % (V_U + 5, V_U + 4))
    store_g("buffer_store_dwordx4 v[%d:%d], v%d, s[%d:%d], s90 offen" % (V_U + 4, V_U + 7, V_HO, SRD_WS, SRD_WS + 3), "0x5555")
    e("v_mov_b32 v%d, v%d" % (V_H, V_U + 4))
    stamp(10)
    lab("L_b_nor3")
    if DEARLY:
        barrier(True)
    else:
        e("s_cbranch_execz L_b_nod")
        e("s_barrier")
        srd(SRD_W, S_WD, 3584 * 2048)
        if TRIG2: doorbell(V_Z, 83, 2)
        e("s_cmp_ge_u32 s%d, %d" % (S_WAVE, 6 if DSPLIT else 7))
        e("s_cbranch_scc1 L_b_nod7")
        if DSPLIT: dma_run(SRD_W, ab, 91, 4 * 2048, L_W0, 4, 32, 36, name="d")
        else: dma_run(SRD_W, ab, 91, 4 * 2048, L_W0, 8, 0, 8, name="d")
        lab("L_b_nod7")
        e("s_waitcnt vmcnt(0)")
        e("s_barrier")
        lab("L_b_nod")
    e("ds_write_b128 v%d, v[%d:%d]" % (V_ZA, V_ZQ, V_ZQ + 3))
    tr256_read(V_WF, V_TR)
    stamp(11)
    e("s_cmp_eq_u32 s96, 0")
    e("s_cbranch_scc0 L_b_split")
    lab("L_b_plain")
    top = poll_begin((V_G, 88, 3) if "4" not in NB else None)
    e("buffer_load_dwordx4 v[%d:%d], v%d, s[%d:%d], s87 offen sc1" % (V_L, V_L + 3, V_G, SRD_WS, SRD_WS + 3))
    e("buffer_load_dwordx4 v[%d:%d], v%d, s[%d:%d], s88 offen sc1" % (V_L + 4, V_L + 7, V_G, SRD_WS, SRD_WS + 3))
    poll_end(top, [chk32(V_L + 1), chk32(V_L + 3), chk32(V_L + 5), chk32(V_L + 7)], bell=(V_G, 88, 3))
    unpack(V_U, V_U + 1, V_L); unpack(V_U + 4, V_U + 5, V_L + 4)
    unpack(V_U + 2, V_U + 3, V_L + 2); unpack(V_U + 6, V_U + 7, V_L + 6)
    e("s_cbranch_execnz L_b_join")
    lab("L_b_split")
    top = poll_begin((V_X1 + 12, 81, 3) if "4" not in NB else None)
    for i, va in enumerate((V_VC, V_VD, V_X1 + 12, V_X1 + 13)):
        if i == 2: top2 = poll_mid(top)
        for h in range(2):
            r = V_L + 8 * i + 4 * h
            e("buffer_load_dwordx4 v[%d:%d], v%d, s[%d:%d], s81 offen offset:%d sc1" % (r, r + 3, va, SRD_WS, SRD_WS + 3, 16 * h))
    poll_end(top, [chk64(V_L + 4 * i + 2) for i in range(8)], last=top2, bell=(V_X1 + 12, 81, 3))
    for mat in range(2):
        for h in range(2):
            for k in range(2):
                e("v_add_f32 v%d, v%d, v%d" % (V_U + 4 * mat + 2 * h + k, V_L + 16 * mat + 4 * h + k, V_L + 16 * mat + 8 + 4 * h + k))
    for i in range(4):
        e("v_cvt_pk_bf16_f32 v%d, v%d, v%d" % (V_L + i, V_U + 2 * i, V_U + 2 * i + 1))
    for i in range(4):
        unpack(V_U + 2 * i, V_U + 2 * i + 1, V_L + i)
    for k in range(4): e("v_mul_f32 v%d, %s, v%d" % (V_U + k, f32(-LOG2E), V_U + k))
    for k in range(4): e("v_exp_f32 v%d, v%d" % (V_U + k, V_U + k))
    for k in range(4): e("v_add_f32 v%d, 1.0, v%d" % (V_U + k, V_U + k))
    for k in range(4): e("v_rcp_f32 v%d, v%d" % (V_U + k, V_U + k))
    e("s_nop 0")
    for i in range(2):
        e("v_cvt_pk_bf16_f32 v%d, v%d, v%d" % (V_L + i, V_U + 2 * i, V_U + 2 * i + 1))
    for i in range(2):
        unpack(V_U + 2 * i, V_U + 2 * i + 1, V_L + i)
    lab("L_b_join")
    stamp(12)
    for k in range(4): e("v_mul_f32 v%d, v%d, v%d" % (V_U + k, V_U + k, V_U + 4 + k))
    e("v_cvt_pk_bf16_f32 v%d, v%d, v%d" % (V_U + 16, V_U, V_U + 1))
    e("v_cvt_pk_bf16_f32 v%d, v%d, v%d" % (V_U + 17, V_U + 2, V_U + 3))
    e("ds_write_b64 v%d, v[%d:%d]" % (V_AWD, V_U + 16, V_U + 17))
    e("s_waitcnt lgkmcnt(0)")
    barrier(True)
    gemv8(V_ACC, V_WF, V_AF, V_AE, V_AO)
    publish_partial(89, False)
    stamp(13)
    noep = uid("noep")
    e("s_add_u32 s%d, s2, s%d" % (S_A, S_WAVE))
    e("s_cmp_lg_u32 s%d, 0" % S_A)
    e("s_cbranch_scc1 %s" % noep)
    e("s_mov_b64 exec, 1")
    e("v_mov_b32 v%d, s%d" % (V_T0, S_F))
    e("buffer_store_dword v%d, v%d, s[%d:%d], 0 offen sc1" % (V_T0, V_Z, SRD_WS, SRD_WS + 3))
    e("s_mov_b64 exec, -1")
    lab(noep)
    only_red("L_b_end2")
    reduce16(8, BELL5)
    stamp(14)
    residual_add(V_U + 4, V_H)
    store_g("buffer_store_dword v%d, v%d, s[%d:%d], s80 offen" % (V_U + 4, V_X1, SRD_O, SRD_O + 3), "0xffff", flags="")
    e("s_cmp_lg_u32 s%d, 0" % S_DRY)
    e("s_cbranch_scc1 L_b_real")
    stamp(15)
    lab("L_b_end")
    stamps_flush(V_U)
    e("s_endpgm")
    lab("L_b_end2")
    if "b" in CLEAN: clean("buffer_store_dwordx4 v[%d:%d], v%d, s[%d:%d], s84 offen" % (V_P, V_P + 3, V_PUB, SRD_WS, SRD_WS + 3))
    e("s_branch L_b_end")

def role_a():
    cmt("================= role A =================")
    KO = V_X1
    KA = V_X1 + 4
    QE, QO, QW, PW0, PW1, SW, SR, XA, EP = [V_X1 + 8 + i for i in range(9)]
    ab = lambda m: V_VB if (m & 2) else V_VA
    dma256_voff(V_VA, V_VB, 256, V_T0)
    e("s_lshl_b32 s%d, s%d, 22" % (S_E, S_XCD))
    e("s_lshr_b32 s%d, s%d, 2" % (S_C, S_SLOT))
    e("s_lshl_b32 s%d, s%d, 20" % (S_A, S_C))
    e("s_add_u32 s%d, s%d, s%d" % (S_E, S_E, S_A))
    e("s_and_b32 s%d, s%d, 3" % (S_D, S_SLOT))
    e("s_lshl_b32 s%d, s%d, 16" % (S_A, S_D))
    e("s_add_u32 s%d, s%d, s%d" % (S_E, S_E, S_A))
    e("s_add_u32 s%d, s%d, 0x%x" % (S_E, S_E, 3072 * 256))
    e("v_xor_b32 v%d, v2, v3" % V_T0)
    e("v_lshlrev_b32 v%d, 4, v%d" % (V_T0, V_T0))
    e("v_lshl_add_u32 v%d, v3, 8, v%d" % (KO, V_T0))
    for i in range(1, 4): e("v_xor_b32 v%d, %d, v%d" % (KO + i, 64 * i, KO))
    e("s_waitcnt lgkmcnt(0)")
    if STAMPS: e("s_mov_b32 s%d, s%d" % (S_ST, S_TM))
    srd(SRD_WS, S_WS, WS_SIZE)
    e("buffer_load_dword v%d, v%d, s[%d:%d], 0 offen sc1" % (EP, V_Z, SRD_WS, SRD_WS + 3))
    e("s_cmp_ge_u32 s%d, %d" % (S_WAVE, NLD))
    e("s_cbranch_scc1 L_a_noissue0")
    srd(SRD_X, S_K, 32 << 20)
    def thr(c):
        if AWIN <= c < ATHR: e("s_waitcnt vmcnt(%d)" % (AWIN - 1))
    if KFIRST:
        dma_run(SRD_X, lambda m: KO + (m & 3), S_E, 1024, L_W1, 16, 0, 16, pre=thr, name="k")
    else:
        srd(SRD_W, S_V, 32 << 20)
        dma_run(SRD_W, ab, S_E, 1024, L_W0, 16, 0, 16, pre=thr, name="v")
        dma_run(SRD_X, lambda m: KO + (m & 3), S_E, 1024, L_W1, 8, 0, 8, pre=lambda m: thr(16 + m), name="k")
        dma_run(SRD_X, lambda m: KO + (m & 3), S_E, 1024, L_W1, 8, 32, 40, name="k")
    lab("L_a_noissue0")
    if KFIRST: srd(SRD_W, S_V, 32 << 20)
    srd(SRD_O, S_DBG, 256)
    xcc_publish(V_T0, SRD_O)
    stamp(1)
    common_consts()
    e("v_lshlrev_b32 v%d, 4, v1" % V_G)
    tr256_addr(V_TR, V_T0)
    e("v_xor_b32 v%d, v2, v3" % V_T0)
    e("v_lshlrev_b32 v%d, 4, v%d" % (V_T0, V_T0))
    e("v_lshl_add_u32 v%d, v2, 8, v%d" % (V_T0, V_T0))
    e("s_lshl_b32 s%d, s%d, 13" % (S_A, S_WAVE))
    e("s_add_u32 s%d, s%d, %d" % (S_A, S_A, L_W1))
    e("v_add_u32 v%d, s%d, v%d" % (KA, S_A, V_T0))
    for i in range(1, 4): e("v_xor_b32 v%d, %d, v%d" % (KA + i, 64 * i, KA))
    act_rd_addr(QE, QO, V_T0, L_QB)
    act_rd_addr(V_AE, V_AO, V_T0, L_PB)
    e("v_bfe_u32 v%d, v1, 2, 3" % V_T2)
    sigma_of(V_T0, V_T2, V_T1)
    e("v_xor_b32 v%d, s%d, v%d" % (V_T0, S_WAVE, V_T0))
    e("v_lshlrev_b32 v%d, 4, v%d" % (V_T0, V_T0))
    e("v_lshrrev_b32 v%d, 2, v1" % V_T1)
    e("v_lshl_add_u32 v%d, v%d, 7, v%d" % (V_T0, V_T1, V_T0))
    e("v_and_b32 v%d, 3, v1" % V_T1)
    e("v_lshl_add_u32 v%d, v%d, 2, v%d" % (V_T0, V_T1, V_T0))
    e("v_add_u32 v%d, %d, v%d" % (QW, L_QB, V_T0))
    e("v_and_b32 v%d, 2, v3" % V_T0)
    e("s_and_b32 s%d, s%d, 1" % (S_A, S_WAVE))
    e("v_or_b32 v%d, s%d, v%d" % (V_T0, S_A, V_T0))
    e("v_and_b32 v%d, 7, v1" % V_T1)
    e("v_xor_b32 v%d, v%d, v%d" % (V_T0, V_T0, V_T1))
    e("v_lshlrev_b32 v%d, 4, v%d" % (V_T0, V_T0))
    e("v_lshrrev_b32 v%d, 1, v3" % V_T1)
    e("v_lshl_add_u32 v%d, v%d, 7, v%d" % (V_T0, V_T1, V_T0))
    e("v_and_b32 v%d, 1, v3" % V_T1)
    e("v_lshl_add_u32 v%d, v%d, 3, v%d" % (V_T0, V_T1, V_T0))
    e("s_lshl_b32 s%d, s%d, 9" % (S_A, S_WAVE))
    e("s_add_u32 s%d, s%d, %d" % (S_A, S_A, L_PB))
    e("v_add_u32 v%d, s%d, v%d" % (PW0, S_A, V_T0))
    e("v_xor_b32 v%d, 64, v%d" % (PW1, PW0))
    e("v_add_u32 v%d, 0x100, v%d" % (PW1, PW1))
    e("v_cndmask_b32 v%d, v%d, v%d, s[%d:%d]" % (PW0, PW0, PW1, S_HI8, S_HI8 + 1))
    e("v_and_b32 v%d, 7, v1" % V_T0)
    e("v_lshlrev_b32 v%d, 2, v%d" % (XA, V_T0))
    e("v_lshlrev_b32 v%d, 6, v%d" % (V_T0, V_T0))
    e("v_add_u32 v%d, %d, v%d" % (SR, L_MX, V_T0))
    e("s_lshl_b32 s%d, s%d, 2" % (S_A, S_WAVE))
    e("v_add_u32 v%d, s%d, v%d" % (SW, S_A, SR))
    e("s_lshl_b32 s%d, s%d, 3" % (S_A, S_C))
    e("s_add_u32 s%d, s%d, s%d" % (S_A, S_A, S_WAVE))
    e("s_lshl_b32 s%d, s%d, 15" % (S_A, S_A))
    e("s_lshl_b32 s%d, s%d, 10" % (S_B, S_XCD))
    e("s_add_u32 s%d, s%d, s%d" % (S_A, S_A, S_B))
    e("s_add_u32 s80, s%d, 0x%x" % (S_A, WS_H1))
    for i in range(1, 4): e("s_add_u32 s%d, s80, %d" % (80 + i, 8192 * i))
    e("s_lshl_b32 s%d, s%d, 3" % (S_A, S_C))
    e("s_add_u32 s%d, s%d, s%d" % (S_A, S_A, S_XCD))
    e("s_lshl_b32 s%d, s%d, 14" % (S_A, S_A))
    e("s_add_u32 s%d, s%d, 0x%x" % (S_A, S_A, WS_H2))
    e("s_lshl_b32 s%d, s%d, 10" % (S_B, S_D))
    e("s_add_u32 s87, s%d, s%d" % (S_A, S_B))
    for i in range(1, 4): e("s_add_u32 s%d, s87, %d" % (87 + i, 4096 * i))
    e("s_lshl_b32 s%d, s%d, 12" % (S_B, S_D))
    e("s_add_u32 s%d, s%d, s%d" % (S_A, S_A, S_B))
    e("s_lshl_b32 s%d, s%d, 6" % (S_B, S_WAVE))
    e("s_add_u32 s84, s%d, s%d" % (S_A, S_B))
    e("v_and_b32 v%d, 7, v1" % V_T0)
    e("v_lshlrev_b32 v%d, 9, v%d" % (V_PUB, V_T0))
    e("v_lshl_add_u32 v%d, v3, 4, v%d" % (V_PUB, V_PUB))
    e("s_lshl_b32 s%d, s%d, 3" % (S_A, S_SLOT))
    e("s_add_u32 s%d, s%d, s%d" % (S_A, S_A, S_XCD))
    e("s_lshl_b32 s%d, s%d, 10" % (S_A, S_A))
    e("s_add_u32 s91, s%d, 0x%x" % (S_A, WS_H2G))
    e("s_mov_b32 s96, %s" % f32(LOG2E))
    e("s_cmp_lt_u32 s%d, %d" % (S_WAVE, NLD))
    e("s_cbranch_scc1 L_a_real")
    if not NOTOUCH:
        e("s_cmp_lg_u32 s%d, 4" % S_WAVE)
        e("s_cbranch_scc1 L_a_notouch")
        e("v_and_b32 v%d, 7, v1" % V_T0)
        e("v_lshlrev_b32 v%d, 7, v%d" % (V_T0, V_T0))
        e("v_bfe_u32 v%d, v1, 3, 2" % V_T1)
        e("v_lshl_add_u32 v%d, v%d, 12, v%d" % (V_T0, V_T1, V_T0))
        touch([(V_T0, 87, 0), (V_Z, 80, 0), (V_Z, 91, 0)])
        lab("L_a_notouch")
    if NODRY: e("s_branch L_a_real0")
    set_dry()
    e("s_branch L_a_att")
    def gu_scalar_setup():
        GO = V_GO
        e("s_lshr_b32 s%d, s%d, 7" % (S_D, S_WG))
        e("s_mul_i32 s%d, s%d, 7" % (S_A, S_XCD))
        e("s_add_u32 s%d, s%d, s%d" % (S_D, S_D, S_A))
        e("s_sub_u32 s%d, 3, s%d" % (S_D, S_D))
        e("s_and_b32 s%d, s%d, 7" % (S_D, S_D))
        e("s_mov_b32 s101, 0")
        e("s_cmp_ge_u32 s%d, 7" % S_SLOT)
        e("s_cselect_b32 s%d, 7, 0" % S_B)
        e("s_cselect_b32 s100, 1, 0")
        e("s_sub_u32 s%d, s%d, s%d" % (S_C, S_SLOT, S_B))
        e("s_cmp_eq_u32 s%d, s%d" % (S_C, S_D))
        e("s_cselect_b32 s99, 1, 0")
        e("s_cmp_lt_u32 s%d, 14" % S_SLOT)
        e("s_cbranch_scc1 L_a_nohelp")
        e("s_cmp_eq_u32 s%d, 7" % S_D)
        e("s_cselect_b32 s101, 1, 0")
        e("s_mov_b32 s%d, s%d" % (S_C, S_D))
        e("s_sub_u32 s100, s%d, 14" % S_SLOT)
        e("s_mov_b32 s99, 2")
        lab("L_a_nohelp")
        e("s_cmp_lg_u32 s100, 0")
        e("s_cselect_b32 s%d, s%d, s%d" % (SRD_W, S_WU, S_WG))
        e("s_cselect_b32 s%d, s%d, s%d" % (S_A, S_WU + 1, S_WG + 1))
        e("s_cselect_b32 s85, 0x%x, 0" % (WS_H4U - WS_H4S))
        e("s_add_u32 s85, s85, 0x%x" % WS_H4S)
        e("s_and_b32 s%d, s%d, 0xffff" % (SRD_W + 1, S_A))
        e("s_cmp_lg_u32 s101, 0")
        e("s_cselect_b32 s%d, 0, 0x%x" % (SRD_W + 2, 1024 * 7168))
        e("s_mov_b32 s%d, 0x20000" % (SRD_W + 3))
        e("s_mul_i32 s%d, s%d, 7" % (S_A, S_XCD))
        e("s_add_u32 s%d, s%d, s%d" % (S_C, S_C, S_A))
        e("v_lshrrev_b32 v%d, 3, v1" % V_T0)
        e("v_bfe_u32 v%d, v1, 4, 1" % V_T1)
        e("v_and_b32 v%d, 7, v1" % V_T2)
        e("v_xor_b32 v%d, v%d, v%d" % (V_T1, V_T1, V_T2))
        e("v_lshlrev_b32 v%d, 4, v%d" % (V_T1, V_T1))
        e("v_mul_u32_u24 v%d, 7168, v%d" % (GO, V_T0))
        e("v_add_u32 v%d, v%d, v%d" % (GO, GO, V_T1))
        for i in range(1, 4): e("v_xor_b32 v%d, %d, v%d" % (GO + i, 32 * i, GO))
        e("s_and_b32 s%d, s%d, 1" % (S_A, S_WAVE))
        e("s_lshl_b32 s%d, s%d, 6" % (S_A, S_A))
        e("v_xor_b32 v%d, s%d, v%d" % (GO + 4, S_A, GO))
        e("v_xor_b32 v%d, 32, v%d" % (GO + 5, GO + 4))
        NE = 8 * GE
        e("s_cmp_eq_u32 s99, 2")
        e("s_cselect_b32 s%d, 64, 0" % S_B)
        e("s_mul_i32 s%d, s%d, %d" % (S_A, S_WAVE, GE))
        e("s_add_u32 s%d, s%d, s%d" % (S_A, S_A, S_B))
        e("s_lshl_b32 s9, s%d, 10" % S_A)
        e("s_mul_i32 s8, s%d, %d" % (S_A, 8 * 7168))
        e("s_lshl_b32 s%d, s%d, 7" % (S_E, S_C))
        e("s_add_u32 s8, s8, s%d" % S_E)
        e("s_cmp_eq_u32 s99, 0")
        e("s_cselect_b32 s%d, %d, %d" % (S_A, (128 - NE) // 4, (64 - NE) // 4))
        e("s_cselect_b32 s6, %d, %d" % ((128 - NE) // 32, (64 - NE) // 32))
        e("s_mul_i32 s%d, s%d, s%d" % (S_A, S_A, S_WAVE))
        e("s_add_u32 s%d, s%d, s%d" % (S_A, S_A, S_B))
        e("s_add_u32 s%d, s%d, %d" % (S_A, S_A, NE))
        e("s_lshl_b32 s5, s%d, 10" % S_A)
        e("s_mul_i32 s4, s%d, %d" % (S_A, 8 * 7168))
        e("s_add_u32 s4, s4, s%d" % S_E)
    def gu_early(ms):
        if not ms or "gu" in SKIP: return
        l = uid("nge")
        e("s_cbranch_execz %s" % l)
        for m in ms:
            e("s_mov_b32 m0, s9")
            e("s_add_u32 s9, s9, 1024")
            e("buffer_load_dwordx4 v%d, s[%d:%d], s8 offen nt lds" % (V_GO + 4 + (m & 1) if GE == 4 else V_GO + ((m & 1) | (((m >> 2) & 1) << 1)), SRD_W, SRD_W + 3))
            e("s_add_u32 s8, s8, %d" % (8 * 7168))
        lab(l)
    def h1_loads():
        for k in range(4):
            e("buffer_load_dwordx4 v[%d:%d], v%d, s[%d:%d], s%d offen sc1" % (V_L + 4 * k, V_L + 4 * k + 3, V_G, SRD_WS, SRD_WS + 3, 80 + k))
        xcc_load(V_L + 16, XA, SRD_O)
    def trig1(w):
        notr = uid("notr")
        e("s_cmp_lg_u32 s%d, %d" % (S_WAVE, w))
        e("s_cbranch_scc1 %s" % notr)
        e("s_lshl_b32 s%d, s%d, 3" % (S_A, S_SLOT))
        e("s_or_b32 s%d, s%d, s%d" % (S_A, S_A, S_XCD))
        e("s_lshl_b32 s%d, s%d, 7" % (S_A, S_A))
        e("s_add_u32 s%d, s%d, 0x%x" % (S_A, S_A, WS_TRIG))
        e("s_mov_b64 exec, 1")
        e("buffer_store_dwordx2 v[%d:%d], v%d, s[%d:%d], s%d offen sc1" % (V_T2 + 1, V_T2 + 2, V_Z, SRD_WS, SRD_WS + 3, S_A) if False else
          "buffer_store_dwordx2 v[%d:%d], v%d, s[%d:%d], s%d offen sc1" % (V_X1 + 18, V_X1 + 19, V_Z, SRD_WS, SRD_WS + 3, S_A))
        full()
        lab(notr)
    if KFIRST:
        lab("L_a_real0")
        e("s_waitcnt vmcnt(0)")
        e("s_branch L_a_sync")
        lab("L_a_real")
        dma_run(SRD_W, ab, S_E, 1024, L_W0, 16, 0, VP, pre=lambda m: thr(16 + m), name="v")
        e("s_waitcnt vmcnt(%d)" % VP)
        lab("L_a_sync")
        set_real()
        make_tag(EP)
        e("v_mov_b32 v%d, s%d" % (V_X1 + 18, S_T))
        e("v_mov_b32 v%d, s%d" % (V_X1 + 19, S_T))
        e("s_barrier")
        stamp(2)
        lab("L_a_att")
        e("s_cbranch_execz L_a_h1k")
        h1_loads()
        e("s_cmp_ge_u32 s%d, 4" % S_WAVE)
        e("s_cbranch_scc1 L_a_h1k")
        if VP < 16:
            dma_run(SRD_W, ab, S_E, 1024, L_W0, 16, VP, 16, name="v")
        lab("L_a_h1k")
    else:
        lab("L_a_real0")
        e("s_waitcnt vmcnt(0)")
        lab("L_a_real")
        set_real()
        e("s_waitcnt vmcnt(%d)" % (TRIGV * 4 // NLD))
        make_tag(EP)
        gu_scalar_setup()
        notr = uid("notr")
        e("s_cmp_lg_u32 s%d, 0" % S_WAVE)
        e("s_cbranch_scc1 %s" % notr)
        e("s_lshl_b32 s%d, s%d, 3" % (S_A, S_SLOT))
        e("s_or_b32 s%d, s%d, s%d" % (S_A, S_A, S_XCD))
        e("s_lshl_b32 s%d, s%d, 7" % (S_A, S_A))
        e("s_add_u32 s%d, s%d, 0x%x" % (S_A, S_A, WS_TRIG))
        e("s_mov_b64 exec, 1")
        e("buffer_store_dwordx2 v[%d:%d], v%d, s[%d:%d], s%d offen sc1" % (V_P + 2, V_P + 3, V_Z, SRD_WS, SRD_WS + 3, S_A))
        e("s_mov_b64 exec, -1")
        lab(notr)
        e("s_waitcnt vmcnt(%d)" % (64 // NLD))
        e("s_barrier")
        stamp(2)
        tr256_read(V_WF, V_TR)
        lab("L_a_att")
        e("s_cbranch_execz L_a_h1k")
        if H1LATE:
            e("s_waitcnt vmcnt(%d)" % H1V)
            e("s_barrier")
            h1_loads()
            e("s_waitcnt vmcnt(5)")
            e("s_barrier")
        else:
            h1_loads()
            e("s_waitcnt vmcnt(5)")
            e("s_barrier")
        lab("L_a_h1k")
        stamp(3)
    for sg in range(4):
        for t in range(2):
            r = V_KF + 16 * t + 4 * sg
            e("ds_read_b128 v[%d:%d], v%d offset:%d" % (r, r + 3, KA + sg, t * 4096))
    e("s_cbranch_execz L_a_h1_nl")
    if KFIRST:
        e("s_cmp_ge_u32 s%d, 4" % S_WAVE)
        e("s_cbranch_scc1 L_a_h1w")
        e("s_waitcnt vmcnt(%d)" % (16 - VP))
        e("s_branch L_a_h1_nl")
    else:
        e("s_branch L_a_h1w")
    lab("L_a_h1")
    h1_loads()
    lab("L_a_h1w")
    poll_end("L_a_h1", [chk64(V_L + 4 * k + 2) for k in range(4)] + xcc_checks(V_L + 16, V_T0))
    stamp(4)
    e("v_pk_add_f32 v[%d:%d], v[%d:%d], v[%d:%d]" % (V_L, V_L + 1, V_L, V_L + 1, V_L + 4, V_L + 5))
    e("v_pk_add_f32 v[%d:%d], v[%d:%d], v[%d:%d]" % (V_L + 8, V_L + 9, V_L + 8, V_L + 9, V_L + 12, V_L + 13))
    e("v_pk_add_f32 v[%d:%d], v[%d:%d], v[%d:%d]" % (V_L, V_L + 1, V_L, V_L + 1, V_L + 8, V_L + 9))
    e("v_cvt_pk_bf16_f32 v%d, v%d, v%d" % (V_T0, V_L, V_L + 1))
    e("ds_write_b32 v%d, v%d" % (QW, V_T0))
    xcc_decide(V_L + 16)
    e("s_waitcnt lgkmcnt(0)")
    barrier(True)
    for sg in range(4):
        e("ds_read_b128 v[%d:%d], v%d offset:%d" % (V_AF + 4 * sg, V_AF + 4 * sg + 3, QO if (sg & 1) else QE, sg * 512))
    S0, S1 = V_U, V_U + 4
    gu_early(range(0, GE1))
    for sg in range(4):
        e("s_waitcnt lgkmcnt(%d)" % (3 - sg))
        for t, acc in ((0, S0), (1, S1)):
            e(mfma(acc, V_KF + 16 * t + 4 * sg, V_AF + 4 * sg, None if sg == 0 else acc))
    gu_early(range(GE1, GE))
    e("s_nop 7")
    X = V_U + 8
    W = V_U + 16
    for k in range(4):
        e("v_cndmask_b32 v%d, v%d, v%d, s[%d:%d]" % (X + k, S0 + k, S1 + k, S_HI8, S_HI8 + 1))
    for rnd in range(2):
        for i2 in range(2):
            e("v_cvt_pk_bf16_f32 v%d, v%d, v%d" % (W + i2, X + 2 * i2, X + 2 * i2 + 1))
        for i2 in range(2):
            unpack(X + 2 * i2, X + 2 * i2 + 1, W + i2)
        if rnd == 0:
            for k in range(4):
                e("v_mul_f32 v%d, %s, v%d" % (X + k, f32(128 ** -0.5), X + k))
    e("v_max3_f32 v%d, v%d, v%d, v%d" % (V_M, X, X + 1, X + 2))
    e("v_max_f32 v%d, v%d, v%d" % (V_M, V_M, X + 3))
    e("s_nop 1")
    e(dpp_add(V_M, V_M, "row_ror:8", "v_max_f32"))
    emit(xrow_ops(V_M, V_T0, "v_max_f32"))
    e("v_mul_f32 v%d, s96, v%d" % (V_M, V_M))
    for k in range(4):
        e("v_fma_f32 v%d, v%d, s96, -v%d" % (X + k, X + k, V_M))
    for k in range(4):
        e("v_exp_f32 v%d, v%d" % (X + k, X + k))
    e("s_nop 0")
    e("v_cvt_pk_bf16_f32 v%d, v%d, v%d" % (W, X, X + 1))
    e("v_cvt_pk_bf16_f32 v%d, v%d, v%d" % (W + 1, X + 2, X + 3))
    e("v_add_f32 v%d, v%d, v%d" % (V_SUM, X, X + 1))
    e("v_add_f32 v%d, v%d, v%d" % (V_T1, X + 2, X + 3))
    e("ds_write_b64 v%d, v[%d:%d]" % (PW0, W, W + 1))
    e("v_add_f32 v%d, v%d, v%d" % (V_SUM, V_SUM, V_T1))
    e("s_nop 1")
    e(dpp_add(V_SUM, V_SUM, "row_ror:8"))
    emit(xrow_ops(V_SUM, V_T0))
    e("ds_write2_b32 v%d, v%d, v%d offset0:0 offset1:8" % (SW, V_M, V_SUM))
    if KFIRST:
        e("s_cbranch_execz L_a_nov")
        trig1(4)
        e("s_waitcnt vmcnt(0) lgkmcnt(0)")
        e("s_barrier")
        lab("L_a_nov")
    else:
        e("s_waitcnt lgkmcnt(0)")
        barrier(True)
    stamp(5)
    MS, LS = V_L, V_L + 8
    for i2 in range(4):
        e("ds_read_b128 v[%d:%d], v%d offset:%d" % (V_L + 4 * i2, V_L + 4 * i2 + 3, SR, 16 * i2))
    def pv_reads(m):
        if KFIRST:
            for h in range(2):
                e("ds_read_b64_tr_b16 v[%d:%d], v%d offset:%d" % (V_WF + 4 * m + 2 * h, V_WF + 4 * m + 2 * h + 1, V_TR, m * 8192 + h * 1024))
        e("ds_read_b128 v[%d:%d], v%d offset:%d" % (V_AF + 4 * m, V_AF + 4 * m + 3, V_AO if (m & 1) else V_AE, m * 512))
    for m in range(4 if KFIRST else 8): pv_reads(m)
    AC = V_U
    side = ["v_max3_f32 v%d, v%d, v%d, v%d" % (V_M, MS, MS + 1, MS + 2),
            "v_max3_f32 v%d, v%d, v%d, v%d" % (V_T0, MS + 3, MS + 4, MS + 5),
            "v_max3_f32 v%d, v%d, v%d, v%d" % (V_M, V_M, MS + 6, MS + 7),
            "v_max_f32 v%d, v%d, v%d" % (V_M, V_M, V_T0)]
    side += ["v_sub_f32 v%d, v%d, v%d" % (MS + i2, MS + i2, V_M) for i2 in range(8)]
    side += ["v_exp_f32 v%d, v%d" % (MS + i2, MS + i2) for i2 in range(8)]
    side += ["v_mul_f32 v%d, v%d, v%d" % (V_SUM, LS, MS), "v_mul_f32 v%d, v%d, v%d" % (V_T1, LS + 1, MS + 1)]
    for i2 in range(2, 8, 2):
        side += ["v_fmac_f32 v%d, v%d, v%d" % (V_SUM, LS + i2, MS + i2), "v_fmac_f32 v%d, v%d, v%d" % (V_T1, LS + i2 + 1, MS + i2 + 1)]
    side += ["v_add_f32 v%d, v%d, v%d" % (V_SUM, V_SUM, V_T1),
             "v_rcp_f32 v%d, v%d" % (V_RS, V_SUM), "v_log_f32 v%d, v%d" % (V_T1, V_SUM), "s_nop 0",
             "v_add_f32 v%d, v%d, v%d" % (V_P + 2, V_T1, V_M)]
    per = (len(side) + 7) // 8
    for m in range(8):
        e("s_waitcnt lgkmcnt(%d)" % ((9 if m < 5 else 3 * (7 - m)) if KFIRST else 7 - m))
        e(mfma(AC + 4 * m, V_WF + 4 * m, V_AF + 4 * m, None))
        if KFIRST and m < 4: pv_reads(m + 4)
        emit(side[m * per:(m + 1) * per])
    def bsel(r):
        return (r & ~1, "op_sel:[0,%d,0] op_sel_hi:[1,%d,1]" % (r & 1, r & 1), "op_sel:[0,%d] op_sel_hi:[1,%d]" % (r & 1, r & 1))
    for m in range(8):
        fb, sel, sel2 = bsel(MS + m)
        for h in range(2):
            a = V_ACC + 2 * h
            if m == 0:
                e("v_pk_mul_f32 v[%d:%d], v[%d:%d], v[%d:%d] %s" % (a, a + 1, AC + 2 * h, AC + 2 * h + 1, fb, fb + 1, sel2))
            else:
                e("v_pk_fma_f32 v[%d:%d], v[%d:%d], v[%d:%d], v[%d:%d] %s" % (a, a + 1, AC + 4 * m + 2 * h, AC + 4 * m + 2 * h + 1, fb, fb + 1, a, a + 1, sel))
    fb, sel, sel2 = bsel(V_RS)
    for h in range(2):
        a = V_ACC + 2 * h
        e("v_pk_mul_f32 v[%d:%d], v[%d:%d], v[%d:%d] %s" % (a, a + 1, a, a + 1, fb, fb + 1, sel2))
    e("v_cvt_pk_bf16_f32 v%d, v%d, v%d" % (V_P, V_ACC, V_ACC + 1))
    e("v_cvt_pk_bf16_f32 v%d, v%d, v%d" % (V_P + 1, V_ACC + 2, V_ACC + 3))
    store_l("buffer_store_dwordx4 v[%d:%d], v%d, s[%d:%d], s84 offen" % (V_P, V_P + 3, V_PUB, SRD_WS, SRD_WS + 3), "lo8")
    stamp(6)
    e("s_sub_u32 s%d, s%d, 1" % (S_A, S_WAVE))
    e("s_cmp_lt_u32 s%d, 3" % S_A)
    e("s_cbranch_scc1 L_a_nocomb")
    e("s_cmp_lg_u32 s%d, 0" % S_DRY)
    e("s_cbranch_scc1 L_a_comb")
    e("s_cmp_lg_u32 s%d, 0" % S_WAVE)
    e("s_cbranch_scc1 L_a_nocomb")
    lab("L_a_comb")
    top = poll_begin()
    for s in range(4):
        e("buffer_load_dwordx4 v[%d:%d], v%d, s[%d:%d], s%d offen sc1" % (V_L + 4 * s, V_L + 4 * s + 3, V_G, SRD_WS, SRD_WS + 3, 87 + s))
    poll_end(top, [chk32(V_L + 4 * s + 3) for s in range(4)])
    Ls = [V_L + 4 * s + 2 for s in range(4)]
    e("v_max3_f32 v%d, v%d, v%d, v%d" % (V_T0, Ls[0], Ls[1], Ls[2]))
    e("v_max_f32 v%d, v%d, v%d" % (V_T0, V_T0, Ls[3]))
    for s in range(4): e("v_sub_f32 v%d, v%d, v%d" % (Ls[s], Ls[s], V_T0))
    for s in range(4): e("v_exp_f32 v%d, v%d" % (Ls[s], Ls[s]))
    for s in range(4):
        unpack(V_U + 4 * s, V_U + 4 * s + 1, V_L + 4 * s)
        unpack(V_U + 4 * s + 2, V_U + 4 * s + 3, V_L + 4 * s + 1)
    e("v_add_f32 v%d, v%d, v%d" % (V_T0, Ls[0], Ls[1]))
    e("v_add_f32 v%d, v%d, v%d" % (V_T1, Ls[2], Ls[3]))
    e("v_add_f32 v%d, v%d, v%d" % (V_T0, V_T0, V_T1))
    e("v_rcp_f32 v%d, v%d" % (V_T0, V_T0))
    for k in range(4):
        e("v_mul_f32 v%d, v%d, v%d" % (V_U + k, V_U + k, Ls[0]))
    for s in range(1, 4):
        for k in range(4):
            e("v_fmac_f32 v%d, v%d, v%d" % (V_U + k, V_U + 4 * s + k, Ls[s]))
    for k in range(4):
        e("v_mul_f32 v%d, v%d, v%d" % (V_U + k, V_U + k, V_T0))
    e("v_cvt_pk_bf16_f32 v%d, v%d, v%d" % (V_U + 16, V_U, V_U + 1))
    e("v_cvt_pk_bf16_f32 v%d, v%d, v%d" % (V_U + 17, V_U + 2, V_U + 3))
    e("v_mov_b32 v%d, s%d" % (V_U + 18, S_T))
    e("v_mov_b32 v%d, s%d" % (V_U + 19, S_T))
    store_g("buffer_store_dwordx4 v[%d:%d], v%d, s[%d:%d], s91 offen" % (V_U + 16, V_U + 19, V_G, SRD_WS, SRD_WS + 3))
    stamp(13)
    lab("L_a_nocomb")
    e("s_cmp_lg_u32 s%d, 0" % S_DRY)
    e("s_cbranch_scc1 L_a_real0")
    e("s_cmp_lg_u32 s101, 0")
    e("s_cbranch_scc1 L_a_idle")
    e("s_mov_b32 s96, s100")
    e("s_mov_b32 s%d, s4" % S_A)
    e("s_mov_b32 s%d, s5" % S_B)
    e("s_mov_b32 s%d, s6" % S_D)
    e("s_barrier")
    e("s_cmp_ge_u32 s%d, %d" % (S_WAVE, 0 if "gu" in SKIP else 4))
    e("s_cbranch_scc1 L_a_gusetup")
    e("s_cmp_eq_u32 s%d, 0" % S_D)
    e("s_cbranch_scc1 L_a_gusetup")
    lab("L_a_guld")
    for m in range(8):
        e("s_mov_b32 m0, s%d" % S_B)
        e("s_add_u32 s%d, s%d, 1024" % (S_B, S_B))
        var = (m & 1) | (((m >> 2) & 1) << 1)
        e("buffer_load_dwordx4 v%d, s[%d:%d], s%d offen nt lds" % (V_GO + var, SRD_W, SRD_W + 3, S_A))
        e("s_add_u32 s%d, s%d, %d" % (S_A, S_A, 8 * 7168))
    e("s_sub_u32 s%d, s%d, 1" % (S_D, S_D))
    e("s_cmp_lg_u32 s%d, 0" % S_D)
    e("s_cbranch_scc1 L_a_guld")
    stamp(7)
    lab("L_a_gusetup")
    e("v_bfe_u32 v%d, v1, 3, 1" % V_T0)
    e("v_and_b32 v%d, 1, v3" % V_T1)
    e("v_lshl_or_b32 v%d, v%d, 1, v%d" % (V_T0, V_T1, V_T0))
    e("v_bfe_u32 v%d, v1, 1, 1" % V_T1)
    e("v_lshl_or_b32 v%d, v%d, 2, v%d" % (V_T0, V_T1, V_T0))
    e("v_xor_b32 v%d, s%d, v%d" % (V_T0, S_WAVE, V_T0))
    e("v_lshlrev_b32 v%d, 4, v%d" % (V_T0, V_T0))
    e("v_bfe_u32 v%d, v1, 2, 2" % V_T2)
    e("v_lshl_add_u32 v%d, v3, 3, v%d" % (V_T2, V_T2))
    e("v_lshl_add_u32 v%d, v%d, 5, v%d" % (V_T2, V_T1, V_T2))
    e("v_lshl_add_u32 v%d, v%d, 7, v%d" % (V_T0, V_T2, V_T0))
    e("v_and_b32 v%d, 1, v1" % V_T1)
    e("v_lshl_add_u32 v%d, v%d, 3, v%d" % (V_TR, V_T1, V_T0))
    e("v_add_u32 v%d, 0x10000, v%d" % (V_VA, V_TR))
    e("v_lshrrev_b32 v%d, 3, v2" % V_T0)
    e("v_lshl_or_b32 v%d, v3, 1, v%d" % (V_T1, V_T0))
    e("v_and_b32 v%d, 7, v1" % V_T2)
    e("v_xor_b32 v%d, v%d, v%d" % (V_T1, V_T1, V_T2))
    e("v_lshlrev_b32 v%d, 4, v%d" % (V_T1, V_T1))
    e("v_lshl_add_u32 v%d, v%d, 2, v3" % (V_T0, V_T0))
    e("v_lshl_add_u32 v%d, v%d, 7, v%d" % (V_T1, V_T0, V_T1))
    e("v_add_u32 v%d, %d, v%d" % (V_AE, L_ACT, V_T1))
    e("v_lshlrev_b32 v%d, 3, v%d" % (V_T2, V_T2))
    e("v_add_u32 v%d, %d, v%d" % (V_AO, L_MX, V_T2))
    e("s_lshl_b32 s%d, s%d, 3" % (S_A, S_WAVE))
    e("s_add_u32 s%d, s%d, %d" % (S_A, S_A, L_MX))
    e("v_mov_b32 v%d, s%d" % (V_RED, S_A))
    pos_write_addr(V_AW, L_ACT)
    e("s_lshl_b32 s%d, s%d, 12" % (S_A, S_WAVE))
    e("s_add_u32 s86, s%d, 0x%x" % (S_A, WS_H3B))
    e("s_lshl_b32 s%d, s%d, 11" % (S_A, S_C))
    e("s_lshl_b32 s%d, s%d, 8" % (S_B, S_WAVE))
    e("s_add_u32 s%d, s%d, s%d" % (S_A, S_A, S_B))
    e("s_add_u32 s85, s85, s%d" % S_A)
    e("v_and_b32 v%d, 1, v3" % V_T0)
    e("v_lshlrev_b32 v%d, 7, v%d" % (V_PUB, V_T0))
    e("v_and_b32 v%d, 7, v1" % V_T0)
    e("v_lshl_add_u32 v%d, v%d, 4, v%d" % (V_PUB, V_T0, V_PUB))
    e("v_lshrrev_b32 v%d, 1, v3" % V_T0)
    e("v_lshl_add_u32 v%d, v%d, 3, v%d" % (V_PUB, V_T0, V_PUB))
    e("s_lshl_b32 s%d, s96, 1" % S_A)
    e("s_add_u32 s%d, s%d, s99" % (S_A, S_A))
    e("s_sub_u32 s%d, s%d, 1" % (S_A, S_A))
    e("s_lshl_b32 s%d, s%d, 3" % (S_A, S_A))
    e("s_add_u32 s%d, s%d, s%d" % (S_A, S_A, S_XCD))
    e("s_lshl_b32 s%d, s%d, 12" % (S_A, S_A))
    e("s_lshl_b32 s%d, s%d, 9" % (S_B, S_WAVE))
    e("s_add_u32 s%d, s%d, s%d" % (S_A, S_A, S_B))
    e("s_add_u32 s84, s%d, 0x%x" % (S_A, WS_H4P))
    e("v_lshlrev_b32 v%d, 1, v%d" % (V_H, V_PUB))
    e("v_mov_b32 v%d, s%d" % (V_ACC + 6, S_T))
    e("v_mov_b32 v%d, s%d" % (V_ACC + 7, S_T))
    ONE = V_WF
    CS = V_WF + 4
    for k in range(4): e("v_mov_b32 v%d, 0x3f803f80" % (ONE + k))
    e("v_mov_b32 v%d, s%d" % (V_P + 1, S_T))
    e("s_mov_b64 s[%d:%d], s[%d:%d]" % (80, 81, S_ML, S_ML + 1))
    e("s_mov_b64 s[%d:%d], s[%d:%d]" % (82, 83, S_MG, S_MG + 1))
    e("s_cmp_lt_u32 s%d, 4" % S_WAVE)
    e("s_cbranch_scc1 L_a_gureal")
    if NODRY: e("s_branch L_a_gureal")
    set_dry()
    e("s_branch L_a_gutop")
    lab("L_a_gureal")
    set_real()
    e("s_mov_b64 s[%d:%d], s[%d:%d]" % (S_ML, S_ML + 1, 80, 81))
    e("s_mov_b64 s[%d:%d], s[%d:%d]" % (S_MG, S_MG + 1, 82, 83))
    e("s_waitcnt vmcnt(%d)" % T2V)
    if TRIG2: trig2()
    e("s_waitcnt vmcnt(0)")
    e("s_barrier")
    lab("L_a_gutop")
    GF = V_KF
    for m in range(16):
        for h in range(2):
            e("ds_read_b64_tr_b16 v[%d:%d], v%d offset:%d" % (GF + 4 * m + 2 * h, GF + 4 * m + 2 * h + 1, V_TR if m < 8 else V_VA, (m & 7) * 8192 + h * 512))
    e("s_waitcnt lgkmcnt(0)")
    e("s_cmp_lg_u32 s99, 1")
    e("s_cbranch_scc1 L_a_z1")
    for k in range(32, 64): e("v_mov_b32 v%d, 0" % (GF + k))
    lab("L_a_z1")
    e("s_cmp_lg_u32 s99, 2")
    e("s_cbranch_scc1 L_a_z2")
    for k in range(0, 32): e("v_mov_b32 v%d, 0" % (GF + k))
    lab("L_a_z2")
    e("s_nop 1")
    for m in range(16):
        e(mfma(CS, GF + 4 * m, ONE, None if m == 0 else CS))
    e("s_nop 7")
    e("v_permlane32_swap_b32 v%d, v%d" % (CS, CS + 2))
    e("v_permlane32_swap_b32 v%d, v%d" % (CS + 1, CS + 3))
    e("s_nop 1")
    e("v_add_f32_dpp v%d, v%d, v%d row_shl:8 row_mask:0xf bank_mask:0xf" % (CS, CS + 2, CS))
    e("v_add_f32_dpp v%d, v%d, v%d row_shl:8 row_mask:0xf bank_mask:0xf" % (CS + 1, CS + 3, CS + 1))
    stamp(8)
    top = poll_begin((V_G, 86, 3) if "3" not in NB else None)
    for n in range(4):
        e("buffer_load_dwordx4 v[%d:%d], v%d, s[%d:%d], s86 offen offset:%d sc1" % (V_L + 4 * n, V_L + 4 * n + 3, V_G, SRD_WS, SRD_WS + 3, n * 1024))
    poll_end(top, [chk64(V_L + 4 * n + 2) for n in range(4)], bell=(V_G, 86, 3))
    for n in range(4):
        e("ds_write_b64 v%d, v[%d:%d] offset:%d" % (V_AW, V_L + 4 * n, V_L + 4 * n + 1, n * 4096))
    stamp(9)
    side = ln_stats_dot_ops([V_L + 4 * (i >> 1) + (i & 1) for i in range(8)], ONE, V_SUM, V_SQ, V_T0, V_M, V_RS)
    emit(side[:16])
    side = side[16:]
    e("s_waitcnt lgkmcnt(0)")
    barrier(True)
    stamp(10)
    for m in range(16):
        e("ds_read_b128 v[%d:%d], v%d offset:%d" % (V_AF + 4 * m, V_AF + 4 * m + 3, V_AE, m * 1024))
    nfirst = 22
    emit(side[:nfirst])
    rest = side[nfirst:]
    mm = [0]
    def next_mfma():
        m = mm[0]; mm[0] += 1
        if m % 2 == 0: e("s_waitcnt lgkmcnt(%d)" % (14 - m))
        e(mfma(V_ACC, GF + 4 * m, V_AF + 4 * m, None if m == 0 else V_ACC))
        return 2 if m % 2 == 0 else 1
    cnt = 0
    for op in rest:
        if op.startswith("s_nop") and mm[0] < 10:
            need = int(op.split()[1]) + 1
            while need > 0 and mm[0] < 10: need -= next_mfma()
            if need > 0: e("s_nop %d" % (need - 1))
            cnt = 0
        else:
            e(op); cnt += 1
            if cnt == 2 and mm[0] < 10: next_mfma(); cnt = 0
    e("ds_write_b64 v%d, v[%d:%d]" % (V_RED, V_M, V_RS))
    while mm[0] < 10: next_mfma() if False else None; break
    while mm[0] < 12:
        m = mm[0]; mm[0] += 1
        if m == 10 or m % 2 == 0: e("s_waitcnt lgkmcnt(%d)" % max(0, min(15, 15 - m)))
        e(mfma(V_ACC, GF + 4 * m, V_AF + 4 * m, None if m == 0 else V_ACC))
    e("s_waitcnt lgkmcnt(0)")
    barrier(True)
    e("ds_read_b64 v[%d:%d], v%d" % (V_M, V_RS, V_AO))
    for m in range(12, 16):
        e(mfma(V_ACC, GF + 4 * m, V_AF + 4 * m, V_ACC))
    e("s_waitcnt lgkmcnt(0)")
    e("v_mul_f32 v%d, v%d, v%d" % (V_T0, V_M, V_RS))
    e("v_mul_f32 v%d, v%d, v%d" % (V_T1, V_T0, CS))
    e("v_mul_f32 v%d, v%d, v%d" % (V_T2, V_T0, CS + 1))
    e("s_nop 3")
    e("v_permlane32_swap_b32 v%d, v%d" % (V_ACC, V_ACC + 2))
    e("v_permlane32_swap_b32 v%d, v%d" % (V_ACC + 1, V_ACC + 3))
    e("s_nop 1")
    e("v_add_f32_dpp v%d, v%d, v%d row_shl:8 row_mask:0xf bank_mask:0xf" % (V_ACC, V_ACC + 2, V_ACC))
    e("v_add_f32_dpp v%d, v%d, v%d row_shl:8 row_mask:0xf bank_mask:0xf" % (V_ACC + 1, V_ACC + 3, V_ACC + 1))
    e("v_fma_f32 v%d, v%d, v%d, -v%d" % (V_ACC, V_ACC, V_RS, V_T1))
    e("v_fma_f32 v%d, v%d, v%d, -v%d" % (V_ACC + 1, V_ACC + 1, V_RS, V_T2))
    e("s_cmp_lg_u32 s99, 0")
    e("s_cbranch_scc1 L_a_part")
    e("v_cvt_pk_bf16_f32 v%d, v%d, v%d" % (V_P, V_ACC, V_ACC + 1))
    nosig = uid("nosig")
    e("s_cmp_lg_u32 s96, 0")
    e("s_cbranch_scc1 %s" % nosig)
    unpack(V_U, V_U + 1, V_P)
    e("v_mul_f32 v%d, %s, v%d" % (V_U, f32(-LOG2E), V_U))
    e("v_mul_f32 v%d, %s, v%d" % (V_U + 1, f32(-LOG2E), V_U + 1))
    e("v_exp_f32 v%d, v%d" % (V_U, V_U))
    e("v_exp_f32 v%d, v%d" % (V_U + 1, V_U + 1))
    e("s_nop 0")
    e("v_add_f32 v%d, 1.0, v%d" % (V_U, V_U))
    e("v_add_f32 v%d, 1.0, v%d" % (V_U + 1, V_U + 1))
    e("v_rcp_f32 v%d, v%d" % (V_U, V_U))
    e("v_rcp_f32 v%d, v%d" % (V_U + 1, V_U + 1))
    e("s_nop 0")
    e("v_cvt_pk_bf16_f32 v%d, v%d, v%d" % (V_P, V_U, V_U + 1))
    lab(nosig)
    store_l("buffer_store_dwordx2 v[%d:%d], v%d, s[%d:%d], s85 offen" % (V_P, V_P + 1, V_PUB, SRD_WS, SRD_WS + 3), "lo8")
    e("s_branch L_a_pubd")
    lab("L_a_part")
    e("v_mov_b32 v%d, v%d" % (V_P, V_ACC))
    e("v_mov_b32 v%d, v%d" % (V_P + 1, V_ACC + 1))
    store_l("buffer_store_dwordx4 v[%d:%d], v%d, s[%d:%d], s84 offen" % (V_P, V_P + 3, V_H, SRD_WS, SRD_WS + 3), "lo8")
    lab("L_a_pubd")
    e("s_cmp_lg_u32 s%d, 0" % S_DRY)
    e("s_cbranch_scc1 L_a_gureal")
    stamp(11)
    if "a" in CLEAN: clean("buffer_store_dwordx4 v[%d:%d], v%d, s[%d:%d], s87 offen" % (V_WF + 8, V_WF + 11, V_WF + 12, SRD_WS, SRD_WS + 3), "lo8")
    lab("L_a_done")
    stamps_flush(V_U)
    e("s_endpgm")
    lab("L_a_idle")
    if TRIG2: trig2()
    e("s_branch L_a_done")

gen()
open(OUT, "w").write("\n".join(lines) + "\n")
print("wrote", OUT, len(lines), "lines")
```

```python
import sys, struct

NAME = "sequential_preLN__sliding_block_cached__glu_gated_glu__decode"
def opt(name, default):
    for a in sys.argv:
        if a.startswith("--%s=" % name): return a.split("=", 1)[1]
    return default
STSET = opt("st", None)
STAMPS = "--stamps" in sys.argv or STSET is not None
STSET = None if STSET is None else set(int(x) for x in STSET.split(","))
NOLOCAL = "--nolocal" in sys.argv
NODRY = "--nodry" in sys.argv
NOTOUCH = "--notouch" in sys.argv
NOBELL = "--nobell" in sys.argv
BELLSLEEP = int(opt("bellsleep", 2))
NB = opt("nb", "")
PRIO = "--prio" in sys.argv
DSPLIT = "--dsplit" in sys.argv
XBAR = "--xbar" in sys.argv
AT = opt("at", "")
BELL5 = "5" not in NB
BELL1 = "--bell1" in sys.argv
TRIG2 = "--trig2" in sys.argv
NOCLEAN = "--clean-on" not in sys.argv
CLEAN = opt("clean", "ab")
NLD = 4
KFIRST = False
PFK = int(opt("pfk", 0))
H1V = int(opt("h1v", -1))
H1LATE = H1V >= 0
GE = int(opt("ge", 0))
GE1 = int(opt("ge1", GE // 2))
VP = int(opt("vp", 8))
BELLFIRST = "--belllast" not in sys.argv
T2V = int(opt("t2v", 12))
DEARLY = "--dearly" in sys.argv
NOCODEPF = "--codepf" not in sys.argv
TLBT = "--notlb" not in sys.argv
SLEEP = int(opt("sleep", 1))
QFIRST = int(opt("qfirst", 8))
AWIN = int(opt("awin", 8))
ATHR = int(opt("athr", 0))
TRIGV = int(opt("trigv", 8))
OUT = [a for a in sys.argv[1:] if not a.startswith("--")]
OUT = OUT[0] if OUT else "cdna_kernels/%s.s" % NAME

lines = []
def e(s): lines.append("    " + s)
def lab(s): lines.append(s + ":")
def cmt(s): lines.append("    ; " + s)
_uid = [0]
def uid(p):
    _uid[0] += 1
    return "L_%s_%d" % (p, _uid[0])
def f32(x): return "0x%08x" % struct.unpack("<I", struct.pack("<f", x))[0]

WS_TRIG = 0x4000
WS_H1 = 0x100000
WS_H2 = 0x200000
WS_H3B = 0x280000
WS_H4S = 0x290000
WS_H4U = 0x2B0000
WS_H2G = 0x2E0000
WS_H4P = 0x500000
WS_H3A = 0x300000
WS_H5 = 0x400000
WS_TS = 0x600000
WS_SIZE = 0x800000

L_W0 = 0
L_W1 = 65536
L_ACT = 131072
L_QB = 147456
L_PB = 149504
L_MX = 153600
LDS_BYTES = 154112

S_X, S_K, S_V, S_WQ, S_WO, S_BX, S_WG, S_WU = 4, 6, 8, 10, 12, 14, 16, 18
S_WD, S_OUT, S_DBG, S_WS = 20, 22, 24, 26
S_WAVE, S_XCD, S_SLOT, S_T = 28, 29, 30, 31
SRD_W, SRD_WS, SRD_X, SRD_O = 32, 36, 40, 44
S_TT = 48
S_HI8 = 50
S_SPIN = 52
S_A, S_B, S_C, S_D, S_E, S_F = 53, 54, 55, 56, 57, 58
S_DRY = 59
S_TM = 60
S_ML = 62
S_ST = 64
S_MG = 92
S_FULL = 94
S_XCC, S_XOFF = 97, 98

LOG2E = 1.4426950408889634

V_VA, V_VB = 4, 5
V_TR = 6
V_AE, V_AO = 7, 8
V_T0, V_T1, V_T2, V_T3 = 9, 10, 11, 12
V_PUB, V_RED, V_H, V_XP, V_AW, V_G, V_Z = 13, 14, 15, 16, 17, 18, 19
V_ACC = 20
V_P = 24
V_M, V_RS, V_SQ, V_SUM = 28, 29, 30, 31
V_L = 32
V_U = 64
V_WF = 96
V_AF = 128
V_KF = 192
V_X1 = 224
V_GO = 248

def srd(dst, ptr, nbytes):
    e("s_mov_b32 s%d, s%d" % (dst, ptr))
    e("s_and_b32 s%d, s%d, 0xffff" % (dst + 1, ptr + 1))
    e("s_mov_b32 s%d, 0x%x" % (dst + 2, nbytes))
    e("s_mov_b32 s%d, 0x20000" % (dst + 3))

def stamp(k):
    if not STAMPS or (STSET is not None and k not in STSET): return
    e("s_memrealtime s[%d:%d]" % (S_TM, S_TM + 1))
    e("s_waitcnt lgkmcnt(0)")
    e("s_mov_b32 s%d, s%d" % (S_ST + k, S_TM))

def stamps_flush(vtmp):
    if not STAMPS: return
    e("s_mov_b64 exec, -1")
    for k in range(16):
        e("v_writelane_b32 v%d, s%d, %d" % (vtmp, S_ST + k, k))
    e("s_lshl_b32 s%d, s2, 9" % S_A)
    e("s_lshl_b32 s%d, s%d, 6" % (S_B, S_WAVE))
    e("s_add_u32 s%d, s%d, s%d" % (S_A, S_A, S_B))
    e("s_add_u32 s%d, s%d, 0x%x" % (S_A, S_A, WS_TS))
    e("v_lshlrev_b32 v%d, 2, v1" % (vtmp + 1))
    e("s_mov_b64 exec, 0xffff")
    e("buffer_store_dword v%d, v%d, s[%d:%d], s%d offen" % (vtmp, vtmp + 1, SRD_WS, SRD_WS + 3, S_A))

def full(): e("s_mov_b64 exec, s[%d:%d]" % (S_FULL, S_FULL + 1))

def barrier(dry=False):
    if dry:
        l = uid("nb")
        e("s_cbranch_execz %s" % l)
        e("s_barrier")
        lab(l)
    else:
        e("s_barrier")

def set_dry():
    e("s_mov_b64 s[%d:%d], 0" % (S_FULL, S_FULL + 1))
    e("s_mov_b64 s[%d:%d], 0" % (S_ML, S_ML + 1))
    e("s_mov_b64 s[%d:%d], 0" % (S_MG, S_MG + 1))
    e("s_mov_b32 s%d, 1" % S_DRY)
    e("s_mov_b32 s3, 8")
    if PRIO: e("s_setprio 0")
    full()

def set_real():
    e("s_mov_b64 s[%d:%d], -1" % (S_FULL, S_FULL + 1))
    e("s_mov_b32 s%d, 0" % S_DRY)
    e("s_mov_b32 s3, 2")
    if PRIO: e("s_setprio 3")
    full()

def dpp_add(dst, src, ctrl, op="v_add_f32"):
    return "%s_dpp v%d, v%d, v%d %s row_mask:0xf bank_mask:0xf" % (op, dst, src, src, ctrl)

def xrow_ops(v, t, op="v_add_f32"):
    return ["v_mov_b32 v%d, v%d" % (t, v), "s_nop 1", "v_permlane16_swap_b32 v%d, v%d" % (v, t), "s_nop 0",
            "%s v%d, v%d, v%d" % (op, v, v, t),
            "v_mov_b32 v%d, v%d" % (t, v), "s_nop 1", "v_permlane32_swap_b32 v%d, v%d" % (v, t), "s_nop 0",
            "%s v%d, v%d, v%d" % (op, v, v, t)]

def wave_allreduce_ops(v, t, op="v_add_f32"):
    o = []
    for r in (8, 4, 2, 1):
        o += ["s_nop 1", dpp_add(v, v, "row_ror:%d" % r, op)]
    return o + xrow_ops(v, t, op)

def bf16_round_ops(v):
    return ["v_cvt_pk_bf16_f32 v%d, v%d, v%d" % (v, v, v), "v_lshlrev_b32 v%d, 16, v%d" % (v, v)]

def unpack_ops(lo, hi, src):
    return ["v_lshlrev_b32 v%d, 16, v%d" % (lo, src), "v_and_b32 v%d, 0xffff0000, v%d" % (hi, src)]
def unpack(lo, hi, src):
    for x in unpack_ops(lo, hi, src): e(x)
def emit(ops):
    for x in ops: e(x)

def poll_begin(bell=None):
    if bell and BELLFIRST: doorbell(*bell)
    top = uid("poll")
    lab(top)
    e("s_cbranch_execz %s_nl" % top)
    return top

def poll_mid(top):
    lab(top + "_nl")
    top2 = top + "x"
    e("s_cbranch_execz %s_nl" % top2)
    return top2

def poll_end(top, checks, last=None, bell=None):
    ok = top + "_ok"
    e("s_waitcnt vmcnt(0)")
    lab((last or top) + "_nl")
    for c in checks: e(c)
    e("s_cmp_eq_u64 exec, s[%d:%d]" % (S_FULL, S_FULL + 1))
    full()
    e("s_cbranch_scc1 %s" % ok)
    if SLEEP: e("s_sleep %d" % SLEEP)
    if bell and not BELLFIRST: doorbell(*bell)
    e("s_sub_u32 s%d, s%d, 1" % (S_SPIN, S_SPIN))
    e("s_cbranch_scc0 %s" % top)
    e("s_mov_b32 s%d, 0" % S_SPIN)
    lab(ok)

def doorbell(va, so, tagpos, off=0, atomic=False):
    if NOBELL: return
    top = uid("bell")
    e("s_cbranch_execz %s_ok" % top)
    lab(top)
    e("s_mov_b64 exec, 1")
    if atomic:
        e("v_mov_b32 v%d, 0" % V_T0)
        e("buffer_atomic_add v%d, v%d, s[%d:%d], s%d offen offset:%d sc0" % (V_T0, va, SRD_WS, SRD_WS + 3, so, off + 4 * tagpos))
    else:
        e("buffer_load_dword v%d, v%d, s[%d:%d], s%d offen offset:%d sc1" % (V_T0, va, SRD_WS, SRD_WS + 3, so, off + 4 * tagpos))
    e("s_waitcnt vmcnt(0)")
    e("v_cmpx_eq_u32 vcc, s%d, v%d" % (S_T, V_T0))
    e("s_cbranch_execnz %s_ok" % top)
    e("s_sleep %d" % BELLSLEEP)
    e("s_sub_u32 s%d, s%d, 1" % (S_SPIN, S_SPIN))
    e("s_cbranch_scc0 %s" % top)
    e("s_mov_b32 s%d, 0" % S_SPIN)
    lab(top + "_ok")
    full()

def chk64(v): return "v_cmpx_eq_u64 vcc, s[%d:%d], v[%d:%d]" % (S_TT, S_TT + 1, v, v + 1)
def chk32(v): return "v_cmpx_eq_u32 vcc, s%d, v%d" % (S_T, v)

def _mask(m, lanemask):
    if lanemask is None: e("s_mov_b64 exec, s[%d:%d]" % (m, m + 1))
    elif lanemask == "lo8": e("s_andn2_b64 exec, s[%d:%d], s[%d:%d]" % (m, m + 1, S_HI8, S_HI8 + 1))
    else: e("s_and_b64 exec, s[%d:%d], %s" % (m, m + 1, lanemask))

def store_g(instr, lanemask=None, flags=" sc1"):
    l = uid("ns")
    if lanemask is not None: _mask(S_FULL, lanemask)
    e("s_cbranch_execz %s" % l)
    e(instr + flags)
    lab(l)
    if lanemask is not None: full()

def store_l(instr, lanemask=None):
    for m, fl in ((S_ML, ""), (S_MG, " sc1")):
        l = uid("ns")
        _mask(m, lanemask)
        e("s_cbranch_execz %s" % l)
        e(instr + fl)
        lab(l)
    full()

def xcc_publish(vt, srd_):
    e("s_getreg_b32 s%d, hwreg(HW_REG_XCC_ID, 0, 4)" % S_XCC)
    e("s_add_u32 s%d, s%d, 1" % (S_XCC, S_XCC))
    e("s_lshl_b32 s%d, s%d, 5" % (S_XOFF, S_XCD))
    skip = uid("noxcc")
    e("s_cmp_lg_u32 s%d, 4" % S_WAVE)
    e("s_cbranch_scc1 %s" % skip)
    e("s_lshr_b32 s%d, s2, 3" % S_B)
    e("s_add_u32 s%d, s%d, s%d" % (S_A, S_XOFF, S_B))
    e("v_mov_b32 v%d, s%d" % (vt, S_XCC))
    e("s_mov_b64 exec, 1")
    e("buffer_store_byte v%d, v%d, s[%d:%d], s%d offen sc1" % (vt, V_Z, srd_, srd_ + 3, S_A))
    e("s_mov_b64 exec, -1")
    lab(skip)
    e("s_mul_i32 s%d, s%d, 0x01010101" % (S_XCC, S_XCC))

def xcc_load(vd, vaddr, srd_):
    e("buffer_load_dword v%d, v%d, s[%d:%d], s%d offen sc1" % (vd, vaddr, srd_, srd_ + 3, S_XOFF))

def xcc_checks(vd, vt):
    return ["v_subrev_u32 v%d, 0x01010101, v%d" % (vt, vd),
            "v_bfi_b32 v%d, v%d, 0, v%d" % (vt, vd, vt),
            "v_and_b32 v%d, 0x80808080, v%d" % (vt, vt),
            "v_cmpx_eq_u32 vcc, 0, v%d" % vt]

def xcc_decide(vd):
    e("v_cmp_ne_u32 vcc, s%d, v%d" % (S_XCC, vd))
    e("s_nop 1")
    if NOLOCAL: e("s_cmp_eq_u32 s%d, 0" % S_XCC)
    else: e("s_cmp_eq_u64 vcc, 0")
    e("s_cselect_b64 s[%d:%d], s[%d:%d], 0" % (S_ML, S_ML + 1, S_FULL, S_FULL + 1))
    e("s_cselect_b64 s[%d:%d], 0, s[%d:%d]" % (S_MG, S_MG + 1, S_FULL, S_FULL + 1))

def ln_stats_ops(vals, vsum, vt, vmean, vrs, vsq):
    o = ["v_add_f32 v%d, v%d, v%d" % (vsum, vals[0], vals[1]), "v_add_f32 v%d, v%d, v%d" % (vt, vals[2], vals[3])]
    for i in range(4, 16, 2):
        o += ["v_add_f32 v%d, v%d, v%d" % (vsum, vsum, vals[i]), "v_add_f32 v%d, v%d, v%d" % (vt, vt, vals[i + 1])]
    o += ["v_add_f32 v%d, v%d, v%d" % (vsum, vsum, vt)]
    o += wave_allreduce_ops(vsum, vt)
    o += ["v_mul_f32 v%d, %s, v%d" % (vmean, f32(1.0 / 1024), vsum)]
    o += ["v_sub_f32 v%d, v%d, v%d" % (vt, vals[0], vmean), "v_mul_f32 v%d, v%d, v%d" % (vsum, vt, vt)]
    for i in range(1, 16):
        o += ["v_sub_f32 v%d, v%d, v%d" % (vt, vals[i], vmean), "v_fmac_f32 v%d, v%d, v%d" % (vsum, vt, vt)]
    o += wave_allreduce_ops(vsum, vt)
    o += ["v_mul_f32 v%d, %s, v%d" % (vsq, f32(1.0 / 1024), vsum)]
    o += bf16_round_ops(vsq)
    o += ["v_add_f32 v%d, %s, v%d" % (vsq, f32(1e-5), vsq)]
    o += bf16_round_ops(vsq)
    o += ["v_sqrt_f32 v%d, v%d" % (vsq, vsq)]
    o += bf16_round_ops(vmean)
    o += bf16_round_ops(vsq)
    o += ["v_rcp_f32 v%d, v%d" % (vrs, vsq), "s_nop 0"]
    return o

def ln_stats_dot_ops(pairs, one, s1, s2, vt, vmean, vrs):
    o = ["v_dot2_f32_bf16 v%d, v%d, v%d, 0" % (s1, pairs[0], one), "v_dot2_f32_bf16 v%d, v%d, v%d, 0" % (s2, pairs[0], pairs[0])]
    for p in pairs[1:]:
        o += ["v_dot2_f32_bf16 v%d, v%d, v%d, v%d" % (s1, p, one, s1), "v_dot2_f32_bf16 v%d, v%d, v%d, v%d" % (s2, p, p, s2)]
    o += ["s_nop 2"]
    for r in (8, 4, 2, 1):
        o += [dpp_add(s1, s1, "row_ror:%d" % r), dpp_add(s2, s2, "row_ror:%d" % r), "s_nop 0"]
    o += ["s_nop 0", "v_permlane32_swap_b32 v%d, v%d" % (s1, s2), "s_nop 0", "v_add_f32 v%d, v%d, v%d" % (s1, s1, s2),
          "v_mov_b32 v%d, v%d" % (s2, s1), "s_nop 1", "v_permlane16_swap_b32 v%d, v%d" % (s1, s2), "s_nop 0",
          "v_add_f32 v%d, v%d, v%d" % (s1, s1, s2), "v_mov_b32 v%d, v%d" % (s2, s1), "s_nop 1",
          "v_permlane32_swap_b32 v%d, v%d" % (s1, s2), "s_nop 0",
          "v_mul_f32 v%d, %s, v%d" % (vmean, f32(1.0 / 1024), s1),
          "v_mul_f32 v%d, %s, v%d" % (s2, f32(1.0 / 1024), s2),
          "v_fma_f32 v%d, -v%d, v%d, v%d" % (s2, vmean, vmean, s2),
          "v_max_f32 v%d, 0, v%d" % (s2, s2)]
    o += bf16_round_ops(s2)
    o += ["v_add_f32 v%d, %s, v%d" % (s2, f32(1e-5), s2)]
    o += bf16_round_ops(s2)
    o += ["v_sqrt_f32 v%d, v%d" % (s2, s2)]
    o += bf16_round_ops(vmean)
    o += bf16_round_ops(s2)
    o += ["v_rcp_f32 v%d, v%d" % (vrs, s2), "s_nop 0"]
    return o

def ln_apply_pair(dst, a, b, vmean, vrs, vsq, t0, t1):
    e("v_sub_f32 v%d, v%d, v%d" % (a, a, vmean))
    e("v_sub_f32 v%d, v%d, v%d" % (b, b, vmean))
    e("v_cvt_pk_bf16_f32 v%d, v%d, v%d" % (t0, a, b))
    unpack(a, b, t0)
    e("v_mul_f32 v%d, v%d, v%d" % (t0, a, vrs))
    e("v_mul_f32 v%d, v%d, v%d" % (t1, b, vrs))
    e("v_fma_f32 v%d, -v%d, v%d, v%d" % (a, t0, vsq, a))
    e("v_fma_f32 v%d, -v%d, v%d, v%d" % (b, t1, vsq, b))
    e("v_fmac_f32 v%d, v%d, v%d" % (t0, a, vrs))
    e("v_fmac_f32 v%d, v%d, v%d" % (t1, b, vrs))
    e("v_cvt_pk_bf16_f32 v%d, v%d, v%d" % (dst, t0, t1))

def sigma_of(dst, u, t):
    e("v_and_b32 v%d, 3, v%d" % (dst, u))
    e("v_lshlrev_b32 v%d, 1, v%d" % (dst, dst))
    e("v_bfe_u32 v%d, v%d, 2, 1" % (t, u))
    e("v_or_b32 v%d, v%d, v%d" % (dst, dst, t))

def dma256_voff(va, vb, pitch, t):
    e("v_bfe_u32 v%d, v1, 1, 3" % t)
    e("v_xor_b32 v%d, v3, v%d" % (t, t))
    e("v_lshlrev_b32 v%d, 5, v%d" % (t, t))
    e("v_and_b32 v%d, 1, v1" % va)
    e("v_lshl_add_u32 v%d, v%d, 4, v%d" % (t, va, t))
    e("v_mul_u32_u24 v%d, %d, v3" % (va, pitch))
    e("v_add_u32 v%d, v%d, v%d" % (va, va, t))
    e("v_xor_b32 v%d, 0x80, v%d" % (vb, va))

SKIP = opt("skip", "").split(",")
def dma_run(srd_, voffs, s_base, rowbytes, ldsbase, per_wave, m0, m1, pre=None, name=None):
    if name in SKIP: return
    _dma_run(srd_, voffs, s_base, rowbytes, ldsbase, per_wave, m0, m1, pre)

def _dma_run(srd_, voffs, s_base, rowbytes, ldsbase, per_wave, m0, m1, pre=None):
    e("s_mul_i32 s%d, s%d, %d" % (S_A, S_WAVE, per_wave * rowbytes))
    e("s_add_u32 s%d, s%d, s%d" % (S_A, S_A, s_base))
    if m0: e("s_add_u32 s%d, s%d, %d" % (S_A, S_A, rowbytes * m0))
    e("s_mul_i32 s%d, s%d, %d" % (S_B, S_WAVE, per_wave * 1024))
    if ldsbase + m0: e("s_add_u32 s%d, s%d, %d" % (S_B, S_B, ldsbase + 1024 * m0))
    for m in range(m0, m1):
        e("s_mov_b32 m0, s%d" % S_B)
        if pre: pre(m)
        if m < m1 - 1: e("s_add_u32 s%d, s%d, 1024" % (S_B, S_B))
        else: e("s_nop 0")
        e("buffer_load_dwordx4 v%d, s[%d:%d], s%d offen nt lds" % (voffs(m), srd_, srd_ + 3, S_A))
        if m < m1 - 1: e("s_add_u32 s%d, s%d, %d" % (S_A, S_A, rowbytes))

def tr256_addr(va, t):
    e("v_bfe_u32 v%d, v1, 2, 2" % t)
    e("v_and_b32 v%d, 1, v3" % va)
    e("v_lshl_or_b32 v%d, v%d, 2, v%d" % (va, va, t))
    e("v_xor_b32 v%d, s%d, v%d" % (va, S_WAVE, va))
    e("v_lshlrev_b32 v%d, 5, v%d" % (va, va))
    e("v_lshl_add_u32 v%d, v3, 3, v%d" % (t, t))
    e("v_lshl_add_u32 v%d, v%d, 8, v%d" % (va, t, va))
    e("v_and_b32 v%d, 3, v1" % t)
    e("v_lshl_add_u32 v%d, v%d, 3, v%d" % (va, t, va))

def tr256_read(dst, va):
    for m in range(8):
        for h in range(2):
            e("ds_read_b64_tr_b16 v[%d:%d], v%d offset:%d" % (dst + 4 * m + 2 * h, dst + 4 * m + 2 * h + 1, va, m * 8192 + h * 1024))

def act_rd_addr(ve, vo, t, ldsbase):
    e("v_and_b32 v%d, 7, v1" % t)
    e("v_lshlrev_b32 v%d, 1, v3" % ve)
    e("v_xor_b32 v%d, v%d, v%d" % (ve, ve, t))
    e("v_lshlrev_b32 v%d, 4, v%d" % (ve, ve))
    e("v_lshl_add_u32 v%d, v3, 7, v%d" % (ve, ve))
    e("v_add_u32 v%d, %d, v%d" % (ve, ldsbase, ve))
    e("v_xor_b32 v%d, 16, v%d" % (vo, ve))

def mfma(d, a, b, c):
    cs = "0" if c is None else "v[%d:%d]" % (c, c + 3)
    return "v_mfma_f32_16x16x32_bf16 v[%d:%d], v[%d:%d], v[%d:%d], %s" % (d, d + 3, a, a + 3, b, b + 3, cs)

def gemv8(acc, wf, af, ve, vo):
    for m in range(8):
        e("ds_read_b128 v[%d:%d], v%d offset:%d" % (af + 4 * m, af + 4 * m + 3, vo if (m & 1) else ve, m * 512))
    for m in range(8):
        e("s_waitcnt lgkmcnt(%d)" % (7 - m))
        e(mfma(acc, wf + 4 * m, af + 4 * m, None if m == 0 else acc))

def touch(items):
    for i, (va, so, off) in enumerate(items):
        e("buffer_load_dword v%d, v%d, s[%d:%d], s%d offen offset:%d sc1" % (V_X1 + 20 + i, va, SRD_WS, SRD_WS + 3, so, off))

def clean(instr, lanemask=None):
    if NOCLEAN: return
    l = uid("nc")
    _mask(S_ML, lanemask)
    e("s_cbranch_execz %s" % l)
    e(instr + " sc1")
    lab(l)
    full()

def trig2():
    l = uid("nt2")
    e("s_cmp_lg_u32 s%d, 0" % S_WAVE)
    e("s_cbranch_scc1 %s" % l)
    e("s_lshl_b32 s%d, s%d, 3" % (S_A, S_SLOT))
    e("s_or_b32 s%d, s%d, s%d" % (S_A, S_A, S_XCD))
    e("s_lshl_b32 s%d, s%d, 7" % (S_A, S_A))
    e("s_add_u32 s%d, s%d, 0x%x" % (S_A, S_A, WS_TRIG))
    store_g("buffer_store_dword v%d, v%d, s[%d:%d], s%d offen offset:8" % (V_P + 3, V_Z, SRD_WS, SRD_WS + 3, S_A), "1")
    lab(l)

def make_tag(vE):
    e("v_readfirstlane_b32 s%d, v%d" % (S_F, vE))
    e("s_nop 3")
    e("s_mul_i32 s%d, s%d, 0x9e3779b1" % (S_T, S_F))
    e("s_add_u32 s%d, s%d, 0x85ebca6b" % (S_T, S_T))
    e("s_mov_b32 s%d, s%d" % (S_TT, S_T))
    e("s_mov_b32 s%d, s%d" % (S_TT + 1, S_T))
    e("s_add_u32 s%d, s%d, 1" % (S_F, S_F))
    e("v_mov_b32 v%d, s%d" % (V_P + 2, S_T))
    e("v_mov_b32 v%d, s%d" % (V_P + 3, S_T))

def publish_partial(s_off, local):
    e("s_nop 7")
    e("v_cndmask_b32 v%d, v%d, v%d, s[%d:%d]" % (V_P, V_ACC, V_ACC + 2, S_HI8, S_HI8 + 1))
    e("v_cndmask_b32 v%d, v%d, v%d, s[%d:%d]" % (V_P + 1, V_ACC + 1, V_ACC + 3, S_HI8, S_HI8 + 1))
    ins = "buffer_store_dwordx4 v[%d:%d], v%d, s[%d:%d], s%d offen" % (V_P, V_P + 3, V_PUB, SRD_WS, SRD_WS + 3, s_off)
    (store_l if local else store_g)(ins)

def reduce16(s0, bell=False):
    top = poll_begin((V_RED, s0, 3, 0, "5" in AT) if bell else None)
    for n in range(4):
        e("buffer_load_dwordx4 v[%d:%d], v%d, s[%d:%d], s%d offen sc1" % (V_L + 4 * n, V_L + 4 * n + 3, V_RED, SRD_WS, SRD_WS + 3, s0 + n))
    poll_end(top, [chk64(V_L + 4 * n + 2) for n in range(4)], bell=(V_RED, s0, 3) if bell else None)
    a, b = V_L, V_L + 1
    e("v_pk_add_f32 v[%d:%d], v[%d:%d], v[%d:%d]" % (a, b, a, b, V_L + 4, V_L + 5))
    e("v_pk_add_f32 v[%d:%d], v[%d:%d], v[%d:%d]" % (V_L + 8, V_L + 9, V_L + 8, V_L + 9, V_L + 12, V_L + 13))
    e("v_pk_add_f32 v[%d:%d], v[%d:%d], v[%d:%d]" % (a, b, a, b, V_L + 8, V_L + 9))
    e("s_nop 1")
    e("v_permlane32_swap_b32 v%d, v%d" % (a, b))
    e("s_nop 0")
    e("v_add_f32 v%d, v%d, v%d" % (a, a, b))
    e("v_mov_b32 v%d, v%d" % (b, a))
    e("s_nop 1")
    e("v_permlane16_swap_b32 v%d, v%d" % (a, b))
    e("s_nop 0")
    e("v_add_f32 v%d, v%d, v%d" % (a, a, b))
    e("v_mov_b32 v%d, v%d" % (b, a))
    e("s_nop 1")
    e("v_permlane32_swap_b32 v%d, v%d" % (a, b))
    e("s_nop 0")

def only_red(lbl):
    e("s_cmp_ge_u32 s%d, s3" % S_WAVE)
    e("s_cbranch_scc1 %s" % lbl)

def residual_add(dst, vres):
    e("v_cvt_pk_bf16_f32 v%d, v%d, v%d" % (V_T0, V_L, V_L + 1))
    unpack(V_U + 2, V_U + 3, vres)
    unpack(V_U, V_U + 1, V_T0)
    e("v_add_f32 v%d, v%d, v%d" % (V_U, V_U, V_U + 2))
    e("v_add_f32 v%d, v%d, v%d" % (V_U + 1, V_U + 1, V_U + 3))
    e("v_cvt_pk_bf16_f32 v%d, v%d, v%d" % (dst, V_U, V_U + 1))

def pos_write_addr(dst, ldsbase):
    e("v_bfe_u32 v%d, v1, 1, 3" % V_T2)
    sigma_of(V_T0, V_T2, V_T1)
    e("v_xor_b32 v%d, s%d, v%d" % (V_T0, S_WAVE, V_T0))
    e("v_lshlrev_b32 v%d, 4, v%d" % (V_T0, V_T0))
    e("v_lshrrev_b32 v%d, 1, v1" % V_T1)
    e("v_lshl_add_u32 v%d, v%d, 7, v%d" % (V_T0, V_T1, V_T0))
    e("v_and_b32 v%d, 1, v1" % V_T1)
    e("v_lshl_add_u32 v%d, v%d, 3, v%d" % (V_T0, V_T1, V_T0))
    e("v_add_u32 v%d, %d, v%d" % (dst, ldsbase, V_T0))

def gen():
    for l in """Fused decode layer: preLN + sliding-window GQA attention + residual + preLN + GLU MLP + residual.
Kernarg (96 bytes, pointers only): 0 A_x, 8 A_k_cache, 16 A_v_cache, 24 A_wq, 32 A_wo, 40 B_x (unused), 48 B_w_gate,
  56 B_w_up, 64 B_w_down, 72 d_out, 80 d_debug, 88 d_ws.
One persistent launch, 256 workgroups x 8 waves, one workgroup per CU.  role = (wg>>3)&1:
  B: LN1 + Q-proj tile -> O-proj tile -> h reduce -> down-proj tile -> final reduce
  A: attention for (batch, kv head, 256-key split) -> split combine -> gate/up tile (LN2 folded in)
Weights / K / V stream HBM -> LDS (LDS-DMA, swizzled images) and feed MFMA through transposing LDS reads.
Hand-offs between workgroups are 8/16-byte granules in d_ws that carry a per-launch tag (hash of an epoch word
  kept in d_ws).  Groups of workgroups that find (via the XCC id table in d_debug) that they share an XCD
  exchange through L2 with plain stores; otherwise every hand-off is written through.  All spins are bounded.
Waves 4-7 run upcoming latency-critical code once with EXEC=0 (memory instructions branched around) so that it
  is resident in the instruction cache while waves 0-3 issue the streams.
Generated by a script (work/gen.py).""".split("\n"):
        lines.append("; " + l)
    lines.append("; @launch grid=(256,1,1) block=(512,1,1) lds=%d" % LDS_BYTES)
    lines.append('.amdgcn_target "amdgcn-amd-amdhsa--gfx950"')
    lines.append(".text")
    lines.append(".globl %s_kernel" % NAME)
    lines.append(".p2align 8")
    lines.append(".type %s_kernel,@function" % NAME)
    lab("%s_kernel" % NAME)
    e("s_cmp_ge_u32 s2, 256")
    e("s_cbranch_scc1 L_end")
    if STAMPS:
        e("s_memrealtime s[%d:%d]" % (S_TM, S_TM + 1))
        for k in range(1, 16): e("s_mov_b32 s%d, 0" % (S_ST + k))
    e("s_load_dwordx16 s[4:19], s[0:1], 0")
    e("s_load_dwordx8 s[20:27], s[0:1], 64")
    e("v_lshrrev_b32 v4, 6, v0")
    e("v_and_b32 v1, 63, v0")
    e("v_readfirstlane_b32 s%d, v4" % S_WAVE)
    e("v_and_b32 v2, 15, v1")
    e("v_lshrrev_b32 v3, 4, v1")
    e("s_and_b32 s%d, s2, 7" % S_XCD)
    e("s_lshr_b32 s%d, s2, 4" % S_SLOT)
    e("v_mov_b32 v%d, 0" % V_Z)
    if PRIO: e("s_setprio 3")
    code_prefetch()
    e("s_bitcmp1_b32 s2, 3")
    e("s_cbranch_scc1 L_roleA")
    role_b()
    lab("L_roleA")
    role_a()
    lab("L_end")
    e("s_endpgm")
    lines.append('.section .rodata,"a"')
    lines.append(".p2align 6")
    lines.append(".amdhsa_kernel %s_kernel" % NAME)
    lines.append("  .amdhsa_next_free_vgpr 256")
    lines.append("  .amdhsa_next_free_sgpr 102")
    lines.append("  .amdhsa_accum_offset 256")
    lines.append("  .amdhsa_group_segment_fixed_size 0")
    lines.append("  .amdhsa_kernarg_size 96")
    lines.append("  .amdhsa_user_sgpr_count 2")
    lines.append("  .amdhsa_user_sgpr_kernarg_segment_ptr 1")
    lines.append("  .amdhsa_system_sgpr_workgroup_id_x 1")
    lines.append(".end_amdhsa_kernel")

def code_prefetch():
    if NOCODEPF: return
    l = uid("nopf")
    e("s_lshl_b32 s%d, s%d, 3" % (S_A, S_SLOT))
    e("s_add_u32 s%d, s%d, s%d" % (S_A, S_A, S_WAVE))
    e("s_cmp_lg_u32 s%d, 5" % S_A)
    e("s_cbranch_scc1 %s" % l)
    e("s_getpc_b64 s[%d:%d]" % (S_ML, S_ML + 1))
    lab(l + "_pc")
    e("s_sub_u32 s%d, s%d, %s_pc-%s_kernel" % (S_ML, S_ML, l, NAME))
    e("s_subb_u32 s%d, s%d, 0" % (S_ML + 1, S_ML + 1))
    e("v_lshlrev_b32 v%d, 7, v1" % V_T0)
    e("global_load_dword v%d, v%d, s[%d:%d]" % (V_U, V_T0, S_ML, S_ML + 1))
    e("v_add_u32 v%d, 0x2000, v%d" % (V_T0, V_T0))
    e("v_min_u32 v%d, L_end-%s_kernel, v%d" % (V_T0, NAME, V_T0))
    e("global_load_dword v%d, v%d, s[%d:%d]" % (V_U + 1, V_T0, S_ML, S_ML + 1))
    lab(l)

def common_consts():
    e("s_mov_b32 s%d, 0x40000" % S_SPIN)
    e("s_mov_b32 s%d, 0xff00ff00" % S_HI8)
    e("s_mov_b32 s%d, 0xff00ff00" % (S_HI8 + 1))
    e("s_mov_b64 s[%d:%d], -1" % (S_FULL, S_FULL + 1))
    e("s_mov_b32 s%d, 0" % S_DRY)

def role_b():
    cmt("================= role B =================")
    V_AWD, V_XA, V_HO, V_ZA, V_TR1 = V_X1 + 1, V_X1 + 2, V_X1 + 3, V_X1 + 4, V_X1 + 5
    V_VC, V_VD = V_X1 + 6, V_X1 + 7
    V_ZQ = V_X1 + 8
    ab = lambda m: V_VB if (m & 2) else V_VA
    dma256_voff(V_VA, V_VB, 8192, V_T0)
    e("v_lshlrev_b32 v%d, 4, v1" % V_G)
    e("s_and_b32 s%d, s%d, 3" % (S_D, S_SLOT))
    e("s_lshr_b32 s%d, s%d, 2" % (S_A, S_SLOT))
    e("s_lshl_b32 s%d, s%d, 1" % (S_B, S_XCD))
    e("s_add_u32 s%d, s%d, s%d" % (S_B, S_B, S_A))
    e("s_lshl_b32 s%d, s%d, 2" % (S_C, S_B))
    e("s_add_u32 s%d, s%d, 1" % (S_C, S_C))
    e("s_sub_u32 s%d, s%d, 2" % (S_B, S_B))
    e("s_lshl_b32 s%d, s%d, 2" % (S_E, S_XCD))
    e("s_add_u32 s%d, s%d, s%d" % (S_E, S_E, S_A))
    e("s_sub_u32 s%d, s%d, 8" % (S_E, S_E))
    e("s_cmp_ge_u32 s%d, 4" % S_XCD)
    e("s_cselect_b32 s%d, s%d, s%d" % (S_B, S_E, S_B))
    e("s_cselect_b32 s%d, 2, s%d" % (S_A, S_A))
    e("s_mul_i32 s%d, s%d, 43" % (S_E, S_B))
    e("s_lshr_b32 s%d, s%d, 7" % (S_E, S_E))
    e("s_mul_i32 s%d, s%d, 3" % (S_F, S_E))
    e("s_sub_u32 s%d, s%d, s%d" % (S_F, S_B, S_F))
    e("s_lshl_b32 s%d, s%d, 2" % (S_E, S_E))
    e("s_add_u32 s%d, s%d, s%d" % (S_E, S_E, S_F))
    e("s_min_u32 s%d, s%d, 1" % (S_F, S_F))
    e("s_add_u32 s%d, s%d, s%d" % (S_E, S_E, S_F))
    e("s_cmp_ge_u32 s%d, 2" % S_A)
    e("s_cselect_b32 s%d, s%d, s%d" % (S_C, S_E, S_C))
    e("s_lshl_b32 s%d, s%d, 21" % (S_E, S_D))
    e("s_lshl_b32 s%d, s%d, 8" % (S_A, S_C))
    e("s_add_u32 s%d, s%d, s%d" % (S_E, S_E, S_A))
    e("s_lshl_b32 s82, s%d, 11" % S_WAVE)
    e("s_lshl_b32 s83, s%d, 9" % S_D)
    e("s_add_u32 s83, s83, s82")
    e("s_waitcnt lgkmcnt(0)")
    if STAMPS: e("s_mov_b32 s%d, s%d" % (S_ST, S_TM))
    srd(SRD_X, S_X, 16384)
    srd(SRD_W, S_WQ, 8 << 20)
    e("buffer_load_dwordx4 v[%d:%d], v%d, s[%d:%d], s82 offen" % (V_L, V_L + 3, V_G, SRD_X, SRD_X + 3))
    e("buffer_load_dwordx4 v[%d:%d], v%d, s[%d:%d], s82 offen offset:1024" % (V_L + 4, V_L + 7, V_G, SRD_X, SRD_X + 3))
    e("buffer_load_dwordx4 v[%d:%d], v%d, s[%d:%d], s83 offen" % (V_L + 8, V_L + 11, V_G, SRD_X, SRD_X + 3))
    if XBAR: e("s_barrier")
    dma_run(SRD_W, ab, S_E, 4 * 8192, L_W0, 8, 0, QFIRST)
    srd(SRD_WS, S_WS, WS_SIZE)
    e("buffer_load_dword v%d, v%d, s[%d:%d], 0 offen sc1" % (V_L + 12, V_Z, SRD_WS, SRD_WS + 3))
    stamp(1)
    common_consts()
    e("s_lshr_b32 s%d, s%d, 1" % (S_A, S_SLOT))
    e("s_lshl_b32 s%d, s%d, 11" % (S_A, S_A))
    e("s_lshl_b32 s%d, s%d, 8" % (S_B, S_XCD))
    e("s_add_u32 s%d, s%d, s%d" % (S_A, S_A, S_B))
    e("s_and_b32 s%d, s%d, 1" % (S_B, S_SLOT))
    e("s_lshl_b32 s%d, s%d, 7" % (S_B, S_B))
    e("s_add_u32 s%d, s%d, s%d" % (S_A, S_A, S_B))
    e("s_and_b32 s%d, s%d, 1" % (S_B, S_WAVE))
    e("s_lshl_b32 s%d, s%d, 6" % (S_B, S_B))
    e("s_add_u32 s80, s%d, s%d" % (S_A, S_B))
    e("v_lshlrev_b32 v%d, 2, v2" % V_X1)
    e("v_lshlrev_b32 v%d, 3, v2" % V_HO)
    e("buffer_load_dword v%d, v%d, s[%d:%d], s80 offen" % (V_XP, V_X1, SRD_X, SRD_X + 3))
    e("s_waitcnt vmcnt(%d)" % (QFIRST + 2))
    for i in range(8):
        unpack(V_U + 2 * i, V_U + 2 * i + 1, V_L + i)
    emit(ln_stats_ops([V_U + i for i in range(16)], V_SUM, V_T0, V_M, V_RS, V_SQ))
    if QFIRST < 8:
        dma_run(SRD_W, ab, S_E, 4 * 8192, L_W0, 8, QFIRST, 8)
    for i in range(4):
        unpack(V_U + 2 * i, V_U + 2 * i + 1, V_L + 8 + i)
    for i in range(4):
        ln_apply_pair(V_L + 16 + i, V_U + 2 * i, V_U + 2 * i + 1, V_M, V_RS, V_SQ, V_T0, V_T1)
    e("v_and_b32 v%d, 7, v1" % V_T2)
    e("v_lshlrev_b32 v%d, 2, v%d" % (V_XA, V_T2))
    sigma_of(V_T0, V_T2, V_T1)
    e("v_xor_b32 v%d, s%d, v%d" % (V_T0, S_WAVE, V_T0))
    e("v_lshlrev_b32 v%d, 4, v%d" % (V_T0, V_T0))
    e("v_lshl_add_u32 v%d, v1, 7, v%d" % (V_T0, V_T0))
    e("v_add_u32 v%d, %d, v%d" % (V_T0, L_ACT, V_T0))
    e("s_mov_b64 exec, 0xffffffff")
    e("ds_write_b128 v%d, v[%d:%d]" % (V_T0, V_L + 16, V_L + 19))
    e("s_mov_b64 exec, -1")
    srd(SRD_X, S_DBG, 256)
    xcc_publish(V_T0, SRD_X)
    if PFK:
        srd(SRD_O, S_K, 32 << 20)
        e("s_lshl_b32 s84, s%d, 22" % S_XCD)
        e("s_lshl_b32 s%d, s%d, 18" % (S_A, S_SLOT))
        e("s_and_b32 s%d, s%d, 0x300000" % (S_A, S_A))
        e("s_add_u32 s84, s84, s%d" % S_A)
        e("s_and_b32 s%d, s%d, 3" % (S_A, S_SLOT))
        e("s_lshl_b32 s%d, s%d, 16" % (S_A, S_A))
        e("s_add_u32 s84, s84, s%d" % S_A)
        e("s_add_u32 s84, s84, 0x%x" % (3072 * 256 + 65536 - 8192 * PFK))
        dma_run(SRD_O, lambda m: V_G, 84, 1024, L_W1, PFK, 0, PFK)
    tr256_addr(V_TR, V_T0)
    act_rd_addr(V_AE, V_AO, V_T0, L_ACT)
    e("v_and_b32 v%d, 7, v1" % V_T0)
    e("v_lshlrev_b32 v%d, 10, v%d" % (V_PUB, V_T0))
    e("v_lshrrev_b32 v%d, 3, v2" % V_T0)
    e("v_lshl_add_u32 v%d, v3, 1, v%d" % (V_T0, V_T0))
    e("v_lshl_add_u32 v%d, v%d, 4, v%d" % (V_PUB, V_T0, V_PUB))
    e("s_lshl_b32 s%d, s%d, 7" % (S_A, S_WAVE))
    e("v_add_u32 v%d, s%d, v%d" % (V_PUB, S_A, V_PUB))
    e("s_lshl_b32 s%d, s%d, 2" % (S_A, S_C))
    e("s_add_u32 s%d, s%d, s%d" % (S_A, S_A, S_D))
    e("s_lshl_b32 s%d, s%d, 13" % (S_A, S_A))
    e("s_add_u32 s81, s%d, 0x%x" % (S_A, WS_H1))
    stamp(2)
    if NODRY: e("s_branch L_q_real")
    e("s_waitcnt lgkmcnt(0)")
    set_dry()
    lab("L_q_top")
    tr256_read(V_WF, V_TR)
    gemv8(V_ACC, V_WF, V_AF, V_AE, V_AO)
    publish_partial(81, False)
    e("s_cmp_eq_u32 s%d, 0" % S_DRY)
    e("s_cbranch_scc1 L_q_done")
    lab("L_q_real")
    set_real()
    e("s_waitcnt vmcnt(%d)" % (8 - QFIRST + 1 + PFK))
    make_tag(V_L + 12)
    e("s_waitcnt vmcnt(%d) lgkmcnt(0)" % PFK)
    e("s_barrier")
    stamp(3)
    e("s_branch L_q_top")
    lab("L_q_done")
    stamp(4)
    dma256_voff(V_VA, V_VB, 2048, V_T0)
    e("v_add_u32 v%d, %d, v%d" % (V_TR1, L_W1, V_TR))
    e("s_and_b32 s%d, s%d, 1" % (S_A, S_WAVE))
    e("s_lshl_b32 s%d, s%d, 7" % (S_A, S_A))
    e("v_xor_b32 v%d, s%d, v%d" % (V_X1 + 14, S_A, V_VA))
    e("v_xor_b32 v%d, 0x80, v%d" % (V_X1 + 15, V_X1 + 14))
    pos_write_addr(V_AW, L_ACT)
    e("v_lshlrev_b32 v%d, 13, v3" % V_RED)
    e("v_lshl_add_u32 v%d, v2, 4, v%d" % (V_RED, V_RED))
    e("s_and_b32 s%d, s%d, 1" % (S_A, S_WAVE))
    e("s_lshl_b32 s%d, s%d, 8" % (S_A, S_A))
    e("v_add_u32 v%d, s%d, v%d" % (V_RED, S_A, V_RED))
    e("s_lshl_b32 s%d, s%d, 3" % (S_A, S_SLOT))
    e("s_or_b32 s%d, s%d, s%d" % (S_A, S_A, S_XCD))
    e("s_lshl_b32 s%d, s%d, 7" % (S_A, S_A))
    e("s_add_u32 s83, s%d, 0x%x" % (S_A, WS_TRIG))
    e("s_lshl_b32 s%d, s%d, 3" % (S_A, S_SLOT))
    e("s_add_u32 s%d, s%d, s%d" % (S_A, S_A, S_WAVE))
    e("s_lshl_b32 s%d, s%d, 10" % (S_A, S_A))
    e("s_add_u32 s82, s%d, 0x%x" % (S_A, WS_H2G))
    e("s_lshl_b32 s%d, s%d, 4" % (S_A, S_XCD))
    e("s_add_u32 s%d, s%d, s%d" % (S_A, S_A, S_SLOT))
    e("s_lshl_b32 s%d, s%d, 13" % (S_A, S_A))
    e("s_add_u32 s84, s%d, 0x%x" % (S_A, WS_H3A))
    e("s_lshl_b32 s%d, s%d, 17" % (S_A, S_XCD))
    e("s_lshl_b32 s%d, s%d, 9" % (S_B, S_SLOT))
    e("s_add_u32 s%d, s%d, s%d" % (S_A, S_A, S_B))
    e("s_add_u32 s85, s%d, 0x%x" % (S_A, WS_H3A))
    e("s_add_u32 s86, s%d, 0x%x" % (S_A, WS_H5))
    for n in range(4):
        e("s_add_u32 s%d, s85, %d" % (4 + n, 32768 * n))
        e("s_add_u32 s%d, s86, %d" % (8 + n, 32768 * n))
    e("s_lshl_b32 s%d, s80, 1" % S_A)
    e("s_add_u32 s90, s%d, 0x%x" % (S_A, WS_H3B))
    e("s_lshr_b32 s%d, s%d, 3" % (S_C, S_SLOT))
    e("s_lshl_b32 s%d, s%d, 1" % (S_A, S_XCD))
    e("s_add_u32 s%d, s%d, s%d" % (S_C, S_C, S_A))
    e("s_and_b32 s%d, s%d, 7" % (S_D, S_SLOT))
    e("s_mul_i32 s91, s%d, %d" % (S_C, 224 * 2048))
    e("s_lshl_b32 s%d, s%d, 8" % (S_A, S_D))
    e("s_add_u32 s91, s91, s%d" % S_A)
    e("s_min_u32 s%d, s%d, 6" % (S_A, S_WAVE))
    e("s_lshl_b32 s%d, s%d, 10" % (S_B, S_A))
    e("s_mul_i32 s%d, s%d, 7168" % (S_E, S_C))
    e("s_add_u32 s%d, s%d, s%d" % (S_E, S_E, S_B))
    e("s_add_u32 s87, s%d, 0x%x" % (S_E, WS_H4S))
    e("s_add_u32 s88, s%d, 0x%x" % (S_E, WS_H4U))
    e("s_lshl_b32 s%d, s%d, 2" % (S_B, S_A))
    e("v_add_u32 v%d, s%d, v3" % (V_T3, S_B))
    e("v_and_b32 v%d, 7, v%d" % (V_T2, V_T3))
    sigma_of(V_T0, V_T2, V_T1)
    e("v_and_b32 v%d, 7, v1" % V_T1)
    e("v_xor_b32 v%d, v%d, v%d" % (V_T0, V_T0, V_T1))
    e("v_lshlrev_b32 v%d, 4, v%d" % (V_T0, V_T0))
    e("v_lshl_add_u32 v%d, v%d, 7, v%d" % (V_T0, V_T3, V_T0))
    e("v_bfe_u32 v%d, v1, 3, 1" % V_T1)
    e("v_lshl_add_u32 v%d, v%d, 3, v%d" % (V_T0, V_T1, V_T0))
    e("v_add_u32 v%d, %d, v%d" % (V_AWD, L_ACT, V_T0))
    e("s_lshl_b32 s%d, s%d, 4" % (S_A, S_D))
    e("s_add_u32 s%d, s%d, s%d" % (S_A, S_A, S_C))
    e("s_lshl_b32 s%d, s%d, 13" % (S_A, S_A))
    e("s_add_u32 s89, s%d, 0x%x" % (S_A, WS_H5))
    e("v_and_b32 v%d, 31, v1" % V_T0)
    e("v_lshlrev_b32 v%d, 4, v%d" % (V_T0, V_T0))
    e("v_add_u32 v%d, %d, v%d" % (V_ZA, L_ACT + 28 * 128, V_T0))
    for k in range(4): e("v_mov_b32 v%d, 0" % (V_ZQ + k))
    srd(SRD_O, S_OUT, 16384)
    e("s_lshr_b32 s%d, s%d, 7" % (S_E, S_WG))
    e("s_mul_i32 s%d, s%d, 7" % (S_A, S_XCD))
    e("s_add_u32 s%d, s%d, s%d" % (S_E, S_E, S_A))
    e("s_sub_u32 s%d, 3, s%d" % (S_E, S_E))
    e("s_and_b32 s%d, s%d, 7" % (S_E, S_E))
    e("s_lshr_b32 s%d, s%d, 3" % (S_A, S_SLOT))
    e("s_mul_i32 s%d, s%d, 56" % (S_A, S_A))
    e("s_min_u32 s%d, s%d, 6" % (S_B, S_WAVE))
    e("s_lshl_b32 s%d, s%d, 3" % (S_B, S_B))
    e("s_add_u32 s%d, s%d, s%d" % (S_A, S_A, S_B))
    e("s_lshr_b32 s%d, s%d, 4" % (S_B, S_A))
    e("s_cmp_eq_u32 s%d, s%d" % (S_B, S_E))
    e("s_cselect_b32 s96, 1, 0")
    e("s_and_b32 s%d, s%d, 8" % (S_A, S_A))
    e("s_lshl_b32 s%d, s%d, 8" % (S_A, S_A))
    e("s_lshl_b32 s%d, s%d, 12" % (S_B, S_XCD))
    e("s_add_u32 s%d, s%d, s%d" % (S_A, S_A, S_B))
    e("s_add_u32 s81, s%d, 0x%x" % (S_A, WS_H4P))
    e("v_lshlrev_b32 v%d, 5, v1" % V_VC)
    e("v_add_u32 v%d, 0x8000, v%d" % (V_VD, V_VC))
    e("v_add_u32 v%d, 0x10000, v%d" % (V_X1 + 12, V_VC))
    e("v_add_u32 v%d, 0x18000, v%d" % (V_X1 + 13, V_VC))
    e("s_lshl_b32 s99, s%d, 19" % S_SLOT)
    e("s_lshl_b32 s%d, s%d, 8" % (S_A, S_XCD))
    e("s_add_u32 s99, s99, s%d" % S_A)
    e("s_barrier")
    e("s_cmp_ge_u32 s%d, 4" % S_WAVE)
    e("s_cbranch_scc1 L_b_warm")
    srd(SRD_W, S_WO, 8 << 20)
    top = poll_begin()
    e("buffer_load_dwordx2 v[%d:%d], v%d, s[%d:%d], s83 offen sc1" % (V_L, V_L + 1, V_Z, SRD_WS, SRD_WS + 3))
    poll_end(top, [chk64(V_L)])
    dma_run(SRD_W, ab, 99, 4 * 2048, L_W1, 16, 0, 16, name="wo")
    if DEARLY:
        srd(SRD_W, S_WD, 3584 * 2048)
        dma_run(SRD_W, lambda m: V_X1 + 15 if (m & 2) else V_X1 + 14, 91, 4 * 2048, L_W0, 14, 0, 14)
    if DSPLIT:
        srd(SRD_W, S_WD, 3584 * 2048)
        dma_run(SRD_W, ab, 91, 4 * 2048, L_W0, 8, 0, 8)
    stamp(5)
    e("s_waitcnt vmcnt(%d)" % (14 if DEARLY else 8 if DSPLIT else 0))
    e("s_branch L_b_real")
    lab("L_b_warm")
    if not NOTOUCH:
        e("s_cmp_lg_u32 s%d, 4" % S_WAVE)
        e("s_cbranch_scc1 L_b_notouch")
        e("v_lshlrev_b32 v%d, 7, v1" % V_T0)
        e("v_lshrrev_b32 v%d, 2, v1" % V_T1)
        e("v_lshlrev_b32 v%d, 13, v%d" % (V_T1, V_T1))
        e("v_and_b32 v%d, 3, v1" % V_T2)
        e("v_lshl_add_u32 v%d, v%d, 7, v%d" % (V_T1, V_T2, V_T1))
        e("s_sub_u32 s%d, s87, 4096" % S_A)
        e("s_sub_u32 s%d, s88, 4096" % S_B)
        e("s_lshl_b32 s%d, s%d, 12" % (S_C, S_XCD))
        e("s_add_u32 s%d, s%d, 0x%x" % (S_C, S_C, WS_H4P))
        e("v_and_b32 v%d, 31, v1" % V_T2)
        e("v_lshlrev_b32 v%d, 7, v%d" % (V_T2, V_T2))
        e("v_lshrrev_b32 v%d, 5, v1" % V_T3)
        e("v_lshl_add_u32 v%d, v%d, 15, v%d" % (V_T2, V_T3, V_T2))
        e("v_add_u32 v%d, 0x10000, v%d" % (V_T3, V_T2))
        touch([(V_T1, 85, 0), (V_T0, S_A, 0), (V_T0, S_B, 0), (V_T2, S_C, 0), (V_T3, S_C, 0), (V_Z, 82, 0), (V_Z, 86, 0), (V_Z, 89, 0), (V_Z, 90, 0)])
        if TLBT:
            e("v_mov_b32 v%d, s99" % V_T0)
            e("v_mov_b32 v%d, s91" % V_T1)
            e("global_load_dword v%d, v%d, s[%d:%d]" % (V_X1 + 29, V_T0, S_WO, S_WO + 1))
            e("global_load_dword v%d, v%d, s[%d:%d]" % (V_X1 + 30, V_T1, S_WD, S_WD + 1))
            e("global_load_dword v%d, v%d, s[%d:%d]" % (V_X1 + 31, V_Z, S_OUT, S_OUT + 1))
        lab("L_b_notouch")
    if NODRY: e("s_branch L_b_real")
    set_dry()
    e("s_branch L_b_tail")
    lab("L_b_real")
    set_real()
    e("s_barrier")
    lab("L_b_tail")
    tr256_read(V_WF, V_TR1)
    top = poll_begin()
    xcc_load(V_L, V_XA, SRD_X)
    poll_end(top, xcc_checks(V_L, V_T0))
    xcc_decide(V_L)
    stamp(6)
    top = poll_begin((V_G, 82, 3, 0, "2" in AT))
    e("buffer_load_dwordx4 v[%d:%d], v%d, s[%d:%d], s82 offen sc1" % (V_L, V_L + 3, V_G, SRD_WS, SRD_WS + 3))
    poll_end(top, [chk64(V_L + 2)], bell=(V_G, 82, 3))
    e("ds_write_b64 v%d, v[%d:%d]" % (V_AW, V_L, V_L + 1))
    stamp(7)
    e("s_waitcnt lgkmcnt(0)")
    barrier(True)
    gemv8(V_ACC, V_WF, V_AF, V_AE, V_AO)
    publish_partial(84, True)
    stamp(8)
    only_red("L_b_nor3")
    reduce16(4)
    stamp(9)
    residual_add(V_U + 4, V_XP)
    e("v_mov_b32 v%d, s%d" % (V_U + 6, S_T))
    e("v_mov_b32 v%d, s%d" % (V_U + 7, S_T))
    e("v_mov_b32_dpp v%d, v%d quad_perm:[1,1,3,3] row_mask:0xf bank_mask:0xf" % (V_U + 5, V_U + 4))
    store_g("buffer_store_dwordx4 v[%d:%d], v%d, s[%d:%d], s90 offen" % (V_U + 4, V_U + 7, V_HO, SRD_WS, SRD_WS + 3), "0x5555")
    e("v_mov_b32 v%d, v%d" % (V_H, V_U + 4))
    stamp(10)
    lab("L_b_nor3")
    if DEARLY:
        barrier(True)
    else:
        e("s_cbranch_execz L_b_nod")
        e("s_barrier")
        srd(SRD_W, S_WD, 3584 * 2048)
        if TRIG2: doorbell(V_Z, 83, 2)
        e("s_cmp_ge_u32 s%d, %d" % (S_WAVE, 6 if DSPLIT else 7))
        e("s_cbranch_scc1 L_b_nod7")
        if DSPLIT: dma_run(SRD_W, ab, 91, 4 * 2048, L_W0, 4, 32, 36, name="d")
        else: dma_run(SRD_W, ab, 91, 4 * 2048, L_W0, 8, 0, 8, name="d")
        lab("L_b_nod7")
        e("s_waitcnt vmcnt(0)")
        e("s_barrier")
        lab("L_b_nod")
    e("ds_write_b128 v%d, v[%d:%d]" % (V_ZA, V_ZQ, V_ZQ + 3))
    tr256_read(V_WF, V_TR)
    stamp(11)
    e("s_cmp_eq_u32 s96, 0")
    e("s_cbranch_scc0 L_b_split")
    lab("L_b_plain")
    top = poll_begin((V_G, 88, 3) if "4" not in NB else None)
    e("buffer_load_dwordx4 v[%d:%d], v%d, s[%d:%d], s87 offen sc1" % (V_L, V_L + 3, V_G, SRD_WS, SRD_WS + 3))
    e("buffer_load_dwordx4 v[%d:%d], v%d, s[%d:%d], s88 offen sc1" % (V_L + 4, V_L + 7, V_G, SRD_WS, SRD_WS + 3))
    poll_end(top, [chk32(V_L + 1), chk32(V_L + 3), chk32(V_L + 5), chk32(V_L + 7)], bell=(V_G, 88, 3))
    unpack(V_U, V_U + 1, V_L); unpack(V_U + 4, V_U + 5, V_L + 4)
    unpack(V_U + 2, V_U + 3, V_L + 2); unpack(V_U + 6, V_U + 7, V_L + 6)
    e("s_cbranch_execnz L_b_join")
    lab("L_b_split")
    top = poll_begin((V_X1 + 12, 81, 3) if "4" not in NB else None)
    for i, va in enumerate((V_VC, V_VD, V_X1 + 12, V_X1 + 13)):
        if i == 2: top2 = poll_mid(top)
        for h in range(2):
            r = V_L + 8 * i + 4 * h
            e("buffer_load_dwordx4 v[%d:%d], v%d, s[%d:%d], s81 offen offset:%d sc1" % (r, r + 3, va, SRD_WS, SRD_WS + 3, 16 * h))
    poll_end(top, [chk64(V_L + 4 * i + 2) for i in range(8)], last=top2, bell=(V_X1 + 12, 81, 3))
    for mat in range(2):
        for h in range(2):
            for k in range(2):
                e("v_add_f32 v%d, v%d, v%d" % (V_U + 4 * mat + 2 * h + k, V_L + 16 * mat + 4 * h + k, V_L + 16 * mat + 8 + 4 * h + k))
    for i in range(4):
        e("v_cvt_pk_bf16_f32 v%d, v%d, v%d" % (V_L + i, V_U + 2 * i, V_U + 2 * i + 1))
    for i in range(4):
        unpack(V_U + 2 * i, V_U + 2 * i + 1, V_L + i)
    for k in range(4): e("v_mul_f32 v%d, %s, v%d" % (V_U + k, f32(-LOG2E), V_U + k))
    for k in range(4): e("v_exp_f32 v%d, v%d" % (V_U + k, V_U + k))
    for k in range(4): e("v_add_f32 v%d, 1.0, v%d" % (V_U + k, V_U + k))
    for k in range(4): e("v_rcp_f32 v%d, v%d" % (V_U + k, V_U + k))
    e("s_nop 0")
    for i in range(2):
        e("v_cvt_pk_bf16_f32 v%d, v%d, v%d" % (V_L + i, V_U + 2 * i, V_U + 2 * i + 1))
    for i in range(2):
        unpack(V_U + 2 * i, V_U + 2 * i + 1, V_L + i)
    lab("L_b_join")
    stamp(12)
    for k in range(4): e("v_mul_f32 v%d, v%d, v%d" % (V_U + k, V_U + k, V_U + 4 + k))
    e("v_cvt_pk_bf16_f32 v%d, v%d, v%d" % (V_U + 16, V_U, V_U + 1))
    e("v_cvt_pk_bf16_f32 v%d, v%d, v%d" % (V_U + 17, V_U + 2, V_U + 3))
    e("ds_write_b64 v%d, v[%d:%d]" % (V_AWD, V_U + 16, V_U + 17))
    e("s_waitcnt lgkmcnt(0)")
    barrier(True)
    gemv8(V_ACC, V_WF, V_AF, V_AE, V_AO)
    publish_partial(89, False)
    stamp(13)
    noep = uid("noep")
    e("s_add_u32 s%d, s2, s%d" % (S_A, S_WAVE))
    e("s_cmp_lg_u32 s%d, 0" % S_A)
    e("s_cbranch_scc1 %s" % noep)
    e("s_mov_b64 exec, 1")
    e("v_mov_b32 v%d, s%d" % (V_T0, S_F))
    e("buffer_store_dword v%d, v%d, s[%d:%d], 0 offen sc1" % (V_T0, V_Z, SRD_WS, SRD_WS + 3))
    e("s_mov_b64 exec, -1")
    lab(noep)
    only_red("L_b_end2")
    reduce16(8, BELL5)
    stamp(14)
    residual_add(V_U + 4, V_H)
    store_g("buffer_store_dword v%d, v%d, s[%d:%d], s80 offen" % (V_U + 4, V_X1, SRD_O, SRD_O + 3), "0xffff", flags="")
    e("s_cmp_lg_u32 s%d, 0" % S_DRY)
    e("s_cbranch_scc1 L_b_real")
    stamp(15)
    lab("L_b_end")
    stamps_flush(V_U)
    e("s_endpgm")
    lab("L_b_end2")
    if "b" in CLEAN: clean("buffer_store_dwordx4 v[%d:%d], v%d, s[%d:%d], s84 offen" % (V_P, V_P + 3, V_PUB, SRD_WS, SRD_WS + 3))
    e("s_branch L_b_end")

def role_a():
    cmt("================= role A =================")
    KO = V_X1
    KA = V_X1 + 4
    QE, QO, QW, PW0, PW1, SW, SR, XA, EP = [V_X1 + 8 + i for i in range(9)]
    ab = lambda m: V_VB if (m & 2) else V_VA
    dma256_voff(V_VA, V_VB, 256, V_T0)
    e("s_lshl_b32 s%d, s%d, 22" % (S_E, S_XCD))
    e("s_lshr_b32 s%d, s%d, 2" % (S_C, S_SLOT))
    e("s_lshl_b32 s%d, s%d, 20" % (S_A, S_C))
    e("s_add_u32 s%d, s%d, s%d" % (S_E, S_E, S_A))
    e("s_and_b32 s%d, s%d, 3" % (S_D, S_SLOT))
    e("s_lshl_b32 s%d, s%d, 16" % (S_A, S_D))
    e("s_add_u32 s%d, s%d, s%d" % (S_E, S_E, S_A))
    e("s_add_u32 s%d, s%d, 0x%x" % (S_E, S_E, 3072 * 256))
    e("v_xor_b32 v%d, v2, v3" % V_T0)
    e("v_lshlrev_b32 v%d, 4, v%d" % (V_T0, V_T0))
    e("v_lshl_add_u32 v%d, v3, 8, v%d" % (KO, V_T0))
    for i in range(1, 4): e("v_xor_b32 v%d, %d, v%d" % (KO + i, 64 * i, KO))
    e("s_waitcnt lgkmcnt(0)")
    if STAMPS: e("s_mov_b32 s%d, s%d" % (S_ST, S_TM))
    srd(SRD_WS, S_WS, WS_SIZE)
    e("buffer_load_dword v%d, v%d, s[%d:%d], 0 offen sc1" % (EP, V_Z, SRD_WS, SRD_WS + 3))
    e("s_cmp_ge_u32 s%d, %d" % (S_WAVE, NLD))
    e("s_cbranch_scc1 L_a_noissue0")
    srd(SRD_X, S_K, 32 << 20)
    def thr(c):
        if AWIN <= c < ATHR: e("s_waitcnt vmcnt(%d)" % (AWIN - 1))
    if KFIRST:
        dma_run(SRD_X, lambda m: KO + (m & 3), S_E, 1024, L_W1, 16, 0, 16, pre=thr, name="k")
    else:
        srd(SRD_W, S_V, 32 << 20)
        dma_run(SRD_W, ab, S_E, 1024, L_W0, 16, 0, 16, pre=thr, name="v")
        dma_run(SRD_X, lambda m: KO + (m & 3), S_E, 1024, L_W1, 8, 0, 8, pre=lambda m: thr(16 + m), name="k")
        dma_run(SRD_X, lambda m: KO + (m & 3), S_E, 1024, L_W1, 8, 32, 40, name="k")
    lab("L_a_noissue0")
    if KFIRST: srd(SRD_W, S_V, 32 << 20)
    srd(SRD_O, S_DBG, 256)
    xcc_publish(V_T0, SRD_O)
    stamp(1)
    common_consts()
    e("v_lshlrev_b32 v%d, 4, v1" % V_G)
    tr256_addr(V_TR, V_T0)
    e("v_xor_b32 v%d, v2, v3" % V_T0)
    e("v_lshlrev_b32 v%d, 4, v%d" % (V_T0, V_T0))
    e("v_lshl_add_u32 v%d, v2, 8, v%d" % (V_T0, V_T0))
    e("s_lshl_b32 s%d, s%d, 13" % (S_A, S_WAVE))
    e("s_add_u32 s%d, s%d, %d" % (S_A, S_A, L_W1))
    e("v_add_u32 v%d, s%d, v%d" % (KA, S_A, V_T0))
    for i in range(1, 4): e("v_xor_b32 v%d, %d, v%d" % (KA + i, 64 * i, KA))
    act_rd_addr(QE, QO, V_T0, L_QB)
    act_rd_addr(V_AE, V_AO, V_T0, L_PB)
    e("v_bfe_u32 v%d, v1, 2, 3" % V_T2)
    sigma_of(V_T0, V_T2, V_T1)
    e("v_xor_b32 v%d, s%d, v%d" % (V_T0, S_WAVE, V_T0))
    e("v_lshlrev_b32 v%d, 4, v%d" % (V_T0, V_T0))
    e("v_lshrrev_b32 v%d, 2, v1" % V_T1)
    e("v_lshl_add_u32 v%d, v%d, 7, v%d" % (V_T0, V_T1, V_T0))
    e("v_and_b32 v%d, 3, v1" % V_T1)
    e("v_lshl_add_u32 v%d, v%d, 2, v%d" % (V_T0, V_T1, V_T0))
    e("v_add_u32 v%d, %d, v%d" % (QW, L_QB, V_T0))
    e("v_and_b32 v%d, 2, v3" % V_T0)
    e("s_and_b32 s%d, s%d, 1" % (S_A, S_WAVE))
    e("v_or_b32 v%d, s%d, v%d" % (V_T0, S_A, V_T0))
    e("v_and_b32 v%d, 7, v1" % V_T1)
    e("v_xor_b32 v%d, v%d, v%d" % (V_T0, V_T0, V_T1))
    e("v_lshlrev_b32 v%d, 4, v%d" % (V_T0, V_T0))
    e("v_lshrrev_b32 v%d, 1, v3" % V_T1)
    e("v_lshl_add_u32 v%d, v%d, 7, v%d" % (V_T0, V_T1, V_T0))
    e("v_and_b32 v%d, 1, v3" % V_T1)
    e("v_lshl_add_u32 v%d, v%d, 3, v%d" % (V_T0, V_T1, V_T0))
    e("s_lshl_b32 s%d, s%d, 9" % (S_A, S_WAVE))
    e("s_add_u32 s%d, s%d, %d" % (S_A, S_A, L_PB))
    e("v_add_u32 v%d, s%d, v%d" % (PW0, S_A, V_T0))
    e("v_xor_b32 v%d, 64, v%d" % (PW1, PW0))
    e("v_add_u32 v%d, 0x100, v%d" % (PW1, PW1))
    e("v_cndmask_b32 v%d, v%d, v%d, s[%d:%d]" % (PW0, PW0, PW1, S_HI8, S_HI8 + 1))
    e("v_and_b32 v%d, 7, v1" % V_T0)
    e("v_lshlrev_b32 v%d, 2, v%d" % (XA, V_T0))
    e("v_lshlrev_b32 v%d, 6, v%d" % (V_T0, V_T0))
    e("v_add_u32 v%d, %d, v%d" % (SR, L_MX, V_T0))
    e("s_lshl_b32 s%d, s%d, 2" % (S_A, S_WAVE))
    e("v_add_u32 v%d, s%d, v%d" % (SW, S_A, SR))
    e("s_lshl_b32 s%d, s%d, 3" % (S_A, S_C))
    e("s_add_u32 s%d, s%d, s%d" % (S_A, S_A, S_WAVE))
    e("s_lshl_b32 s%d, s%d, 15" % (S_A, S_A))
    e("s_lshl_b32 s%d, s%d, 10" % (S_B, S_XCD))
    e("s_add_u32 s%d, s%d, s%d" % (S_A, S_A, S_B))
    e("s_add_u32 s80, s%d, 0x%x" % (S_A, WS_H1))
    for i in range(1, 4): e("s_add_u32 s%d, s80, %d" % (80 + i, 8192 * i))
    e("s_lshl_b32 s%d, s%d, 3" % (S_A, S_C))
    e("s_add_u32 s%d, s%d, s%d" % (S_A, S_A, S_XCD))
    e("s_lshl_b32 s%d, s%d, 14" % (S_A, S_A))
    e("s_add_u32 s%d, s%d, 0x%x" % (S_A, S_A, WS_H2))
    e("s_lshl_b32 s%d, s%d, 10" % (S_B, S_D))
    e("s_add_u32 s87, s%d, s%d" % (S_A, S_B))
    for i in range(1, 4): e("s_add_u32 s%d, s87, %d" % (87 + i, 4096 * i))
    e("s_lshl_b32 s%d, s%d, 12" % (S_B, S_D))
    e("s_add_u32 s%d, s%d, s%d" % (S_A, S_A, S_B))
    e("s_lshl_b32 s%d, s%d, 6" % (S_B, S_WAVE))
    e("s_add_u32 s84, s%d, s%d" % (S_A, S_B))
    e("v_and_b32 v%d, 7, v1" % V_T0)
    e("v_lshlrev_b32 v%d, 9, v%d" % (V_PUB, V_T0))
    e("v_lshl_add_u32 v%d, v3, 4, v%d" % (V_PUB, V_PUB))
    e("s_lshl_b32 s%d, s%d, 3" % (S_A, S_SLOT))
    e("s_add_u32 s%d, s%d, s%d" % (S_A, S_A, S_XCD))
    e("s_lshl_b32 s%d, s%d, 10" % (S_A, S_A))
    e("s_add_u32 s91, s%d, 0x%x" % (S_A, WS_H2G))
    e("s_mov_b32 s96, %s" % f32(LOG2E))
    e("s_cmp_lt_u32 s%d, %d" % (S_WAVE, NLD))
    e("s_cbranch_scc1 L_a_real")
    if not NOTOUCH:
        e("s_cmp_lg_u32 s%d, 4" % S_WAVE)
        e("s_cbranch_scc1 L_a_notouch")
        e("v_and_b32 v%d, 7, v1" % V_T0)
        e("v_lshlrev_b32 v%d, 7, v%d" % (V_T0, V_T0))
        e("v_bfe_u32 v%d, v1, 3, 2" % V_T1)
        e("v_lshl_add_u32 v%d, v%d, 12, v%d" % (V_T0, V_T1, V_T0))
        touch([(V_T0, 87, 0), (V_Z, 80, 0), (V_Z, 91, 0)])
        if TLBT:
            e("v_min_u32 v%d, 27, v1" % V_T1)
            e("v_lshlrev_b32 v%d, 18, v%d" % (V_T1, V_T1))
            e("global_load_dword v%d, v%d, s[%d:%d]" % (V_X1 + 23, V_T1, S_WG, S_WG + 1))
            e("global_load_dword v%d, v%d, s[%d:%d]" % (V_X1 + 23, V_T1, S_WU, S_WU + 1))
            e("s_mov_b32 s%d, 0x%x" % (S_A, WS_H3B))
            e("s_mov_b32 s%d, 0x%x" % (S_B, WS_H4P))
            e("buffer_load_dword v%d, v%d, s[%d:%d], s%d offen offset:64 sc1" % (V_X1 + 23, V_Z, SRD_WS, SRD_WS + 3, S_B))
        lab("L_a_notouch")
    if NODRY: e("s_branch L_a_real0")
    set_dry()
    e("s_branch L_a_att")
    def gu_scalar_setup():
        GO = V_GO
        e("s_lshr_b32 s%d, s%d, 7" % (S_D, S_WG))
        e("s_mul_i32 s%d, s%d, 7" % (S_A, S_XCD))
        e("s_add_u32 s%d, s%d, s%d" % (S_D, S_D, S_A))
        e("s_sub_u32 s%d, 3, s%d" % (S_D, S_D))
        e("s_and_b32 s%d, s%d, 7" % (S_D, S_D))
        e("s_mov_b32 s101, 0")
        e("s_cmp_ge_u32 s%d, 7" % S_SLOT)
        e("s_cselect_b32 s%d, 7, 0" % S_B)
        e("s_cselect_b32 s100, 1, 0")
        e("s_sub_u32 s%d, s%d, s%d" % (S_C, S_SLOT, S_B))
        e("s_cmp_eq_u32 s%d, s%d" % (S_C, S_D))
        e("s_cselect_b32 s99, 1, 0")
        e("s_cmp_lt_u32 s%d, 14" % S_SLOT)
        e("s_cbranch_scc1 L_a_nohelp")
        e("s_cmp_eq_u32 s%d, 7" % S_D)
        e("s_cselect_b32 s101, 1, 0")
        e("s_mov_b32 s%d, s%d" % (S_C, S_D))
        e("s_sub_u32 s100, s%d, 14" % S_SLOT)
        e("s_mov_b32 s99, 2")
        lab("L_a_nohelp")
        e("s_cmp_lg_u32 s100, 0")
        e("s_cselect_b32 s%d, s%d, s%d" % (SRD_W, S_WU, S_WG))
        e("s_cselect_b32 s%d, s%d, s%d" % (S_A, S_WU + 1, S_WG + 1))
        e("s_cselect_b32 s85, 0x%x, 0" % (WS_H4U - WS_H4S))
        e("s_add_u32 s85, s85, 0x%x" % WS_H4S)
        e("s_and_b32 s%d, s%d, 0xffff" % (SRD_W + 1, S_A))
        e("s_cmp_lg_u32 s101, 0")
        e("s_cselect_b32 s%d, 0, 0x%x" % (SRD_W + 2, 1024 * 7168))
        e("s_mov_b32 s%d, 0x20000" % (SRD_W + 3))
        e("s_mul_i32 s%d, s%d, 7" % (S_A, S_XCD))
        e("s_add_u32 s%d, s%d, s%d" % (S_C, S_C, S_A))
        e("v_lshrrev_b32 v%d, 3, v1" % V_T0)
        e("v_bfe_u32 v%d, v1, 4, 1" % V_T1)
        e("v_and_b32 v%d, 7, v1" % V_T2)
        e("v_xor_b32 v%d, v%d, v%d" % (V_T1, V_T1, V_T2))
        e("v_lshlrev_b32 v%d, 4, v%d" % (V_T1, V_T1))
        e("v_mul_u32_u24 v%d, 7168, v%d" % (GO, V_T0))
        e("v_add_u32 v%d, v%d, v%d" % (GO, GO, V_T1))
        for i in range(1, 4): e("v_xor_b32 v%d, %d, v%d" % (GO + i, 32 * i, GO))
        e("s_and_b32 s%d, s%d, 1" % (S_A, S_WAVE))
        e("s_lshl_b32 s%d, s%d, 6" % (S_A, S_A))
        e("v_xor_b32 v%d, s%d, v%d" % (GO + 4, S_A, GO))
        e("v_xor_b32 v%d, 32, v%d" % (GO + 5, GO + 4))
        NE = 8 * GE
        e("s_cmp_eq_u32 s99, 2")
        e("s_cselect_b32 s%d, 64, 0" % S_B)
        e("s_mul_i32 s%d, s%d, %d" % (S_A, S_WAVE, GE))
        e("s_add_u32 s%d, s%d, s%d" % (S_A, S_A, S_B))
        e("s_lshl_b32 s9, s%d, 10" % S_A)
        e("s_mul_i32 s8, s%d, %d" % (S_A, 8 * 7168))
        e("s_lshl_b32 s%d, s%d, 7" % (S_E, S_C))
        e("s_add_u32 s8, s8, s%d" % S_E)
        e("s_cmp_eq_u32 s99, 0")
        e("s_cselect_b32 s%d, %d, %d" % (S_A, (128 - NE) // 4, (64 - NE) // 4))
        e("s_cselect_b32 s6, %d, %d" % ((128 - NE) // 32, (64 - NE) // 32))
        e("s_mul_i32 s%d, s%d, s%d" % (S_A, S_A, S_WAVE))
        e("s_add_u32 s%d, s%d, s%d" % (S_A, S_A, S_B))
        e("s_add_u32 s%d, s%d, %d" % (S_A, S_A, NE))
        e("s_lshl_b32 s5, s%d, 10" % S_A)
        e("s_mul_i32 s4, s%d, %d" % (S_A, 8 * 7168))
        e("s_add_u32 s4, s4, s%d" % S_E)
    def gu_early(ms):
        if not ms or "gu" in SKIP: return
        l = uid("nge")
        e("s_cbranch_execz %s" % l)
        for m in ms:
            e("s_mov_b32 m0, s9")
            e("s_add_u32 s9, s9, 1024")
            e("buffer_load_dwordx4 v%d, s[%d:%d], s8 offen nt lds" % (V_GO + 4 + (m & 1) if GE == 4 else V_GO + ((m & 1) | (((m >> 2) & 1) << 1)), SRD_W, SRD_W + 3))
            e("s_add_u32 s8, s8, %d" % (8 * 7168))
        lab(l)
    def h1_loads():
        for k in range(4):
            e("buffer_load_dwordx4 v[%d:%d], v%d, s[%d:%d], s%d offen sc1" % (V_L + 4 * k, V_L + 4 * k + 3, V_G, SRD_WS, SRD_WS + 3, 80 + k))
        xcc_load(V_L + 16, XA, SRD_O)
    def trig1(w):
        notr = uid("notr")
        e("s_cmp_lg_u32 s%d, %d" % (S_WAVE, w))
        e("s_cbranch_scc1 %s" % notr)
        e("s_lshl_b32 s%d, s%d, 3" % (S_A, S_SLOT))
        e("s_or_b32 s%d, s%d, s%d" % (S_A, S_A, S_XCD))
        e("s_lshl_b32 s%d, s%d, 7" % (S_A, S_A))
        e("s_add_u32 s%d, s%d, 0x%x" % (S_A, S_A, WS_TRIG))
        e("s_mov_b64 exec, 1")
        e("buffer_store_dwordx2 v[%d:%d], v%d, s[%d:%d], s%d offen sc1" % (V_T2 + 1, V_T2 + 2, V_Z, SRD_WS, SRD_WS + 3, S_A) if False else
          "buffer_store_dwordx2 v[%d:%d], v%d, s[%d:%d], s%d offen sc1" % (V_X1 + 18, V_X1 + 19, V_Z, SRD_WS, SRD_WS + 3, S_A))
        full()
        lab(notr)
    if KFIRST:
        lab("L_a_real0")
        e("s_waitcnt vmcnt(0)")
        e("s_branch L_a_sync")
        lab("L_a_real")
        dma_run(SRD_W, ab, S_E, 1024, L_W0, 16, 0, VP, pre=lambda m: thr(16 + m), name="v")
        e("s_waitcnt vmcnt(%d)" % VP)
        lab("L_a_sync")
        set_real()
        make_tag(EP)
        e("v_mov_b32 v%d, s%d" % (V_X1 + 18, S_T))
        e("v_mov_b32 v%d, s%d" % (V_X1 + 19, S_T))
        e("s_barrier")
        stamp(2)
        lab("L_a_att")
        e("s_cbranch_execz L_a_h1k")
        h1_loads()
        e("s_cmp_ge_u32 s%d, 4" % S_WAVE)
        e("s_cbranch_scc1 L_a_h1k")
        if VP < 16:
            dma_run(SRD_W, ab, S_E, 1024, L_W0, 16, VP, 16, name="v")
        lab("L_a_h1k")
    else:
        lab("L_a_real0")
        e("s_waitcnt vmcnt(0)")
        lab("L_a_real")
        set_real()
        e("s_waitcnt vmcnt(%d)" % (TRIGV * 4 // NLD))
        make_tag(EP)
        gu_scalar_setup()
        notr = uid("notr")
        e("s_cmp_lg_u32 s%d, 0" % S_WAVE)
        e("s_cbranch_scc1 %s" % notr)
        e("s_lshl_b32 s%d, s%d, 3" % (S_A, S_SLOT))
        e("s_or_b32 s%d, s%d, s%d" % (S_A, S_A, S_XCD))
        e("s_lshl_b32 s%d, s%d, 7" % (S_A, S_A))
        e("s_add_u32 s%d, s%d, 0x%x" % (S_A, S_A, WS_TRIG))
        e("s_mov_b64 exec, 1")
        e("buffer_store_dwordx2 v[%d:%d], v%d, s[%d:%d], s%d offen sc1" % (V_P + 2, V_P + 3, V_Z, SRD_WS, SRD_WS + 3, S_A))
        e("s_mov_b64 exec, -1")
        lab(notr)
        e("s_waitcnt vmcnt(%d)" % (64 // NLD))
        e("s_barrier")
        stamp(2)
        tr256_read(V_WF, V_TR)
        lab("L_a_att")
        e("s_cbranch_execz L_a_h1k")
        if H1LATE:
            e("s_waitcnt vmcnt(%d)" % H1V)
            e("s_barrier")
            h1_loads()
            e("s_waitcnt vmcnt(5)")
            e("s_barrier")
        else:
            h1_loads()
            e("s_waitcnt vmcnt(5)")
            e("s_barrier")
        lab("L_a_h1k")
        stamp(3)
    for sg in range(4):
        for t in range(2):
            r = V_KF + 16 * t + 4 * sg
            e("ds_read_b128 v[%d:%d], v%d offset:%d" % (r, r + 3, KA + sg, t * 4096))
    e("s_cbranch_execz L_a_h1_nl")
    if KFIRST:
        e("s_cmp_ge_u32 s%d, 4" % S_WAVE)
        e("s_cbranch_scc1 L_a_h1w")
        e("s_waitcnt vmcnt(%d)" % (16 - VP))
        e("s_branch L_a_h1_nl")
    else:
        e("s_branch L_a_h1w")
    lab("L_a_h1")
    h1_loads()
    lab("L_a_h1w")
    poll_end("L_a_h1", [chk64(V_L + 4 * k + 2) for k in range(4)] + xcc_checks(V_L + 16, V_T0))
    stamp(4)
    e("v_pk_add_f32 v[%d:%d], v[%d:%d], v[%d:%d]" % (V_L, V_L + 1, V_L, V_L + 1, V_L + 4, V_L + 5))
    e("v_pk_add_f32 v[%d:%d], v[%d:%d], v[%d:%d]" % (V_L + 8, V_L + 9, V_L + 8, V_L + 9, V_L + 12, V_L + 13))
    e("v_pk_add_f32 v[%d:%d], v[%d:%d], v[%d:%d]" % (V_L, V_L + 1, V_L, V_L + 1, V_L + 8, V_L + 9))
    e("v_cvt_pk_bf16_f32 v%d, v%d, v%d" % (V_T0, V_L, V_L + 1))
    e("ds_write_b32 v%d, v%d" % (QW, V_T0))
    xcc_decide(V_L + 16)
    e("s_waitcnt lgkmcnt(0)")
    barrier(True)
    for sg in range(4):
        e("ds_read_b128 v[%d:%d], v%d offset:%d" % (V_AF + 4 * sg, V_AF + 4 * sg + 3, QO if (sg & 1) else QE, sg * 512))
    S0, S1 = V_U, V_U + 4
    gu_early(range(0, GE1))
    for sg in range(4):
        e("s_waitcnt lgkmcnt(%d)" % (3 - sg))
        for t, acc in ((0, S0), (1, S1)):
            e(mfma(acc, V_KF + 16 * t + 4 * sg, V_AF + 4 * sg, None if sg == 0 else acc))
    gu_early(range(GE1, GE))
    e("s_nop 7")
    X = V_U + 8
    W = V_U + 16
    for k in range(4):
        e("v_cndmask_b32 v%d, v%d, v%d, s[%d:%d]" % (X + k, S0 + k, S1 + k, S_HI8, S_HI8 + 1))
    for rnd in range(2):
        for i2 in range(2):
            e("v_cvt_pk_bf16_f32 v%d, v%d, v%d" % (W + i2, X + 2 * i2, X + 2 * i2 + 1))
        for i2 in range(2):
            unpack(X + 2 * i2, X + 2 * i2 + 1, W + i2)
        if rnd == 0:
            for k in range(4):
                e("v_mul_f32 v%d, %s, v%d" % (X + k, f32(128 ** -0.5), X + k))
    e("v_max3_f32 v%d, v%d, v%d, v%d" % (V_M, X, X + 1, X + 2))
    e("v_max_f32 v%d, v%d, v%d" % (V_M, V_M, X + 3))
    e("s_nop 1")
    e(dpp_add(V_M, V_M, "row_ror:8", "v_max_f32"))
    emit(xrow_ops(V_M, V_T0, "v_max_f32"))
    e("v_mul_f32 v%d, s96, v%d" % (V_M, V_M))
    for k in range(4):
        e("v_fma_f32 v%d, v%d, s96, -v%d" % (X + k, X + k, V_M))
    for k in range(4):
        e("v_exp_f32 v%d, v%d" % (X + k, X + k))
    e("s_nop 0")
    e("v_cvt_pk_bf16_f32 v%d, v%d, v%d" % (W, X, X + 1))
    e("v_cvt_pk_bf16_f32 v%d, v%d, v%d" % (W + 1, X + 2, X + 3))
    e("v_add_f32 v%d, v%d, v%d" % (V_SUM, X, X + 1))
    e("v_add_f32 v%d, v%d, v%d" % (V_T1, X + 2, X + 3))
    e("ds_write_b64 v%d, v[%d:%d]" % (PW0, W, W + 1))
    e("v_add_f32 v%d, v%d, v%d" % (V_SUM, V_SUM, V_T1))
    e("s_nop 1")
    e(dpp_add(V_SUM, V_SUM, "row_ror:8"))
    emit(xrow_ops(V_SUM, V_T0))
    e("ds_write2_b32 v%d, v%d, v%d offset0:0 offset1:8" % (SW, V_M, V_SUM))
    if KFIRST:
        e("s_cbranch_execz L_a_nov")
        trig1(4)
        e("s_waitcnt vmcnt(0) lgkmcnt(0)")
        e("s_barrier")
        lab("L_a_nov")
    else:
        e("s_waitcnt lgkmcnt(0)")
        barrier(True)
    stamp(5)
    MS, LS = V_L, V_L + 8
    for i2 in range(4):
        e("ds_read_b128 v[%d:%d], v%d offset:%d" % (V_L + 4 * i2, V_L + 4 * i2 + 3, SR, 16 * i2))
    def pv_reads(m):
        if KFIRST:
            for h in range(2):
                e("ds_read_b64_tr_b16 v[%d:%d], v%d offset:%d" % (V_WF + 4 * m + 2 * h, V_WF + 4 * m + 2 * h + 1, V_TR, m * 8192 + h * 1024))
        e("ds_read_b128 v[%d:%d], v%d offset:%d" % (V_AF + 4 * m, V_AF + 4 * m + 3, V_AO if (m & 1) else V_AE, m * 512))
    for m in range(4 if KFIRST else 8): pv_reads(m)
    AC = V_U
    side = ["v_max3_f32 v%d, v%d, v%d, v%d" % (V_M, MS, MS + 1, MS + 2),
            "v_max3_f32 v%d, v%d, v%d, v%d" % (V_T0, MS + 3, MS + 4, MS + 5),
            "v_max3_f32 v%d, v%d, v%d, v%d" % (V_M, V_M, MS + 6, MS + 7),
            "v_max_f32 v%d, v%d, v%d" % (V_M, V_M, V_T0)]
    side += ["v_sub_f32 v%d, v%d, v%d" % (MS + i2, MS + i2, V_M) for i2 in range(8)]
    side += ["v_exp_f32 v%d, v%d" % (MS + i2, MS + i2) for i2 in range(8)]
    side += ["v_mul_f32 v%d, v%d, v%d" % (V_SUM, LS, MS), "v_mul_f32 v%d, v%d, v%d" % (V_T1, LS + 1, MS + 1)]
    for i2 in range(2, 8, 2):
        side += ["v_fmac_f32 v%d, v%d, v%d" % (V_SUM, LS + i2, MS + i2), "v_fmac_f32 v%d, v%d, v%d" % (V_T1, LS + i2 + 1, MS + i2 + 1)]
    side += ["v_add_f32 v%d, v%d, v%d" % (V_SUM, V_SUM, V_T1),
             "v_rcp_f32 v%d, v%d" % (V_RS, V_SUM), "v_log_f32 v%d, v%d" % (V_T1, V_SUM), "s_nop 0",
             "v_add_f32 v%d, v%d, v%d" % (V_P + 2, V_T1, V_M)]
    per = (len(side) + 7) // 8
    for m in range(8):
        e("s_waitcnt lgkmcnt(%d)" % ((9 if m < 5 else 3 * (7 - m)) if KFIRST else 7 - m))
        e(mfma(AC + 4 * m, V_WF + 4 * m, V_AF + 4 * m, None))
        if KFIRST and m < 4: pv_reads(m + 4)
        emit(side[m * per:(m + 1) * per])
    def bsel(r):
        return (r & ~1, "op_sel:[0,%d,0] op_sel_hi:[1,%d,1]" % (r & 1, r & 1), "op_sel:[0,%d] op_sel_hi:[1,%d]" % (r & 1, r & 1))
    for m in range(8):
        fb, sel, sel2 = bsel(MS + m)
        for h in range(2):
            a = V_ACC + 2 * h
            if m == 0:
                e("v_pk_mul_f32 v[%d:%d], v[%d:%d], v[%d:%d] %s" % (a, a + 1, AC + 2 * h, AC + 2 * h + 1, fb, fb + 1, sel2))
            else:
                e("v_pk_fma_f32 v[%d:%d], v[%d:%d], v[%d:%d], v[%d:%d] %s" % (a, a + 1, AC + 4 * m + 2 * h, AC + 4 * m + 2 * h + 1, fb, fb + 1, a, a + 1, sel))
    fb, sel, sel2 = bsel(V_RS)
    for h in range(2):
        a = V_ACC + 2 * h
        e("v_pk_mul_f32 v[%d:%d], v[%d:%d], v[%d:%d] %s" % (a, a + 1, a, a + 1, fb, fb + 1, sel2))
    e("v_cvt_pk_bf16_f32 v%d, v%d, v%d" % (V_P, V_ACC, V_ACC + 1))
    e("v_cvt_pk_bf16_f32 v%d, v%d, v%d" % (V_P + 1, V_ACC + 2, V_ACC + 3))
    store_l("buffer_store_dwordx4 v[%d:%d], v%d, s[%d:%d], s84 offen" % (V_P, V_P + 3, V_PUB, SRD_WS, SRD_WS + 3), "lo8")
    stamp(6)
    e("s_sub_u32 s%d, s%d, 1" % (S_A, S_WAVE))
    e("s_cmp_lt_u32 s%d, 3" % S_A)
    e("s_cbranch_scc1 L_a_nocomb")
    e("s_cmp_lg_u32 s%d, 0" % S_DRY)
    e("s_cbranch_scc1 L_a_comb")
    e("s_cmp_lg_u32 s%d, 0" % S_WAVE)
    e("s_cbranch_scc1 L_a_nocomb")
    lab("L_a_comb")
    top = poll_begin()
    for s in range(4):
        e("buffer_load_dwordx4 v[%d:%d], v%d, s[%d:%d], s%d offen sc1" % (V_L + 4 * s, V_L + 4 * s + 3, V_G, SRD_WS, SRD_WS + 3, 87 + s))
    poll_end(top, [chk32(V_L + 4 * s + 3) for s in range(4)])
    Ls = [V_L + 4 * s + 2 for s in range(4)]
    e("v_max3_f32 v%d, v%d, v%d, v%d" % (V_T0, Ls[0], Ls[1], Ls[2]))
    e("v_max_f32 v%d, v%d, v%d" % (V_T0, V_T0, Ls[3]))
    for s in range(4): e("v_sub_f32 v%d, v%d, v%d" % (Ls[s], Ls[s], V_T0))
    for s in range(4): e("v_exp_f32 v%d, v%d" % (Ls[s], Ls[s]))
    for s in range(4):
        unpack(V_U + 4 * s, V_U + 4 * s + 1, V_L + 4 * s)
        unpack(V_U + 4 * s + 2, V_U + 4 * s + 3, V_L + 4 * s + 1)
    e("v_add_f32 v%d, v%d, v%d" % (V_T0, Ls[0], Ls[1]))
    e("v_add_f32 v%d, v%d, v%d" % (V_T1, Ls[2], Ls[3]))
    e("v_add_f32 v%d, v%d, v%d" % (V_T0, V_T0, V_T1))
    e("v_rcp_f32 v%d, v%d" % (V_T0, V_T0))
    for k in range(4):
        e("v_mul_f32 v%d, v%d, v%d" % (V_U + k, V_U + k, Ls[0]))
    for s in range(1, 4):
        for k in range(4):
            e("v_fmac_f32 v%d, v%d, v%d" % (V_U + k, V_U + 4 * s + k, Ls[s]))
    for k in range(4):
        e("v_mul_f32 v%d, v%d, v%d" % (V_U + k, V_U + k, V_T0))
    e("v_cvt_pk_bf16_f32 v%d, v%d, v%d" % (V_U + 16, V_U, V_U + 1))
    e("v_cvt_pk_bf16_f32 v%d, v%d, v%d" % (V_U + 17, V_U + 2, V_U + 3))
    e("v_mov_b32 v%d, s%d" % (V_U + 18, S_T))
    e("v_mov_b32 v%d, s%d" % (V_U + 19, S_T))
    store_g("buffer_store_dwordx4 v[%d:%d], v%d, s[%d:%d], s91 offen" % (V_U + 16, V_U + 19, V_G, SRD_WS, SRD_WS + 3))
    stamp(13)
    lab("L_a_nocomb")
    e("s_cmp_lg_u32 s%d, 0" % S_DRY)
    e("s_cbranch_scc1 L_a_real0")
    e("s_cmp_lg_u32 s101, 0")
    e("s_cbranch_scc1 L_a_idle")
    e("s_mov_b32 s96, s100")
    e("s_mov_b32 s%d, s4" % S_A)
    e("s_mov_b32 s%d, s5" % S_B)
    e("s_mov_b32 s%d, s6" % S_D)
    e("s_barrier")
    e("s_cmp_ge_u32 s%d, %d" % (S_WAVE, 0 if "gu" in SKIP else 4))
    e("s_cbranch_scc1 L_a_gusetup")
    e("s_cmp_eq_u32 s%d, 0" % S_D)
    e("s_cbranch_scc1 L_a_gusetup")
    lab("L_a_guld")
    for m in range(8):
        e("s_mov_b32 m0, s%d" % S_B)
        e("s_add_u32 s%d, s%d, 1024" % (S_B, S_B))
        var = (m & 1) | (((m >> 2) & 1) << 1)
        e("buffer_load_dwordx4 v%d, s[%d:%d], s%d offen nt lds" % (V_GO + var, SRD_W, SRD_W + 3, S_A))
        e("s_add_u32 s%d, s%d, %d" % (S_A, S_A, 8 * 7168))
    e("s_sub_u32 s%d, s%d, 1" % (S_D, S_D))
    e("s_cmp_lg_u32 s%d, 0" % S_D)
    e("s_cbranch_scc1 L_a_guld")
    stamp(7)
    lab("L_a_gusetup")
    e("v_bfe_u32 v%d, v1, 3, 1" % V_T0)
    e("v_and_b32 v%d, 1, v3" % V_T1)
    e("v_lshl_or_b32 v%d, v%d, 1, v%d" % (V_T0, V_T1, V_T0))
    e("v_bfe_u32 v%d, v1, 1, 1" % V_T1)
    e("v_lshl_or_b32 v%d, v%d, 2, v%d" % (V_T0, V_T1, V_T0))
    e("v_xor_b32 v%d, s%d, v%d" % (V_T0, S_WAVE, V_T0))
    e("v_lshlrev_b32 v%d, 4, v%d" % (V_T0, V_T0))
    e("v_bfe_u32 v%d, v1, 2, 2" % V_T2)
    e("v_lshl_add_u32 v%d, v3, 3, v%d" % (V_T2, V_T2))
    e("v_lshl_add_u32 v%d, v%d, 5, v%d" % (V_T2, V_T1, V_T2))
    e("v_lshl_add_u32 v%d, v%d, 7, v%d" % (V_T0, V_T2, V_T0))
    e("v_and_b32 v%d, 1, v1" % V_T1)
    e("v_lshl_add_u32 v%d, v%d, 3, v%d" % (V_TR, V_T1, V_T0))
    e("v_add_u32 v%d, 0x10000, v%d" % (V_VA, V_TR))
    e("v_lshrrev_b32 v%d, 3, v2" % V_T0)
    e("v_lshl_or_b32 v%d, v3, 1, v%d" % (V_T1, V_T0))
    e("v_and_b32 v%d, 7, v1" % V_T2)
    e("v_xor_b32 v%d, v%d, v%d" % (V_T1, V_T1, V_T2))
    e("v_lshlrev_b32 v%d, 4, v%d" % (V_T1, V_T1))
    e("v_lshl_add_u32 v%d, v%d, 2, v3" % (V_T0, V_T0))
    e("v_lshl_add_u32 v%d, v%d, 7, v%d" % (V_T1, V_T0, V_T1))
    e("v_add_u32 v%d, %d, v%d" % (V_AE, L_ACT, V_T1))
    e("v_lshlrev_b32 v%d, 3, v%d" % (V_T2, V_T2))
    e("v_add_u32 v%d, %d, v%d" % (V_AO, L_MX, V_T2))
    e("s_lshl_b32 s%d, s%d, 3" % (S_A, S_WAVE))
    e("s_add_u32 s%d, s%d, %d" % (S_A, S_A, L_MX))
    e("v_mov_b32 v%d, s%d" % (V_RED, S_A))
    pos_write_addr(V_AW, L_ACT)
    e("s_lshl_b32 s%d, s%d, 12" % (S_A, S_WAVE))
    e("s_add_u32 s86, s%d, 0x%x" % (S_A, WS_H3B))
    e("s_lshl_b32 s%d, s%d, 11" % (S_A, S_C))
    e("s_lshl_b32 s%d, s%d, 8" % (S_B, S_WAVE))
    e("s_add_u32 s%d, s%d, s%d" % (S_A, S_A, S_B))
    e("s_add_u32 s85, s85, s%d" % S_A)
    e("v_and_b32 v%d, 1, v3" % V_T0)
    e("v_lshlrev_b32 v%d, 7, v%d" % (V_PUB, V_T0))
    e("v_and_b32 v%d, 7, v1" % V_T0)
    e("v_lshl_add_u32 v%d, v%d, 4, v%d" % (V_PUB, V_T0, V_PUB))
    e("v_lshrrev_b32 v%d, 1, v3" % V_T0)
    e("v_lshl_add_u32 v%d, v%d, 3, v%d" % (V_PUB, V_T0, V_PUB))
    e("s_lshl_b32 s%d, s96, 1" % S_A)
    e("s_add_u32 s%d, s%d, s99" % (S_A, S_A))
    e("s_sub_u32 s%d, s%d, 1" % (S_A, S_A))
    e("s_lshl_b32 s%d, s%d, 3" % (S_A, S_A))
    e("s_add_u32 s%d, s%d, s%d" % (S_A, S_A, S_XCD))
    e("s_lshl_b32 s%d, s%d, 12" % (S_A, S_A))
    e("s_lshl_b32 s%d, s%d, 9" % (S_B, S_WAVE))
    e("s_add_u32 s%d, s%d, s%d" % (S_A, S_A, S_B))
    e("s_add_u32 s84, s%d, 0x%x" % (S_A, WS_H4P))
    e("v_lshlrev_b32 v%d, 1, v%d" % (V_H, V_PUB))
    e("v_mov_b32 v%d, s%d" % (V_ACC + 6, S_T))
    e("v_mov_b32 v%d, s%d" % (V_ACC + 7, S_T))
    ONE = V_WF
    CS = V_WF + 4
    for k in range(4): e("v_mov_b32 v%d, 0x3f803f80" % (ONE + k))
    e("v_mov_b32 v%d, s%d" % (V_P + 1, S_T))
    e("s_mov_b64 s[%d:%d], s[%d:%d]" % (80, 81, S_ML, S_ML + 1))
    e("s_mov_b64 s[%d:%d], s[%d:%d]" % (82, 83, S_MG, S_MG + 1))
    e("s_cmp_lt_u32 s%d, 4" % S_WAVE)
    e("s_cbranch_scc1 L_a_gureal")
    if NODRY: e("s_branch L_a_gureal")
    set_dry()
    e("s_branch L_a_gutop")
    lab("L_a_gureal")
    set_real()
    e("s_mov_b64 s[%d:%d], s[%d:%d]" % (S_ML, S_ML + 1, 80, 81))
    e("s_mov_b64 s[%d:%d], s[%d:%d]" % (S_MG, S_MG + 1, 82, 83))
    e("s_waitcnt vmcnt(%d)" % T2V)
    if TRIG2: trig2()
    e("s_waitcnt vmcnt(0)")
    e("s_barrier")
    lab("L_a_gutop")
    GF = V_KF
    for m in range(16):
        for h in range(2):
            e("ds_read_b64_tr_b16 v[%d:%d], v%d offset:%d" % (GF + 4 * m + 2 * h, GF + 4 * m + 2 * h + 1, V_TR if m < 8 else V_VA, (m & 7) * 8192 + h * 512))
    e("s_waitcnt lgkmcnt(0)")
    e("s_cmp_lg_u32 s99, 1")
    e("s_cbranch_scc1 L_a_z1")
    for k in range(32, 64): e("v_mov_b32 v%d, 0" % (GF + k))
    lab("L_a_z1")
    e("s_cmp_lg_u32 s99, 2")
    e("s_cbranch_scc1 L_a_z2")
    for k in range(0, 32): e("v_mov_b32 v%d, 0" % (GF + k))
    lab("L_a_z2")
    e("s_nop 1")
    for m in range(16):
        e(mfma(CS, GF + 4 * m, ONE, None if m == 0 else CS))
    e("s_nop 7")
    e("v_permlane32_swap_b32 v%d, v%d" % (CS, CS + 2))
    e("v_permlane32_swap_b32 v%d, v%d" % (CS + 1, CS + 3))
    e("s_nop 1")
    e("v_add_f32_dpp v%d, v%d, v%d row_shl:8 row_mask:0xf bank_mask:0xf" % (CS, CS + 2, CS))
    e("v_add_f32_dpp v%d, v%d, v%d row_shl:8 row_mask:0xf bank_mask:0xf" % (CS + 1, CS + 3, CS + 1))
    stamp(8)
    top = poll_begin((V_G, 86, 3) if "3" not in NB else None)
    for n in range(4):
        e("buffer_load_dwordx4 v[%d:%d], v%d, s[%d:%d], s86 offen offset:%d sc1" % (V_L + 4 * n, V_L + 4 * n + 3, V_G, SRD_WS, SRD_WS + 3, n * 1024))
    poll_end(top, [chk64(V_L + 4 * n + 2) for n in range(4)], bell=(V_G, 86, 3))
    for n in range(4):
        e("ds_write_b64 v%d, v[%d:%d] offset:%d" % (V_AW, V_L + 4 * n, V_L + 4 * n + 1, n * 4096))
    stamp(9)
    side = ln_stats_dot_ops([V_L + 4 * (i >> 1) + (i & 1) for i in range(8)], ONE, V_SUM, V_SQ, V_T0, V_M, V_RS)
    emit(side[:16])
    side = side[16:]
    e("s_waitcnt lgkmcnt(0)")
    barrier(True)
    stamp(10)
    for m in range(16):
        e("ds_read_b128 v[%d:%d], v%d offset:%d" % (V_AF + 4 * m, V_AF + 4 * m + 3, V_AE, m * 1024))
    nfirst = 22
    emit(side[:nfirst])
    rest = side[nfirst:]
    mm = [0]
    def next_mfma():
        m = mm[0]; mm[0] += 1
        if m % 2 == 0: e("s_waitcnt lgkmcnt(%d)" % (14 - m))
        e(mfma(V_ACC, GF + 4 * m, V_AF + 4 * m, None if m == 0 else V_ACC))
        return 2 if m % 2 == 0 else 1
    cnt = 0
    for op in rest:
        if op.startswith("s_nop") and mm[0] < 10:
            need = int(op.split()[1]) + 1
            while need > 0 and mm[0] < 10: need -= next_mfma()
            if need > 0: e("s_nop %d" % (need - 1))
            cnt = 0
        else:
            e(op); cnt += 1
            if cnt == 2 and mm[0] < 10: next_mfma(); cnt = 0
    e("ds_write_b64 v%d, v[%d:%d]" % (V_RED, V_M, V_RS))
    while mm[0] < 10: next_mfma() if False else None; break
    while mm[0] < 12:
        m = mm[0]; mm[0] += 1
        if m == 10 or m % 2 == 0: e("s_waitcnt lgkmcnt(%d)" % max(0, min(15, 15 - m)))
        e(mfma(V_ACC, GF + 4 * m, V_AF + 4 * m, None if m == 0 else V_ACC))
    e("s_waitcnt lgkmcnt(0)")
    barrier(True)
    e("ds_read_b64 v[%d:%d], v%d" % (V_M, V_RS, V_AO))
    for m in range(12, 16):
        e(mfma(V_ACC, GF + 4 * m, V_AF + 4 * m, V_ACC))
    e("s_waitcnt lgkmcnt(0)")
    e("v_mul_f32 v%d, v%d, v%d" % (V_T0, V_M, V_RS))
    e("v_mul_f32 v%d, v%d, v%d" % (V_T1, V_T0, CS))
    e("v_mul_f32 v%d, v%d, v%d" % (V_T2, V_T0, CS + 1))
    e("s_nop 3")
    e("v_permlane32_swap_b32 v%d, v%d" % (V_ACC, V_ACC + 2))
    e("v_permlane32_swap_b32 v%d, v%d" % (V_ACC + 1, V_ACC + 3))
    e("s_nop 1")
    e("v_add_f32_dpp v%d, v%d, v%d row_shl:8 row_mask:0xf bank_mask:0xf" % (V_ACC, V_ACC + 2, V_ACC))
    e("v_add_f32_dpp v%d, v%d, v%d row_shl:8 row_mask:0xf bank_mask:0xf" % (V_ACC + 1, V_ACC + 3, V_ACC + 1))
    e("v_fma_f32 v%d, v%d, v%d, -v%d" % (V_ACC, V_ACC, V_RS, V_T1))
    e("v_fma_f32 v%d, v%d, v%d, -v%d" % (V_ACC + 1, V_ACC + 1, V_RS, V_T2))
    e("s_cmp_lg_u32 s99, 0")
    e("s_cbranch_scc1 L_a_part")
    e("v_cvt_pk_bf16_f32 v%d, v%d, v%d" % (V_P, V_ACC, V_ACC + 1))
    nosig = uid("nosig")
    e("s_cmp_lg_u32 s96, 0")
    e("s_cbranch_scc1 %s" % nosig)
    unpack(V_U, V_U + 1, V_P)
    e("v_mul_f32 v%d, %s, v%d" % (V_U, f32(-LOG2E), V_U))
    e("v_mul_f32 v%d, %s, v%d" % (V_U + 1, f32(-LOG2E), V_U + 1))
    e("v_exp_f32 v%d, v%d" % (V_U, V_U))
    e("v_exp_f32 v%d, v%d" % (V_U + 1, V_U + 1))
    e("s_nop 0")
    e("v_add_f32 v%d, 1.0, v%d" % (V_U, V_U))
    e("v_add_f32 v%d, 1.0, v%d" % (V_U + 1, V_U + 1))
    e("v_rcp_f32 v%d, v%d" % (V_U, V_U))
    e("v_rcp_f32 v%d, v%d" % (V_U + 1, V_U + 1))
    e("s_nop 0")
    e("v_cvt_pk_bf16_f32 v%d, v%d, v%d" % (V_P, V_U, V_U + 1))
    lab(nosig)
    store_l("buffer_store_dwordx2 v[%d:%d], v%d, s[%d:%d], s85 offen" % (V_P, V_P + 1, V_PUB, SRD_WS, SRD_WS + 3), "lo8")
    e("s_branch L_a_pubd")
    lab("L_a_part")
    e("v_mov_b32 v%d, v%d" % (V_P, V_ACC))
    e("v_mov_b32 v%d, v%d" % (V_P + 1, V_ACC + 1))
    store_l("buffer_store_dwordx4 v[%d:%d], v%d, s[%d:%d], s84 offen" % (V_P, V_P + 3, V_H, SRD_WS, SRD_WS + 3), "lo8")
    lab("L_a_pubd")
    e("s_cmp_lg_u32 s%d, 0" % S_DRY)
    e("s_cbranch_scc1 L_a_gureal")
    stamp(11)
    if "a" in CLEAN: clean("buffer_store_dwordx4 v[%d:%d], v%d, s[%d:%d], s87 offen" % (V_WF + 8, V_WF + 11, V_WF + 12, SRD_WS, SRD_WS + 3), "lo8")
    lab("L_a_done")
    stamps_flush(V_U)
    e("s_endpgm")
    lab("L_a_idle")
    if TRIG2: trig2()
    e("s_branch L_a_done")

gen()
open(OUT, "w").write("\n".join(lines) + "\n")
print("wrote", OUT, len(lines), "lines")
```

```python
import sys, struct

NAME = "sequential_preLN__sliding_block_cached__glu_gated_glu__decode"
def opt(name, default):
    for a in sys.argv:
        if a.startswith("--%s=" % name): return a.split("=", 1)[1]
    return default
STSET = opt("st", None)
STAMPS = "--stamps" in sys.argv or STSET is not None
STSET = None if STSET is None else set(int(x) for x in STSET.split(","))
NOLOCAL = "--nolocal" in sys.argv
NODRY = "--nodry" in sys.argv
NOTOUCH = "--notouch" in sys.argv
NOBELL = "--nobell" in sys.argv
BELLSLEEP = int(opt("bellsleep", 2))
NB = opt("nb", "")
PRIO = "--prio" in sys.argv
DSPLIT = "--dsplit" in sys.argv
XBAR = "--xbar" in sys.argv
AT = opt("at", "")
BELL5 = "5" not in NB
BELL1 = "--bell1" in sys.argv
TRIG2 = "--trig2" in sys.argv
NOCLEAN = "--clean-on" not in sys.argv
CLEAN = opt("clean", "ab")
NLD = 4
KFIRST = False
PFK = int(opt("pfk", 0))
H1V = int(opt("h1v", -1))
H1LATE = H1V >= 0
GE = int(opt("ge", 0))
GE1 = int(opt("ge1", GE // 2))
VP = int(opt("vp", 8))
BELLFIRST = "--belllast" not in sys.argv
T2V = int(opt("t2v", 12))
DEARLY = "--dearly" in sys.argv
NOCODEPF = "--codepf" not in sys.argv
TLBT = "--notlb" not in sys.argv
SLEEP = int(opt("sleep", 1))
QFIRST = int(opt("qfirst", 8))
AWIN = int(opt("awin", 8))
ATHR = int(opt("athr", 0))
TRIGV = int(opt("trigv", 8))
OUT = [a for a in sys.argv[1:] if not a.startswith("--")]
OUT = OUT[0] if OUT else "cdna_kernels/%s.s" % NAME

lines = []
def e(s): lines.append("    " + s)
def lab(s): lines.append(s + ":")
def cmt(s): lines.append("    ; " + s)
_uid = [0]
def uid(p):
    _uid[0] += 1
    return "L_%s_%d" % (p, _uid[0])
def f32(x): return "0x%08x" % struct.unpack("<I", struct.pack("<f", x))[0]

WS_TRIG = 0x4000
WS_H1 = 0x100000
WS_H2 = 0x200000
WS_H3B = 0x280000
WS_H4S = 0x290000
WS_H4U = 0x2B0000
WS_H2G = 0x2E0000
WS_H4P = 0x500000
WS_H3A = 0x300000
WS_H5 = 0x400000
WS_TS = 0x600000
WS_SIZE = 0x800000

L_W0 = 0
L_W1 = 65536
L_ACT = 131072
L_QB = 147456
L_PB = 149504
L_MX = 153600
LDS_BYTES = 154112

S_X, S_K, S_V, S_WQ, S_WO, S_BX, S_WG, S_WU = 4, 6, 8, 10, 12, 14, 16, 18
S_WD, S_OUT, S_DBG, S_WS = 20, 22, 24, 26
S_WAVE, S_XCD, S_SLOT, S_T = 28, 29, 30, 31
SRD_W, SRD_WS, SRD_X, SRD_O = 32, 36, 40, 44
S_TT = 48
S_HI8 = 50
S_SPIN = 52
S_A, S_B, S_C, S_D, S_E, S_F = 53, 54, 55, 56, 57, 58
S_DRY = 59
S_TM = 60
S_ML = 62
S_ST = 64
S_MG = 92
S_FULL = 94
S_XCC, S_XOFF = 97, 98

LOG2E = 1.4426950408889634

V_VA, V_VB = 4, 5
V_TR = 6
V_AE, V_AO = 7, 8
V_T0, V_T1, V_T2, V_T3 = 9, 10, 11, 12
V_PUB, V_RED, V_H, V_XP, V_AW, V_G, V_Z = 13, 14, 15, 16, 17, 18, 19
V_ACC = 20
V_P = 24
V_M, V_RS, V_SQ, V_SUM = 28, 29, 30, 31
V_L = 32
V_U = 64
V_WF = 96
V_AF = 128
V_KF = 192
V_X1 = 224
V_GO = 248

def srd(dst, ptr, nbytes):
    e("s_mov_b32 s%d, s%d" % (dst, ptr))
    e("s_and_b32 s%d, s%d, 0xffff" % (dst + 1, ptr + 1))
    e("s_mov_b32 s%d, 0x%x" % (dst + 2, nbytes))
    e("s_mov_b32 s%d, 0x20000" % (dst + 3))

def stamp(k):
    if not STAMPS or (STSET is not None and k not in STSET): return
    e("s_memrealtime s[%d:%d]" % (S_TM, S_TM + 1))
    e("s_waitcnt lgkmcnt(0)")
    e("s_mov_b32 s%d, s%d" % (S_ST + k, S_TM))

def stamps_flush(vtmp):
    if not STAMPS: return
    e("s_mov_b64 exec, -1")
    for k in range(16):
        e("v_writelane_b32 v%d, s%d, %d" % (vtmp, S_ST + k, k))
    e("s_lshl_b32 s%d, s2, 9" % S_A)
    e("s_lshl_b32 s%d, s%d, 6" % (S_B, S_WAVE))
    e("s_add_u32 s%d, s%d, s%d" % (S_A, S_A, S_B))
    e("s_add_u32 s%d, s%d, 0x%x" % (S_A, S_A, WS_TS))
    e("v_lshlrev_b32 v%d, 2, v1" % (vtmp + 1))
    e("s_mov_b64 exec, 0xffff")
    e("buffer_store_dword v%d, v%d, s[%d:%d], s%d offen" % (vtmp, vtmp + 1, SRD_WS, SRD_WS + 3, S_A))

def full(): e("s_mov_b64 exec, s[%d:%d]" % (S_FULL, S_FULL + 1))

def barrier(dry=False):
    if dry:
        l = uid("nb")
        e("s_cbranch_execz %s" % l)
        e("s_barrier")
        lab(l)
    else:
        e("s_barrier")

def set_dry():
    e("s_mov_b64 s[%d:%d], 0" % (S_FULL, S_FULL + 1))
    e("s_mov_b64 s[%d:%d], 0" % (S_ML, S_ML + 1))
    e("s_mov_b64 s[%d:%d], 0" % (S_MG, S_MG + 1))
    e("s_mov_b32 s%d, 1" % S_DRY)
    e("s_mov_b32 s3, 8")
    if PRIO: e("s_setprio 0")
    full()

def set_real():
    e("s_mov_b64 s[%d:%d], -1" % (S_FULL, S_FULL + 1))
    e("s_mov_b32 s%d, 0" % S_DRY)
    e("s_mov_b32 s3, 2")
    if PRIO: e("s_setprio 3")
    full()

def dpp_add(dst, src, ctrl, op="v_add_f32"):
    return "%s_dpp v%d, v%d, v%d %s row_mask:0xf bank_mask:0xf" % (op, dst, src, src, ctrl)

def xrow_ops(v, t, op="v_add_f32"):
    return ["v_mov_b32 v%d, v%d" % (t, v), "s_nop 1", "v_permlane16_swap_b32 v%d, v%d" % (v, t), "s_nop 0",
            "%s v%d, v%d, v%d" % (op, v, v, t),
            "v_mov_b32 v%d, v%d" % (t, v), "s_nop 1", "v_permlane32_swap_b32 v%d, v%d" % (v, t), "s_nop 0",
            "%s v%d, v%d, v%d" % (op, v, v, t)]

def wave_allreduce_ops(v, t, op="v_add_f32"):
    o = []
    for r in (8, 4, 2, 1):
        o += ["s_nop 1", dpp_add(v, v, "row_ror:%d" % r, op)]
    return o + xrow_ops(v, t, op)

def bf16_round_ops(v):
    return ["v_cvt_pk_bf16_f32 v%d, v%d, v%d" % (v, v, v), "v_lshlrev_b32 v%d, 16, v%d" % (v, v)]

def unpack_ops(lo, hi, src):
    return ["v_lshlrev_b32 v%d, 16, v%d" % (lo, src), "v_and_b32 v%d, 0xffff0000, v%d" % (hi, src)]
def unpack(lo, hi, src):
    for x in unpack_ops(lo, hi, src): e(x)
def emit(ops):
    for x in ops: e(x)

def poll_begin(bell=None):
    if bell and BELLFIRST: doorbell(*bell)
    top = uid("poll")
    lab(top)
    e("s_cbranch_execz %s_nl" % top)
    return top

def poll_mid(top):
    lab(top + "_nl")
    top2 = top + "x"
    e("s_cbranch_execz %s_nl" % top2)
    return top2

def poll_end(top, checks, last=None, bell=None):
    ok = top + "_ok"
    e("s_waitcnt vmcnt(0)")
    lab((last or top) + "_nl")
    for c in checks: e(c)
    e("s_cmp_eq_u64 exec, s[%d:%d]" % (S_FULL, S_FULL + 1))
    full()
    e("s_cbranch_scc1 %s" % ok)
    if SLEEP: e("s_sleep %d" % SLEEP)
    if bell and not BELLFIRST: doorbell(*bell)
    e("s_sub_u32 s%d, s%d, 1" % (S_SPIN, S_SPIN))
    e("s_cbranch_scc0 %s" % top)
    e("s_mov_b32 s%d, 0" % S_SPIN)
    lab(ok)

def doorbell(va, so, tagpos, off=0, atomic=False):
    if NOBELL: return
    top = uid("bell")
    e("s_cbranch_execz %s_ok" % top)
    lab(top)
    e("s_mov_b64 exec, 1")
    if atomic:
        e("v_mov_b32 v%d, 0" % V_T0)
        e("buffer_atomic_add v%d, v%d, s[%d:%d], s%d offen offset:%d sc0" % (V_T0, va, SRD_WS, SRD_WS + 3, so, off + 4 * tagpos))
    else:
        e("buffer_load_dword v%d, v%d, s[%d:%d], s%d offen offset:%d sc1" % (V_T0, va, SRD_WS, SRD_WS + 3, so, off + 4 * tagpos))
    e("s_waitcnt vmcnt(0)")
    e("v_cmpx_eq_u32 vcc, s%d, v%d" % (S_T, V_T0))
    e("s_cbranch_execnz %s_ok" % top)
    e("s_sleep %d" % BELLSLEEP)
    e("s_sub_u32 s%d, s%d, 1" % (S_SPIN, S_SPIN))
    e("s_cbranch_scc0 %s" % top)
    e("s_mov_b32 s%d, 0" % S_SPIN)
    lab(top + "_ok")
    full()

def chk64(v): return "v_cmpx_eq_u64 vcc, s[%d:%d], v[%d:%d]" % (S_TT, S_TT + 1, v, v + 1)
def chk32(v): return "v_cmpx_eq_u32 vcc, s%d, v%d" % (S_T, v)

def _mask(m, lanemask):
    if lanemask is None: e("s_mov_b64 exec, s[%d:%d]" % (m, m + 1))
    elif lanemask == "lo8": e("s_andn2_b64 exec, s[%d:%d], s[%d:%d]" % (m, m + 1, S_HI8, S_HI8 + 1))
    else: e("s_and_b64 exec, s[%d:%d], %s" % (m, m + 1, lanemask))

def store_g(instr, lanemask=None, flags=" sc1"):
    l = uid("ns")
    if lanemask is not None: _mask(S_FULL, lanemask)
    e("s_cbranch_execz %s" % l)
    e(instr + flags)
    lab(l)
    if lanemask is not None: full()

def store_l(instr, lanemask=None):
    for m, fl in ((S_ML, ""), (S_MG, " sc1")):
        l = uid("ns")
        _mask(m, lanemask)
        e("s_cbranch_execz %s" % l)
        e(instr + fl)
        lab(l)
    full()

def xcc_publish(vt, srd_):
    e("s_getreg_b32 s%d, hwreg(HW_REG_XCC_ID, 0, 4)" % S_XCC)
    e("s_add_u32 s%d, s%d, 1" % (S_XCC, S_XCC))
    e("s_lshl_b32 s%d, s%d, 5" % (S_XOFF, S_XCD))
    skip = uid("noxcc")
    e("s_cmp_lg_u32 s%d, 4" % S_WAVE)
    e("s_cbranch_scc1 %s" % skip)
    e("s_lshr_b32 s%d, s2, 3" % S_B)
    e("s_add_u32 s%d, s%d, s%d" % (S_A, S_XOFF, S_B))
    e("v_mov_b32 v%d, s%d" % (vt, S_XCC))
    e("s_mov_b64 exec, 1")
    e("buffer_store_byte v%d, v%d, s[%d:%d], s%d offen sc1" % (vt, V_Z, srd_, srd_ + 3, S_A))
    e("s_mov_b64 exec, -1")
    lab(skip)
    e("s_mul_i32 s%d, s%d, 0x01010101" % (S_XCC, S_XCC))

def xcc_load(vd, vaddr, srd_):
    e("buffer_load_dword v%d, v%d, s[%d:%d], s%d offen sc1" % (vd, vaddr, srd_, srd_ + 3, S_XOFF))

def xcc_checks(vd, vt):
    return ["v_subrev_u32 v%d, 0x01010101, v%d" % (vt, vd),
            "v_bfi_b32 v%d, v%d, 0, v%d" % (vt, vd, vt),
            "v_and_b32 v%d, 0x80808080, v%d" % (vt, vt),
            "v_cmpx_eq_u32 vcc, 0, v%d" % vt]

def xcc_decide(vd):
    e("v_cmp_ne_u32 vcc, s%d, v%d" % (S_XCC, vd))
    e("s_nop 1")
    if NOLOCAL: e("s_cmp_eq_u32 s%d, 0" % S_XCC)
    else: e("s_cmp_eq_u64 vcc, 0")
    e("s_cselect_b64 s[%d:%d], s[%d:%d], 0" % (S_ML, S_ML + 1, S_FULL, S_FULL + 1))
    e("s_cselect_b64 s[%d:%d], 0, s[%d:%d]" % (S_MG, S_MG + 1, S_FULL, S_FULL + 1))

def ln_stats_ops(vals, vsum, vt, vmean, vrs, vsq):
    o = ["v_add_f32 v%d, v%d, v%d" % (vsum, vals[0], vals[1]), "v_add_f32 v%d, v%d, v%d" % (vt, vals[2], vals[3])]
    for i in range(4, 16, 2):
        o += ["v_add_f32 v%d, v%d, v%d" % (vsum, vsum, vals[i]), "v_add_f32 v%d, v%d, v%d" % (vt, vt, vals[i + 1])]
    o += ["v_add_f32 v%d, v%d, v%d" % (vsum, vsum, vt)]
    o += wave_allreduce_ops(vsum, vt)
    o += ["v_mul_f32 v%d, %s, v%d" % (vmean, f32(1.0 / 1024), vsum)]
    o += ["v_sub_f32 v%d, v%d, v%d" % (vt, vals[0], vmean), "v_mul_f32 v%d, v%d, v%d" % (vsum, vt, vt)]
    for i in range(1, 16):
        o += ["v_sub_f32 v%d, v%d, v%d" % (vt, vals[i], vmean), "v_fmac_f32 v%d, v%d, v%d" % (vsum, vt, vt)]
    o += wave_allreduce_ops(vsum, vt)
    o += ["v_mul_f32 v%d, %s, v%d" % (vsq, f32(1.0 / 1024), vsum)]
    o += bf16_round_ops(vsq)
    o += ["v_add_f32 v%d, %s, v%d" % (vsq, f32(1e-5), vsq)]
    o += bf16_round_ops(vsq)
    o += ["v_sqrt_f32 v%d, v%d" % (vsq, vsq)]
    o += bf16_round_ops(vmean)
    o += bf16_round_ops(vsq)
    o += ["v_rcp_f32 v%d, v%d" % (vrs, vsq), "s_nop 0"]
    return o

def ln_stats_dot_ops(pairs, one, s1, s2, vt, vmean, vrs):
    o = ["v_dot2_f32_bf16 v%d, v%d, v%d, 0" % (s1, pairs[0], one), "v_dot2_f32_bf16 v%d, v%d, v%d, 0" % (s2, pairs[0], pairs[0])]
    for p in pairs[1:]:
        o += ["v_dot2_f32_bf16 v%d, v%d, v%d, v%d" % (s1, p, one, s1), "v_dot2_f32_bf16 v%d, v%d, v%d, v%d" % (s2, p, p, s2)]
    o += ["s_nop 2"]
    for r in (8, 4, 2, 1):
        o += [dpp_add(s1, s1, "row_ror:%d" % r), dpp_add(s2, s2, "row_ror:%d" % r), "s_nop 0"]
    o += ["s_nop 0", "v_permlane32_swap_b32 v%d, v%d" % (s1, s2), "s_nop 0", "v_add_f32 v%d, v%d, v%d" % (s1, s1, s2),
          "v_mov_b32 v%d, v%d" % (s2, s1), "s_nop 1", "v_permlane16_swap_b32 v%d, v%d" % (s1, s2), "s_nop 0",
          "v_add_f32 v%d, v%d, v%d" % (s1, s1, s2), "v_mov_b32 v%d, v%d" % (s2, s1), "s_nop 1",
          "v_permlane32_swap_b32 v%d, v%d" % (s1, s2), "s_nop 0",
          "v_mul_f32 v%d, %s, v%d" % (vmean, f32(1.0 / 1024), s1),
          "v_mul_f32 v%d, %s, v%d" % (s2, f32(1.0 / 1024), s2),
          "v_fma_f32 v%d, -v%d, v%d, v%d" % (s2, vmean, vmean, s2),
          "v_max_f32 v%d, 0, v%d" % (s2, s2)]
    o += bf16_round_ops(s2)
    o += ["v_add_f32 v%d, %s, v%d" % (s2, f32(1e-5), s2)]
    o += bf16_round_ops(s2)
    o += ["v_sqrt_f32 v%d, v%d" % (s2, s2)]
    o += bf16_round_ops(vmean)
    o += bf16_round_ops(s2)
    o += ["v_rcp_f32 v%d, v%d" % (vrs, s2), "s_nop 0"]
    return o

def ln_apply_pair(dst, a, b, vmean, vrs, vsq, t0, t1):
    e("v_sub_f32 v%d, v%d, v%d" % (a, a, vmean))
    e("v_sub_f32 v%d, v%d, v%d" % (b, b, vmean))
    e("v_cvt_pk_bf16_f32 v%d, v%d, v%d" % (t0, a, b))
    unpack(a, b, t0)
    e("v_mul_f32 v%d, v%d, v%d" % (t0, a, vrs))
    e("v_mul_f32 v%d, v%d, v%d" % (t1, b, vrs))
    e("v_fma_f32 v%d, -v%d, v%d, v%d" % (a, t0, vsq, a))
    e("v_fma_f32 v%d, -v%d, v%d, v%d" % (b, t1, vsq, b))
    e("v_fmac_f32 v%d, v%d, v%d" % (t0, a, vrs))
    e("v_fmac_f32 v%d, v%d, v%d" % (t1, b, vrs))
    e("v_cvt_pk_bf16_f32 v%d, v%d, v%d" % (dst, t0, t1))

def sigma_of(dst, u, t):
    e("v_and_b32 v%d, 3, v%d" % (dst, u))
    e("v_lshlrev_b32 v%d, 1, v%d" % (dst, dst))
    e("v_bfe_u32 v%d, v%d, 2, 1" % (t, u))
    e("v_or_b32 v%d, v%d, v%d" % (dst, dst, t))

def dma256_voff(va, vb, pitch, t):
    e("v_bfe_u32 v%d, v1, 1, 3" % t)
    e("v_xor_b32 v%d, v3, v%d" % (t, t))
    e("v_lshlrev_b32 v%d, 5, v%d" % (t, t))
    e("v_and_b32 v%d, 1, v1" % va)
    e("v_lshl_add_u32 v%d, v%d, 4, v%d" % (t, va, t))
    e("v_mul_u32_u24 v%d, %d, v3" % (va, pitch))
    e("v_add_u32 v%d, v%d, v%d" % (va, va, t))
    e("v_xor_b32 v%d, 0x80, v%d" % (vb, va))

SKIP = opt("skip", "").split(",")
def dma_run(srd_, voffs, s_base, rowbytes, ldsbase, per_wave, m0, m1, pre=None, name=None):
    if name in SKIP: return
    _dma_run(srd_, voffs, s_base, rowbytes, ldsbase, per_wave, m0, m1, pre)

def _dma_run(srd_, voffs, s_base, rowbytes, ldsbase, per_wave, m0, m1, pre=None):
    e("s_mul_i32 s%d, s%d, %d" % (S_A, S_WAVE, per_wave * rowbytes))
    e("s_add_u32 s%d, s%d, s%d" % (S_A, S_A, s_base))
    if m0: e("s_add_u32 s%d, s%d, %d" % (S_A, S_A, rowbytes * m0))
    e("s_mul_i32 s%d, s%d, %d" % (S_B, S_WAVE, per_wave * 1024))
    if ldsbase + m0: e("s_add_u32 s%d, s%d, %d" % (S_B, S_B, ldsbase + 1024 * m0))
    for m in range(m0, m1):
        e("s_mov_b32 m0, s%d" % S_B)
        if pre: pre(m)
        if m < m1 - 1: e("s_add_u32 s%d, s%d, 1024" % (S_B, S_B))
        else: e("s_nop 0")
        e("buffer_load_dwordx4 v%d, s[%d:%d], s%d offen nt lds" % (voffs(m), srd_, srd_ + 3, S_A))
        if m < m1 - 1: e("s_add_u32 s%d, s%d, %d" % (S_A, S_A, rowbytes))

def tr256_addr(va, t):
    e("v_bfe_u32 v%d, v1, 2, 2" % t)
    e("v_and_b32 v%d, 1, v3" % va)
    e("v_lshl_or_b32 v%d, v%d, 2, v%d" % (va, va, t))
    e("v_xor_b32 v%d, s%d, v%d" % (va, S_WAVE, va))
    e("v_lshlrev_b32 v%d, 5, v%d" % (va, va))
    e("v_lshl_add_u32 v%d, v3, 3, v%d" % (t, t))
    e("v_lshl_add_u32 v%d, v%d, 8, v%d" % (va, t, va))
    e("v_and_b32 v%d, 3, v1" % t)
    e("v_lshl_add_u32 v%d, v%d, 3, v%d" % (va, t, va))

def tr256_read(dst, va):
    for m in range(8):
        for h in range(2):
            e("ds_read_b64_tr_b16 v[%d:%d], v%d offset:%d" % (dst + 4 * m + 2 * h, dst + 4 * m + 2 * h + 1, va, m * 8192 + h * 1024))

def act_rd_addr(ve, vo, t, ldsbase):
    e("v_and_b32 v%d, 7, v1" % t)
    e("v_lshlrev_b32 v%d, 1, v3" % ve)
    e("v_xor_b32 v%d, v%d, v%d" % (ve, ve, t))
    e("v_lshlrev_b32 v%d, 4, v%d" % (ve, ve))
    e("v_lshl_add_u32 v%d, v3, 7, v%d" % (ve, ve))
    e("v_add_u32 v%d, %d, v%d" % (ve, ldsbase, ve))
    e("v_xor_b32 v%d, 16, v%d" % (vo, ve))

def mfma(d, a, b, c):
    cs = "0" if c is None else "v[%d:%d]" % (c, c + 3)
    return "v_mfma_f32_16x16x32_bf16 v[%d:%d], v[%d:%d], v[%d:%d], %s" % (d, d + 3, a, a + 3, b, b + 3, cs)

def gemv8(acc, wf, af, ve, vo):
    for m in range(8):
        e("ds_read_b128 v[%d:%d], v%d offset:%d" % (af + 4 * m, af + 4 * m + 3, vo if (m & 1) else ve, m * 512))
    for m in range(8):
        e("s_waitcnt lgkmcnt(%d)" % (7 - m))
        e(mfma(acc, wf + 4 * m, af + 4 * m, None if m == 0 else acc))

def touch(items):
    for i, (va, so, off) in enumerate(items):
        e("buffer_load_dword v%d, v%d, s[%d:%d], s%d offen offset:%d sc1" % (V_X1 + 20 + i, va, SRD_WS, SRD_WS + 3, so, off))

def clean(instr, lanemask=None):
    if NOCLEAN: return
    l = uid("nc")
    _mask(S_ML, lanemask)
    e("s_cbranch_execz %s" % l)
    e(instr + " sc1")
    lab(l)
    full()

def trig2():
    l = uid("nt2")
    e("s_cmp_lg_u32 s%d, 0" % S_WAVE)
    e("s_cbranch_scc1 %s" % l)
    e("s_lshl_b32 s%d, s%d, 3" % (S_A, S_SLOT))
    e("s_or_b32 s%d, s%d, s%d" % (S_A, S_A, S_XCD))
    e("s_lshl_b32 s%d, s%d, 7" % (S_A, S_A))
    e("s_add_u32 s%d, s%d, 0x%x" % (S_A, S_A, WS_TRIG))
    store_g("buffer_store_dword v%d, v%d, s[%d:%d], s%d offen offset:8" % (V_P + 3, V_Z, SRD_WS, SRD_WS + 3, S_A), "1")
    lab(l)

def make_tag(vE):
    e("v_readfirstlane_b32 s%d, v%d" % (S_F, vE))
    e("s_nop 3")
    e("s_mul_i32 s%d, s%d, 0x9e3779b1" % (S_T, S_F))
    e("s_add_u32 s%d, s%d, 0x85ebca6b" % (S_T, S_T))
    e("s_mov_b32 s%d, s%d" % (S_TT, S_T))
    e("s_mov_b32 s%d, s%d" % (S_TT + 1, S_T))
    e("s_add_u32 s%d, s%d, 1" % (S_F, S_F))
    e("v_mov_b32 v%d, s%d" % (V_P + 2, S_T))
    e("v_mov_b32 v%d, s%d" % (V_P + 3, S_T))

def publish_partial(s_off, local):
    e("s_nop 7")
    e("v_cndmask_b32 v%d, v%d, v%d, s[%d:%d]" % (V_P, V_ACC, V_ACC + 2, S_HI8, S_HI8 + 1))
    e("v_cndmask_b32 v%d, v%d, v%d, s[%d:%d]" % (V_P + 1, V_ACC + 1, V_ACC + 3, S_HI8, S_HI8 + 1))
    ins = "buffer_store_dwordx4 v[%d:%d], v%d, s[%d:%d], s%d offen" % (V_P, V_P + 3, V_PUB, SRD_WS, SRD_WS + 3, s_off)
    (store_l if local else store_g)(ins)

def reduce16(s0, bell=False):
    top = poll_begin((V_RED, s0, 3, 0, "5" in AT) if bell else None)
    for n in range(4):
        e("buffer_load_dwordx4 v[%d:%d], v%d, s[%d:%d], s%d offen sc1" % (V_L + 4 * n, V_L + 4 * n + 3, V_RED, SRD_WS, SRD_WS + 3, s0 + n))
    poll_end(top, [chk64(V_L + 4 * n + 2) for n in range(4)], bell=(V_RED, s0, 3) if bell else None)
    a, b = V_L, V_L + 1
    e("v_pk_add_f32 v[%d:%d], v[%d:%d], v[%d:%d]" % (a, b, a, b, V_L + 4, V_L + 5))
    e("v_pk_add_f32 v[%d:%d], v[%d:%d], v[%d:%d]" % (V_L + 8, V_L + 9, V_L + 8, V_L + 9, V_L + 12, V_L + 13))
    e("v_pk_add_f32 v[%d:%d], v[%d:%d], v[%d:%d]" % (a, b, a, b, V_L + 8, V_L + 9))
    e("s_nop 1")
    e("v_permlane32_swap_b32 v%d, v%d" % (a, b))
    e("s_nop 0")
    e("v_add_f32 v%d, v%d, v%d" % (a, a, b))
    e("v_mov_b32 v%d, v%d" % (b, a))
    e("s_nop 1")
    e("v_permlane16_swap_b32 v%d, v%d" % (a, b))
    e("s_nop 0")
    e("v_add_f32 v%d, v%d, v%d" % (a, a, b))
    e("v_mov_b32 v%d, v%d" % (b, a))
    e("s_nop 1")
    e("v_permlane32_swap_b32 v%d, v%d" % (a, b))
    e("s_nop 0")

def only_red(lbl):
    e("s_cmp_ge_u32 s%d, s3" % S_WAVE)
    e("s_cbranch_scc1 %s" % lbl)

def residual_add(dst, vres):
    e("v_cvt_pk_bf16_f32 v%d, v%d, v%d" % (V_T0, V_L, V_L + 1))
    unpack(V_U + 2, V_U + 3, vres)
    unpack(V_U, V_U + 1, V_T0)
    e("v_add_f32 v%d, v%d, v%d" % (V_U, V_U, V_U + 2))
    e("v_add_f32 v%d, v%d, v%d" % (V_U + 1, V_U + 1, V_U + 3))
    e("v_cvt_pk_bf16_f32 v%d, v%d, v%d" % (dst, V_U, V_U + 1))

def pos_write_addr(dst, ldsbase):
    e("v_bfe_u32 v%d, v1, 1, 3" % V_T2)
    sigma_of(V_T0, V_T2, V_T1)
    e("v_xor_b32 v%d, s%d, v%d" % (V_T0, S_WAVE, V_T0))
    e("v_lshlrev_b32 v%d, 4, v%d" % (V_T0, V_T0))
    e("v_lshrrev_b32 v%d, 1, v1" % V_T1)
    e("v_lshl_add_u32 v%d, v%d, 7, v%d" % (V_T0, V_T1, V_T0))
    e("v_and_b32 v%d, 1, v1" % V_T1)
    e("v_lshl_add_u32 v%d, v%d, 3, v%d" % (V_T0, V_T1, V_T0))
    e("v_add_u32 v%d, %d, v%d" % (dst, ldsbase, V_T0))

def gen():
    for l in """Fused decode layer: preLN + sliding-window GQA attention + residual + preLN + GLU MLP + residual.
Kernarg (96 bytes, pointers only): 0 A_x, 8 A_k_cache, 16 A_v_cache, 24 A_wq, 32 A_wo, 40 B_x (unused), 48 B_w_gate,
  56 B_w_up, 64 B_w_down, 72 d_out, 80 d_debug, 88 d_ws.
One persistent launch, 256 workgroups x 8 waves, one workgroup per CU.  role = (wg>>3)&1:
  B: LN1 + Q-proj tile -> O-proj tile -> h reduce -> down-proj tile -> final reduce
  A: attention for (batch, kv head, 256-key split) -> split combine -> gate/up tile (LN2 folded in)
Weights / K / V stream HBM -> LDS (LDS-DMA, swizzled images) and feed MFMA through transposing LDS reads.
Hand-offs between workgroups are 8/16-byte granules in d_ws that carry a per-launch tag (hash of an epoch word
  kept in d_ws).  Groups of workgroups that find (via the XCC id table in d_debug) that they share an XCD
  exchange through L2 with plain stores; otherwise every hand-off is written through.  All spins are bounded.
Waves 4-7 run upcoming latency-critical code once with EXEC=0 (memory instructions branched around) so that it
  is resident in the instruction cache while waves 0-3 issue the streams.
Generated by a script (work/gen.py).""".split("\n"):
        lines.append("; " + l)
    lines.append("; @launch grid=(256,1,1) block=(512,1,1) lds=%d" % LDS_BYTES)
    lines.append('.amdgcn_target "amdgcn-amd-amdhsa--gfx950"')
    lines.append(".text")
    lines.append(".globl %s_kernel" % NAME)
    lines.append(".p2align 8")
    lines.append(".type %s_kernel,@function" % NAME)
    lab("%s_kernel" % NAME)
    e("s_cmp_ge_u32 s2, 256")
    e("s_cbranch_scc1 L_end")
    if STAMPS:
        e("s_memrealtime s[%d:%d]" % (S_TM, S_TM + 1))
        for k in range(1, 16): e("s_mov_b32 s%d, 0" % (S_ST + k))
    e("s_load_dwordx16 s[4:19], s[0:1], 0")
    e("s_load_dwordx8 s[20:27], s[0:1], 64")
    e("v_lshrrev_b32 v4, 6, v0")
    e("v_and_b32 v1, 63, v0")
    e("v_readfirstlane_b32 s%d, v4" % S_WAVE)
    e("v_and_b32 v2, 15, v1")
    e("v_lshrrev_b32 v3, 4, v1")
    e("s_and_b32 s%d, s2, 7" % S_XCD)
    e("s_lshr_b32 s%d, s2, 4" % S_SLOT)
    e("v_mov_b32 v%d, 0" % V_Z)
    if PRIO: e("s_setprio 3")
    code_prefetch()
    e("s_bitcmp1_b32 s2, 3")
    e("s_cbranch_scc1 L_roleA")
    role_b()
    lab("L_roleA")
    role_a()
    lab("L_end")
    e("s_endpgm")
    lines.append('.section .rodata,"a"')
    lines.append(".p2align 6")
    lines.append(".amdhsa_kernel %s_kernel" % NAME)
    lines.append("  .amdhsa_next_free_vgpr 256")
    lines.append("  .amdhsa_next_free_sgpr 102")
    lines.append("  .amdhsa_accum_offset 256")
    lines.append("  .amdhsa_group_segment_fixed_size 0")
    lines.append("  .amdhsa_kernarg_size 96")
    lines.append("  .amdhsa_user_sgpr_count 2")
    lines.append("  .amdhsa_user_sgpr_kernarg_segment_ptr 1")
    lines.append("  .amdhsa_system_sgpr_workgroup_id_x 1")
    lines.append(".end_amdhsa_kernel")

def code_prefetch():
    if NOCODEPF: return
    l = uid("nopf")
    e("s_lshr_b32 s%d, s2, 3" % S_A)
    e("s_lshl_b32 s%d, s%d, 3" % (S_A, S_A))
    e("s_add_u32 s%d, s%d, s%d" % (S_A, S_A, S_WAVE))
    e("s_cmp_lg_u32 s%d, 13" % S_A)
    e("s_cbranch_scc1 %s" % l)
    e("s_getpc_b64 s[%d:%d]" % (S_ML, S_ML + 1))
    lab(l + "_pc")
    e("s_sub_u32 s%d, s%d, %s_pc-%s_kernel" % (S_ML, S_ML, l, NAME))
    e("s_subb_u32 s%d, s%d, 0" % (S_ML + 1, S_ML + 1))
    e("v_lshlrev_b32 v%d, 7, v1" % V_T0)
    e("global_load_dword v%d, v%d, s[%d:%d]" % (V_U, V_T0, S_ML, S_ML + 1))
    e("v_add_u32 v%d, 0x2000, v%d" % (V_T0, V_T0))
    e("v_min_u32 v%d, L_end-%s_kernel, v%d" % (V_T0, NAME, V_T0))
    e("global_load_dword v%d, v%d, s[%d:%d]" % (V_U + 1, V_T0, S_ML, S_ML + 1))
    lab(l)

def common_consts():
    e("s_mov_b32 s%d, 0x40000" % S_SPIN)
    e("s_mov_b32 s%d, 0xff00ff00" % S_HI8)
    e("s_mov_b32 s%d, 0xff00ff00" % (S_HI8 + 1))
    e("s_mov_b64 s[%d:%d], -1" % (S_FULL, S_FULL + 1))
    e("s_mov_b32 s%d, 0" % S_DRY)

def role_b():
    cmt("================= role B =================")
    V_AWD, V_XA, V_HO, V_ZA, V_TR1 = V_X1 + 1, V_X1 + 2, V_X1 + 3, V_X1 + 4, V_X1 + 5
    V_VC, V_VD = V_X1 + 6, V_X1 + 7
    V_ZQ = V_X1 + 8
    ab = lambda m: V_VB if (m & 2) else V_VA
    dma256_voff(V_VA, V_VB, 8192, V_T0)
    e("v_lshlrev_b32 v%d, 4, v1" % V_G)
    e("s_and_b32 s%d, s%d, 3" % (S_D, S_SLOT))
    e("s_lshr_b32 s%d, s%d, 2" % (S_A, S_SLOT))
    e("s_lshl_b32 s%d, s%d, 1" % (S_B, S_XCD))
    e("s_add_u32 s%d, s%d, s%d" % (S_B, S_B, S_A))
    e("s_lshl_b32 s%d, s%d, 2" % (S_C, S_B))
    e("s_add_u32 s%d, s%d, 1" % (S_C, S_C))
    e("s_sub_u32 s%d, s%d, 2" % (S_B, S_B))
    e("s_lshl_b32 s%d, s%d, 2" % (S_E, S_XCD))
    e("s_add_u32 s%d, s%d, s%d" % (S_E, S_E, S_A))
    e("s_sub_u32 s%d, s%d, 8" % (S_E, S_E))
    e("s_cmp_ge_u32 s%d, 4" % S_XCD)
    e("s_cselect_b32 s%d, s%d, s%d" % (S_B, S_E, S_B))
    e("s_cselect_b32 s%d, 2, s%d" % (S_A, S_A))
    e("s_mul_i32 s%d, s%d, 43" % (S_E, S_B))
    e("s_lshr_b32 s%d, s%d, 7" % (S_E, S_E))
    e("s_mul_i32 s%d, s%d, 3" % (S_F, S_E))
    e("s_sub_u32 s%d, s%d, s%d" % (S_F, S_B, S_F))
    e("s_lshl_b32 s%d, s%d, 2" % (S_E, S_E))
    e("s_add_u32 s%d, s%d, s%d" % (S_E, S_E, S_F))
    e("s_min_u32 s%d, s%d, 1" % (S_F, S_F))
    e("s_add_u32 s%d, s%d, s%d" % (S_E, S_E, S_F))
    e("s_cmp_ge_u32 s%d, 2" % S_A)
    e("s_cselect_b32 s%d, s%d, s%d" % (S_C, S_E, S_C))
    e("s_lshl_b32 s%d, s%d, 21" % (S_E, S_D))
    e("s_lshl_b32 s%d, s%d, 8" % (S_A, S_C))
    e("s_add_u32 s%d, s%d, s%d" % (S_E, S_E, S_A))
    e("s_lshl_b32 s82, s%d, 11" % S_WAVE)
    e("s_lshl_b32 s83, s%d, 9" % S_D)
    e("s_add_u32 s83, s83, s82")
    e("s_waitcnt lgkmcnt(0)")
    if STAMPS: e("s_mov_b32 s%d, s%d" % (S_ST, S_TM))
    srd(SRD_X, S_X, 16384)
    srd(SRD_W, S_WQ, 8 << 20)
    e("buffer_load_dwordx4 v[%d:%d], v%d, s[%d:%d], s82 offen" % (V_L, V_L + 3, V_G, SRD_X, SRD_X + 3))
    e("buffer_load_dwordx4 v[%d:%d], v%d, s[%d:%d], s82 offen offset:1024" % (V_L + 4, V_L + 7, V_G, SRD_X, SRD_X + 3))
    e("buffer_load_dwordx4 v[%d:%d], v%d, s[%d:%d], s83 offen" % (V_L + 8, V_L + 11, V_G, SRD_X, SRD_X + 3))
    if XBAR: e("s_barrier")
    dma_run(SRD_W, ab, S_E, 4 * 8192, L_W0, 8, 0, QFIRST)
    srd(SRD_WS, S_WS, WS_SIZE)
    e("buffer_load_dword v%d, v%d, s[%d:%d], 0 offen sc1" % (V_L + 12, V_Z, SRD_WS, SRD_WS + 3))
    stamp(1)
    common_consts()
    e("s_lshr_b32 s%d, s%d, 1" % (S_A, S_SLOT))
    e("s_lshl_b32 s%d, s%d, 11" % (S_A, S_A))
    e("s_lshl_b32 s%d, s%d, 8" % (S_B, S_XCD))
    e("s_add_u32 s%d, s%d, s%d" % (S_A, S_A, S_B))
    e("s_and_b32 s%d, s%d, 1" % (S_B, S_SLOT))
    e("s_lshl_b32 s%d, s%d, 7" % (S_B, S_B))
    e("s_add_u32 s%d, s%d, s%d" % (S_A, S_A, S_B))
    e("s_and_b32 s%d, s%d, 1" % (S_B, S_WAVE))
    e("s_lshl_b32 s%d, s%d, 6" % (S_B, S_B))
    e("s_add_u32 s80, s%d, s%d" % (S_A, S_B))
    e("v_lshlrev_b32 v%d, 2, v2" % V_X1)
    e("v_lshlrev_b32 v%d, 3, v2" % V_HO)
    e("buffer_load_dword v%d, v%d, s[%d:%d], s80 offen" % (V_XP, V_X1, SRD_X, SRD_X + 3))
    e("s_waitcnt vmcnt(%d)" % (QFIRST + 2))
    for i in range(8):
        unpack(V_U + 2 * i, V_U + 2 * i + 1, V_L + i)
    emit(ln_stats_ops([V_U + i for i in range(16)], V_SUM, V_T0, V_M, V_RS, V_SQ))
    if QFIRST < 8:
        dma_run(SRD_W, ab, S_E, 4 * 8192, L_W0, 8, QFIRST, 8)
    for i in range(4):
        unpack(V_U + 2 * i, V_U + 2 * i + 1, V_L + 8 + i)
    for i in range(4):
        ln_apply_pair(V_L + 16 + i, V_U + 2 * i, V_U + 2 * i + 1, V_M, V_RS, V_SQ, V_T0, V_T1)
    e("v_and_b32 v%d, 7, v1" % V_T2)
    e("v_lshlrev_b32 v%d, 2, v%d" % (V_XA, V_T2))
    sigma_of(V_T0, V_T2, V_T1)
    e("v_xor_b32 v%d, s%d, v%d" % (V_T0, S_WAVE, V_T0))
    e("v_lshlrev_b32 v%d, 4, v%d" % (V_T0, V_T0))
    e("v_lshl_add_u32 v%d, v1, 7, v%d" % (V_T0, V_T0))
    e("v_add_u32 v%d, %d, v%d" % (V_T0, L_ACT, V_T0))
    e("s_mov_b64 exec, 0xffffffff")
    e("ds_write_b128 v%d, v[%d:%d]" % (V_T0, V_L + 16, V_L + 19))
    e("s_mov_b64 exec, -1")
    srd(SRD_X, S_DBG, 256)
    xcc_publish(V_T0, SRD_X)
    if PFK:
        srd(SRD_O, S_K, 32 << 20)
        e("s_lshl_b32 s84, s%d, 22" % S_XCD)
        e("s_lshl_b32 s%d, s%d, 18" % (S_A, S_SLOT))
        e("s_and_b32 s%d, s%d, 0x300000" % (S_A, S_A))
        e("s_add_u32 s84, s84, s%d" % S_A)
        e("s_and_b32 s%d, s%d, 3" % (S_A, S_SLOT))
        e("s_lshl_b32 s%d, s%d, 16" % (S_A, S_A))
        e("s_add_u32 s84, s84, s%d" % S_A)
        e("s_add_u32 s84, s84, 0x%x" % (3072 * 256 + 65536 - 8192 * PFK))
        dma_run(SRD_O, lambda m: V_G, 84, 1024, L_W1, PFK, 0, PFK)
    tr256_addr(V_TR, V_T0)
    act_rd_addr(V_AE, V_AO, V_T0, L_ACT)
    e("v_and_b32 v%d, 7, v1" % V_T0)
    e("v_lshlrev_b32 v%d, 10, v%d" % (V_PUB, V_T0))
    e("v_lshrrev_b32 v%d, 3, v2" % V_T0)
    e("v_lshl_add_u32 v%d, v3, 1, v%d" % (V_T0, V_T0))
    e("v_lshl_add_u32 v%d, v%d, 4, v%d" % (V_PUB, V_T0, V_PUB))
    e("s_lshl_b32 s%d, s%d, 7" % (S_A, S_WAVE))
    e("v_add_u32 v%d, s%d, v%d" % (V_PUB, S_A, V_PUB))
    e("s_lshl_b32 s%d, s%d, 2" % (S_A, S_C))
    e("s_add_u32 s%d, s%d, s%d" % (S_A, S_A, S_D))
    e("s_lshl_b32 s%d, s%d, 13" % (S_A, S_A))
    e("s_add_u32 s81, s%d, 0x%x" % (S_A, WS_H1))
    stamp(2)
    if NODRY: e("s_branch L_q_real")
    e("s_waitcnt lgkmcnt(0)")
    set_dry()
    lab("L_q_top")
    tr256_read(V_WF, V_TR)
    gemv8(V_ACC, V_WF, V_AF, V_AE, V_AO)
    publish_partial(81, False)
    e("s_cmp_eq_u32 s%d, 0" % S_DRY)
    e("s_cbranch_scc1 L_q_done")
    lab("L_q_real")
    set_real()
    e("s_waitcnt vmcnt(%d)" % (8 - QFIRST + 1 + PFK))
    make_tag(V_L + 12)
    e("s_waitcnt vmcnt(%d) lgkmcnt(0)" % PFK)
    e("s_barrier")
    stamp(3)
    e("s_branch L_q_top")
    lab("L_q_done")
    stamp(4)
    dma256_voff(V_VA, V_VB, 2048, V_T0)
    e("v_add_u32 v%d, %d, v%d" % (V_TR1, L_W1, V_TR))
    e("s_and_b32 s%d, s%d, 1" % (S_A, S_WAVE))
    e("s_lshl_b32 s%d, s%d, 7" % (S_A, S_A))
    e("v_xor_b32 v%d, s%d, v%d" % (V_X1 + 14, S_A, V_VA))
    e("v_xor_b32 v%d, 0x80, v%d" % (V_X1 + 15, V_X1 + 14))
    pos_write_addr(V_AW, L_ACT)
    e("v_lshlrev_b32 v%d, 13, v3" % V_RED)
    e("v_lshl_add_u32 v%d, v2, 4, v%d" % (V_RED, V_RED))
    e("s_and_b32 s%d, s%d, 1" % (S_A, S_WAVE))
    e("s_lshl_b32 s%d, s%d, 8" % (S_A, S_A))
    e("v_add_u32 v%d, s%d, v%d" % (V_RED, S_A, V_RED))
    e("s_lshl_b32 s%d, s%d, 3" % (S_A, S_SLOT))
    e("s_or_b32 s%d, s%d, s%d" % (S_A, S_A, S_XCD))
    e("s_lshl_b32 s%d, s%d, 7" % (S_A, S_A))
    e("s_add_u32 s83, s%d, 0x%x" % (S_A, WS_TRIG))
    e("s_lshl_b32 s%d, s%d, 3" % (S_A, S_SLOT))
    e("s_add_u32 s%d, s%d, s%d" % (S_A, S_A, S_WAVE))
    e("s_lshl_b32 s%d, s%d, 10" % (S_A, S_A))
    e("s_add_u32 s82, s%d, 0x%x" % (S_A, WS_H2G))
    e("s_lshl_b32 s%d, s%d, 4" % (S_A, S_XCD))
    e("s_add_u32 s%d, s%d, s%d" % (S_A, S_A, S_SLOT))
    e("s_lshl_b32 s%d, s%d, 13" % (S_A, S_A))
    e("s_add_u32 s84, s%d, 0x%x" % (S_A, WS_H3A))
    e("s_lshl_b32 s%d, s%d, 17" % (S_A, S_XCD))
    e("s_lshl_b32 s%d, s%d, 9" % (S_B, S_SLOT))
    e("s_add_u32 s%d, s%d, s%d" % (S_A, S_A, S_B))
    e("s_add_u32 s85, s%d, 0x%x" % (S_A, WS_H3A))
    e("s_add_u32 s86, s%d, 0x%x" % (S_A, WS_H5))
    for n in range(4):
        e("s_add_u32 s%d, s85, %d" % (4 + n, 32768 * n))
        e("s_add_u32 s%d, s86, %d" % (8 + n, 32768 * n))
    e("s_lshl_b32 s%d, s80, 1" % S_A)
    e("s_add_u32 s90, s%d, 0x%x" % (S_A, WS_H3B))
    e("s_lshr_b32 s%d, s%d, 3" % (S_C, S_SLOT))
    e("s_lshl_b32 s%d, s%d, 1" % (S_A, S_XCD))
    e("s_add_u32 s%d, s%d, s%d" % (S_C, S_C, S_A))
    e("s_and_b32 s%d, s%d, 7" % (S_D, S_SLOT))
    e("s_mul_i32 s91, s%d, %d" % (S_C, 224 * 2048))
    e("s_lshl_b32 s%d, s%d, 8" % (S_A, S_D))
    e("s_add_u32 s91, s91, s%d" % S_A)
    e("s_min_u32 s%d, s%d, 6" % (S_A, S_WAVE))
    e("s_lshl_b32 s%d, s%d, 10" % (S_B, S_A))
    e("s_mul_i32 s%d, s%d, 7168" % (S_E, S_C))
    e("s_add_u32 s%d, s%d, s%d" % (S_E, S_E, S_B))
    e("s_add_u32 s87, s%d, 0x%x" % (S_E, WS_H4S))
    e("s_add_u32 s88, s%d, 0x%x" % (S_E, WS_H4U))
    e("s_lshl_b32 s%d, s%d, 2" % (S_B, S_A))
    e("v_add_u32 v%d, s%d, v3" % (V_T3, S_B))
    e("v_and_b32 v%d, 7, v%d" % (V_T2, V_T3))
    sigma_of(V_T0, V_T2, V_T1)
    e("v_and_b32 v%d, 7, v1" % V_T1)
    e("v_xor_b32 v%d, v%d, v%d" % (V_T0, V_T0, V_T1))
    e("v_lshlrev_b32 v%d, 4, v%d" % (V_T0, V_T0))
    e("v_lshl_add_u32 v%d, v%d, 7, v%d" % (V_T0, V_T3, V_T0))
    e("v_bfe_u32 v%d, v1, 3, 1" % V_T1)
    e("v_lshl_add_u32 v%d, v%d, 3, v%d" % (V_T0, V_T1, V_T0))
    e("v_add_u32 v%d, %d, v%d" % (V_AWD, L_ACT, V_T0))
    e("s_lshl_b32 s%d, s%d, 4" % (S_A, S_D))
    e("s_add_u32 s%d, s%d, s%d" % (S_A, S_A, S_C))
    e("s_lshl_b32 s%d, s%d, 13" % (S_A, S_A))
    e("s_add_u32 s89, s%d, 0x%x" % (S_A, WS_H5))
    e("v_and_b32 v%d, 31, v1" % V_T0)
    e("v_lshlrev_b32 v%d, 4, v%d" % (V_T0, V_T0))
    e("v_add_u32 v%d, %d, v%d" % (V_ZA, L_ACT + 28 * 128, V_T0))
    for k in range(4): e("v_mov_b32 v%d, 0" % (V_ZQ + k))
    srd(SRD_O, S_OUT, 16384)
    e("s_lshr_b32 s%d, s%d, 7" % (S_E, S_WG))
    e("s_mul_i32 s%d, s%d, 7" % (S_A, S_XCD))
    e("s_add_u32 s%d, s%d, s%d" % (S_E, S_E, S_A))
    e("s_sub_u32 s%d, 3, s%d" % (S_E, S_E))
    e("s_and_b32 s%d, s%d, 7" % (S_E, S_E))
    e("s_lshr_b32 s%d, s%d, 3" % (S_A, S_SLOT))
    e("s_mul_i32 s%d, s%d, 56" % (S_A, S_A))
    e("s_min_u32 s%d, s%d, 6" % (S_B, S_WAVE))
    e("s_lshl_b32 s%d, s%d, 3" % (S_B, S_B))
    e("s_add_u32 s%d, s%d, s%d" % (S_A, S_A, S_B))
    e("s_lshr_b32 s%d, s%d, 4" % (S_B, S_A))
    e("s_cmp_eq_u32 s%d, s%d" % (S_B, S_E))
    e("s_cselect_b32 s96, 1, 0")
    e("s_and_b32 s%d, s%d, 8" % (S_A, S_A))
    e("s_lshl_b32 s%d, s%d, 8" % (S_A, S_A))
    e("s_lshl_b32 s%d, s%d, 12" % (S_B, S_XCD))
    e("s_add_u32 s%d, s%d, s%d" % (S_A, S_A, S_B))
    e("s_add_u32 s81, s%d, 0x%x" % (S_A, WS_H4P))
    e("v_lshlrev_b32 v%d, 5, v1" % V_VC)
    e("v_add_u32 v%d, 0x8000, v%d" % (V_VD, V_VC))
    e("v_add_u32 v%d, 0x10000, v%d" % (V_X1 + 12, V_VC))
    e("v_add_u32 v%d, 0x18000, v%d" % (V_X1 + 13, V_VC))
    e("s_lshl_b32 s99, s%d, 19" % S_SLOT)
    e("s_lshl_b32 s%d, s%d, 8" % (S_A, S_XCD))
    e("s_add_u32 s99, s99, s%d" % S_A)
    e("s_barrier")
    e("s_cmp_ge_u32 s%d, 4" % S_WAVE)
    e("s_cbranch_scc1 L_b_warm")
    srd(SRD_W, S_WO, 8 << 20)
    top = poll_begin()
    e("buffer_load_dwordx2 v[%d:%d], v%d, s[%d:%d], s83 offen sc1" % (V_L, V_L + 1, V_Z, SRD_WS, SRD_WS + 3))
    poll_end(top, [chk64(V_L)])
    dma_run(SRD_W, ab, 99, 4 * 2048, L_W1, 16, 0, 16, name="wo")
    if DEARLY:
        srd(SRD_W, S_WD, 3584 * 2048)
        dma_run(SRD_W, lambda m: V_X1 + 15 if (m & 2) else V_X1 + 14, 91, 4 * 2048, L_W0, 14, 0, 14)
    if DSPLIT:
        srd(SRD_W, S_WD, 3584 * 2048)
        dma_run(SRD_W, ab, 91, 4 * 2048, L_W0, 8, 0, 8)
    stamp(5)
    e("s_waitcnt vmcnt(%d)" % (14 if DEARLY else 8 if DSPLIT else 0))
    e("s_branch L_b_real")
    lab("L_b_warm")
    if not NOTOUCH:
        e("s_cmp_lg_u32 s%d, 4" % S_WAVE)
        e("s_cbranch_scc1 L_b_notouch")
        e("v_lshlrev_b32 v%d, 7, v1" % V_T0)
        e("v_lshrrev_b32 v%d, 2, v1" % V_T1)
        e("v_lshlrev_b32 v%d, 13, v%d" % (V_T1, V_T1))
        e("v_and_b32 v%d, 3, v1" % V_T2)
        e("v_lshl_add_u32 v%d, v%d, 7, v%d" % (V_T1, V_T2, V_T1))
        e("s_sub_u32 s%d, s87, 4096" % S_A)
        e("s_sub_u32 s%d, s88, 4096" % S_B)
        e("s_lshl_b32 s%d, s%d, 12" % (S_C, S_XCD))
        e("s_add_u32 s%d, s%d, 0x%x" % (S_C, S_C, WS_H4P))
        e("v_and_b32 v%d, 31, v1" % V_T2)
        e("v_lshlrev_b32 v%d, 7, v%d" % (V_T2, V_T2))
        e("v_lshrrev_b32 v%d, 5, v1" % V_T3)
        e("v_lshl_add_u32 v%d, v%d, 15, v%d" % (V_T2, V_T3, V_T2))
        e("v_add_u32 v%d, 0x10000, v%d" % (V_T3, V_T2))
        touch([(V_T1, 85, 0), (V_T0, S_A, 0), (V_T0, S_B, 0), (V_T2, S_C, 0), (V_T3, S_C, 0), (V_Z, 82, 0), (V_Z, 86, 0), (V_Z, 89, 0), (V_Z, 90, 0)])
        if TLBT:
            e("v_mov_b32 v%d, s99" % V_T0)
            e("v_mov_b32 v%d, s91" % V_T1)
            e("global_load_dword v%d, v%d, s[%d:%d]" % (V_X1 + 29, V_T0, S_WO, S_WO + 1))
            e("global_load_dword v%d, v%d, s[%d:%d]" % (V_X1 + 30, V_T1, S_WD, S_WD + 1))
            e("global_load_dword v%d, v%d, s[%d:%d]" % (V_X1 + 31, V_Z, S_OUT, S_OUT + 1))
        lab("L_b_notouch")
    if NODRY: e("s_branch L_b_real")
    set_dry()
    e("s_branch L_b_tail")
    lab("L_b_real")
    set_real()
    e("s_barrier")
    lab("L_b_tail")
    tr256_read(V_WF, V_TR1)
    top = poll_begin()
    xcc_load(V_L, V_XA, SRD_X)
    poll_end(top, xcc_checks(V_L, V_T0))
    xcc_decide(V_L)
    stamp(6)
    top = poll_begin((V_G, 82, 3, 0, "2" in AT))
    e("buffer_load_dwordx4 v[%d:%d], v%d, s[%d:%d], s82 offen sc1" % (V_L, V_L + 3, V_G, SRD_WS, SRD_WS + 3))
    poll_end(top, [chk64(V_L + 2)], bell=(V_G, 82, 3))
    e("ds_write_b64 v%d, v[%d:%d]" % (V_AW, V_L, V_L + 1))
    stamp(7)
    e("s_waitcnt lgkmcnt(0)")
    barrier(True)
    gemv8(V_ACC, V_WF, V_AF, V_AE, V_AO)
    publish_partial(84, True)
    stamp(8)
    only_red("L_b_nor3")
    reduce16(4)
    stamp(9)
    residual_add(V_U + 4, V_XP)
    e("v_mov_b32 v%d, s%d" % (V_U + 6, S_T))
    e("v_mov_b32 v%d, s%d" % (V_U + 7, S_T))
    e("v_mov_b32_dpp v%d, v%d quad_perm:[1,1,3,3] row_mask:0xf bank_mask:0xf" % (V_U + 5, V_U + 4))
    store_g("buffer_store_dwordx4 v[%d:%d], v%d, s[%d:%d], s90 offen" % (V_U + 4, V_U + 7, V_HO, SRD_WS, SRD_WS + 3), "0x5555")
    e("v_mov_b32 v%d, v%d" % (V_H, V_U + 4))
    stamp(10)
    lab("L_b_nor3")
    if DEARLY:
        barrier(True)
    else:
        e("s_cbranch_execz L_b_nod")
        e("s_barrier")
        srd(SRD_W, S_WD, 3584 * 2048)
        if TRIG2: doorbell(V_Z, 83, 2)
        e("s_cmp_ge_u32 s%d, %d" % (S_WAVE, 6 if DSPLIT else 7))
        e("s_cbranch_scc1 L_b_nod7")
        if DSPLIT: dma_run(SRD_W, ab, 91, 4 * 2048, L_W0, 4, 32, 36, name="d")
        else: dma_run(SRD_W, ab, 91, 4 * 2048, L_W0, 8, 0, 8, name="d")
        lab("L_b_nod7")
        e("s_waitcnt vmcnt(0)")
        e("s_barrier")
        lab("L_b_nod")
    e("ds_write_b128 v%d, v[%d:%d]" % (V_ZA, V_ZQ, V_ZQ + 3))
    tr256_read(V_WF, V_TR)
    stamp(11)
    e("s_cmp_eq_u32 s96, 0")
    e("s_cbranch_scc0 L_b_split")
    lab("L_b_plain")
    top = poll_begin((V_G, 88, 3) if "4" not in NB else None)
    e("buffer_load_dwordx4 v[%d:%d], v%d, s[%d:%d], s87 offen sc1" % (V_L, V_L + 3, V_G, SRD_WS, SRD_WS + 3))
    e("buffer_load_dwordx4 v[%d:%d], v%d, s[%d:%d], s88 offen sc1" % (V_L + 4, V_L + 7, V_G, SRD_WS, SRD_WS + 3))
    poll_end(top, [chk32(V_L + 1), chk32(V_L + 3), chk32(V_L + 5), chk32(V_L + 7)], bell=(V_G, 88, 3))
    unpack(V_U, V_U + 1, V_L); unpack(V_U + 4, V_U + 5, V_L + 4)
    unpack(V_U + 2, V_U + 3, V_L + 2); unpack(V_U + 6, V_U + 7, V_L + 6)
    e("s_cbranch_execnz L_b_join")
    lab("L_b_split")
    top = poll_begin((V_X1 + 12, 81, 3) if "4" not in NB else None)
    for i, va in enumerate((V_VC, V_VD, V_X1 + 12, V_X1 + 13)):
        if i == 2: top2 = poll_mid(top)
        for h in range(2):
            r = V_L + 8 * i + 4 * h
            e("buffer_load_dwordx4 v[%d:%d], v%d, s[%d:%d], s81 offen offset:%d sc1" % (r, r + 3, va, SRD_WS, SRD_WS + 3, 16 * h))
    poll_end(top, [chk64(V_L + 4 * i + 2) for i in range(8)], last=top2, bell=(V_X1 + 12, 81, 3))
    for mat in range(2):
        for h in range(2):
            for k in range(2):
                e("v_add_f32 v%d, v%d, v%d" % (V_U + 4 * mat + 2 * h + k, V_L + 16 * mat + 4 * h + k, V_L + 16 * mat + 8 + 4 * h + k))
    for i in range(4):
        e("v_cvt_pk_bf16_f32 v%d, v%d, v%d" % (V_L + i, V_U + 2 * i, V_U + 2 * i + 1))
    for i in range(4):
        unpack(V_U + 2 * i, V_U + 2 * i + 1, V_L + i)
    for k in range(4): e("v_mul_f32 v%d, %s, v%d" % (V_U + k, f32(-LOG2E), V_U + k))
    for k in range(4): e("v_exp_f32 v%d, v%d" % (V_U + k, V_U + k))
    for k in range(4): e("v_add_f32 v%d, 1.0, v%d" % (V_U + k, V_U + k))
    for k in range(4): e("v_rcp_f32 v%d, v%d" % (V_U + k, V_U + k))
    e("s_nop 0")
    for i in range(2):
        e("v_cvt_pk_bf16_f32 v%d, v%d, v%d" % (V_L + i, V_U + 2 * i, V_U + 2 * i + 1))
    for i in range(2):
        unpack(V_U + 2 * i, V_U + 2 * i + 1, V_L + i)
    lab("L_b_join")
    stamp(12)
    for k in range(4): e("v_mul_f32 v%d, v%d, v%d" % (V_U + k, V_U + k, V_U + 4 + k))
    e("v_cvt_pk_bf16_f32 v%d, v%d, v%d" % (V_U + 16, V_U, V_U + 1))
    e("v_cvt_pk_bf16_f32 v%d, v%d, v%d" % (V_U + 17, V_U + 2, V_U + 3))
    e("ds_write_b64 v%d, v[%d:%d]" % (V_AWD, V_U + 16, V_U + 17))
    e("s_waitcnt lgkmcnt(0)")
    barrier(True)
    gemv8(V_ACC, V_WF, V_AF, V_AE, V_AO)
    publish_partial(89, False)
    stamp(13)
    noep = uid("noep")
    e("s_add_u32 s%d, s2, s%d" % (S_A, S_WAVE))
    e("s_cmp_lg_u32 s%d, 0" % S_A)
    e("s_cbranch_scc1 %s" % noep)
    e("s_mov_b64 exec, 1")
    e("v_mov_b32 v%d, s%d" % (V_T0, S_F))
    e("buffer_store_dword v%d, v%d, s[%d:%d], 0 offen sc1" % (V_T0, V_Z, SRD_WS, SRD_WS + 3))
    e("s_mov_b64 exec, -1")
    lab(noep)
    only_red("L_b_end2")
    reduce16(8, BELL5)
    stamp(14)
    residual_add(V_U + 4, V_H)
    store_g("buffer_store_dword v%d, v%d, s[%d:%d], s80 offen" % (V_U + 4, V_X1, SRD_O, SRD_O + 3), "0xffff", flags="")
    e("s_cmp_lg_u32 s%d, 0" % S_DRY)
    e("s_cbranch_scc1 L_b_real")
    stamp(15)
    lab("L_b_end")
    stamps_flush(V_U)
    e("s_endpgm")
    lab("L_b_end2")
    if "b" in CLEAN: clean("buffer_store_dwordx4 v[%d:%d], v%d, s[%d:%d], s84 offen" % (V_P, V_P + 3, V_PUB, SRD_WS, SRD_WS + 3))
    e("s_branch L_b_end")

def role_a():
    cmt("================= role A =================")
    KO = V_X1
    KA = V_X1 + 4
    QE, QO, QW, PW0, PW1, SW, SR, XA, EP = [V_X1 + 8 + i for i in range(9)]
    ab = lambda m: V_VB if (m & 2) else V_VA
    dma256_voff(V_VA, V_VB, 256, V_T0)
    e("s_lshl_b32 s%d, s%d, 22" % (S_E, S_XCD))
    e("s_lshr_b32 s%d, s%d, 2" % (S_C, S_SLOT))
    e("s_lshl_b32 s%d, s%d, 20" % (S_A, S_C))
    e("s_add_u32 s%d, s%d, s%d" % (S_E, S_E, S_A))
    e("s_and_b32 s%d, s%d, 3" % (S_D, S_SLOT))
    e("s_lshl_b32 s%d, s%d, 16" % (S_A, S_D))
    e("s_add_u32 s%d, s%d, s%d" % (S_E, S_E, S_A))
    e("s_add_u32 s%d, s%d, 0x%x" % (S_E, S_E, 3072 * 256))
    e("v_xor_b32 v%d, v2, v3" % V_T0)
    e("v_lshlrev_b32 v%d, 4, v%d" % (V_T0, V_T0))
    e("v_lshl_add_u32 v%d, v3, 8, v%d" % (KO, V_T0))
    for i in range(1, 4): e("v_xor_b32 v%d, %d, v%d" % (KO + i, 64 * i, KO))
    e("s_waitcnt lgkmcnt(0)")
    if STAMPS: e("s_mov_b32 s%d, s%d" % (S_ST, S_TM))
    srd(SRD_WS, S_WS, WS_SIZE)
    e("buffer_load_dword v%d, v%d, s[%d:%d], 0 offen sc1" % (EP, V_Z, SRD_WS, SRD_WS + 3))
    e("s_cmp_ge_u32 s%d, %d" % (S_WAVE, NLD))
    e("s_cbranch_scc1 L_a_noissue0")
    srd(SRD_X, S_K, 32 << 20)
    def thr(c):
        if AWIN <= c < ATHR: e("s_waitcnt vmcnt(%d)" % (AWIN - 1))
    if KFIRST:
        dma_run(SRD_X, lambda m: KO + (m & 3), S_E, 1024, L_W1, 16, 0, 16, pre=thr, name="k")
    else:
        srd(SRD_W, S_V, 32 << 20)
        dma_run(SRD_W, ab, S_E, 1024, L_W0, 16, 0, 16, pre=thr, name="v")
        dma_run(SRD_X, lambda m: KO + (m & 3), S_E, 1024, L_W1, 8, 0, 8, pre=lambda m: thr(16 + m), name="k")
        dma_run(SRD_X, lambda m: KO + (m & 3), S_E, 1024, L_W1, 8, 32, 40, name="k")
    lab("L_a_noissue0")
    if KFIRST: srd(SRD_W, S_V, 32 << 20)
    srd(SRD_O, S_DBG, 256)
    xcc_publish(V_T0, SRD_O)
    stamp(1)
    common_consts()
    e("v_lshlrev_b32 v%d, 4, v1" % V_G)
    tr256_addr(V_TR, V_T0)
    e("v_xor_b32 v%d, v2, v3" % V_T0)
    e("v_lshlrev_b32 v%d, 4, v%d" % (V_T0, V_T0))
    e("v_lshl_add_u32 v%d, v2, 8, v%d" % (V_T0, V_T0))
    e("s_lshl_b32 s%d, s%d, 13" % (S_A, S_WAVE))
    e("s_add_u32 s%d, s%d, %d" % (S_A, S_A, L_W1))
    e("v_add_u32 v%d, s%d, v%d" % (KA, S_A, V_T0))
    for i in range(1, 4): e("v_xor_b32 v%d, %d, v%d" % (KA + i, 64 * i, KA))
    act_rd_addr(QE, QO, V_T0, L_QB)
    act_rd_addr(V_AE, V_AO, V_T0, L_PB)
    e("v_bfe_u32 v%d, v1, 2, 3" % V_T2)
    sigma_of(V_T0, V_T2, V_T1)
    e("v_xor_b32 v%d, s%d, v%d" % (V_T0, S_WAVE, V_T0))
    e("v_lshlrev_b32 v%d, 4, v%d" % (V_T0, V_T0))
    e("v_lshrrev_b32 v%d, 2, v1" % V_T1)
    e("v_lshl_add_u32 v%d, v%d, 7, v%d" % (V_T0, V_T1, V_T0))
    e("v_and_b32 v%d, 3, v1" % V_T1)
    e("v_lshl_add_u32 v%d, v%d, 2, v%d" % (V_T0, V_T1, V_T0))
    e("v_add_u32 v%d, %d, v%d" % (QW, L_QB, V_T0))
    e("v_and_b32 v%d, 2, v3" % V_T0)
    e("s_and_b32 s%d, s%d, 1" % (S_A, S_WAVE))
    e("v_or_b32 v%d, s%d, v%d" % (V_T0, S_A, V_T0))
    e("v_and_b32 v%d, 7, v1" % V_T1)
    e("v_xor_b32 v%d, v%d, v%d" % (V_T0, V_T0, V_T1))
    e("v_lshlrev_b32 v%d, 4, v%d" % (V_T0, V_T0))
    e("v_lshrrev_b32 v%d, 1, v3" % V_T1)
    e("v_lshl_add_u32 v%d, v%d, 7, v%d" % (V_T0, V_T1, V_T0))
    e("v_and_b32 v%d, 1, v3" % V_T1)
    e("v_lshl_add_u32 v%d, v%d, 3, v%d" % (V_T0, V_T1, V_T0))
    e("s_lshl_b32 s%d, s%d, 9" % (S_A, S_WAVE))
    e("s_add_u32 s%d, s%d, %d" % (S_A, S_A, L_PB))
    e("v_add_u32 v%d, s%d, v%d" % (PW0, S_A, V_T0))
    e("v_xor_b32 v%d, 64, v%d" % (PW1, PW0))
    e("v_add_u32 v%d, 0x100, v%d" % (PW1, PW1))
    e("v_cndmask_b32 v%d, v%d, v%d, s[%d:%d]" % (PW0, PW0, PW1, S_HI8, S_HI8 + 1))
    e("v_and_b32 v%d, 7, v1" % V_T0)
    e("v_lshlrev_b32 v%d, 2, v%d" % (XA, V_T0))
    e("v_lshlrev_b32 v%d, 6, v%d" % (V_T0, V_T0))
    e("v_add_u32 v%d, %d, v%d" % (SR, L_MX, V_T0))
    e("s_lshl_b32 s%d, s%d, 2" % (S_A, S_WAVE))
    e("v_add_u32 v%d, s%d, v%d" % (SW, S_A, SR))
    e("s_lshl_b32 s%d, s%d, 3" % (S_A, S_C))
    e("s_add_u32 s%d, s%d, s%d" % (S_A, S_A, S_WAVE))
    e("s_lshl_b32 s%d, s%d, 15" % (S_A, S_A))
    e("s_lshl_b32 s%d, s%d, 10" % (S_B, S_XCD))
    e("s_add_u32 s%d, s%d, s%d" % (S_A, S_A, S_B))
    e("s_add_u32 s80, s%d, 0x%x" % (S_A, WS_H1))
    for i in range(1, 4): e("s_add_u32 s%d, s80, %d" % (80 + i, 8192 * i))
    e("s_lshl_b32 s%d, s%d, 3" % (S_A, S_C))
    e("s_add_u32 s%d, s%d, s%d" % (S_A, S_A, S_XCD))
    e("s_lshl_b32 s%d, s%d, 14" % (S_A, S_A))
    e("s_add_u32 s%d, s%d, 0x%x" % (S_A, S_A, WS_H2))
    e("s_lshl_b32 s%d, s%d, 10" % (S_B, S_D))
    e("s_add_u32 s87, s%d, s%d" % (S_A, S_B))
    for i in range(1, 4): e("s_add_u32 s%d, s87, %d" % (87 + i, 4096 * i))
    e("s_lshl_b32 s%d, s%d, 12" % (S_B, S_D))
    e("s_add_u32 s%d, s%d, s%d" % (S_A, S_A, S_B))
    e("s_lshl_b32 s%d, s%d, 6" % (S_B, S_WAVE))
    e("s_add_u32 s84, s%d, s%d" % (S_A, S_B))
    e("v_and_b32 v%d, 7, v1" % V_T0)
    e("v_lshlrev_b32 v%d, 9, v%d" % (V_PUB, V_T0))
    e("v_lshl_add_u32 v%d, v3, 4, v%d" % (V_PUB, V_PUB))
    e("s_lshl_b32 s%d, s%d, 3" % (S_A, S_SLOT))
    e("s_add_u32 s%d, s%d, s%d" % (S_A, S_A, S_XCD))
    e("s_lshl_b32 s%d, s%d, 10" % (S_A, S_A))
    e("s_add_u32 s91, s%d, 0x%x" % (S_A, WS_H2G))
    e("s_mov_b32 s96, %s" % f32(LOG2E))
    e("s_cmp_lt_u32 s%d, %d" % (S_WAVE, NLD))
    e("s_cbranch_scc1 L_a_real")
    if not NOTOUCH:
        e("s_cmp_lg_u32 s%d, 4" % S_WAVE)
        e("s_cbranch_scc1 L_a_notouch")
        e("v_and_b32 v%d, 7, v1" % V_T0)
        e("v_lshlrev_b32 v%d, 7, v%d" % (V_T0, V_T0))
        e("v_bfe_u32 v%d, v1, 3, 2" % V_T1)
        e("v_lshl_add_u32 v%d, v%d, 12, v%d" % (V_T0, V_T1, V_T0))
        touch([(V_T0, 87, 0), (V_Z, 80, 0), (V_Z, 91, 0)])
        if TLBT:
            e("v_min_u32 v%d, 27, v1" % V_T1)
            e("v_lshlrev_b32 v%d, 18, v%d" % (V_T1, V_T1))
            e("global_load_dword v%d, v%d, s[%d:%d]" % (V_X1 + 23, V_T1, S_WG, S_WG + 1))
            e("global_load_dword v%d, v%d, s[%d:%d]" % (V_X1 + 23, V_T1, S_WU, S_WU + 1))
            e("s_mov_b32 s%d, 0x%x" % (S_A, WS_H3B))
            e("s_mov_b32 s%d, 0x%x" % (S_B, WS_H4P))
            e("buffer_load_dword v%d, v%d, s[%d:%d], s%d offen offset:64 sc1" % (V_X1 + 23, V_Z, SRD_WS, SRD_WS + 3, S_B))
        lab("L_a_notouch")
    if NODRY: e("s_branch L_a_real0")
    set_dry()
    e("s_branch L_a_att")
    def gu_scalar_setup():
        GO = V_GO
        e("s_lshr_b32 s%d, s%d, 7" % (S_D, S_WG))
        e("s_mul_i32 s%d, s%d, 7" % (S_A, S_XCD))
        e("s_add_u32 s%d, s%d, s%d" % (S_D, S_D, S_A))
        e("s_sub_u32 s%d, 3, s%d" % (S_D, S_D))
        e("s_and_b32 s%d, s%d, 7" % (S_D, S_D))
        e("s_mov_b32 s101, 0")
        e("s_cmp_ge_u32 s%d, 7" % S_SLOT)
        e("s_cselect_b32 s%d, 7, 0" % S_B)
        e("s_cselect_b32 s100, 1, 0")
        e("s_sub_u32 s%d, s%d, s%d" % (S_C, S_SLOT, S_B))
        e("s_cmp_eq_u32 s%d, s%d" % (S_C, S_D))
        e("s_cselect_b32 s99, 1, 0")
        e("s_cmp_lt_u32 s%d, 14" % S_SLOT)
        e("s_cbranch_scc1 L_a_nohelp")
        e("s_cmp_eq_u32 s%d, 7" % S_D)
        e("s_cselect_b32 s101, 1, 0")
        e("s_mov_b32 s%d, s%d" % (S_C, S_D))
        e("s_sub_u32 s100, s%d, 14" % S_SLOT)
        e("s_mov_b32 s99, 2")
        lab("L_a_nohelp")
        e("s_cmp_lg_u32 s100, 0")
        e("s_cselect_b32 s%d, s%d, s%d" % (SRD_W, S_WU, S_WG))
        e("s_cselect_b32 s%d, s%d, s%d" % (S_A, S_WU + 1, S_WG + 1))
        e("s_cselect_b32 s85, 0x%x, 0" % (WS_H4U - WS_H4S))
        e("s_add_u32 s85, s85, 0x%x" % WS_H4S)
        e("s_and_b32 s%d, s%d, 0xffff" % (SRD_W + 1, S_A))
        e("s_cmp_lg_u32 s101, 0")
        e("s_cselect_b32 s%d, 0, 0x%x" % (SRD_W + 2, 1024 * 7168))
        e("s_mov_b32 s%d, 0x20000" % (SRD_W + 3))
        e("s_mul_i32 s%d, s%d, 7" % (S_A, S_XCD))
        e("s_add_u32 s%d, s%d, s%d" % (S_C, S_C, S_A))
        e("v_lshrrev_b32 v%d, 3, v1" % V_T0)
        e("v_bfe_u32 v%d, v1, 4, 1" % V_T1)
        e("v_and_b32 v%d, 7, v1" % V_T2)
        e("v_xor_b32 v%d, v%d, v%d" % (V_T1, V_T1, V_T2))
        e("v_lshlrev_b32 v%d, 4, v%d" % (V_T1, V_T1))
        e("v_mul_u32_u24 v%d, 7168, v%d" % (GO, V_T0))
        e("v_add_u32 v%d, v%d, v%d" % (GO, GO, V_T1))
        for i in range(1, 4): e("v_xor_b32 v%d, %d, v%d" % (GO + i, 32 * i, GO))
        e("s_and_b32 s%d, s%d, 1" % (S_A, S_WAVE))
        e("s_lshl_b32 s%d, s%d, 6" % (S_A, S_A))
        e("v_xor_b32 v%d, s%d, v%d" % (GO + 4, S_A, GO))
        e("v_xor_b32 v%d, 32, v%d" % (GO + 5, GO + 4))
        NE = 8 * GE
        e("s_cmp_eq_u32 s99, 2")
        e("s_cselect_b32 s%d, 64, 0" % S_B)
        e("s_mul_i32 s%d, s%d, %d" % (S_A, S_WAVE, GE))
        e("s_add_u32 s%d, s%d, s%d" % (S_A, S_A, S_B))
        e("s_lshl_b32 s9, s%d, 10" % S_A)
        e("s_mul_i32 s8, s%d, %d" % (S_A, 8 * 7168))
        e("s_lshl_b32 s%d, s%d, 7" % (S_E, S_C))
        e("s_add_u32 s8, s8, s%d" % S_E)
        e("s_cmp_eq_u32 s99, 0")
        e("s_cselect_b32 s%d, %d, %d" % (S_A, (128 - NE) // 4, (64 - NE) // 4))
        e("s_cselect_b32 s6, %d, %d" % ((128 - NE) // 32, (64 - NE) // 32))
        e("s_mul_i32 s%d, s%d, s%d" % (S_A, S_A, S_WAVE))
        e("s_add_u32 s%d, s%d, s%d" % (S_A, S_A, S_B))
        e("s_add_u32 s%d, s%d, %d" % (S_A, S_A, NE))
        e("s_lshl_b32 s5, s%d, 10" % S_A)
        e("s_mul_i32 s4, s%d, %d" % (S_A, 8 * 7168))
        e("s_add_u32 s4, s4, s%d" % S_E)
    def gu_early(ms):
        if not ms or "gu" in SKIP: return
        l = uid("nge")
        e("s_cbranch_execz %s" % l)
        for m in ms:
            e("s_mov_b32 m0, s9")
            e("s_add_u32 s9, s9, 1024")
            e("buffer_load_dwordx4 v%d, s[%d:%d], s8 offen nt lds" % (V_GO + 4 + (m & 1) if GE == 4 else V_GO + ((m & 1) | (((m >> 2) & 1) << 1)), SRD_W, SRD_W + 3))
            e("s_add_u32 s8, s8, %d" % (8 * 7168))
        lab(l)
    def h1_loads():
        for k in range(4):
            e("buffer_load_dwordx4 v[%d:%d], v%d, s[%d:%d], s%d offen sc1" % (V_L + 4 * k, V_L + 4 * k + 3, V_G, SRD_WS, SRD_WS + 3, 80 + k))
        xcc_load(V_L + 16, XA, SRD_O)
    def trig1(w):
        notr = uid("notr")
        e("s_cmp_lg_u32 s%d, %d" % (S_WAVE, w))
        e("s_cbranch_scc1 %s" % notr)
        e("s_lshl_b32 s%d, s%d, 3" % (S_A, S_SLOT))
        e("s_or_b32 s%d, s%d, s%d" % (S_A, S_A, S_XCD))
        e("s_lshl_b32 s%d, s%d, 7" % (S_A, S_A))
        e("s_add_u32 s%d, s%d, 0x%x" % (S_A, S_A, WS_TRIG))
        e("s_mov_b64 exec, 1")
        e("buffer_store_dwordx2 v[%d:%d], v%d, s[%d:%d], s%d offen sc1" % (V_T2 + 1, V_T2 + 2, V_Z, SRD_WS, SRD_WS + 3, S_A) if False else
          "buffer_store_dwordx2 v[%d:%d], v%d, s[%d:%d], s%d offen sc1" % (V_X1 + 18, V_X1 + 19, V_Z, SRD_WS, SRD_WS + 3, S_A))
        full()
        lab(notr)
    if KFIRST:
        lab("L_a_real0")
        e("s_waitcnt vmcnt(0)")
        e("s_branch L_a_sync")
        lab("L_a_real")
        dma_run(SRD_W, ab, S_E, 1024, L_W0, 16, 0, VP, pre=lambda m: thr(16 + m), name="v")
        e("s_waitcnt vmcnt(%d)" % VP)
        lab("L_a_sync")
        set_real()
        make_tag(EP)
        e("v_mov_b32 v%d, s%d" % (V_X1 + 18, S_T))
        e("v_mov_b32 v%d, s%d" % (V_X1 + 19, S_T))
        e("s_barrier")
        stamp(2)
        lab("L_a_att")
        e("s_cbranch_execz L_a_h1k")
        h1_loads()
        e("s_cmp_ge_u32 s%d, 4" % S_WAVE)
        e("s_cbranch_scc1 L_a_h1k")
        if VP < 16:
            dma_run(SRD_W, ab, S_E, 1024, L_W0, 16, VP, 16, name="v")
        lab("L_a_h1k")
    else:
        lab("L_a_real0")
        e("s_waitcnt vmcnt(0)")
        lab("L_a_real")
        set_real()
        e("s_waitcnt vmcnt(%d)" % (TRIGV * 4 // NLD))
        make_tag(EP)
        gu_scalar_setup()
        notr = uid("notr")
        e("s_cmp_lg_u32 s%d, 0" % S_WAVE)
        e("s_cbranch_scc1 %s" % notr)
        e("s_lshl_b32 s%d, s%d, 3" % (S_A, S_SLOT))
        e("s_or_b32 s%d, s%d, s%d" % (S_A, S_A, S_XCD))
        e("s_lshl_b32 s%d, s%d, 7" % (S_A, S_A))
        e("s_add_u32 s%d, s%d, 0x%x" % (S_A, S_A, WS_TRIG))
        e("s_mov_b64 exec, 1")
        e("buffer_store_dwordx2 v[%d:%d], v%d, s[%d:%d], s%d offen sc1" % (V_P + 2, V_P + 3, V_Z, SRD_WS, SRD_WS + 3, S_A))
        e("s_mov_b64 exec, -1")
        lab(notr)
        e("s_waitcnt vmcnt(%d)" % (64 // NLD))
        e("s_barrier")
        stamp(2)
        tr256_read(V_WF, V_TR)
        lab("L_a_att")
        e("s_cbranch_execz L_a_h1k")
        if H1LATE:
            e("s_waitcnt vmcnt(%d)" % H1V)
            e("s_barrier")
            h1_loads()
            e("s_waitcnt vmcnt(5)")
            e("s_barrier")
        else:
            h1_loads()
            e("s_waitcnt vmcnt(5)")
            e("s_barrier")
        lab("L_a_h1k")
        stamp(3)
    for sg in range(4):
        for t in range(2):
            r = V_KF + 16 * t + 4 * sg
            e("ds_read_b128 v[%d:%d], v%d offset:%d" % (r, r + 3, KA + sg, t * 4096))
    e("s_cbranch_execz L_a_h1_nl")
    if KFIRST:
        e("s_cmp_ge_u32 s%d, 4" % S_WAVE)
        e("s_cbranch_scc1 L_a_h1w")
        e("s_waitcnt vmcnt(%d)" % (16 - VP))
        e("s_branch L_a_h1_nl")
    else:
        e("s_branch L_a_h1w")
    lab("L_a_h1")
    h1_loads()
    lab("L_a_h1w")
    poll_end("L_a_h1", [chk64(V_L + 4 * k + 2) for k in range(4)] + xcc_checks(V_L + 16, V_T0))
    stamp(4)
    e("v_pk_add_f32 v[%d:%d], v[%d:%d], v[%d:%d]" % (V_L, V_L + 1, V_L, V_L + 1, V_L + 4, V_L + 5))
    e("v_pk_add_f32 v[%d:%d], v[%d:%d], v[%d:%d]" % (V_L + 8, V_L + 9, V_L + 8, V_L + 9, V_L + 12, V_L + 13))
    e("v_pk_add_f32 v[%d:%d], v[%d:%d], v[%d:%d]" % (V_L, V_L + 1, V_L, V_L + 1, V_L + 8, V_L + 9))
    e("v_cvt_pk_bf16_f32 v%d, v%d, v%d" % (V_T0, V_L, V_L + 1))
    e("ds_write_b32 v%d, v%d" % (QW, V_T0))
    xcc_decide(V_L + 16)
    e("s_waitcnt lgkmcnt(0)")
    barrier(True)
    for sg in range(4):
        e("ds_read_b128 v[%d:%d], v%d offset:%d" % (V_AF + 4 * sg, V_AF + 4 * sg + 3, QO if (sg & 1) else QE, sg * 512))
    S0, S1 = V_U, V_U + 4
    gu_early(range(0, GE1))
    for sg in range(4):
        e("s_waitcnt lgkmcnt(%d)" % (3 - sg))
        for t, acc in ((0, S0), (1, S1)):
            e(mfma(acc, V_KF + 16 * t + 4 * sg, V_AF + 4 * sg, None if sg == 0 else acc))
    gu_early(range(GE1, GE))
    e("s_nop 7")
    X = V_U + 8
    W = V_U + 16
    for k in range(4):
        e("v_cndmask_b32 v%d, v%d, v%d, s[%d:%d]" % (X + k, S0 + k, S1 + k, S_HI8, S_HI8 + 1))
    for rnd in range(2):
        for i2 in range(2):
            e("v_cvt_pk_bf16_f32 v%d, v%d, v%d" % (W + i2, X + 2 * i2, X + 2 * i2 + 1))
        for i2 in range(2):
            unpack(X + 2 * i2, X + 2 * i2 + 1, W + i2)
        if rnd == 0:
            for k in range(4):
                e("v_mul_f32 v%d, %s, v%d" % (X + k, f32(128 ** -0.5), X + k))
    e("v_max3_f32 v%d, v%d, v%d, v%d" % (V_M, X, X + 1, X + 2))
    e("v_max_f32 v%d, v%d, v%d" % (V_M, V_M, X + 3))
    e("s_nop 1")
    e(dpp_add(V_M, V_M, "row_ror:8", "v_max_f32"))
    emit(xrow_ops(V_M, V_T0, "v_max_f32"))
    e("v_mul_f32 v%d, s96, v%d" % (V_M, V_M))
    for k in range(4):
        e("v_fma_f32 v%d, v%d, s96, -v%d" % (X + k, X + k, V_M))
    for k in range(4):
        e("v_exp_f32 v%d, v%d" % (X + k, X + k))
    e("s_nop 0")
    e("v_cvt_pk_bf16_f32 v%d, v%d, v%d" % (W, X, X + 1))
    e("v_cvt_pk_bf16_f32 v%d, v%d, v%d" % (W + 1, X + 2, X + 3))
    e("v_add_f32 v%d, v%d, v%d" % (V_SUM, X, X + 1))
    e("v_add_f32 v%d, v%d, v%d" % (V_T1, X + 2, X + 3))
    e("ds_write_b64 v%d, v[%d:%d]" % (PW0, W, W + 1))
    e("v_add_f32 v%d, v%d, v%d" % (V_SUM, V_SUM, V_T1))
    e("s_nop 1")
    e(dpp_add(V_SUM, V_SUM, "row_ror:8"))
    emit(xrow_ops(V_SUM, V_T0))
    e("ds_write2_b32 v%d, v%d, v%d offset0:0 offset1:8" % (SW, V_M, V_SUM))
    if KFIRST:
        e("s_cbranch_execz L_a_nov")
        trig1(4)
        e("s_waitcnt vmcnt(0) lgkmcnt(0)")
        e("s_barrier")
        lab("L_a_nov")
    else:
        e("s_waitcnt lgkmcnt(0)")
        barrier(True)
    stamp(5)
    MS, LS = V_L, V_L + 8
    for i2 in range(4):
        e("ds_read_b128 v[%d:%d], v%d offset:%d" % (V_L + 4 * i2, V_L + 4 * i2 + 3, SR, 16 * i2))
    def pv_reads(m):
        if KFIRST:
            for h in range(2):
                e("ds_read_b64_tr_b16 v[%d:%d], v%d offset:%d" % (V_WF + 4 * m + 2 * h, V_WF + 4 * m + 2 * h + 1, V_TR, m * 8192 + h * 1024))
        e("ds_read_b128 v[%d:%d], v%d offset:%d" % (V_AF + 4 * m, V_AF + 4 * m + 3, V_AO if (m & 1) else V_AE, m * 512))
    for m in range(4 if KFIRST else 8): pv_reads(m)
    AC = V_U
    side = ["v_max3_f32 v%d, v%d, v%d, v%d" % (V_M, MS, MS + 1, MS + 2),
            "v_max3_f32 v%d, v%d, v%d, v%d" % (V_T0, MS + 3, MS + 4, MS + 5),
            "v_max3_f32 v%d, v%d, v%d, v%d" % (V_M, V_M, MS + 6, MS + 7),
            "v_max_f32 v%d, v%d, v%d" % (V_M, V_M, V_T0)]
    side += ["v_sub_f32 v%d, v%d, v%d" % (MS + i2, MS + i2, V_M) for i2 in range(8)]
    side += ["v_exp_f32 v%d, v%d" % (MS + i2, MS + i2) for i2 in range(8)]
    side += ["v_mul_f32 v%d, v%d, v%d" % (V_SUM, LS, MS), "v_mul_f32 v%d, v%d, v%d" % (V_T1, LS + 1, MS + 1)]
    for i2 in range(2, 8, 2):
        side += ["v_fmac_f32 v%d, v%d, v%d" % (V_SUM, LS + i2, MS + i2), "v_fmac_f32 v%d, v%d, v%d" % (V_T1, LS + i2 + 1, MS + i2 + 1)]
    side += ["v_add_f32 v%d, v%d, v%d" % (V_SUM, V_SUM, V_T1),
             "v_rcp_f32 v%d, v%d" % (V_RS, V_SUM), "v_log_f32 v%d, v%d" % (V_T1, V_SUM), "s_nop 0",
             "v_add_f32 v%d, v%d, v%d" % (V_P + 2, V_T1, V_M)]
    per = (len(side) + 7) // 8
    for m in range(8):
        e("s_waitcnt lgkmcnt(%d)" % ((9 if m < 5 else 3 * (7 - m)) if KFIRST else 7 - m))
        e(mfma(AC + 4 * m, V_WF + 4 * m, V_AF + 4 * m, None))
        if KFIRST and m < 4: pv_reads(m + 4)
        emit(side[m * per:(m + 1) * per])
    def bsel(r):
        return (r & ~1, "op_sel:[0,%d,0] op_sel_hi:[1,%d,1]" % (r & 1, r & 1), "op_sel:[0,%d] op_sel_hi:[1,%d]" % (r & 1, r & 1))
    for m in range(8):
        fb, sel, sel2 = bsel(MS + m)
        for h in range(2):
            a = V_ACC + 2 * h
            if m == 0:
                e("v_pk_mul_f32 v[%d:%d], v[%d:%d], v[%d:%d] %s" % (a, a + 1, AC + 2 * h, AC + 2 * h + 1, fb, fb + 1, sel2))
            else:
                e("v_pk_fma_f32 v[%d:%d], v[%d:%d], v[%d:%d], v[%d:%d] %s" % (a, a + 1, AC + 4 * m + 2 * h, AC + 4 * m + 2 * h + 1, fb, fb + 1, a, a + 1, sel))
    fb, sel, sel2 = bsel(V_RS)
    for h in range(2):
        a = V_ACC + 2 * h
        e("v_pk_mul_f32 v[%d:%d], v[%d:%d], v[%d:%d] %s" % (a, a + 1, a, a + 1, fb, fb + 1, sel2))
    e("v_cvt_pk_bf16_f32 v%d, v%d, v%d" % (V_P, V_ACC, V_ACC + 1))
    e("v_cvt_pk_bf16_f32 v%d, v%d, v%d" % (V_P + 1, V_ACC + 2, V_ACC + 3))
    store_l("buffer_store_dwordx4 v[%d:%d], v%d, s[%d:%d], s84 offen" % (V_P, V_P + 3, V_PUB, SRD_WS, SRD_WS + 3), "lo8")
    stamp(6)
    e("s_sub_u32 s%d, s%d, 1" % (S_A, S_WAVE))
    e("s_cmp_lt_u32 s%d, 3" % S_A)
    e("s_cbranch_scc1 L_a_nocomb")
    e("s_cmp_lg_u32 s%d, 0" % S_DRY)
    e("s_cbranch_scc1 L_a_comb")
    e("s_cmp_lg_u32 s%d, 0" % S_WAVE)
    e("s_cbranch_scc1 L_a_nocomb")
    lab("L_a_comb")
    top = poll_begin()
    for s in range(4):
        e("buffer_load_dwordx4 v[%d:%d], v%d, s[%d:%d], s%d offen sc1" % (V_L + 4 * s, V_L + 4 * s + 3, V_G, SRD_WS, SRD_WS + 3, 87 + s))
    poll_end(top, [chk32(V_L + 4 * s + 3) for s in range(4)])
    Ls = [V_L + 4 * s + 2 for s in range(4)]
    e("v_max3_f32 v%d, v%d, v%d, v%d" % (V_T0, Ls[0], Ls[1], Ls[2]))
    e("v_max_f32 v%d, v%d, v%d" % (V_T0, V_T0, Ls[3]))
    for s in range(4): e("v_sub_f32 v%d, v%d, v%d" % (Ls[s], Ls[s], V_T0))
    for s in range(4): e("v_exp_f32 v%d, v%d" % (Ls[s], Ls[s]))
    for s in range(4):
        unpack(V_U + 4 * s, V_U + 4 * s + 1, V_L + 4 * s)
        unpack(V_U + 4 * s + 2, V_U + 4 * s + 3, V_L + 4 * s + 1)
    e("v_add_f32 v%d, v%d, v%d" % (V_T0, Ls[0], Ls[1]))
    e("v_add_f32 v%d, v%d, v%d" % (V_T1, Ls[2], Ls[3]))
    e("v_add_f32 v%d, v%d, v%d" % (V_T0, V_T0, V_T1))
    e("v_rcp_f32 v%d, v%d" % (V_T0, V_T0))
    for k in range(4):
        e("v_mul_f32 v%d, v%d, v%d" % (V_U + k, V_U + k, Ls[0]))
    for s in range(1, 4):
        for k in range(4):
            e("v_fmac_f32 v%d, v%d, v%d" % (V_U + k, V_U + 4 * s + k, Ls[s]))
    for k in range(4):
        e("v_mul_f32 v%d, v%d, v%d" % (V_U + k, V_U + k, V_T0))
    e("v_cvt_pk_bf16_f32 v%d, v%d, v%d" % (V_U + 16, V_U, V_U + 1))
    e("v_cvt_pk_bf16_f32 v%d, v%d, v%d" % (V_U + 17, V_U + 2, V_U + 3))
    e("v_mov_b32 v%d, s%d" % (V_U + 18, S_T))
    e("v_mov_b32 v%d, s%d" % (V_U + 19, S_T))
    store_g("buffer_store_dwordx4 v[%d:%d], v%d, s[%d:%d], s91 offen" % (V_U + 16, V_U + 19, V_G, SRD_WS, SRD_WS + 3))
    stamp(13)
    lab("L_a_nocomb")
    e("s_cmp_lg_u32 s%d, 0" % S_DRY)
    e("s_cbranch_scc1 L_a_real0")
    e("s_cmp_lg_u32 s101, 0")
    e("s_cbranch_scc1 L_a_idle")
    e("s_mov_b32 s96, s100")
    e("s_mov_b32 s%d, s4" % S_A)
    e("s_mov_b32 s%d, s5" % S_B)
    e("s_mov_b32 s%d, s6" % S_D)
    e("s_barrier")
    e("s_cmp_ge_u32 s%d, %d" % (S_WAVE, 0 if "gu" in SKIP else 4))
    e("s_cbranch_scc1 L_a_gusetup")
    e("s_cmp_eq_u32 s%d, 0" % S_D)
    e("s_cbranch_scc1 L_a_gusetup")
    lab("L_a_guld")
    for m in range(8):
        e("s_mov_b32 m0, s%d" % S_B)
        e("s_add_u32 s%d, s%d, 1024" % (S_B, S_B))
        var = (m & 1) | (((m >> 2) & 1) << 1)
        e("buffer_load_dwordx4 v%d, s[%d:%d], s%d offen nt lds" % (V_GO + var, SRD_W, SRD_W + 3, S_A))
        e("s_add_u32 s%d, s%d, %d" % (S_A, S_A, 8 * 7168))
    e("s_sub_u32 s%d, s%d, 1" % (S_D, S_D))
    e("s_cmp_lg_u32 s%d, 0" % S_D)
    e("s_cbranch_scc1 L_a_guld")
    stamp(7)
    lab("L_a_gusetup")
    e("v_bfe_u32 v%d, v1, 3, 1" % V_T0)
    e("v_and_b32 v%d, 1, v3" % V_T1)
    e("v_lshl_or_b32 v%d, v%d, 1, v%d" % (V_T0, V_T1, V_T0))
    e("v_bfe_u32 v%d, v1, 1, 1" % V_T1)
    e("v_lshl_or_b32 v%d, v%d, 2, v%d" % (V_T0, V_T1, V_T0))
    e("v_xor_b32 v%d, s%d, v%d" % (V_T0, S_WAVE, V_T0))
    e("v_lshlrev_b32 v%d, 4, v%d" % (V_T0, V_T0))
    e("v_bfe_u32 v%d, v1, 2, 2" % V_T2)
    e("v_lshl_add_u32 v%d, v3, 3, v%d" % (V_T2, V_T2))
    e("v_lshl_add_u32 v%d, v%d, 5, v%d" % (V_T2, V_T1, V_T2))
    e("v_lshl_add_u32 v%d, v%d, 7, v%d" % (V_T0, V_T2, V_T0))
    e("v_and_b32 v%d, 1, v1" % V_T1)
    e("v_lshl_add_u32 v%d, v%d, 3, v%d" % (V_TR, V_T1, V_T0))
    e("v_add_u32 v%d, 0x10000, v%d" % (V_VA, V_TR))
    e("v_lshrrev_b32 v%d, 3, v2" % V_T0)
    e("v_lshl_or_b32 v%d, v3, 1, v%d" % (V_T1, V_T0))
    e("v_and_b32 v%d, 7, v1" % V_T2)
    e("v_xor_b32 v%d, v%d, v%d" % (V_T1, V_T1, V_T2))
    e("v_lshlrev_b32 v%d, 4, v%d" % (V_T1, V_T1))
    e("v_lshl_add_u32 v%d, v%d, 2, v3" % (V_T0, V_T0))
    e("v_lshl_add_u32 v%d, v%d, 7, v%d" % (V_T1, V_T0, V_T1))
    e("v_add_u32 v%d, %d, v%d" % (V_AE, L_ACT, V_T1))
    e("v_lshlrev_b32 v%d, 3, v%d" % (V_T2, V_T2))
    e("v_add_u32 v%d, %d, v%d" % (V_AO, L_MX, V_T2))
    e("s_lshl_b32 s%d, s%d, 3" % (S_A, S_WAVE))
    e("s_add_u32 s%d, s%d, %d" % (S_A, S_A, L_MX))
    e("v_mov_b32 v%d, s%d" % (V_RED, S_A))
    pos_write_addr(V_AW, L_ACT)
    e("s_lshl_b32 s%d, s%d, 12" % (S_A, S_WAVE))
    e("s_add_u32 s86, s%d, 0x%x" % (S_A, WS_H3B))
    e("s_lshl_b32 s%d, s%d, 11" % (S_A, S_C))
    e("s_lshl_b32 s%d, s%d, 8" % (S_B, S_WAVE))
    e("s_add_u32 s%d, s%d, s%d" % (S_A, S_A, S_B))
    e("s_add_u32 s85, s85, s%d" % S_A)
    e("v_and_b32 v%d, 1, v3" % V_T0)
    e("v_lshlrev_b32 v%d, 7, v%d" % (V_PUB, V_T0))
    e("v_and_b32 v%d, 7, v1" % V_T0)
    e("v_lshl_add_u32 v%d, v%d, 4, v%d" % (V_PUB, V_T0, V_PUB))
    e("v_lshrrev_b32 v%d, 1, v3" % V_T0)
    e("v_lshl_add_u32 v%d, v%d, 3, v%d" % (V_PUB, V_T0, V_PUB))
    e("s_lshl_b32 s%d, s96, 1" % S_A)
    e("s_add_u32 s%d, s%d, s99" % (S_A, S_A))
    e("s_sub_u32 s%d, s%d, 1" % (S_A, S_A))
    e("s_lshl_b32 s%d, s%d, 3" % (S_A, S_A))
    e("s_add_u32 s%d, s%d, s%d" % (S_A, S_A, S_XCD))
    e("s_lshl_b32 s%d, s%d, 12" % (S_A, S_A))
    e("s_lshl_b32 s%d, s%d, 9" % (S_B, S_WAVE))
    e("s_add_u32 s%d, s%d, s%d" % (S_A, S_A, S_B))
    e("s_add_u32 s84, s%d, 0x%x" % (S_A, WS_H4P))
    e("v_lshlrev_b32 v%d, 1, v%d" % (V_H, V_PUB))
    e("v_mov_b32 v%d, s%d" % (V_ACC + 6, S_T))
    e("v_mov_b32 v%d, s%d" % (V_ACC + 7, S_T))
    ONE = V_WF
    CS = V_WF + 4
    for k in range(4): e("v_mov_b32 v%d, 0x3f803f80" % (ONE + k))
    e("v_mov_b32 v%d, s%d" % (V_P + 1, S_T))
    e("s_mov_b64 s[%d:%d], s[%d:%d]" % (80, 81, S_ML, S_ML + 1))
    e("s_mov_b64 s[%d:%d], s[%d:%d]" % (82, 83, S_MG, S_MG + 1))
    e("s_cmp_lt_u32 s%d, 4" % S_WAVE)
    e("s_cbranch_scc1 L_a_gureal")
    if NODRY: e("s_branch L_a_gureal")
    set_dry()
    e("s_branch L_a_gutop")
    lab("L_a_gureal")
    set_real()
    e("s_mov_b64 s[%d:%d], s[%d:%d]" % (S_ML, S_ML + 1, 80, 81))
    e("s_mov_b64 s[%d:%d], s[%d:%d]" % (S_MG, S_MG + 1, 82, 83))
    e("s_waitcnt vmcnt(%d)" % T2V)
    if TRIG2: trig2()
    e("s_waitcnt vmcnt(0)")
    e("s_barrier")
    lab("L_a_gutop")
    GF = V_KF
    for m in range(16):
        for h in range(2):
            e("ds_read_b64_tr_b16 v[%d:%d], v%d offset:%d" % (GF + 4 * m + 2 * h, GF + 4 * m + 2 * h + 1, V_TR if m < 8 else V_VA, (m & 7) * 8192 + h * 512))
    e("s_waitcnt lgkmcnt(0)")
    e("s_cmp_lg_u32 s99, 1")
    e("s_cbranch_scc1 L_a_z1")
    for k in range(32, 64): e("v_mov_b32 v%d, 0" % (GF + k))
    lab("L_a_z1")
    e("s_cmp_lg_u32 s99, 2")
    e("s_cbranch_scc1 L_a_z2")
    for k in range(0, 32): e("v_mov_b32 v%d, 0" % (GF + k))
    lab("L_a_z2")
    e("s_nop 1")
    for m in range(16):
        e(mfma(CS, GF + 4 * m, ONE, None if m == 0 else CS))
    e("s_nop 7")
    e("v_permlane32_swap_b32 v%d, v%d" % (CS, CS + 2))
    e("v_permlane32_swap_b32 v%d, v%d" % (CS + 1, CS + 3))
    e("s_nop 1")
    e("v_add_f32_dpp v%d, v%d, v%d row_shl:8 row_mask:0xf bank_mask:0xf" % (CS, CS + 2, CS))
    e("v_add_f32_dpp v%d, v%d, v%d row_shl:8 row_mask:0xf bank_mask:0xf" % (CS + 1, CS + 3, CS + 1))
    stamp(8)
    top = poll_begin((V_G, 86, 3) if "3" not in NB else None)
    for n in range(4):
        e("buffer_load_dwordx4 v[%d:%d], v%d, s[%d:%d], s86 offen offset:%d sc1" % (V_L + 4 * n, V_L + 4 * n + 3, V_G, SRD_WS, SRD_WS + 3, n * 1024))
    poll_end(top, [chk64(V_L + 4 * n + 2) for n in range(4)], bell=(V_G, 86, 3))
    for n in range(4):
        e("ds_write_b64 v%d, v[%d:%d] offset:%d" % (V_AW, V_L + 4 * n, V_L + 4 * n + 1, n * 4096))
    stamp(9)
    side = ln_stats_dot_ops([V_L + 4 * (i >> 1) + (i & 1) for i in range(8)], ONE, V_SUM, V_SQ, V_T0, V_M, V_RS)
    emit(side[:16])
    side = side[16:]
    e("s_waitcnt lgkmcnt(0)")
    barrier(True)
    stamp(10)
    for m in range(16):
        e("ds_read_b128 v[%d:%d], v%d offset:%d" % (V_AF + 4 * m, V_AF + 4 * m + 3, V_AE, m * 1024))
    nfirst = 22
    emit(side[:nfirst])
    rest = side[nfirst:]
    mm = [0]
    def next_mfma():
        m = mm[0]; mm[0] += 1
        if m % 2 == 0: e("s_waitcnt lgkmcnt(%d)" % (14 - m))
        e(mfma(V_ACC, GF + 4 * m, V_AF + 4 * m, None if m == 0 else V_ACC))
        return 2 if m % 2 == 0 else 1
    cnt = 0
    for op in rest:
        if op.startswith("s_nop") and mm[0] < 10:
            need = int(op.split()[1]) + 1
            while need > 0 and mm[0] < 10: need -= next_mfma()
            if need > 0: e("s_nop %d" % (need - 1))
            cnt = 0
        else:
            e(op); cnt += 1
            if cnt == 2 and mm[0] < 10: next_mfma(); cnt = 0
    e("ds_write_b64 v%d, v[%d:%d]" % (V_RED, V_M, V_RS))
    while mm[0] < 10: next_mfma() if False else None; break
    while mm[0] < 12:
        m = mm[0]; mm[0] += 1
        if m == 10 or m % 2 == 0: e("s_waitcnt lgkmcnt(%d)" % max(0, min(15, 15 - m)))
        e(mfma(V_ACC, GF + 4 * m, V_AF + 4 * m, None if m == 0 else V_ACC))
    e("s_waitcnt lgkmcnt(0)")
    barrier(True)
    e("ds_read_b64 v[%d:%d], v%d" % (V_M, V_RS, V_AO))
    for m in range(12, 16):
        e(mfma(V_ACC, GF + 4 * m, V_AF + 4 * m, V_ACC))
    e("s_waitcnt lgkmcnt(0)")
    e("v_mul_f32 v%d, v%d, v%d" % (V_T0, V_M, V_RS))
    e("v_mul_f32 v%d, v%d, v%d" % (V_T1, V_T0, CS))
    e("v_mul_f32 v%d, v%d, v%d" % (V_T2, V_T0, CS + 1))
    e("s_nop 3")
    e("v_permlane32_swap_b32 v%d, v%d" % (V_ACC, V_ACC + 2))
    e("v_permlane32_swap_b32 v%d, v%d" % (V_ACC + 1, V_ACC + 3))
    e("s_nop 1")
    e("v_add_f32_dpp v%d, v%d, v%d row_shl:8 row_mask:0xf bank_mask:0xf" % (V_ACC, V_ACC + 2, V_ACC))
    e("v_add_f32_dpp v%d, v%d, v%d row_shl:8 row_mask:0xf bank_mask:0xf" % (V_ACC + 1, V_ACC + 3, V_ACC + 1))
    e("v_fma_f32 v%d, v%d, v%d, -v%d" % (V_ACC, V_ACC, V_RS, V_T1))
    e("v_fma_f32 v%d, v%d, v%d, -v%d" % (V_ACC + 1, V_ACC + 1, V_RS, V_T2))
    e("s_cmp_lg_u32 s99, 0")
    e("s_cbranch_scc1 L_a_part")
    e("v_cvt_pk_bf16_f32 v%d, v%d, v%d" % (V_P, V_ACC, V_ACC + 1))
    nosig = uid("nosig")
    e("s_cmp_lg_u32 s96, 0")
    e("s_cbranch_scc1 %s" % nosig)
    unpack(V_U, V_U + 1, V_P)
    e("v_mul_f32 v%d, %s, v%d" % (V_U, f32(-LOG2E), V_U))
    e("v_mul_f32 v%d, %s, v%d" % (V_U + 1, f32(-LOG2E), V_U + 1))
    e("v_exp_f32 v%d, v%d" % (V_U, V_U))
    e("v_exp_f32 v%d, v%d" % (V_U + 1, V_U + 1))
    e("s_nop 0")
    e("v_add_f32 v%d, 1.0, v%d" % (V_U, V_U))
    e("v_add_f32 v%d, 1.0, v%d" % (V_U + 1, V_U + 1))
    e("v_rcp_f32 v%d, v%d" % (V_U, V_U))
    e("v_rcp_f32 v%d, v%d" % (V_U + 1, V_U + 1))
    e("s_nop 0")
    e("v_cvt_pk_bf16_f32 v%d, v%d, v%d" % (V_P, V_U, V_U + 1))
    lab(nosig)
    store_l("buffer_store_dwordx2 v[%d:%d], v%d, s[%d:%d], s85 offen" % (V_P, V_P + 1, V_PUB, SRD_WS, SRD_WS + 3), "lo8")
    e("s_branch L_a_pubd")
    lab("L_a_part")
    e("v_mov_b32 v%d, v%d" % (V_P, V_ACC))
    e("v_mov_b32 v%d, v%d" % (V_P + 1, V_ACC + 1))
    store_l("buffer_store_dwordx4 v[%d:%d], v%d, s[%d:%d], s84 offen" % (V_P, V_P + 3, V_H, SRD_WS, SRD_WS + 3), "lo8")
    lab("L_a_pubd")
    e("s_cmp_lg_u32 s%d, 0" % S_DRY)
    e("s_cbranch_scc1 L_a_gureal")
    stamp(11)
    if "a" in CLEAN: clean("buffer_store_dwordx4 v[%d:%d], v%d, s[%d:%d], s87 offen" % (V_WF + 8, V_WF + 11, V_WF + 12, SRD_WS, SRD_WS + 3), "lo8")
    lab("L_a_done")
    stamps_flush(V_U)
    e("s_endpgm")
    lab("L_a_idle")
    if TRIG2: trig2()
    e("s_branch L_a_done")

gen()
open(OUT, "w").write("\n".join(lines) + "\n")
print("wrote", OUT, len(lines), "lines")
```

```python
import sys, struct

NAME = "sequential_preLN__sliding_block_cached__glu_gated_glu__decode"
def opt(name, default):
    for a in sys.argv:
        if a.startswith("--%s=" % name): return a.split("=", 1)[1]
    return default
STSET = opt("st", None)
STAMPS = "--stamps" in sys.argv or STSET is not None
STSET = None if STSET is None else set(int(x) for x in STSET.split(","))
NOLOCAL = "--nolocal" in sys.argv
NODRY = "--nodry" in sys.argv
NOTOUCH = "--notouch" in sys.argv
NOBELL = "--nobell" in sys.argv
BELLSLEEP = int(opt("bellsleep", 2))
NB = opt("nb", "")
KQX = "--kqx" in sys.argv
PRIO = "--prio" in sys.argv
DSPLIT = "--dsplit" in sys.argv
XBAR = "--xbar" in sys.argv
AT = opt("at", "")
BELL5 = "5" not in NB
BELL1 = "--bell1" in sys.argv
TRIG2 = "--trig2" in sys.argv
NOCLEAN = "--clean-on" not in sys.argv
CLEAN = opt("clean", "ab")
NLD = 4
KFIRST = False
PFK = int(opt("pfk", 0))
H1V = int(opt("h1v", -1))
H1LATE = H1V >= 0
GE = int(opt("ge", 0))
GE1 = int(opt("ge1", GE // 2))
VP = int(opt("vp", 8))
BELLFIRST = "--belllast" not in sys.argv
T2V = int(opt("t2v", 12))
DEARLY = "--dearly" in sys.argv
NOCODEPF = "--codepf" not in sys.argv
TLBT = "--notlb" not in sys.argv
SLEEP = int(opt("sleep", 1))
QFIRST = int(opt("qfirst", 8))
AWIN = int(opt("awin", 8))
ATHR = int(opt("athr", 0))
TRIGV = int(opt("trigv", 8))
OUT = [a for a in sys.argv[1:] if not a.startswith("--")]
OUT = OUT[0] if OUT else "cdna_kernels/%s.s" % NAME

lines = []
def e(s): lines.append("    " + s)
def lab(s): lines.append(s + ":")
def cmt(s): lines.append("    ; " + s)
_uid = [0]
def uid(p):
    _uid[0] += 1
    return "L_%s_%d" % (p, _uid[0])
def f32(x): return "0x%08x" % struct.unpack("<I", struct.pack("<f", x))[0]

WS_TRIG = 0x4000
WS_H1 = 0x100000
WS_H2 = 0x200000
WS_H3B = 0x280000
WS_H4S = 0x290000
WS_H4U = 0x2B0000
WS_H2G = 0x2E0000
WS_H4P = 0x500000
WS_H3A = 0x300000
WS_H5 = 0x400000
WS_TS = 0x600000
WS_SIZE = 0x800000

L_W0 = 0
L_W1 = 65536
L_ACT = 131072
L_QB = 147456
L_PB = 149504
L_MX = 153600
LDS_BYTES = 154112

S_X, S_K, S_V, S_WQ, S_WO, S_BX, S_WG, S_WU = 4, 6, 8, 10, 12, 14, 16, 18
S_WD, S_OUT, S_DBG, S_WS = 20, 22, 24, 26
S_WAVE, S_XCD, S_SLOT, S_T = 28, 29, 30, 31
SRD_W, SRD_WS, SRD_X, SRD_O = 32, 36, 40, 44
S_TT = 48
S_HI8 = 50
S_SPIN = 52
S_A, S_B, S_C, S_D, S_E, S_F = 53, 54, 55, 56, 57, 58
S_DRY = 59
S_TM = 60
S_ML = 62
S_ST = 64
S_MG = 92
S_FULL = 94
S_XCC, S_XOFF = 97, 98

LOG2E = 1.4426950408889634

V_VA, V_VB = 4, 5
V_TR = 6
V_AE, V_AO = 7, 8
V_T0, V_T1, V_T2, V_T3 = 9, 10, 11, 12
V_PUB, V_RED, V_H, V_XP, V_AW, V_G, V_Z = 13, 14, 15, 16, 17, 18, 19
V_ACC = 20
V_P = 24
V_M, V_RS, V_SQ, V_SUM = 28, 29, 30, 31
V_L = 32
V_U = 64
V_WF = 96
V_AF = 128
V_KF = 192
V_X1 = 224
V_GO = 248

def srd(dst, ptr, nbytes):
    e("s_mov_b32 s%d, s%d" % (dst, ptr))
    e("s_and_b32 s%d, s%d, 0xffff" % (dst + 1, ptr + 1))
    e("s_mov_b32 s%d, 0x%x" % (dst + 2, nbytes))
    e("s_mov_b32 s%d, 0x20000" % (dst + 3))

def stamp(k):
    if not STAMPS or (STSET is not None and k not in STSET): return
    e("s_memrealtime s[%d:%d]" % (S_TM, S_TM + 1))
    e("s_waitcnt lgkmcnt(0)")
    e("s_mov_b32 s%d, s%d" % (S_ST + k, S_TM))

def stamps_flush(vtmp):
    if not STAMPS: return
    e("s_mov_b64 exec, -1")
    for k in range(16):
        e("v_writelane_b32 v%d, s%d, %d" % (vtmp, S_ST + k, k))
    e("s_lshl_b32 s%d, s2, 9" % S_A)
    e("s_lshl_b32 s%d, s%d, 6" % (S_B, S_WAVE))
    e("s_add_u32 s%d, s%d, s%d" % (S_A, S_A, S_B))
    e("s_add_u32 s%d, s%d, 0x%x" % (S_A, S_A, WS_TS))
    e("v_lshlrev_b32 v%d, 2, v1" % (vtmp + 1))
    e("s_mov_b64 exec, 0xffff")
    e("buffer_store_dword v%d, v%d, s[%d:%d], s%d offen" % (vtmp, vtmp + 1, SRD_WS, SRD_WS + 3, S_A))

def full(): e("s_mov_b64 exec, s[%d:%d]" % (S_FULL, S_FULL + 1))

def barrier(dry=False):
    if dry:
        l = uid("nb")
        e("s_cbranch_execz %s" % l)
        e("s_barrier")
        lab(l)
    else:
        e("s_barrier")

def set_dry():
    e("s_mov_b64 s[%d:%d], 0" % (S_FULL, S_FULL + 1))
    e("s_mov_b64 s[%d:%d], 0" % (S_ML, S_ML + 1))
    e("s_mov_b64 s[%d:%d], 0" % (S_MG, S_MG + 1))
    e("s_mov_b32 s%d, 1" % S_DRY)
    e("s_mov_b32 s3, 8")
    if PRIO: e("s_setprio 0")
    full()

def set_real():
    e("s_mov_b64 s[%d:%d], -1" % (S_FULL, S_FULL + 1))
    e("s_mov_b32 s%d, 0" % S_DRY)
    e("s_mov_b32 s3, 2")
    if PRIO: e("s_setprio 3")
    full()

def dpp_add(dst, src, ctrl, op="v_add_f32"):
    return "%s_dpp v%d, v%d, v%d %s row_mask:0xf bank_mask:0xf" % (op, dst, src, src, ctrl)

def xrow_ops(v, t, op="v_add_f32"):
    return ["v_mov_b32 v%d, v%d" % (t, v), "s_nop 1", "v_permlane16_swap_b32 v%d, v%d" % (v, t), "s_nop 0",
            "%s v%d, v%d, v%d" % (op, v, v, t),
            "v_mov_b32 v%d, v%d" % (t, v), "s_nop 1", "v_permlane32_swap_b32 v%d, v%d" % (v, t), "s_nop 0",
            "%s v%d, v%d, v%d" % (op, v, v, t)]

def wave_allreduce_ops(v, t, op="v_add_f32"):
    o = []
    for r in (8, 4, 2, 1):
        o += ["s_nop 1", dpp_add(v, v, "row_ror:%d" % r, op)]
    return o + xrow_ops(v, t, op)

def bf16_round_ops(v):
    return ["v_cvt_pk_bf16_f32 v%d, v%d, v%d" % (v, v, v), "v_lshlrev_b32 v%d, 16, v%d" % (v, v)]

def unpack_ops(lo, hi, src):
    return ["v_lshlrev_b32 v%d, 16, v%d" % (lo, src), "v_and_b32 v%d, 0xffff0000, v%d" % (hi, src)]
def unpack(lo, hi, src):
    for x in unpack_ops(lo, hi, src): e(x)
def emit(ops):
    for x in ops: e(x)

def poll_begin(bell=None):
    if bell and BELLFIRST: doorbell(*bell)
    top = uid("poll")
    lab(top)
    e("s_cbranch_execz %s_nl" % top)
    return top

def poll_mid(top):
    lab(top + "_nl")
    top2 = top + "x"
    e("s_cbranch_execz %s_nl" % top2)
    return top2

def poll_end(top, checks, last=None, bell=None):
    ok = top + "_ok"
    e("s_waitcnt vmcnt(0)")
    lab((last or top) + "_nl")
    for c in checks: e(c)
    e("s_cmp_eq_u64 exec, s[%d:%d]" % (S_FULL, S_FULL + 1))
    full()
    e("s_cbranch_scc1 %s" % ok)
    if SLEEP: e("s_sleep %d" % SLEEP)
    if bell and not BELLFIRST: doorbell(*bell)
    e("s_sub_u32 s%d, s%d, 1" % (S_SPIN, S_SPIN))
    e("s_cbranch_scc0 %s" % top)
    e("s_mov_b32 s%d, 0" % S_SPIN)
    lab(ok)

def doorbell(va, so, tagpos, off=0, atomic=False):
    if NOBELL: return
    top = uid("bell")
    e("s_cbranch_execz %s_ok" % top)
    lab(top)
    e("s_mov_b64 exec, 1")
    if atomic:
        e("v_mov_b32 v%d, 0" % V_T0)
        e("buffer_atomic_add v%d, v%d, s[%d:%d], s%d offen offset:%d sc0" % (V_T0, va, SRD_WS, SRD_WS + 3, so, off + 4 * tagpos))
    else:
        e("buffer_load_dword v%d, v%d, s[%d:%d], s%d offen offset:%d sc1" % (V_T0, va, SRD_WS, SRD_WS + 3, so, off + 4 * tagpos))
    e("s_waitcnt vmcnt(0)")
    e("v_cmpx_eq_u32 vcc, s%d, v%d" % (S_T, V_T0))
    e("s_cbranch_execnz %s_ok" % top)
    e("s_sleep %d" % BELLSLEEP)
    e("s_sub_u32 s%d, s%d, 1" % (S_SPIN, S_SPIN))
    e("s_cbranch_scc0 %s" % top)
    e("s_mov_b32 s%d, 0" % S_SPIN)
    lab(top + "_ok")
    full()

def chk64(v): return "v_cmpx_eq_u64 vcc, s[%d:%d], v[%d:%d]" % (S_TT, S_TT + 1, v, v + 1)
def chk32(v): return "v_cmpx_eq_u32 vcc, s%d, v%d" % (S_T, v)

def _mask(m, lanemask):
    if lanemask is None: e("s_mov_b64 exec, s[%d:%d]" % (m, m + 1))
    elif lanemask == "lo8": e("s_andn2_b64 exec, s[%d:%d], s[%d:%d]" % (m, m + 1, S_HI8, S_HI8 + 1))
    else: e("s_and_b64 exec, s[%d:%d], %s" % (m, m + 1, lanemask))

def store_g(instr, lanemask=None, flags=" sc1"):
    l = uid("ns")
    if lanemask is not None: _mask(S_FULL, lanemask)
    e("s_cbranch_execz %s" % l)
    e(instr + flags)
    lab(l)
    if lanemask is not None: full()

def store_l(instr, lanemask=None):
    for m, fl in ((S_ML, ""), (S_MG, " sc1")):
        l = uid("ns")
        _mask(m, lanemask)
        e("s_cbranch_execz %s" % l)
        e(instr + fl)
        lab(l)
    full()

def xcc_publish(vt, srd_):
    e("s_getreg_b32 s%d, hwreg(HW_REG_XCC_ID, 0, 4)" % S_XCC)
    e("s_add_u32 s%d, s%d, 1" % (S_XCC, S_XCC))
    e("s_lshl_b32 s%d, s%d, 5" % (S_XOFF, S_XCD))
    skip = uid("noxcc")
    e("s_cmp_lg_u32 s%d, 4" % S_WAVE)
    e("s_cbranch_scc1 %s" % skip)
    e("s_lshr_b32 s%d, s2, 3" % S_B)
    e("s_add_u32 s%d, s%d, s%d" % (S_A, S_XOFF, S_B))
    e("v_mov_b32 v%d, s%d" % (vt, S_XCC))
    e("s_mov_b64 exec, 1")
    e("buffer_store_byte v%d, v%d, s[%d:%d], s%d offen sc1" % (vt, V_Z, srd_, srd_ + 3, S_A))
    e("s_mov_b64 exec, -1")
    lab(skip)
    e("s_mul_i32 s%d, s%d, 0x01010101" % (S_XCC, S_XCC))

def xcc_load(vd, vaddr, srd_):
    e("buffer_load_dword v%d, v%d, s[%d:%d], s%d offen sc1" % (vd, vaddr, srd_, srd_ + 3, S_XOFF))

def xcc_checks(vd, vt):
    return ["v_subrev_u32 v%d, 0x01010101, v%d" % (vt, vd),
            "v_bfi_b32 v%d, v%d, 0, v%d" % (vt, vd, vt),
            "v_and_b32 v%d, 0x80808080, v%d" % (vt, vt),
            "v_cmpx_eq_u32 vcc, 0, v%d" % vt]

def xcc_decide(vd):
    e("v_cmp_ne_u32 vcc, s%d, v%d" % (S_XCC, vd))
    e("s_nop 1")
    if NOLOCAL: e("s_cmp_eq_u32 s%d, 0" % S_XCC)
    else: e("s_cmp_eq_u64 vcc, 0")
    e("s_cselect_b64 s[%d:%d], s[%d:%d], 0" % (S_ML, S_ML + 1, S_FULL, S_FULL + 1))
    e("s_cselect_b64 s[%d:%d], 0, s[%d:%d]" % (S_MG, S_MG + 1, S_FULL, S_FULL + 1))

def ln_stats_ops(vals, vsum, vt, vmean, vrs, vsq):
    o = ["v_add_f32 v%d, v%d, v%d" % (vsum, vals[0], vals[1]), "v_add_f32 v%d, v%d, v%d" % (vt, vals[2], vals[3])]
    for i in range(4, 16, 2):
        o += ["v_add_f32 v%d, v%d, v%d" % (vsum, vsum, vals[i]), "v_add_f32 v%d, v%d, v%d" % (vt, vt, vals[i + 1])]
    o += ["v_add_f32 v%d, v%d, v%d" % (vsum, vsum, vt)]
    o += wave_allreduce_ops(vsum, vt)
    o += ["v_mul_f32 v%d, %s, v%d" % (vmean, f32(1.0 / 1024), vsum)]
    o += ["v_sub_f32 v%d, v%d, v%d" % (vt, vals[0], vmean), "v_mul_f32 v%d, v%d, v%d" % (vsum, vt, vt)]
    for i in range(1, 16):
        o += ["v_sub_f32 v%d, v%d, v%d" % (vt, vals[i], vmean), "v_fmac_f32 v%d, v%d, v%d" % (vsum, vt, vt)]
    o += wave_allreduce_ops(vsum, vt)
    o += ["v_mul_f32 v%d, %s, v%d" % (vsq, f32(1.0 / 1024), vsum)]
    o += bf16_round_ops(vsq)
    o += ["v_add_f32 v%d, %s, v%d" % (vsq, f32(1e-5), vsq)]
    o += bf16_round_ops(vsq)
    o += ["v_sqrt_f32 v%d, v%d" % (vsq, vsq)]
    o += bf16_round_ops(vmean)
    o += bf16_round_ops(vsq)
    o += ["v_rcp_f32 v%d, v%d" % (vrs, vsq), "s_nop 0"]
    return o

def ln_stats_dot_ops(pairs, one, s1, s2, vt, vmean, vrs):
    o = ["v_dot2_f32_bf16 v%d, v%d, v%d, 0" % (s1, pairs[0], one), "v_dot2_f32_bf16 v%d, v%d, v%d, 0" % (s2, pairs[0], pairs[0])]
    for p in pairs[1:]:
        o += ["v_dot2_f32_bf16 v%d, v%d, v%d, v%d" % (s1, p, one, s1), "v_dot2_f32_bf16 v%d, v%d, v%d, v%d" % (s2, p, p, s2)]
    o += ["s_nop 2"]
    for r in (8, 4, 2, 1):
        o += [dpp_add(s1, s1, "row_ror:%d" % r), dpp_add(s2, s2, "row_ror:%d" % r), "s_nop 0"]
    o += ["s_nop 0", "v_permlane32_swap_b32 v%d, v%d" % (s1, s2), "s_nop 0", "v_add_f32 v%d, v%d, v%d" % (s1, s1, s2),
          "v_mov_b32 v%d, v%d" % (s2, s1), "s_nop 1", "v_permlane16_swap_b32 v%d, v%d" % (s1, s2), "s_nop 0",
          "v_add_f32 v%d, v%d, v%d" % (s1, s1, s2), "v_mov_b32 v%d, v%d" % (s2, s1), "s_nop 1",
          "v_permlane32_swap_b32 v%d, v%d" % (s1, s2), "s_nop 0",
          "v_mul_f32 v%d, %s, v%d" % (vmean, f32(1.0 / 1024), s1),
          "v_mul_f32 v%d, %s, v%d" % (s2, f32(1.0 / 1024), s2),
          "v_fma_f32 v%d, -v%d, v%d, v%d" % (s2, vmean, vmean, s2),
          "v_max_f32 v%d, 0, v%d" % (s2, s2)]
    o += bf16_round_ops(s2)
    o += ["v_add_f32 v%d, %s, v%d" % (s2, f32(1e-5), s2)]
    o += bf16_round_ops(s2)
    o += ["v_sqrt_f32 v%d, v%d" % (s2, s2)]
    o += bf16_round_ops(vmean)
    o += bf16_round_ops(s2)
    o += ["v_rcp_f32 v%d, v%d" % (vrs, s2), "s_nop 0"]
    return o

def ln_apply_pair(dst, a, b, vmean, vrs, vsq, t0, t1):
    e("v_sub_f32 v%d, v%d, v%d" % (a, a, vmean))
    e("v_sub_f32 v%d, v%d, v%d" % (b, b, vmean))
    e("v_cvt_pk_bf16_f32 v%d, v%d, v%d" % (t0, a, b))
    unpack(a, b, t0)
    e("v_mul_f32 v%d, v%d, v%d" % (t0, a, vrs))
    e("v_mul_f32 v%d, v%d, v%d" % (t1, b, vrs))
    e("v_fma_f32 v%d, -v%d, v%d, v%d" % (a, t0, vsq, a))
    e("v_fma_f32 v%d, -v%d, v%d, v%d" % (b, t1, vsq, b))
    e("v_fmac_f32 v%d, v%d, v%d" % (t0, a, vrs))
    e("v_fmac_f32 v%d, v%d, v%d" % (t1, b, vrs))
    e("v_cvt_pk_bf16_f32 v%d, v%d, v%d" % (dst, t0, t1))

def sigma_of(dst, u, t):
    e("v_and_b32 v%d, 3, v%d" % (dst, u))
    e("v_lshlrev_b32 v%d, 1, v%d" % (dst, dst))
    e("v_bfe_u32 v%d, v%d, 2, 1" % (t, u))
    e("v_or_b32 v%d, v%d, v%d" % (dst, dst, t))

def dma256_voff(va, vb, pitch, t):
    e("v_bfe_u32 v%d, v1, 1, 3" % t)
    e("v_xor_b32 v%d, v3, v%d" % (t, t))
    e("v_lshlrev_b32 v%d, 5, v%d" % (t, t))
    e("v_and_b32 v%d, 1, v1" % va)
    e("v_lshl_add_u32 v%d, v%d, 4, v%d" % (t, va, t))
    e("v_mul_u32_u24 v%d, %d, v3" % (va, pitch))
    e("v_add_u32 v%d, v%d, v%d" % (va, va, t))
    e("v_xor_b32 v%d, 0x80, v%d" % (vb, va))

SKIP = opt("skip", "").split(",")
def dma_run(srd_, voffs, s_base, rowbytes, ldsbase, per_wave, m0, m1, pre=None, name=None):
    if name in SKIP: return
    _dma_run(srd_, voffs, s_base, rowbytes, ldsbase, per_wave, m0, m1, pre)

def _dma_run(srd_, voffs, s_base, rowbytes, ldsbase, per_wave, m0, m1, pre=None):
    e("s_mul_i32 s%d, s%d, %d" % (S_A, S_WAVE, per_wave * rowbytes))
    e("s_add_u32 s%d, s%d, s%d" % (S_A, S_A, s_base))
    if m0: e("s_add_u32 s%d, s%d, %d" % (S_A, S_A, rowbytes * m0))
    e("s_mul_i32 s%d, s%d, %d" % (S_B, S_WAVE, per_wave * 1024))
    if ldsbase + m0: e("s_add_u32 s%d, s%d, %d" % (S_B, S_B, ldsbase + 1024 * m0))
    for m in range(m0, m1):
        e("s_mov_b32 m0, s%d" % S_B)
        if pre: pre(m)
        if m < m1 - 1: e("s_add_u32 s%d, s%d, 1024" % (S_B, S_B))
        else: e("s_nop 0")
        e("buffer_load_dwordx4 v%d, s[%d:%d], s%d offen nt lds" % (voffs(m), srd_, srd_ + 3, S_A))
        if m < m1 - 1: e("s_add_u32 s%d, s%d, %d" % (S_A, S_A, rowbytes))

def tr256_addr(va, t):
    e("v_bfe_u32 v%d, v1, 2, 2" % t)
    e("v_and_b32 v%d, 1, v3" % va)
    e("v_lshl_or_b32 v%d, v%d, 2, v%d" % (va, va, t))
    e("v_xor_b32 v%d, s%d, v%d" % (va, S_WAVE, va))
    e("v_lshlrev_b32 v%d, 5, v%d" % (va, va))
    e("v_lshl_add_u32 v%d, v3, 3, v%d" % (t, t))
    e("v_lshl_add_u32 v%d, v%d, 8, v%d" % (va, t, va))
    e("v_and_b32 v%d, 3, v1" % t)
    e("v_lshl_add_u32 v%d, v%d, 3, v%d" % (va, t, va))

def tr256_read(dst, va):
    for m in range(8):
        for h in range(2):
            e("ds_read_b64_tr_b16 v[%d:%d], v%d offset:%d" % (dst + 4 * m + 2 * h, dst + 4 * m + 2 * h + 1, va, m * 8192 + h * 1024))

def act_rd_addr(ve, vo, t, ldsbase):
    e("v_and_b32 v%d, 7, v1" % t)
    e("v_lshlrev_b32 v%d, 1, v3" % ve)
    e("v_xor_b32 v%d, v%d, v%d" % (ve, ve, t))
    e("v_lshlrev_b32 v%d, 4, v%d" % (ve, ve))
    e("v_lshl_add_u32 v%d, v3, 7, v%d" % (ve, ve))
    e("v_add_u32 v%d, %d, v%d" % (ve, ldsbase, ve))
    e("v_xor_b32 v%d, 16, v%d" % (vo, ve))

def mfma(d, a, b, c):
    cs = "0" if c is None else "v[%d:%d]" % (c, c + 3)
    return "v_mfma_f32_16x16x32_bf16 v[%d:%d], v[%d:%d], v[%d:%d], %s" % (d, d + 3, a, a + 3, b, b + 3, cs)

def gemv8(acc, wf, af, ve, vo):
    for m in range(8):
        e("ds_read_b128 v[%d:%d], v%d offset:%d" % (af + 4 * m, af + 4 * m + 3, vo if (m & 1) else ve, m * 512))
    for m in range(8):
        e("s_waitcnt lgkmcnt(%d)" % (7 - m))
        e(mfma(acc, wf + 4 * m, af + 4 * m, None if m == 0 else acc))

def touch(items):
    for i, (va, so, off) in enumerate(items):
        e("buffer_load_dword v%d, v%d, s[%d:%d], s%d offen offset:%d sc1" % (V_X1 + 20 + i, va, SRD_WS, SRD_WS + 3, so, off))

def clean(instr, lanemask=None):
    if NOCLEAN: return
    l = uid("nc")
    _mask(S_ML, lanemask)
    e("s_cbranch_execz %s" % l)
    e(instr + " sc1")
    lab(l)
    full()

def trig2():
    l = uid("nt2")
    e("s_cmp_lg_u32 s%d, 0" % S_WAVE)
    e("s_cbranch_scc1 %s" % l)
    e("s_lshl_b32 s%d, s%d, 3" % (S_A, S_SLOT))
    e("s_or_b32 s%d, s%d, s%d" % (S_A, S_A, S_XCD))
    e("s_lshl_b32 s%d, s%d, 7" % (S_A, S_A))
    e("s_add_u32 s%d, s%d, 0x%x" % (S_A, S_A, WS_TRIG))
    store_g("buffer_store_dword v%d, v%d, s[%d:%d], s%d offen offset:8" % (V_P + 3, V_Z, SRD_WS, SRD_WS + 3, S_A), "1")
    lab(l)

def make_tag(vE):
    e("v_readfirstlane_b32 s%d, v%d" % (S_F, vE))
    e("s_nop 3")
    e("s_mul_i32 s%d, s%d, 0x9e3779b1" % (S_T, S_F))
    e("s_add_u32 s%d, s%d, 0x85ebca6b" % (S_T, S_T))
    e("s_mov_b32 s%d, s%d" % (S_TT, S_T))
    e("s_mov_b32 s%d, s%d" % (S_TT + 1, S_T))
    e("s_add_u32 s%d, s%d, 1" % (S_F, S_F))
    e("v_mov_b32 v%d, s%d" % (V_P + 2, S_T))
    e("v_mov_b32 v%d, s%d" % (V_P + 3, S_T))

def publish_partial(s_off, local):
    e("s_nop 7")
    e("v_cndmask_b32 v%d, v%d, v%d, s[%d:%d]" % (V_P, V_ACC, V_ACC + 2, S_HI8, S_HI8 + 1))
    e("v_cndmask_b32 v%d, v%d, v%d, s[%d:%d]" % (V_P + 1, V_ACC + 1, V_ACC + 3, S_HI8, S_HI8 + 1))
    ins = "buffer_store_dwordx4 v[%d:%d], v%d, s[%d:%d], s%d offen" % (V_P, V_P + 3, V_PUB, SRD_WS, SRD_WS + 3, s_off)
    (store_l if local else store_g)(ins)

def reduce16(s0, bell=False):
    top = poll_begin((V_RED, s0, 3, 0, "5" in AT) if bell else None)
    for n in range(4):
        e("buffer_load_dwordx4 v[%d:%d], v%d, s[%d:%d], s%d offen sc1" % (V_L + 4 * n, V_L + 4 * n + 3, V_RED, SRD_WS, SRD_WS + 3, s0 + n))
    poll_end(top, [chk64(V_L + 4 * n + 2) for n in range(4)], bell=(V_RED, s0, 3) if bell else None)
    a, b = V_L, V_L + 1
    e("v_pk_add_f32 v[%d:%d], v[%d:%d], v[%d:%d]" % (a, b, a, b, V_L + 4, V_L + 5))
    e("v_pk_add_f32 v[%d:%d], v[%d:%d], v[%d:%d]" % (V_L + 8, V_L + 9, V_L + 8, V_L + 9, V_L + 12, V_L + 13))
    e("v_pk_add_f32 v[%d:%d], v[%d:%d], v[%d:%d]" % (a, b, a, b, V_L + 8, V_L + 9))
    e("s_nop 1")
    e("v_permlane32_swap_b32 v%d, v%d" % (a, b))
    e("s_nop 0")
    e("v_add_f32 v%d, v%d, v%d" % (a, a, b))
    e("v_mov_b32 v%d, v%d" % (b, a))
    e("s_nop 1")
    e("v_permlane16_swap_b32 v%d, v%d" % (a, b))
    e("s_nop 0")
    e("v_add_f32 v%d, v%d, v%d" % (a, a, b))
    e("v_mov_b32 v%d, v%d" % (b, a))
    e("s_nop 1")
    e("v_permlane32_swap_b32 v%d, v%d" % (a, b))
    e("s_nop 0")

def only_red(lbl):
    e("s_cmp_ge_u32 s%d, s3" % S_WAVE)
    e("s_cbranch_scc1 %s" % lbl)

def residual_add(dst, vres):
    e("v_cvt_pk_bf16_f32 v%d, v%d, v%d" % (V_T0, V_L, V_L + 1))
    unpack(V_U + 2, V_U + 3, vres)
    unpack(V_U, V_U + 1, V_T0)
    e("v_add_f32 v%d, v%d, v%d" % (V_U, V_U, V_U + 2))
    e("v_add_f32 v%d, v%d, v%d" % (V_U + 1, V_U + 1, V_U + 3))
    e("v_cvt_pk_bf16_f32 v%d, v%d, v%d" % (dst, V_U, V_U + 1))

def pos_write_addr(dst, ldsbase):
    e("v_bfe_u32 v%d, v1, 1, 3" % V_T2)
    sigma_of(V_T0, V_T2, V_T1)
    e("v_xor_b32 v%d, s%d, v%d" % (V_T0, S_WAVE, V_T0))
    e("v_lshlrev_b32 v%d, 4, v%d" % (V_T0, V_T0))
    e("v_lshrrev_b32 v%d, 1, v1" % V_T1)
    e("v_lshl_add_u32 v%d, v%d, 7, v%d" % (V_T0, V_T1, V_T0))
    e("v_and_b32 v%d, 1, v1" % V_T1)
    e("v_lshl_add_u32 v%d, v%d, 3, v%d" % (V_T0, V_T1, V_T0))
    e("v_add_u32 v%d, %d, v%d" % (dst, ldsbase, V_T0))

def gen():
    for l in """Fused decode layer: preLN + sliding-window GQA attention + residual + preLN + GLU MLP + residual.
Kernarg (96 bytes, pointers only): 0 A_x, 8 A_k_cache, 16 A_v_cache, 24 A_wq, 32 A_wo, 40 B_x (unused), 48 B_w_gate,
  56 B_w_up, 64 B_w_down, 72 d_out, 80 d_debug, 88 d_ws.
One persistent launch, 256 workgroups x 8 waves, one workgroup per CU.  role = (wg>>3)&1:
  B: LN1 + Q-proj tile -> O-proj tile -> h reduce -> down-proj tile -> final reduce
  A: attention for (batch, kv head, 256-key split) -> split combine -> gate/up tile (LN2 folded in)
Weights / K / V stream HBM -> LDS (LDS-DMA, swizzled images) and feed MFMA through transposing LDS reads.
Hand-offs between workgroups are 8/16-byte granules in d_ws that carry a per-launch tag (hash of an epoch word
  kept in d_ws).  Groups of workgroups that find (via the XCC id table in d_debug) that they share an XCD
  exchange through L2 with plain stores; otherwise every hand-off is written through.  All spins are bounded.
Waves 4-7 run upcoming latency-critical code once with EXEC=0 (memory instructions branched around) so that it
  is resident in the instruction cache while waves 0-3 issue the streams.
Generated by a script (work/gen.py).""".split("\n"):
        lines.append("; " + l)
    lines.append("; @launch grid=(256,1,1) block=(512,1,1) lds=%d" % LDS_BYTES)
    lines.append('.amdgcn_target "amdgcn-amd-amdhsa--gfx950"')
    lines.append(".text")
    lines.append(".globl %s_kernel" % NAME)
    lines.append(".p2align 8")
    lines.append(".type %s_kernel,@function" % NAME)
    lab("%s_kernel" % NAME)
    e("s_cmp_ge_u32 s2, 256")
    e("s_cbranch_scc1 L_end")
    if STAMPS:
        e("s_memrealtime s[%d:%d]" % (S_TM, S_TM + 1))
        for k in range(1, 16): e("s_mov_b32 s%d, 0" % (S_ST + k))
    e("s_load_dwordx16 s[4:19], s[0:1], 0")
    e("s_load_dwordx8 s[20:27], s[0:1], 64")
    e("v_lshrrev_b32 v4, 6, v0")
    e("v_and_b32 v1, 63, v0")
    e("v_readfirstlane_b32 s%d, v4" % S_WAVE)
    e("v_and_b32 v2, 15, v1")
    e("v_lshrrev_b32 v3, 4, v1")
    e("s_and_b32 s%d, s2, 7" % S_XCD)
    e("s_lshr_b32 s%d, s2, 4" % S_SLOT)
    e("v_mov_b32 v%d, 0" % V_Z)
    if PRIO: e("s_setprio 3")
    code_prefetch()
    e("s_bitcmp1_b32 s2, 3")
    e("s_cbranch_scc1 L_roleA")
    role_b()
    lab("L_roleA")
    role_a()
    lab("L_end")
    e("s_endpgm")
    lines.append('.section .rodata,"a"')
    lines.append(".p2align 6")
    lines.append(".amdhsa_kernel %s_kernel" % NAME)
    lines.append("  .amdhsa_next_free_vgpr 256")
    lines.append("  .amdhsa_next_free_sgpr 102")
    lines.append("  .amdhsa_accum_offset 256")
    lines.append("  .amdhsa_group_segment_fixed_size 0")
    lines.append("  .amdhsa_kernarg_size 96")
    lines.append("  .amdhsa_user_sgpr_count 2")
    lines.append("  .amdhsa_user_sgpr_kernarg_segment_ptr 1")
    lines.append("  .amdhsa_system_sgpr_workgroup_id_x 1")
    lines.append(".end_amdhsa_kernel")

def code_prefetch():
    if NOCODEPF: return
    l = uid("nopf")
    e("s_lshr_b32 s%d, s2, 3" % S_A)
    e("s_lshl_b32 s%d, s%d, 3" % (S_A, S_A))
    e("s_add_u32 s%d, s%d, s%d" % (S_A, S_A, S_WAVE))
    e("s_cmp_lg_u32 s%d, 13" % S_A)
    e("s_cbranch_scc1 %s" % l)
    e("s_getpc_b64 s[%d:%d]" % (S_ML, S_ML + 1))
    lab(l + "_pc")
    e("s_sub_u32 s%d, s%d, %s_pc-%s_kernel" % (S_ML, S_ML, l, NAME))
    e("s_subb_u32 s%d, s%d, 0" % (S_ML + 1, S_ML + 1))
    e("v_lshlrev_b32 v%d, 7, v1" % V_T0)
    e("global_load_dword v%d, v%d, s[%d:%d]" % (V_U, V_T0, S_ML, S_ML + 1))
    e("v_add_u32 v%d, 0x2000, v%d" % (V_T0, V_T0))
    e("v_min_u32 v%d, L_end-%s_kernel, v%d" % (V_T0, NAME, V_T0))
    e("global_load_dword v%d, v%d, s[%d:%d]" % (V_U + 1, V_T0, S_ML, S_ML + 1))
    lab(l)

def common_consts():
    e("s_mov_b32 s%d, 0x40000" % S_SPIN)
    e("s_mov_b32 s%d, 0xff00ff00" % S_HI8)
    e("s_mov_b32 s%d, 0xff00ff00" % (S_HI8 + 1))
    e("s_mov_b64 s[%d:%d], -1" % (S_FULL, S_FULL + 1))
    e("s_mov_b32 s%d, 0" % S_DRY)

def role_b():
    cmt("================= role B =================")
    V_AWD, V_XA, V_HO, V_ZA, V_TR1 = V_X1 + 1, V_X1 + 2, V_X1 + 3, V_X1 + 4, V_X1 + 5
    V_VC, V_VD = V_X1 + 6, V_X1 + 7
    V_ZQ = V_X1 + 8
    ab = lambda m: V_VB if (m & 2) else V_VA
    dma256_voff(V_VA, V_VB, 8192, V_T0)
    e("v_lshlrev_b32 v%d, 4, v1" % V_G)
    if KQX:
        e("s_and_b32 s%d, s%d, 3" % (S_D, S_XCD))
        e("s_lshr_b32 s%d, s%d, 2" % (S_C, S_XCD))
        e("s_lshl_b32 s%d, s%d, 4" % (S_C, S_C))
        e("s_add_u32 s%d, s%d, s%d" % (S_C, S_C, S_SLOT))
    else:
        e("s_and_b32 s%d, s%d, 3" % (S_D, S_SLOT))
        e("s_lshr_b32 s%d, s%d, 2" % (S_A, S_SLOT))
        e("s_lshl_b32 s%d, s%d, 1" % (S_B, S_XCD))
        e("s_add_u32 s%d, s%d, s%d" % (S_B, S_B, S_A))
        e("s_lshl_b32 s%d, s%d, 2" % (S_C, S_B))
        e("s_add_u32 s%d, s%d, 1" % (S_C, S_C))
        e("s_sub_u32 s%d, s%d, 2" % (S_B, S_B))
        e("s_lshl_b32 s%d, s%d, 2" % (S_E, S_XCD))
        e("s_add_u32 s%d, s%d, s%d" % (S_E, S_E, S_A))
        e("s_sub_u32 s%d, s%d, 8" % (S_E, S_E))
        e("s_cmp_ge_u32 s%d, 4" % S_XCD)
        e("s_cselect_b32 s%d, s%d, s%d" % (S_B, S_E, S_B))
        e("s_cselect_b32 s%d, 2, s%d" % (S_A, S_A))
        e("s_mul_i32 s%d, s%d, 43" % (S_E, S_B))
        e("s_lshr_b32 s%d, s%d, 7" % (S_E, S_E))
        e("s_mul_i32 s%d, s%d, 3" % (S_F, S_E))
        e("s_sub_u32 s%d, s%d, s%d" % (S_F, S_B, S_F))
        e("s_lshl_b32 s%d, s%d, 2" % (S_E, S_E))
        e("s_add_u32 s%d, s%d, s%d" % (S_E, S_E, S_F))
        e("s_min_u32 s%d, s%d, 1" % (S_F, S_F))
        e("s_add_u32 s%d, s%d, s%d" % (S_E, S_E, S_F))
        e("s_cmp_ge_u32 s%d, 2" % S_A)
        e("s_cselect_b32 s%d, s%d, s%d" % (S_C, S_E, S_C))
    e("s_lshl_b32 s%d, s%d, 21" % (S_E, S_D))
    e("s_lshl_b32 s%d, s%d, 8" % (S_A, S_C))
    e("s_add_u32 s%d, s%d, s%d" % (S_E, S_E, S_A))
    e("s_lshl_b32 s82, s%d, 11" % S_WAVE)
    e("s_lshl_b32 s83, s%d, 9" % S_D)
    e("s_add_u32 s83, s83, s82")
    e("s_waitcnt lgkmcnt(0)")
    if STAMPS: e("s_mov_b32 s%d, s%d" % (S_ST, S_TM))
    srd(SRD_X, S_X, 16384)
    srd(SRD_W, S_WQ, 8 << 20)
    e("buffer_load_dwordx4 v[%d:%d], v%d, s[%d:%d], s82 offen" % (V_L, V_L + 3, V_G, SRD_X, SRD_X + 3))
    e("buffer_load_dwordx4 v[%d:%d], v%d, s[%d:%d], s82 offen offset:1024" % (V_L + 4, V_L + 7, V_G, SRD_X, SRD_X + 3))
    e("buffer_load_dwordx4 v[%d:%d], v%d, s[%d:%d], s83 offen" % (V_L + 8, V_L + 11, V_G, SRD_X, SRD_X + 3))
    if XBAR: e("s_barrier")
    dma_run(SRD_W, ab, S_E, 4 * 8192, L_W0, 8, 0, QFIRST)
    srd(SRD_WS, S_WS, WS_SIZE)
    e("buffer_load_dword v%d, v%d, s[%d:%d], 0 offen sc1" % (V_L + 12, V_Z, SRD_WS, SRD_WS + 3))
    stamp(1)
    common_consts()
    e("s_lshr_b32 s%d, s%d, 1" % (S_A, S_SLOT))
    e("s_lshl_b32 s%d, s%d, 11" % (S_A, S_A))
    e("s_lshl_b32 s%d, s%d, 8" % (S_B, S_XCD))
    e("s_add_u32 s%d, s%d, s%d" % (S_A, S_A, S_B))
    e("s_and_b32 s%d, s%d, 1" % (S_B, S_SLOT))
    e("s_lshl_b32 s%d, s%d, 7" % (S_B, S_B))
    e("s_add_u32 s%d, s%d, s%d" % (S_A, S_A, S_B))
    e("s_and_b32 s%d, s%d, 1" % (S_B, S_WAVE))
    e("s_lshl_b32 s%d, s%d, 6" % (S_B, S_B))
    e("s_add_u32 s80, s%d, s%d" % (S_A, S_B))
    e("v_lshlrev_b32 v%d, 2, v2" % V_X1)
    e("v_lshlrev_b32 v%d, 3, v2" % V_HO)
    e("buffer_load_dword v%d, v%d, s[%d:%d], s80 offen" % (V_XP, V_X1, SRD_X, SRD_X + 3))
    e("s_waitcnt vmcnt(%d)" % (QFIRST + 2))
    for i in range(8):
        unpack(V_U + 2 * i, V_U + 2 * i + 1, V_L + i)
    emit(ln_stats_ops([V_U + i for i in range(16)], V_SUM, V_T0, V_M, V_RS, V_SQ))
    if QFIRST < 8:
        dma_run(SRD_W, ab, S_E, 4 * 8192, L_W0, 8, QFIRST, 8)
    for i in range(4):
        unpack(V_U + 2 * i, V_U + 2 * i + 1, V_L + 8 + i)
    for i in range(4):
        ln_apply_pair(V_L + 16 + i, V_U + 2 * i, V_U + 2 * i + 1, V_M, V_RS, V_SQ, V_T0, V_T1)
    e("v_and_b32 v%d, 7, v1" % V_T2)
    e("v_lshlrev_b32 v%d, 2, v%d" % (V_XA, V_T2))
    sigma_of(V_T0, V_T2, V_T1)
    e("v_xor_b32 v%d, s%d, v%d" % (V_T0, S_WAVE, V_T0))
    e("v_lshlrev_b32 v%d, 4, v%d" % (V_T0, V_T0))
    e("v_lshl_add_u32 v%d, v1, 7, v%d" % (V_T0, V_T0))
    e("v_add_u32 v%d, %d, v%d" % (V_T0, L_ACT, V_T0))
    e("s_mov_b64 exec, 0xffffffff")
    e("ds_write_b128 v%d, v[%d:%d]" % (V_T0, V_L + 16, V_L + 19))
    e("s_mov_b64 exec, -1")
    srd(SRD_X, S_DBG, 256)
    xcc_publish(V_T0, SRD_X)
    if PFK:
        srd(SRD_O, S_K, 32 << 20)
        e("s_lshl_b32 s84, s%d, 22" % S_XCD)
        e("s_lshl_b32 s%d, s%d, 18" % (S_A, S_SLOT))
        e("s_and_b32 s%d, s%d, 0x300000" % (S_A, S_A))
        e("s_add_u32 s84, s84, s%d" % S_A)
        e("s_and_b32 s%d, s%d, 3" % (S_A, S_SLOT))
        e("s_lshl_b32 s%d, s%d, 16" % (S_A, S_A))
        e("s_add_u32 s84, s84, s%d" % S_A)
        e("s_add_u32 s84, s84, 0x%x" % (3072 * 256 + 65536 - 8192 * PFK))
        dma_run(SRD_O, lambda m: V_G, 84, 1024, L_W1, PFK, 0, PFK)
    tr256_addr(V_TR, V_T0)
    act_rd_addr(V_AE, V_AO, V_T0, L_ACT)
    e("v_and_b32 v%d, 7, v1" % V_T0)
    e("v_lshlrev_b32 v%d, 10, v%d" % (V_PUB, V_T0))
    e("v_lshrrev_b32 v%d, 3, v2" % V_T0)
    e("v_lshl_add_u32 v%d, v3, 1, v%d" % (V_T0, V_T0))
    e("v_lshl_add_u32 v%d, v%d, 4, v%d" % (V_PUB, V_T0, V_PUB))
    e("s_lshl_b32 s%d, s%d, 7" % (S_A, S_WAVE))
    e("v_add_u32 v%d, s%d, v%d" % (V_PUB, S_A, V_PUB))
    e("s_lshl_b32 s%d, s%d, 2" % (S_A, S_C))
    e("s_add_u32 s%d, s%d, s%d" % (S_A, S_A, S_D))
    e("s_lshl_b32 s%d, s%d, 13" % (S_A, S_A))
    e("s_add_u32 s81, s%d, 0x%x" % (S_A, WS_H1))
    stamp(2)
    if NODRY: e("s_branch L_q_real")
    e("s_waitcnt lgkmcnt(0)")
    set_dry()
    lab("L_q_top")
    tr256_read(V_WF, V_TR)
    gemv8(V_ACC, V_WF, V_AF, V_AE, V_AO)
    publish_partial(81, False)
    e("s_cmp_eq_u32 s%d, 0" % S_DRY)
    e("s_cbranch_scc1 L_q_done")
    lab("L_q_real")
    set_real()
    e("s_waitcnt vmcnt(%d)" % (8 - QFIRST + 1 + PFK))
    make_tag(V_L + 12)
    e("s_waitcnt vmcnt(%d) lgkmcnt(0)" % PFK)
    e("s_barrier")
    stamp(3)
    e("s_branch L_q_top")
    lab("L_q_done")
    stamp(4)
    dma256_voff(V_VA, V_VB, 2048, V_T0)
    e("v_add_u32 v%d, %d, v%d" % (V_TR1, L_W1, V_TR))
    e("s_and_b32 s%d, s%d, 1" % (S_A, S_WAVE))
    e("s_lshl_b32 s%d, s%d, 7" % (S_A, S_A))
    e("v_xor_b32 v%d, s%d, v%d" % (V_X1 + 14, S_A, V_VA))
    e("v_xor_b32 v%d, 0x80, v%d" % (V_X1 + 15, V_X1 + 14))
    pos_write_addr(V_AW, L_ACT)
    e("v_lshlrev_b32 v%d, 13, v3" % V_RED)
    e("v_lshl_add_u32 v%d, v2, 4, v%d" % (V_RED, V_RED))
    e("s_and_b32 s%d, s%d, 1" % (S_A, S_WAVE))
    e("s_lshl_b32 s%d, s%d, 8" % (S_A, S_A))
    e("v_add_u32 v%d, s%d, v%d" % (V_RED, S_A, V_RED))
    e("s_lshl_b32 s%d, s%d, 3" % (S_A, S_SLOT))
    e("s_or_b32 s%d, s%d, s%d" % (S_A, S_A, S_XCD))
    e("s_lshl_b32 s%d, s%d, 7" % (S_A, S_A))
    e("s_add_u32 s83, s%d, 0x%x" % (S_A, WS_TRIG))
    e("s_lshl_b32 s%d, s%d, 3" % (S_A, S_SLOT))
    e("s_add_u32 s%d, s%d, s%d" % (S_A, S_A, S_WAVE))
    e("s_lshl_b32 s%d, s%d, 10" % (S_A, S_A))
    e("s_add_u32 s82, s%d, 0x%x" % (S_A, WS_H2G))
    e("s_lshl_b32 s%d, s%d, 4" % (S_A, S_XCD))
    e("s_add_u32 s%d, s%d, s%d" % (S_A, S_A, S_SLOT))
    e("s_lshl_b32 s%d, s%d, 13" % (S_A, S_A))
    e("s_add_u32 s84, s%d, 0x%x" % (S_A, WS_H3A))
    e("s_lshl_b32 s%d, s%d, 17" % (S_A, S_XCD))
    e("s_lshl_b32 s%d, s%d, 9" % (S_B, S_SLOT))
    e("s_add_u32 s%d, s%d, s%d" % (S_A, S_A, S_B))
    e("s_add_u32 s85, s%d, 0x%x" % (S_A, WS_H3A))
    e("s_add_u32 s86, s%d, 0x%x" % (S_A, WS_H5))
    for n in range(4):
        e("s_add_u32 s%d, s85, %d" % (4 + n, 32768 * n))
        e("s_add_u32 s%d, s86, %d" % (8 + n, 32768 * n))
    e("s_lshl_b32 s%d, s80, 1" % S_A)
    e("s_add_u32 s90, s%d, 0x%x" % (S_A, WS_H3B))
    e("s_lshr_b32 s%d, s%d, 3" % (S_C, S_SLOT))
    e("s_lshl_b32 s%d, s%d, 1" % (S_A, S_XCD))
    e("s_add_u32 s%d, s%d, s%d" % (S_C, S_C, S_A))
    e("s_and_b32 s%d, s%d, 7" % (S_D, S_SLOT))
    e("s_mul_i32 s91, s%d, %d" % (S_C, 224 * 2048))
    e("s_lshl_b32 s%d, s%d, 8" % (S_A, S_D))
    e("s_add_u32 s91, s91, s%d" % S_A)
    e("s_min_u32 s%d, s%d, 6" % (S_A, S_WAVE))
    e("s_lshl_b32 s%d, s%d, 10" % (S_B, S_A))
    e("s_mul_i32 s%d, s%d, 7168" % (S_E, S_C))
    e("s_add_u32 s%d, s%d, s%d" % (S_E, S_E, S_B))
    e("s_add_u32 s87, s%d, 0x%x" % (S_E, WS_H4S))
    e("s_add_u32 s88, s%d, 0x%x" % (S_E, WS_H4U))
    e("s_lshl_b32 s%d, s%d, 2" % (S_B, S_A))
    e("v_add_u32 v%d, s%d, v3" % (V_T3, S_B))
    e("v_and_b32 v%d, 7, v%d" % (V_T2, V_T3))
    sigma_of(V_T0, V_T2, V_T1)
    e("v_and_b32 v%d, 7, v1" % V_T1)
    e("v_xor_b32 v%d, v%d, v%d" % (V_T0, V_T0, V_T1))
    e("v_lshlrev_b32 v%d, 4, v%d" % (V_T0, V_T0))
    e("v_lshl_add_u32 v%d, v%d, 7, v%d" % (V_T0, V_T3, V_T0))
    e("v_bfe_u32 v%d, v1, 3, 1" % V_T1)
    e("v_lshl_add_u32 v%d, v%d, 3, v%d" % (V_T0, V_T1, V_T0))
    e("v_add_u32 v%d, %d, v%d" % (V_AWD, L_ACT, V_T0))
    e("s_lshl_b32 s%d, s%d, 4" % (S_A, S_D))
    e("s_add_u32 s%d, s%d, s%d" % (S_A, S_A, S_C))
    e("s_lshl_b32 s%d, s%d, 13" % (S_A, S_A))
    e("s_add_u32 s89, s%d, 0x%x" % (S_A, WS_H5))
    e("v_and_b32 v%d, 31, v1" % V_T0)
    e("v_lshlrev_b32 v%d, 4, v%d" % (V_T0, V_T0))
    e("v_add_u32 v%d, %d, v%d" % (V_ZA, L_ACT + 28 * 128, V_T0))
    for k in range(4): e("v_mov_b32 v%d, 0" % (V_ZQ + k))
    srd(SRD_O, S_OUT, 16384)
    e("s_lshr_b32 s%d, s%d, 7" % (S_E, S_WG))
    e("s_mul_i32 s%d, s%d, 7" % (S_A, S_XCD))
    e("s_add_u32 s%d, s%d, s%d" % (S_E, S_E, S_A))
    e("s_sub_u32 s%d, 3, s%d" % (S_E, S_E))
    e("s_and_b32 s%d, s%d, 7" % (S_E, S_E))
    e("s_lshr_b32 s%d, s%d, 3" % (S_A, S_SLOT))
    e("s_mul_i32 s%d, s%d, 56" % (S_A, S_A))
    e("s_min_u32 s%d, s%d, 6" % (S_B, S_WAVE))
    e("s_lshl_b32 s%d, s%d, 3" % (S_B, S_B))
    e("s_add_u32 s%d, s%d, s%d" % (S_A, S_A, S_B))
    e("s_lshr_b32 s%d, s%d, 4" % (S_B, S_A))
    e("s_cmp_eq_u32 s%d, s%d" % (S_B, S_E))
    e("s_cselect_b32 s96, 1, 0")
    e("s_and_b32 s%d, s%d, 8" % (S_A, S_A))
    e("s_lshl_b32 s%d, s%d, 8" % (S_A, S_A))
    e("s_lshl_b32 s%d, s%d, 12" % (S_B, S_XCD))
    e("s_add_u32 s%d, s%d, s%d" % (S_A, S_A, S_B))
    e("s_add_u32 s81, s%d, 0x%x" % (S_A, WS_H4P))
    e("v_lshlrev_b32 v%d, 5, v1" % V_VC)
    e("v_add_u32 v%d, 0x8000, v%d" % (V_VD, V_VC))
    e("v_add_u32 v%d, 0x10000, v%d" % (V_X1 + 12, V_VC))
    e("v_add_u32 v%d, 0x18000, v%d" % (V_X1 + 13, V_VC))
    e("s_lshl_b32 s99, s%d, 19" % S_SLOT)
    e("s_lshl_b32 s%d, s%d, 8" % (S_A, S_XCD))
    e("s_add_u32 s99, s99, s%d" % S_A)
    e("s_barrier")
    e("s_cmp_ge_u32 s%d, 4" % S_WAVE)
    e("s_cbranch_scc1 L_b_warm")
    srd(SRD_W, S_WO, 8 << 20)
    top = poll_begin()
    e("buffer_load_dwordx2 v[%d:%d], v%d, s[%d:%d], s83 offen sc1" % (V_L, V_L + 1, V_Z, SRD_WS, SRD_WS + 3))
    poll_end(top, [chk64(V_L)])
    dma_run(SRD_W, ab, 99, 4 * 2048, L_W1, 16, 0, 16, name="wo")
    if DEARLY:
        srd(SRD_W, S_WD, 3584 * 2048)
        dma_run(SRD_W, lambda m: V_X1 + 15 if (m & 2) else V_X1 + 14, 91, 4 * 2048, L_W0, 14, 0, 14)
    if DSPLIT:
        srd(SRD_W, S_WD, 3584 * 2048)
        dma_run(SRD_W, ab, 91, 4 * 2048, L_W0, 8, 0, 8)
    stamp(5)
    e("s_waitcnt vmcnt(%d)" % (14 if DEARLY else 8 if DSPLIT else 0))
    e("s_branch L_b_real")
    lab("L_b_warm")
    if not NOTOUCH:
        e("s_cmp_lg_u32 s%d, 4" % S_WAVE)
        e("s_cbranch_scc1 L_b_notouch")
        e("v_lshlrev_b32 v%d, 7, v1" % V_T0)
        e("v_lshrrev_b32 v%d, 2, v1" % V_T1)
        e("v_lshlrev_b32 v%d, 13, v%d" % (V_T1, V_T1))
        e("v_and_b32 v%d, 3, v1" % V_T2)
        e("v_lshl_add_u32 v%d, v%d, 7, v%d" % (V_T1, V_T2, V_T1))
        e("s_sub_u32 s%d, s87, 4096" % S_A)
        e("s_sub_u32 s%d, s88, 4096" % S_B)
        e("s_lshl_b32 s%d, s%d, 12" % (S_C, S_XCD))
        e("s_add_u32 s%d, s%d, 0x%x" % (S_C, S_C, WS_H4P))
        e("v_and_b32 v%d, 31, v1" % V_T2)
        e("v_lshlrev_b32 v%d, 7, v%d" % (V_T2, V_T2))
        e("v_lshrrev_b32 v%d, 5, v1" % V_T3)
        e("v_lshl_add_u32 v%d, v%d, 15, v%d" % (V_T2, V_T3, V_T2))
        e("v_add_u32 v%d, 0x10000, v%d" % (V_T3, V_T2))
        touch([(V_T1, 85, 0), (V_T0, S_A, 0), (V_T0, S_B, 0), (V_T2, S_C, 0), (V_T3, S_C, 0), (V_Z, 82, 0), (V_Z, 86, 0), (V_Z, 89, 0), (V_Z, 90, 0)])
        if TLBT:
            e("v_mov_b32 v%d, s99" % V_T0)
            e("v_mov_b32 v%d, s91" % V_T1)
            e("global_load_dword v%d, v%d, s[%d:%d]" % (V_X1 + 29, V_T0, S_WO, S_WO + 1))
            e("global_load_dword v%d, v%d, s[%d:%d]" % (V_X1 + 30, V_T1, S_WD, S_WD + 1))
            e("global_load_dword v%d, v%d, s[%d:%d]" % (V_X1 + 31, V_Z, S_OUT, S_OUT + 1))
        lab("L_b_notouch")
    if NODRY: e("s_branch L_b_real")
    set_dry()
    e("s_branch L_b_tail")
    lab("L_b_real")
    set_real()
    e("s_barrier")
    lab("L_b_tail")
    tr256_read(V_WF, V_TR1)
    top = poll_begin()
    xcc_load(V_L, V_XA, SRD_X)
    poll_end(top, xcc_checks(V_L, V_T0))
    xcc_decide(V_L)
    stamp(6)
    top = poll_begin((V_G, 82, 3, 0, "2" in AT))
    e("buffer_load_dwordx4 v[%d:%d], v%d, s[%d:%d], s82 offen sc1" % (V_L, V_L + 3, V_G, SRD_WS, SRD_WS + 3))
    poll_end(top, [chk64(V_L + 2)], bell=(V_G, 82, 3))
    e("ds_write_b64 v%d, v[%d:%d]" % (V_AW, V_L, V_L + 1))
    stamp(7)
    e("s_waitcnt lgkmcnt(0)")
    barrier(True)
    gemv8(V_ACC, V_WF, V_AF, V_AE, V_AO)
    publish_partial(84, True)
    stamp(8)
    only_red("L_b_nor3")
    reduce16(4)
    stamp(9)
    residual_add(V_U + 4, V_XP)
    e("v_mov_b32 v%d, s%d" % (V_U + 6, S_T))
    e("v_mov_b32 v%d, s%d" % (V_U + 7, S_T))
    e("v_mov_b32_dpp v%d, v%d quad_perm:[1,1,3,3] row_mask:0xf bank_mask:0xf" % (V_U + 5, V_U + 4))
    store_g("buffer_store_dwordx4 v[%d:%d], v%d, s[%d:%d], s90 offen" % (V_U + 4, V_U + 7, V_HO, SRD_WS, SRD_WS + 3), "0x5555")
    e("v_mov_b32 v%d, v%d" % (V_H, V_U + 4))
    stamp(10)
    lab("L_b_nor3")
    if DEARLY:
        barrier(True)
    else:
        e("s_cbranch_execz L_b_nod")
        e("s_barrier")
        srd(SRD_W, S_WD, 3584 * 2048)
        if TRIG2: doorbell(V_Z, 83, 2)
        e("s_cmp_ge_u32 s%d, %d" % (S_WAVE, 6 if DSPLIT else 7))
        e("s_cbranch_scc1 L_b_nod7")
        if DSPLIT: dma_run(SRD_W, ab, 91, 4 * 2048, L_W0, 4, 32, 36, name="d")
        else: dma_run(SRD_W, ab, 91, 4 * 2048, L_W0, 8, 0, 8, name="d")
        lab("L_b_nod7")
        e("s_waitcnt vmcnt(0)")
        e("s_barrier")
        lab("L_b_nod")
    e("ds_write_b128 v%d, v[%d:%d]" % (V_ZA, V_ZQ, V_ZQ + 3))
    tr256_read(V_WF, V_TR)
    stamp(11)
    e("s_cmp_eq_u32 s96, 0")
    e("s_cbranch_scc0 L_b_split")
    lab("L_b_plain")
    top = poll_begin((V_G, 88, 3) if "4" not in NB else None)
    e("buffer_load_dwordx4 v[%d:%d], v%d, s[%d:%d], s87 offen sc1" % (V_L, V_L + 3, V_G, SRD_WS, SRD_WS + 3))
    e("buffer_load_dwordx4 v[%d:%d], v%d, s[%d:%d], s88 offen sc1" % (V_L + 4, V_L + 7, V_G, SRD_WS, SRD_WS + 3))
    poll_end(top, [chk32(V_L + 1), chk32(V_L + 3), chk32(V_L + 5), chk32(V_L + 7)], bell=(V_G, 88, 3))
    unpack(V_U, V_U + 1, V_L); unpack(V_U + 4, V_U + 5, V_L + 4)
    unpack(V_U + 2, V_U + 3, V_L + 2); unpack(V_U + 6, V_U + 7, V_L + 6)
    e("s_cbranch_execnz L_b_join")
    lab("L_b_split")
    top = poll_begin((V_X1 + 12, 81, 3) if "4" not in NB else None)
    for i, va in enumerate((V_VC, V_VD, V_X1 + 12, V_X1 + 13)):
        if i == 2: top2 = poll_mid(top)
        for h in range(2):
            r = V_L + 8 * i + 4 * h
            e("buffer_load_dwordx4 v[%d:%d], v%d, s[%d:%d], s81 offen offset:%d sc1" % (r, r + 3, va, SRD_WS, SRD_WS + 3, 16 * h))
    poll_end(top, [chk64(V_L + 4 * i + 2) for i in range(8)], last=top2, bell=(V_X1 + 12, 81, 3))
    for mat in range(2):
        for h in range(2):
            for k in range(2):
                e("v_add_f32 v%d, v%d, v%d" % (V_U + 4 * mat + 2 * h + k, V_L + 16 * mat + 4 * h + k, V_L + 16 * mat + 8 + 4 * h + k))
    for i in range(4):
        e("v_cvt_pk_bf16_f32 v%d, v%d, v%d" % (V_L + i, V_U + 2 * i, V_U + 2 * i + 1))
    for i in range(4):
        unpack(V_U + 2 * i, V_U + 2 * i + 1, V_L + i)
    for k in range(4): e("v_mul_f32 v%d, %s, v%d" % (V_U + k, f32(-LOG2E), V_U + k))
    for k in range(4): e("v_exp_f32 v%d, v%d" % (V_U + k, V_U + k))
    for k in range(4): e("v_add_f32 v%d, 1.0, v%d" % (V_U + k, V_U + k))
    for k in range(4): e("v_rcp_f32 v%d, v%d" % (V_U + k, V_U + k))
    e("s_nop 0")
    for i in range(2):
        e("v_cvt_pk_bf16_f32 v%d, v%d, v%d" % (V_L + i, V_U + 2 * i, V_U + 2 * i + 1))
    for i in range(2):
        unpack(V_U + 2 * i, V_U + 2 * i + 1, V_L + i)
    lab("L_b_join")
    stamp(12)
    for k in range(4): e("v_mul_f32 v%d, v%d, v%d" % (V_U + k, V_U + k, V_U + 4 + k))
    e("v_cvt_pk_bf16_f32 v%d, v%d, v%d" % (V_U + 16, V_U, V_U + 1))
    e("v_cvt_pk_bf16_f32 v%d, v%d, v%d" % (V_U + 17, V_U + 2, V_U + 3))
    e("ds_write_b64 v%d, v[%d:%d]" % (V_AWD, V_U + 16, V_U + 17))
    e("s_waitcnt lgkmcnt(0)")
    barrier(True)
    gemv8(V_ACC, V_WF, V_AF, V_AE, V_AO)
    publish_partial(89, False)
    stamp(13)
    noep = uid("noep")
    e("s_add_u32 s%d, s2, s%d" % (S_A, S_WAVE))
    e("s_cmp_lg_u32 s%d, 0" % S_A)
    e("s_cbranch_scc1 %s" % noep)
    e("s_mov_b64 exec, 1")
    e("v_mov_b32 v%d, s%d" % (V_T0, S_F))
    e("buffer_store_dword v%d, v%d, s[%d:%d], 0 offen sc1" % (V_T0, V_Z, SRD_WS, SRD_WS + 3))
    e("s_mov_b64 exec, -1")
    lab(noep)
    only_red("L_b_end2")
    reduce16(8, BELL5)
    stamp(14)
    residual_add(V_U + 4, V_H)
    store_g("buffer_store_dword v%d, v%d, s[%d:%d], s80 offen" % (V_U + 4, V_X1, SRD_O, SRD_O + 3), "0xffff", flags="")
    e("s_cmp_lg_u32 s%d, 0" % S_DRY)
    e("s_cbranch_scc1 L_b_real")
    stamp(15)
    lab("L_b_end")
    stamps_flush(V_U)
    e("s_endpgm")
    lab("L_b_end2")
    if "b" in CLEAN: clean("buffer_store_dwordx4 v[%d:%d], v%d, s[%d:%d], s84 offen" % (V_P, V_P + 3, V_PUB, SRD_WS, SRD_WS + 3))
    e("s_branch L_b_end")

def role_a():
    cmt("================= role A =================")
    KO = V_X1
    KA = V_X1 + 4
    QE, QO, QW, PW0, PW1, SW, SR, XA, EP = [V_X1 + 8 + i for i in range(9)]
    ab = lambda m: V_VB if (m & 2) else V_VA
    dma256_voff(V_VA, V_VB, 256, V_T0)
    e("s_lshl_b32 s%d, s%d, 22" % (S_E, S_XCD))
    e("s_lshr_b32 s%d, s%d, 2" % (S_C, S_SLOT))
    e("s_lshl_b32 s%d, s%d, 20" % (S_A, S_C))
    e("s_add_u32 s%d, s%d, s%d" % (S_E, S_E, S_A))
    e("s_and_b32 s%d, s%d, 3" % (S_D, S_SLOT))
    e("s_lshl_b32 s%d, s%d, 16" % (S_A, S_D))
    e("s_add_u32 s%d, s%d, s%d" % (S_E, S_E, S_A))
    e("s_add_u32 s%d, s%d, 0x%x" % (S_E, S_E, 3072 * 256))
    e("v_xor_b32 v%d, v2, v3" % V_T0)
    e("v_lshlrev_b32 v%d, 4, v%d" % (V_T0, V_T0))
    e("v_lshl_add_u32 v%d, v3, 8, v%d" % (KO, V_T0))
    for i in range(1, 4): e("v_xor_b32 v%d, %d, v%d" % (KO + i, 64 * i, KO))
    e("s_waitcnt lgkmcnt(0)")
    if STAMPS: e("s_mov_b32 s%d, s%d" % (S_ST, S_TM))
    srd(SRD_WS, S_WS, WS_SIZE)
    e("buffer_load_dword v%d, v%d, s[%d:%d], 0 offen sc1" % (EP, V_Z, SRD_WS, SRD_WS + 3))
    e("s_cmp_ge_u32 s%d, %d" % (S_WAVE, NLD))
    e("s_cbranch_scc1 L_a_noissue0")
    srd(SRD_X, S_K, 32 << 20)
    def thr(c):
        if AWIN <= c < ATHR: e("s_waitcnt vmcnt(%d)" % (AWIN - 1))
    if KFIRST:
        dma_run(SRD_X, lambda m: KO + (m & 3), S_E, 1024, L_W1, 16, 0, 16, pre=thr, name="k")
    else:
        srd(SRD_W, S_V, 32 << 20)
        dma_run(SRD_W, ab, S_E, 1024, L_W0, 16, 0, 16, pre=thr, name="v")
        dma_run(SRD_X, lambda m: KO + (m & 3), S_E, 1024, L_W1, 8, 0, 8, pre=lambda m: thr(16 + m), name="k")
        dma_run(SRD_X, lambda m: KO + (m & 3), S_E, 1024, L_W1, 8, 32, 40, name="k")
    lab("L_a_noissue0")
    if KFIRST: srd(SRD_W, S_V, 32 << 20)
    srd(SRD_O, S_DBG, 256)
    xcc_publish(V_T0, SRD_O)
    stamp(1)
    common_consts()
    e("v_lshlrev_b32 v%d, 4, v1" % V_G)
    tr256_addr(V_TR, V_T0)
    e("v_xor_b32 v%d, v2, v3" % V_T0)
    e("v_lshlrev_b32 v%d, 4, v%d" % (V_T0, V_T0))
    e("v_lshl_add_u32 v%d, v2, 8, v%d" % (V_T0, V_T0))
    e("s_lshl_b32 s%d, s%d, 13" % (S_A, S_WAVE))
    e("s_add_u32 s%d, s%d, %d" % (S_A, S_A, L_W1))
    e("v_add_u32 v%d, s%d, v%d" % (KA, S_A, V_T0))
    for i in range(1, 4): e("v_xor_b32 v%d, %d, v%d" % (KA + i, 64 * i, KA))
    act_rd_addr(QE, QO, V_T0, L_QB)
    act_rd_addr(V_AE, V_AO, V_T0, L_PB)
    e("v_bfe_u32 v%d, v1, 2, 3" % V_T2)
    sigma_of(V_T0, V_T2, V_T1)
    e("v_xor_b32 v%d, s%d, v%d" % (V_T0, S_WAVE, V_T0))
    e("v_lshlrev_b32 v%d, 4, v%d" % (V_T0, V_T0))
    e("v_lshrrev_b32 v%d, 2, v1" % V_T1)
    e("v_lshl_add_u32 v%d, v%d, 7, v%d" % (V_T0, V_T1, V_T0))
    e("v_and_b32 v%d, 3, v1" % V_T1)
    e("v_lshl_add_u32 v%d, v%d, 2, v%d" % (V_T0, V_T1, V_T0))
    e("v_add_u32 v%d, %d, v%d" % (QW, L_QB, V_T0))
    e("v_and_b32 v%d, 2, v3" % V_T0)
    e("s_and_b32 s%d, s%d, 1" % (S_A, S_WAVE))
    e("v_or_b32 v%d, s%d, v%d" % (V_T0, S_A, V_T0))
    e("v_and_b32 v%d, 7, v1" % V_T1)
    e("v_xor_b32 v%d, v%d, v%d" % (V_T0, V_T0, V_T1))
    e("v_lshlrev_b32 v%d, 4, v%d" % (V_T0, V_T0))
    e("v_lshrrev_b32 v%d, 1, v3" % V_T1)
    e("v_lshl_add_u32 v%d, v%d, 7, v%d" % (V_T0, V_T1, V_T0))
    e("v_and_b32 v%d, 1, v3" % V_T1)
    e("v_lshl_add_u32 v%d, v%d, 3, v%d" % (V_T0, V_T1, V_T0))
    e("s_lshl_b32 s%d, s%d, 9" % (S_A, S_WAVE))
    e("s_add_u32 s%d, s%d, %d" % (S_A, S_A, L_PB))
    e("v_add_u32 v%d, s%d, v%d" % (PW0, S_A, V_T0))
    e("v_xor_b32 v%d, 64, v%d" % (PW1, PW0))
    e("v_add_u32 v%d, 0x100, v%d" % (PW1, PW1))
    e("v_cndmask_b32 v%d, v%d, v%d, s[%d:%d]" % (PW0, PW0, PW1, S_HI8, S_HI8 + 1))
    e("v_and_b32 v%d, 7, v1" % V_T0)
    e("v_lshlrev_b32 v%d, 2, v%d" % (XA, V_T0))
    e("v_lshlrev_b32 v%d, 6, v%d" % (V_T0, V_T0))
    e("v_add_u32 v%d, %d, v%d" % (SR, L_MX, V_T0))
    e("s_lshl_b32 s%d, s%d, 2" % (S_A, S_WAVE))
    e("v_add_u32 v%d, s%d, v%d" % (SW, S_A, SR))
    e("s_lshl_b32 s%d, s%d, 3" % (S_A, S_C))
    e("s_add_u32 s%d, s%d, s%d" % (S_A, S_A, S_WAVE))
    e("s_lshl_b32 s%d, s%d, 15" % (S_A, S_A))
    e("s_lshl_b32 s%d, s%d, 10" % (S_B, S_XCD))
    e("s_add_u32 s%d, s%d, s%d" % (S_A, S_A, S_B))
    e("s_add_u32 s80, s%d, 0x%x" % (S_A, WS_H1))
    for i in range(1, 4): e("s_add_u32 s%d, s80, %d" % (80 + i, 8192 * i))
    e("s_lshl_b32 s%d, s%d, 3" % (S_A, S_C))
    e("s_add_u32 s%d, s%d, s%d" % (S_A, S_A, S_XCD))
    e("s_lshl_b32 s%d, s%d, 14" % (S_A, S_A))
    e("s_add_u32 s%d, s%d, 0x%x" % (S_A, S_A, WS_H2))
    e("s_lshl_b32 s%d, s%d, 10" % (S_B, S_D))
    e("s_add_u32 s87, s%d, s%d" % (S_A, S_B))
    for i in range(1, 4): e("s_add_u32 s%d, s87, %d" % (87 + i, 4096 * i))
    e("s_lshl_b32 s%d, s%d, 12" % (S_B, S_D))
    e("s_add_u32 s%d, s%d, s%d" % (S_A, S_A, S_B))
    e("s_lshl_b32 s%d, s%d, 6" % (S_B, S_WAVE))
    e("s_add_u32 s84, s%d, s%d" % (S_A, S_B))
    e("v_and_b32 v%d, 7, v1" % V_T0)
    e("v_lshlrev_b32 v%d, 9, v%d" % (V_PUB, V_T0))
    e("v_lshl_add_u32 v%d, v3, 4, v%d" % (V_PUB, V_PUB))
    e("s_lshl_b32 s%d, s%d, 3" % (S_A, S_SLOT))
    e("s_add_u32 s%d, s%d, s%d" % (S_A, S_A, S_XCD))
    e("s_lshl_b32 s%d, s%d, 10" % (S_A, S_A))
    e("s_add_u32 s91, s%d, 0x%x" % (S_A, WS_H2G))
    e("s_mov_b32 s96, %s" % f32(LOG2E))
    e("s_cmp_lt_u32 s%d, %d" % (S_WAVE, NLD))
    e("s_cbranch_scc1 L_a_real")
    if not NOTOUCH:
        e("s_cmp_lg_u32 s%d, 4" % S_WAVE)
        e("s_cbranch_scc1 L_a_notouch")
        e("v_and_b32 v%d, 7, v1" % V_T0)
        e("v_lshlrev_b32 v%d, 7, v%d" % (V_T0, V_T0))
        e("v_bfe_u32 v%d, v1, 3, 2" % V_T1)
        e("v_lshl_add_u32 v%d, v%d, 12, v%d" % (V_T0, V_T1, V_T0))
        touch([(V_T0, 87, 0), (V_Z, 80, 0), (V_Z, 91, 0)])
        if TLBT:
            e("v_min_u32 v%d, 27, v1" % V_T1)
            e("v_lshlrev_b32 v%d, 18, v%d" % (V_T1, V_T1))
            e("global_load_dword v%d, v%d, s[%d:%d]" % (V_X1 + 23, V_T1, S_WG, S_WG + 1))
            e("global_load_dword v%d, v%d, s[%d:%d]" % (V_X1 + 23, V_T1, S_WU, S_WU + 1))
            e("s_mov_b32 s%d, 0x%x" % (S_A, WS_H3B))
            e("s_mov_b32 s%d, 0x%x" % (S_B, WS_H4P))
            e("buffer_load_dword v%d, v%d, s[%d:%d], s%d offen offset:64 sc1" % (V_X1 + 23, V_Z, SRD_WS, SRD_WS + 3, S_B))
        lab("L_a_notouch")
    if NODRY: e("s_branch L_a_real0")
    set_dry()
    e("s_branch L_a_att")
    def gu_scalar_setup():
        GO = V_GO
        e("s_lshr_b32 s%d, s%d, 7" % (S_D, S_WG))
        e("s_mul_i32 s%d, s%d, 7" % (S_A, S_XCD))
        e("s_add_u32 s%d, s%d, s%d" % (S_D, S_D, S_A))
        e("s_sub_u32 s%d, 3, s%d" % (S_D, S_D))
        e("s_and_b32 s%d, s%d, 7" % (S_D, S_D))
        e("s_mov_b32 s101, 0")
        e("s_cmp_ge_u32 s%d, 7" % S_SLOT)
        e("s_cselect_b32 s%d, 7, 0" % S_B)
        e("s_cselect_b32 s100, 1, 0")
        e("s_sub_u32 s%d, s%d, s%d" % (S_C, S_SLOT, S_B))
        e("s_cmp_eq_u32 s%d, s%d" % (S_C, S_D))
        e("s_cselect_b32 s99, 1, 0")
        e("s_cmp_lt_u32 s%d, 14" % S_SLOT)
        e("s_cbranch_scc1 L_a_nohelp")
        e("s_cmp_eq_u32 s%d, 7" % S_D)
        e("s_cselect_b32 s101, 1, 0")
        e("s_mov_b32 s%d, s%d" % (S_C, S_D))
        e("s_sub_u32 s100, s%d, 14" % S_SLOT)
        e("s_mov_b32 s99, 2")
        lab("L_a_nohelp")
        e("s_cmp_lg_u32 s100, 0")
        e("s_cselect_b32 s%d, s%d, s%d" % (SRD_W, S_WU, S_WG))
        e("s_cselect_b32 s%d, s%d, s%d" % (S_A, S_WU + 1, S_WG + 1))
        e("s_cselect_b32 s85, 0x%x, 0" % (WS_H4U - WS_H4S))
        e("s_add_u32 s85, s85, 0x%x" % WS_H4S)
        e("s_and_b32 s%d, s%d, 0xffff" % (SRD_W + 1, S_A))
        e("s_cmp_lg_u32 s101, 0")
        e("s_cselect_b32 s%d, 0, 0x%x" % (SRD_W + 2, 1024 * 7168))
        e("s_mov_b32 s%d, 0x20000" % (SRD_W + 3))
        e("s_mul_i32 s%d, s%d, 7" % (S_A, S_XCD))
        e("s_add_u32 s%d, s%d, s%d" % (S_C, S_C, S_A))
        e("v_lshrrev_b32 v%d, 3, v1" % V_T0)
        e("v_bfe_u32 v%d, v1, 4, 1" % V_T1)
        e("v_and_b32 v%d, 7, v1" % V_T2)
        e("v_xor_b32 v%d, v%d, v%d" % (V_T1, V_T1, V_T2))
        e("v_lshlrev_b32 v%d, 4, v%d" % (V_T1, V_T1))
        e("v_mul_u32_u24 v%d, 7168, v%d" % (GO, V_T0))
        e("v_add_u32 v%d, v%d, v%d" % (GO, GO, V_T1))
        for i in range(1, 4): e("v_xor_b32 v%d, %d, v%d" % (GO + i, 32 * i, GO))
        e("s_and_b32 s%d, s%d, 1" % (S_A, S_WAVE))
        e("s_lshl_b32 s%d, s%d, 6" % (S_A, S_A))
        e("v_xor_b32 v%d, s%d, v%d" % (GO + 4, S_A, GO))
        e("v_xor_b32 v%d, 32, v%d" % (GO + 5, GO + 4))
        NE = 8 * GE
        e("s_cmp_eq_u32 s99, 2")
        e("s_cselect_b32 s%d, 64, 0" % S_B)
        e("s_mul_i32 s%d, s%d, %d" % (S_A, S_WAVE, GE))
        e("s_add_u32 s%d, s%d, s%d" % (S_A, S_A, S_B))
        e("s_lshl_b32 s9, s%d, 10" % S_A)
        e("s_mul_i32 s8, s%d, %d" % (S_A, 8 * 7168))
        e("s_lshl_b32 s%d, s%d, 7" % (S_E, S_C))
        e("s_add_u32 s8, s8, s%d" % S_E)
        e("s_cmp_eq_u32 s99, 0")
        e("s_cselect_b32 s%d, %d, %d" % (S_A, (128 - NE) // 4, (64 - NE) // 4))
        e("s_cselect_b32 s6, %d, %d" % ((128 - NE) // 32, (64 - NE) // 32))
        e("s_mul_i32 s%d, s%d, s%d" % (S_A, S_A, S_WAVE))
        e("s_add_u32 s%d, s%d, s%d" % (S_A, S_A, S_B))
        e("s_add_u32 s%d, s%d, %d" % (S_A, S_A, NE))
        e("s_lshl_b32 s5, s%d, 10" % S_A)
        e("s_mul_i32 s4, s%d, %d" % (S_A, 8 * 7168))
        e("s_add_u32 s4, s4, s%d" % S_E)
    def gu_early(ms):
        if not ms or "gu" in SKIP: return
        l = uid("nge")
        e("s_cbranch_execz %s" % l)
        for m in ms:
            e("s_mov_b32 m0, s9")
            e("s_add_u32 s9, s9, 1024")
            e("buffer_load_dwordx4 v%d, s[%d:%d], s8 offen nt lds" % (V_GO + 4 + (m & 1) if GE == 4 else V_GO + ((m & 1) | (((m >> 2) & 1) << 1)), SRD_W, SRD_W + 3))
            e("s_add_u32 s8, s8, %d" % (8 * 7168))
        lab(l)
    def h1_loads():
        for k in range(4):
            e("buffer_load_dwordx4 v[%d:%d], v%d, s[%d:%d], s%d offen sc1" % (V_L + 4 * k, V_L + 4 * k + 3, V_G, SRD_WS, SRD_WS + 3, 80 + k))
        xcc_load(V_L + 16, XA, SRD_O)
    def trig1(w):
        notr = uid("notr")
        e("s_cmp_lg_u32 s%d, %d" % (S_WAVE, w))
        e("s_cbranch_scc1 %s" % notr)
        e("s_lshl_b32 s%d, s%d, 3" % (S_A, S_SLOT))
        e("s_or_b32 s%d, s%d, s%d" % (S_A, S_A, S_XCD))
        e("s_lshl_b32 s%d, s%d, 7" % (S_A, S_A))
        e("s_add_u32 s%d, s%d, 0x%x" % (S_A, S_A, WS_TRIG))
        e("s_mov_b64 exec, 1")
        e("buffer_store_dwordx2 v[%d:%d], v%d, s[%d:%d], s%d offen sc1" % (V_T2 + 1, V_T2 + 2, V_Z, SRD_WS, SRD_WS + 3, S_A) if False else
          "buffer_store_dwordx2 v[%d:%d], v%d, s[%d:%d], s%d offen sc1" % (V_X1 + 18, V_X1 + 19, V_Z, SRD_WS, SRD_WS + 3, S_A))
        full()
        lab(notr)
    if KFIRST:
        lab("L_a_real0")
        e("s_waitcnt vmcnt(0)")
        e("s_branch L_a_sync")
        lab("L_a_real")
        dma_run(SRD_W, ab, S_E, 1024, L_W0, 16, 0, VP, pre=lambda m: thr(16 + m), name="v")
        e("s_waitcnt vmcnt(%d)" % VP)
        lab("L_a_sync")
        set_real()
        make_tag(EP)
        e("v_mov_b32 v%d, s%d" % (V_X1 + 18, S_T))
        e("v_mov_b32 v%d, s%d" % (V_X1 + 19, S_T))
        e("s_barrier")
        stamp(2)
        lab("L_a_att")
        e("s_cbranch_execz L_a_h1k")
        h1_loads()
        e("s_cmp_ge_u32 s%d, 4" % S_WAVE)
        e("s_cbranch_scc1 L_a_h1k")
        if VP < 16:
            dma_run(SRD_W, ab, S_E, 1024, L_W0, 16, VP, 16, name="v")
        lab("L_a_h1k")
    else:
        lab("L_a_real0")
        e("s_waitcnt vmcnt(0)")
        lab("L_a_real")
        set_real()
        e("s_waitcnt vmcnt(%d)" % (TRIGV * 4 // NLD))
        make_tag(EP)
        gu_scalar_setup()
        notr = uid("notr")
        e("s_cmp_lg_u32 s%d, 0" % S_WAVE)
        e("s_cbranch_scc1 %s" % notr)
        e("s_lshl_b32 s%d, s%d, 3" % (S_A, S_SLOT))
        e("s_or_b32 s%d, s%d, s%d" % (S_A, S_A, S_XCD))
        e("s_lshl_b32 s%d, s%d, 7" % (S_A, S_A))
        e("s_add_u32 s%d, s%d, 0x%x" % (S_A, S_A, WS_TRIG))
        e("s_mov_b64 exec, 1")
        e("buffer_store_dwordx2 v[%d:%d], v%d, s[%d:%d], s%d offen sc1" % (V_P + 2, V_P + 3, V_Z, SRD_WS, SRD_WS + 3, S_A))
        e("s_mov_b64 exec, -1")
        lab(notr)
        e("s_waitcnt vmcnt(%d)" % (64 // NLD))
        e("s_barrier")
        stamp(2)
        tr256_read(V_WF, V_TR)
        lab("L_a_att")
        e("s_cbranch_execz L_a_h1k")
        if H1LATE:
            e("s_waitcnt vmcnt(%d)" % H1V)
            e("s_barrier")
            h1_loads()
            e("s_waitcnt vmcnt(5)")
            e("s_barrier")
        else:
            h1_loads()
            e("s_waitcnt vmcnt(5)")
            e("s_barrier")
        lab("L_a_h1k")
        stamp(3)
    for sg in range(4):
        for t in range(2):
            r = V_KF + 16 * t + 4 * sg
            e("ds_read_b128 v[%d:%d], v%d offset:%d" % (r, r + 3, KA + sg, t * 4096))
    e("s_cbranch_execz L_a_h1_nl")
    if KFIRST:
        e("s_cmp_ge_u32 s%d, 4" % S_WAVE)
        e("s_cbranch_scc1 L_a_h1w")
        e("s_waitcnt vmcnt(%d)" % (16 - VP))
        e("s_branch L_a_h1_nl")
    else:
        e("s_branch L_a_h1w")
    lab("L_a_h1")
    h1_loads()
    lab("L_a_h1w")
    poll_end("L_a_h1", [chk64(V_L + 4 * k + 2) for k in range(4)] + xcc_checks(V_L + 16, V_T0))
    stamp(4)
    e("v_pk_add_f32 v[%d:%d], v[%d:%d], v[%d:%d]" % (V_L, V_L + 1, V_L, V_L + 1, V_L + 4, V_L + 5))
    e("v_pk_add_f32 v[%d:%d], v[%d:%d], v[%d:%d]" % (V_L + 8, V_L + 9, V_L + 8, V_L + 9, V_L + 12, V_L + 13))
    e("v_pk_add_f32 v[%d:%d], v[%d:%d], v[%d:%d]" % (V_L, V_L + 1, V_L, V_L + 1, V_L + 8, V_L + 9))
    e("v_cvt_pk_bf16_f32 v%d, v%d, v%d" % (V_T0, V_L, V_L + 1))
    e("ds_write_b32 v%d, v%d" % (QW, V_T0))
    xcc_decide(V_L + 16)
    e("s_waitcnt lgkmcnt(0)")
    barrier(True)
    for sg in range(4):
        e("ds_read_b128 v[%d:%d], v%d offset:%d" % (V_AF + 4 * sg, V_AF + 4 * sg + 3, QO if (sg & 1) else QE, sg * 512))
    S0, S1 = V_U, V_U + 4
    gu_early(range(0, GE1))
    for sg in range(4):
        e("s_waitcnt lgkmcnt(%d)" % (3 - sg))
        for t, acc in ((0, S0), (1, S1)):
            e(mfma(acc, V_KF + 16 * t + 4 * sg, V_AF + 4 * sg, None if sg == 0 else acc))
    gu_early(range(GE1, GE))
    e("s_nop 7")
    X = V_U + 8
    W = V_U + 16
    for k in range(4):
        e("v_cndmask_b32 v%d, v%d, v%d, s[%d:%d]" % (X + k, S0 + k, S1 + k, S_HI8, S_HI8 + 1))
    for rnd in range(2):
        for i2 in range(2):
            e("v_cvt_pk_bf16_f32 v%d, v%d, v%d" % (W + i2, X + 2 * i2, X + 2 * i2 + 1))
        for i2 in range(2):
            unpack(X + 2 * i2, X + 2 * i2 + 1, W + i2)
        if rnd == 0:
            for k in range(4):
                e("v_mul_f32 v%d, %s, v%d" % (X + k, f32(128 ** -0.5), X + k))
    e("v_max3_f32 v%d, v%d, v%d, v%d" % (V_M, X, X + 1, X + 2))
    e("v_max_f32 v%d, v%d, v%d" % (V_M, V_M, X + 3))
    e("s_nop 1")
    e(dpp_add(V_M, V_M, "row_ror:8", "v_max_f32"))
    emit(xrow_ops(V_M, V_T0, "v_max_f32"))
    e("v_mul_f32 v%d, s96, v%d" % (V_M, V_M))
    for k in range(4):
        e("v_fma_f32 v%d, v%d, s96, -v%d" % (X + k, X + k, V_M))
    for k in range(4):
        e("v_exp_f32 v%d, v%d" % (X + k, X + k))
    e("s_nop 0")
    e("v_cvt_pk_bf16_f32 v%d, v%d, v%d" % (W, X, X + 1))
    e("v_cvt_pk_bf16_f32 v%d, v%d, v%d" % (W + 1, X + 2, X + 3))
    e("v_add_f32 v%d, v%d, v%d" % (V_SUM, X, X + 1))
    e("v_add_f32 v%d, v%d, v%d" % (V_T1, X + 2, X + 3))
    e("ds_write_b64 v%d, v[%d:%d]" % (PW0, W, W + 1))
    e("v_add_f32 v%d, v%d, v%d" % (V_SUM, V_SUM, V_T1))
    e("s_nop 1")
    e(dpp_add(V_SUM, V_SUM, "row_ror:8"))
    emit(xrow_ops(V_SUM, V_T0))
    e("ds_write2_b32 v%d, v%d, v%d offset0:0 offset1:8" % (SW, V_M, V_SUM))
    if KFIRST:
        e("s_cbranch_execz L_a_nov")
        trig1(4)
        e("s_waitcnt vmcnt(0) lgkmcnt(0)")
        e("s_barrier")
        lab("L_a_nov")
    else:
        e("s_waitcnt lgkmcnt(0)")
        barrier(True)
    stamp(5)
    MS, LS = V_L, V_L + 8
    for i2 in range(4):
        e("ds_read_b128 v[%d:%d], v%d offset:%d" % (V_L + 4 * i2, V_L + 4 * i2 + 3, SR, 16 * i2))
    def pv_reads(m):
        if KFIRST:
            for h in range(2):
                e("ds_read_b64_tr_b16 v[%d:%d], v%d offset:%d" % (V_WF + 4 * m + 2 * h, V_WF + 4 * m + 2 * h + 1, V_TR, m * 8192 + h * 1024))
        e("ds_read_b128 v[%d:%d], v%d offset:%d" % (V_AF + 4 * m, V_AF + 4 * m + 3, V_AO if (m & 1) else V_AE, m * 512))
    for m in range(4 if KFIRST else 8): pv_reads(m)
    AC = V_U
    side = ["v_max3_f32 v%d, v%d, v%d, v%d" % (V_M, MS, MS + 1, MS + 2),
            "v_max3_f32 v%d, v%d, v%d, v%d" % (V_T0, MS + 3, MS + 4, MS + 5),
            "v_max3_f32 v%d, v%d, v%d, v%d" % (V_M, V_M, MS + 6, MS + 7),
            "v_max_f32 v%d, v%d, v%d" % (V_M, V_M, V_T0)]
    side += ["v_sub_f32 v%d, v%d, v%d" % (MS + i2, MS + i2, V_M) for i2 in range(8)]
    side += ["v_exp_f32 v%d, v%d" % (MS + i2, MS + i2) for i2 in range(8)]
    side += ["v_mul_f32 v%d, v%d, v%d" % (V_SUM, LS, MS), "v_mul_f32 v%d, v%d, v%d" % (V_T1, LS + 1, MS + 1)]
    for i2 in range(2, 8, 2):
        side += ["v_fmac_f32 v%d, v%d, v%d" % (V_SUM, LS + i2, MS + i2), "v_fmac_f32 v%d, v%d, v%d" % (V_T1, LS + i2 + 1, MS + i2 + 1)]
    side += ["v_add_f32 v%d, v%d, v%d" % (V_SUM, V_SUM, V_T1),
             "v_rcp_f32 v%d, v%d" % (V_RS, V_SUM), "v_log_f32 v%d, v%d" % (V_T1, V_SUM), "s_nop 0",
             "v_add_f32 v%d, v%d, v%d" % (V_P + 2, V_T1, V_M)]
    per = (len(side) + 7) // 8
    for m in range(8):
        e("s_waitcnt lgkmcnt(%d)" % ((9 if m < 5 else 3 * (7 - m)) if KFIRST else 7 - m))
        e(mfma(AC + 4 * m, V_WF + 4 * m, V_AF + 4 * m, None))
        if KFIRST and m < 4: pv_reads(m + 4)
        emit(side[m * per:(m + 1) * per])
    def bsel(r):
        return (r & ~1, "op_sel:[0,%d,0] op_sel_hi:[1,%d,1]" % (r & 1, r & 1), "op_sel:[0,%d] op_sel_hi:[1,%d]" % (r & 1, r & 1))
    for m in range(8):
        fb, sel, sel2 = bsel(MS + m)
        for h in range(2):
            a = V_ACC + 2 * h
            if m == 0:
                e("v_pk_mul_f32 v[%d:%d], v[%d:%d], v[%d:%d] %s" % (a, a + 1, AC + 2 * h, AC + 2 * h + 1, fb, fb + 1, sel2))
            else:
                e("v_pk_fma_f32 v[%d:%d], v[%d:%d], v[%d:%d], v[%d:%d] %s" % (a, a + 1, AC + 4 * m + 2 * h, AC + 4 * m + 2 * h + 1, fb, fb + 1, a, a + 1, sel))
    fb, sel, sel2 = bsel(V_RS)
    for h in range(2):
        a = V_ACC + 2 * h
        e("v_pk_mul_f32 v[%d:%d], v[%d:%d], v[%d:%d] %s" % (a, a + 1, a, a + 1, fb, fb + 1, sel2))
    e("v_cvt_pk_bf16_f32 v%d, v%d, v%d" % (V_P, V_ACC, V_ACC + 1))
    e("v_cvt_pk_bf16_f32 v%d, v%d, v%d" % (V_P + 1, V_ACC + 2, V_ACC + 3))
    store_l("buffer_store_dwordx4 v[%d:%d], v%d, s[%d:%d], s84 offen" % (V_P, V_P + 3, V_PUB, SRD_WS, SRD_WS + 3), "lo8")
    stamp(6)
    e("s_sub_u32 s%d, s%d, 1" % (S_A, S_WAVE))
    e("s_cmp_lt_u32 s%d, 3" % S_A)
    e("s_cbranch_scc1 L_a_nocomb")
    e("s_cmp_lg_u32 s%d, 0" % S_DRY)
    e("s_cbranch_scc1 L_a_comb")
    e("s_cmp_lg_u32 s%d, 0" % S_WAVE)
    e("s_cbranch_scc1 L_a_nocomb")
    lab("L_a_comb")
    top = poll_begin()
    for s in range(4):
        e("buffer_load_dwordx4 v[%d:%d], v%d, s[%d:%d], s%d offen sc1" % (V_L + 4 * s, V_L + 4 * s + 3, V_G, SRD_WS, SRD_WS + 3, 87 + s))
    poll_end(top, [chk32(V_L + 4 * s + 3) for s in range(4)])
    Ls = [V_L + 4 * s + 2 for s in range(4)]
    e("v_max3_f32 v%d, v%d, v%d, v%d" % (V_T0, Ls[0], Ls[1], Ls[2]))
    e("v_max_f32 v%d, v%d, v%d" % (V_T0, V_T0, Ls[3]))
    for s in range(4): e("v_sub_f32 v%d, v%d, v%d" % (Ls[s], Ls[s], V_T0))
    for s in range(4): e("v_exp_f32 v%d, v%d" % (Ls[s], Ls[s]))
    for s in range(4):
        unpack(V_U + 4 * s, V_U + 4 * s + 1, V_L + 4 * s)
        unpack(V_U + 4 * s + 2, V_U + 4 * s + 3, V_L + 4 * s + 1)
    e("v_add_f32 v%d, v%d, v%d" % (V_T0, Ls[0], Ls[1]))
    e("v_add_f32 v%d, v%d, v%d" % (V_T1, Ls[2], Ls[3]))
    e("v_add_f32 v%d, v%d, v%d" % (V_T0, V_T0, V_T1))
    e("v_rcp_f32 v%d, v%d" % (V_T0, V_T0))
    for k in range(4):
        e("v_mul_f32 v%d, v%d, v%d" % (V_U + k, V_U + k, Ls[0]))
    for s in range(1, 4):
        for k in range(4):
            e("v_fmac_f32 v%d, v%d, v%d" % (V_U + k, V_U + 4 * s + k, Ls[s]))
    for k in range(4):
        e("v_mul_f32 v%d, v%d, v%d" % (V_U + k, V_U + k, V_T0))
    e("v_cvt_pk_bf16_f32 v%d, v%d, v%d" % (V_U + 16, V_U, V_U + 1))
    e("v_cvt_pk_bf16_f32 v%d, v%d, v%d" % (V_U + 17, V_U + 2, V_U + 3))
    e("v_mov_b32 v%d, s%d" % (V_U + 18, S_T))
    e("v_mov_b32 v%d, s%d" % (V_U + 19, S_T))
    store_g("buffer_store_dwordx4 v[%d:%d], v%d, s[%d:%d], s91 offen" % (V_U + 16, V_U + 19, V_G, SRD_WS, SRD_WS + 3))
    stamp(13)
    lab("L_a_nocomb")
    e("s_cmp_lg_u32 s%d, 0" % S_DRY)
    e("s_cbranch_scc1 L_a_real0")
    e("s_cmp_lg_u32 s101, 0")
    e("s_cbranch_scc1 L_a_idle")
    e("s_mov_b32 s96, s100")
    e("s_mov_b32 s%d, s4" % S_A)
    e("s_mov_b32 s%d, s5" % S_B)
    e("s_mov_b32 s%d, s6" % S_D)
    e("s_barrier")
    e("s_cmp_ge_u32 s%d, %d" % (S_WAVE, 0 if "gu" in SKIP else 4))
    e("s_cbranch_scc1 L_a_gusetup")
    e("s_cmp_eq_u32 s%d, 0" % S_D)
    e("s_cbranch_scc1 L_a_gusetup")
    lab("L_a_guld")
    for m in range(8):
        e("s_mov_b32 m0, s%d" % S_B)
        e("s_add_u32 s%d, s%d, 1024" % (S_B, S_B))
        var = (m & 1) | (((m >> 2) & 1) << 1)
        e("buffer_load_dwordx4 v%d, s[%d:%d], s%d offen nt lds" % (V_GO + var, SRD_W, SRD_W + 3, S_A))
        e("s_add_u32 s%d, s%d, %d" % (S_A, S_A, 8 * 7168))
    e("s_sub_u32 s%d, s%d, 1" % (S_D, S_D))
    e("s_cmp_lg_u32 s%d, 0" % S_D)
    e("s_cbranch_scc1 L_a_guld")
    stamp(7)
    lab("L_a_gusetup")
    e("v_bfe_u32 v%d, v1, 3, 1" % V_T0)
    e("v_and_b32 v%d, 1, v3" % V_T1)
    e("v_lshl_or_b32 v%d, v%d, 1, v%d" % (V_T0, V_T1, V_T0))
    e("v_bfe_u32 v%d, v1, 1, 1" % V_T1)
    e("v_lshl_or_b32 v%d, v%d, 2, v%d" % (V_T0, V_T1, V_T0))
    e("v_xor_b32 v%d, s%d, v%d" % (V_T0, S_WAVE, V_T0))
    e("v_lshlrev_b32 v%d, 4, v%d" % (V_T0, V_T0))
    e("v_bfe_u32 v%d, v1, 2, 2" % V_T2)
    e("v_lshl_add_u32 v%d, v3, 3, v%d" % (V_T2, V_T2))
    e("v_lshl_add_u32 v%d, v%d, 5, v%d" % (V_T2, V_T1, V_T2))
    e("v_lshl_add_u32 v%d, v%d, 7, v%d" % (V_T0, V_T2, V_T0))
    e("v_and_b32 v%d, 1, v1" % V_T1)
    e("v_lshl_add_u32 v%d, v%d, 3, v%d" % (V_TR, V_T1, V_T0))
    e("v_add_u32 v%d, 0x10000, v%d" % (V_VA, V_TR))
    e("v_lshrrev_b32 v%d, 3, v2" % V_T0)
    e("v_lshl_or_b32 v%d, v3, 1, v%d" % (V_T1, V_T0))
    e("v_and_b32 v%d, 7, v1" % V_T2)
    e("v_xor_b32 v%d, v%d, v%d" % (V_T1, V_T1, V_T2))
    e("v_lshlrev_b32 v%d, 4, v%d" % (V_T1, V_T1))
    e("v_lshl_add_u32 v%d, v%d, 2, v3" % (V_T0, V_T0))
    e("v_lshl_add_u32 v%d, v%d, 7, v%d" % (V_T1, V_T0, V_T1))
    e("v_add_u32 v%d, %d, v%d" % (V_AE, L_ACT, V_T1))
    e("v_lshlrev_b32 v%d, 3, v%d" % (V_T2, V_T2))
    e("v_add_u32 v%d, %d, v%d" % (V_AO, L_MX, V_T2))
    e("s_lshl_b32 s%d, s%d, 3" % (S_A, S_WAVE))
    e("s_add_u32 s%d, s%d, %d" % (S_A, S_A, L_MX))
    e("v_mov_b32 v%d, s%d" % (V_RED, S_A))
    pos_write_addr(V_AW, L_ACT)
    e("s_lshl_b32 s%d, s%d, 12" % (S_A, S_WAVE))
    e("s_add_u32 s86, s%d, 0x%x" % (S_A, WS_H3B))
    e("s_lshl_b32 s%d, s%d, 11" % (S_A, S_C))
    e("s_lshl_b32 s%d, s%d, 8" % (S_B, S_WAVE))
    e("s_add_u32 s%d, s%d, s%d" % (S_A, S_A, S_B))
    e("s_add_u32 s85, s85, s%d" % S_A)
    e("v_and_b32 v%d, 1, v3" % V_T0)
    e("v_lshlrev_b32 v%d, 7, v%d" % (V_PUB, V_T0))
    e("v_and_b32 v%d, 7, v1" % V_T0)
    e("v_lshl_add_u32 v%d, v%d, 4, v%d" % (V_PUB, V_T0, V_PUB))
    e("v_lshrrev_b32 v%d, 1, v3" % V_T0)
    e("v_lshl_add_u32 v%d, v%d, 3, v%d" % (V_PUB, V_T0, V_PUB))
    e("s_lshl_b32 s%d, s96, 1" % S_A)
    e("s_add_u32 s%d, s%d, s99" % (S_A, S_A))
    e("s_sub_u32 s%d, s%d, 1" % (S_A, S_A))
    e("s_lshl_b32 s%d, s%d, 3" % (S_A, S_A))
    e("s_add_u32 s%d, s%d, s%d" % (S_A, S_A, S_XCD))
    e("s_lshl_b32 s%d, s%d, 12" % (S_A, S_A))
    e("s_lshl_b32 s%d, s%d, 9" % (S_B, S_WAVE))
    e("s_add_u32 s%d, s%d, s%d" % (S_A, S_A, S_B))
    e("s_add_u32 s84, s%d, 0x%x" % (S_A, WS_H4P))
    e("v_lshlrev_b32 v%d, 1, v%d" % (V_H, V_PUB))
    e("v_mov_b32 v%d, s%d" % (V_ACC + 6, S_T))
    e("v_mov_b32 v%d, s%d" % (V_ACC + 7, S_T))
    ONE = V_WF
    CS = V_WF + 4
    for k in range(4): e("v_mov_b32 v%d, 0x3f803f80" % (ONE + k))
    e("v_mov_b32 v%d, s%d" % (V_P + 1, S_T))
    e("s_mov_b64 s[%d:%d], s[%d:%d]" % (80, 81, S_ML, S_ML + 1))
    e("s_mov_b64 s[%d:%d], s[%d:%d]" % (82, 83, S_MG, S_MG + 1))
    e("s_cmp_lt_u32 s%d, 4" % S_WAVE)
    e("s_cbranch_scc1 L_a_gureal")
    if NODRY: e("s_branch L_a_gureal")
    set_dry()
    e("s_branch L_a_gutop")
    lab("L_a_gureal")
    set_real()
    e("s_mov_b64 s[%d:%d], s[%d:%d]" % (S_ML, S_ML + 1, 80, 81))
    e("s_mov_b64 s[%d:%d], s[%d:%d]" % (S_MG, S_MG + 1, 82, 83))
    e("s_waitcnt vmcnt(%d)" % T2V)
    if TRIG2: trig2()
    e("s_waitcnt vmcnt(0)")
    e("s_barrier")
    lab("L_a_gutop")
    GF = V_KF
    for m in range(16):
        for h in range(2):
            e("ds_read_b64_tr_b16 v[%d:%d], v%d offset:%d" % (GF + 4 * m + 2 * h, GF + 4 * m + 2 * h + 1, V_TR if m < 8 else V_VA, (m & 7) * 8192 + h * 512))
    e("s_waitcnt lgkmcnt(0)")
    e("s_cmp_lg_u32 s99, 1")
    e("s_cbranch_scc1 L_a_z1")
    for k in range(32, 64): e("v_mov_b32 v%d, 0" % (GF + k))
    lab("L_a_z1")
    e("s_cmp_lg_u32 s99, 2")
    e("s_cbranch_scc1 L_a_z2")
    for k in range(0, 32): e("v_mov_b32 v%d, 0" % (GF + k))
    lab("L_a_z2")
    e("s_nop 1")
    for m in range(16):
        e(mfma(CS, GF + 4 * m, ONE, None if m == 0 else CS))
    e("s_nop 7")
    e("v_permlane32_swap_b32 v%d, v%d" % (CS, CS + 2))
    e("v_permlane32_swap_b32 v%d, v%d" % (CS + 1, CS + 3))
    e("s_nop 1")
    e("v_add_f32_dpp v%d, v%d, v%d row_shl:8 row_mask:0xf bank_mask:0xf" % (CS, CS + 2, CS))
    e("v_add_f32_dpp v%d, v%d, v%d row_shl:8 row_mask:0xf bank_mask:0xf" % (CS + 1, CS + 3, CS + 1))
    stamp(8)
    top = poll_begin((V_G, 86, 3) if "3" not in NB else None)
    for n in range(4):
        e("buffer_load_dwordx4 v[%d:%d], v%d, s[%d:%d], s86 offen offset:%d sc1" % (V_L + 4 * n, V_L + 4 * n + 3, V_G, SRD_WS, SRD_WS + 3, n * 1024))
    poll_end(top, [chk64(V_L + 4 * n + 2) for n in range(4)], bell=(V_G, 86, 3))
    for n in range(4):
        e("ds_write_b64 v%d, v[%d:%d] offset:%d" % (V_AW, V_L + 4 * n, V_L + 4 * n + 1, n * 4096))
    stamp(9)
    side = ln_stats_dot_ops([V_L + 4 * (i >> 1) + (i & 1) for i in range(8)], ONE, V_SUM, V_SQ, V_T0, V_M, V_RS)
    emit(side[:16])
    side = side[16:]
    e("s_waitcnt lgkmcnt(0)")
    barrier(True)
    stamp(10)
    for m in range(16):
        e("ds_read_b128 v[%d:%d], v%d offset:%d" % (V_AF + 4 * m, V_AF + 4 * m + 3, V_AE, m * 1024))
    nfirst = 22
    emit(side[:nfirst])
    rest = side[nfirst:]
    mm = [0]
    def next_mfma():
        m = mm[0]; mm[0] += 1
        if m % 2 == 0: e("s_waitcnt lgkmcnt(%d)" % (14 - m))
        e(mfma(V_ACC, GF + 4 * m, V_AF + 4 * m, None if m == 0 else V_ACC))
        return 2 if m % 2 == 0 else 1
    cnt = 0
    for op in rest:
        if op.startswith("s_nop") and mm[0] < 10:
            need = int(op.split()[1]) + 1
            while need > 0 and mm[0] < 10: need -= next_mfma()
            if need > 0: e("s_nop %d" % (need - 1))
            cnt = 0
        else:
            e(op); cnt += 1
            if cnt == 2 and mm[0] < 10: next_mfma(); cnt = 0
    e("ds_write_b64 v%d, v[%d:%d]" % (V_RED, V_M, V_RS))
    while mm[0] < 10: next_mfma() if False else None; break
    while mm[0] < 12:
        m = mm[0]; mm[0] += 1
        if m == 10 or m % 2 == 0: e("s_waitcnt lgkmcnt(%d)" % max(0, min(15, 15 - m)))
        e(mfma(V_ACC, GF + 4 * m, V_AF + 4 * m, None if m == 0 else V_ACC))
    e("s_waitcnt lgkmcnt(0)")
    barrier(True)
    e("ds_read_b64 v[%d:%d], v%d" % (V_M, V_RS, V_AO))
    for m in range(12, 16):
        e(mfma(V_ACC, GF + 4 * m, V_AF + 4 * m, V_ACC))
    e("s_waitcnt lgkmcnt(0)")
    e("v_mul_f32 v%d, v%d, v%d" % (V_T0, V_M, V_RS))
    e("v_mul_f32 v%d, v%d, v%d" % (V_T1, V_T0, CS))
    e("v_mul_f32 v%d, v%d, v%d" % (V_T2, V_T0, CS + 1))
    e("s_nop 3")
    e("v_permlane32_swap_b32 v%d, v%d" % (V_ACC, V_ACC + 2))
    e("v_permlane32_swap_b32 v%d, v%d" % (V_ACC + 1, V_ACC + 3))
    e("s_nop 1")
    e("v_add_f32_dpp v%d, v%d, v%d row_shl:8 row_mask:0xf bank_mask:0xf" % (V_ACC, V_ACC + 2, V_ACC))
    e("v_add_f32_dpp v%d, v%d, v%d row_shl:8 row_mask:0xf bank_mask:0xf" % (V_ACC + 1, V_ACC + 3, V_ACC + 1))
    e("v_fma_f32 v%d, v%d, v%d, -v%d" % (V_ACC, V_ACC, V_RS, V_T1))
    e("v_fma_f32 v%d, v%d, v%d, -v%d" % (V_ACC + 1, V_ACC + 1, V_RS, V_T2))
    e("s_cmp_lg_u32 s99, 0")
    e("s_cbranch_scc1 L_a_part")
    e("v_cvt_pk_bf16_f32 v%d, v%d, v%d" % (V_P, V_ACC, V_ACC + 1))
    nosig = uid("nosig")
    e("s_cmp_lg_u32 s96, 0")
    e("s_cbranch_scc1 %s" % nosig)
    unpack(V_U, V_U + 1, V_P)
    e("v_mul_f32 v%d, %s, v%d" % (V_U, f32(-LOG2E), V_U))
    e("v_mul_f32 v%d, %s, v%d" % (V_U + 1, f32(-LOG2E), V_U + 1))
    e("v_exp_f32 v%d, v%d" % (V_U, V_U))
    e("v_exp_f32 v%d, v%d" % (V_U + 1, V_U + 1))
    e("s_nop 0")
    e("v_add_f32 v%d, 1.0, v%d" % (V_U, V_U))
    e("v_add_f32 v%d, 1.0, v%d" % (V_U + 1, V_U + 1))
    e("v_rcp_f32 v%d, v%d" % (V_U, V_U))
    e("v_rcp_f32 v%d, v%d" % (V_U + 1, V_U + 1))
    e("s_nop 0")
    e("v_cvt_pk_bf16_f32 v%d, v%d, v%d" % (V_P, V_U, V_U + 1))
    lab(nosig)
    store_l("buffer_store_dwordx2 v[%d:%d], v%d, s[%d:%d], s85 offen" % (V_P, V_P + 1, V_PUB, SRD_WS, SRD_WS + 3), "lo8")
    e("s_branch L_a_pubd")
    lab("L_a_part")
    e("v_mov_b32 v%d, v%d" % (V_P, V_ACC))
    e("v_mov_b32 v%d, v%d" % (V_P + 1, V_ACC + 1))
    store_l("buffer_store_dwordx4 v[%d:%d], v%d, s[%d:%d], s84 offen" % (V_P, V_P + 3, V_H, SRD_WS, SRD_WS + 3), "lo8")
    lab("L_a_pubd")
    e("s_cmp_lg_u32 s%d, 0" % S_DRY)
    e("s_cbranch_scc1 L_a_gureal")
    stamp(11)
    if "a" in CLEAN: clean("buffer_store_dwordx4 v[%d:%d], v%d, s[%d:%d], s87 offen" % (V_WF + 8, V_WF + 11, V_WF + 12, SRD_WS, SRD_WS + 3), "lo8")
    lab("L_a_done")
    stamps_flush(V_U)
    e("s_endpgm")
    lab("L_a_idle")
    if TRIG2: trig2()
    e("s_branch L_a_done")

gen()
open(OUT, "w").write("\n".join(lines) + "\n")
print("wrote", OUT, len(lines), "lines")
```

```python
import sys, struct

NAME = "sequential_preLN__sliding_block_cached__glu_gated_glu__decode"
def opt(name, default):
    for a in sys.argv:
        if a.startswith("--%s=" % name): return a.split("=", 1)[1]
    return default
STSET = opt("st", None)
STAMPS = "--stamps" in sys.argv or STSET is not None
STSET = None if STSET is None else set(int(x) for x in STSET.split(","))
NOLOCAL = "--nolocal" in sys.argv
NODRY = "--nodry" in sys.argv
NOTOUCH = "--notouch" in sys.argv
NOBELL = "--nobell" in sys.argv
BELLSLEEP = int(opt("bellsleep", 2))
NB = opt("nb", "")
GW = int(opt("gw", 0))
NOTRIG = "--notrig" in sys.argv
KQX = "--kqx" in sys.argv
PRIO = "--prio" in sys.argv
DSPLIT = "--dsplit" in sys.argv
XBAR = "--xbar" in sys.argv
AT = opt("at", "")
BELL5 = "5" not in NB
BELL1 = "--bell1" in sys.argv
TRIG2 = "--trig2" in sys.argv
NOCLEAN = "--clean-on" not in sys.argv
CLEAN = opt("clean", "ab")
NLD = 4
KFIRST = False
PFK = int(opt("pfk", 0))
H1V = int(opt("h1v", 2))
H1LATE = H1V >= 0
GE = int(opt("ge", 0))
GE1 = int(opt("ge1", GE // 2))
VP = int(opt("vp", 8))
BELLFIRST = "--belllast" not in sys.argv
T2V = int(opt("t2v", 12))
DEARLY = "--dearly" in sys.argv
NOCODEPF = "--codepf" not in sys.argv
TLBT = "--notlb" not in sys.argv
SLEEP = int(opt("sleep", 1))
QFIRST = int(opt("qfirst", 8))
AWIN = int(opt("awin", 8))
ATHR = int(opt("athr", 0))
TRIGV = int(opt("trigv", 8))
OUT = [a for a in sys.argv[1:] if not a.startswith("--")]
OUT = OUT[0] if OUT else "cdna_kernels/%s.s" % NAME

lines = []
def e(s): lines.append("    " + s)
def lab(s): lines.append(s + ":")
def cmt(s): lines.append("    ; " + s)
_uid = [0]
def uid(p):
    _uid[0] += 1
    return "L_%s_%d" % (p, _uid[0])
def f32(x): return "0x%08x" % struct.unpack("<I", struct.pack("<f", x))[0]

WS_TRIG = 0x4000
WS_H1 = 0x100000
WS_H2 = 0x200000
WS_H3B = 0x280000
WS_H4S = 0x290000
WS_H4U = 0x2B0000
WS_H2G = 0x2E0000
WS_H4P = 0x500000
WS_H3A = 0x300000
WS_H5 = 0x400000
WS_TS = 0x600000
WS_SIZE = 0x800000

L_W0 = 0
L_W1 = 65536
L_ACT = 131072
L_QB = 147456
L_PB = 149504
L_MX = 153600
LDS_BYTES = 154112

S_X, S_K, S_V, S_WQ, S_WO, S_BX, S_WG, S_WU = 4, 6, 8, 10, 12, 14, 16, 18
S_WD, S_OUT, S_DBG, S_WS = 20, 22, 24, 26
S_WAVE, S_XCD, S_SLOT, S_T = 28, 29, 30, 31
SRD_W, SRD_WS, SRD_X, SRD_O = 32, 36, 40, 44
S_TT = 48
S_HI8 = 50
S_SPIN = 52
S_A, S_B, S_C, S_D, S_E, S_F = 53, 54, 55, 56, 57, 58
S_DRY = 59
S_TM = 60
S_ML = 62
S_ST = 64
S_MG = 92
S_FULL = 94
S_XCC, S_XOFF = 97, 98

LOG2E = 1.4426950408889634

V_VA, V_VB = 4, 5
V_TR = 6
V_AE, V_AO = 7, 8
V_T0, V_T1, V_T2, V_T3 = 9, 10, 11, 12
V_PUB, V_RED, V_H, V_XP, V_AW, V_G, V_Z = 13, 14, 15, 16, 17, 18, 19
V_ACC = 20
V_P = 24
V_M, V_RS, V_SQ, V_SUM = 28, 29, 30, 31
V_L = 32
V_U = 64
V_WF = 96
V_AF = 128
V_KF = 192
V_X1 = 224
V_GO = 248

def srd(dst, ptr, nbytes):
    e("s_mov_b32 s%d, s%d" % (dst, ptr))
    e("s_and_b32 s%d, s%d, 0xffff" % (dst + 1, ptr + 1))
    e("s_mov_b32 s%d, 0x%x" % (dst + 2, nbytes))
    e("s_mov_b32 s%d, 0x20000" % (dst + 3))

def stamp(k):
    if not STAMPS or (STSET is not None and k not in STSET): return
    e("s_memrealtime s[%d:%d]" % (S_TM, S_TM + 1))
    e("s_waitcnt lgkmcnt(0)")
    e("s_mov_b32 s%d, s%d" % (S_ST + k, S_TM))

def stamps_flush(vtmp):
    if not STAMPS: return
    e("s_mov_b64 exec, -1")
    for k in range(16):
        e("v_writelane_b32 v%d, s%d, %d" % (vtmp, S_ST + k, k))
    e("s_lshl_b32 s%d, s2, 9" % S_A)
    e("s_lshl_b32 s%d, s%d, 6" % (S_B, S_WAVE))
    e("s_add_u32 s%d, s%d, s%d" % (S_A, S_A, S_B))
    e("s_add_u32 s%d, s%d, 0x%x" % (S_A, S_A, WS_TS))
    e("v_lshlrev_b32 v%d, 2, v1" % (vtmp + 1))
    e("s_mov_b64 exec, 0xffff")
    e("buffer_store_dword v%d, v%d, s[%d:%d], s%d offen" % (vtmp, vtmp + 1, SRD_WS, SRD_WS + 3, S_A))

def full(): e("s_mov_b64 exec, s[%d:%d]" % (S_FULL, S_FULL + 1))

def barrier(dry=False):
    if dry:
        l = uid("nb")
        e("s_cbranch_execz %s" % l)
        e("s_barrier")
        lab(l)
    else:
        e("s_barrier")

def set_dry():
    e("s_mov_b64 s[%d:%d], 0" % (S_FULL, S_FULL + 1))
    e("s_mov_b64 s[%d:%d], 0" % (S_ML, S_ML + 1))
    e("s_mov_b64 s[%d:%d], 0" % (S_MG, S_MG + 1))
    e("s_mov_b32 s%d, 1" % S_DRY)
    e("s_mov_b32 s3, 8")
    if PRIO: e("s_setprio 0")
    full()

def set_real():
    e("s_mov_b64 s[%d:%d], -1" % (S_FULL, S_FULL + 1))
    e("s_mov_b32 s%d, 0" % S_DRY)
    e("s_mov_b32 s3, 2")
    if PRIO: e("s_setprio 3")
    full()

def dpp_add(dst, src, ctrl, op="v_add_f32"):
    return "%s_dpp v%d, v%d, v%d %s row_mask:0xf bank_mask:0xf" % (op, dst, src, src, ctrl)

def xrow_ops(v, t, op="v_add_f32"):
    return ["v_mov_b32 v%d, v%d" % (t, v), "s_nop 1", "v_permlane16_swap_b32 v%d, v%d" % (v, t), "s_nop 0",
            "%s v%d, v%d, v%d" % (op, v, v, t),
            "v_mov_b32 v%d, v%d" % (t, v), "s_nop 1", "v_permlane32_swap_b32 v%d, v%d" % (v, t), "s_nop 0",
            "%s v%d, v%d, v%d" % (op, v, v, t)]

def wave_allreduce_ops(v, t, op="v_add_f32"):
    o = []
    for r in (8, 4, 2, 1):
        o += ["s_nop 1", dpp_add(v, v, "row_ror:%d" % r, op)]
    return o + xrow_ops(v, t, op)

def bf16_round_ops(v):
    return ["v_cvt_pk_bf16_f32 v%d, v%d, v%d" % (v, v, v), "v_lshlrev_b32 v%d, 16, v%d" % (v, v)]

def unpack_ops(lo, hi, src):
    return ["v_lshlrev_b32 v%d, 16, v%d" % (lo, src), "v_and_b32 v%d, 0xffff0000, v%d" % (hi, src)]
def unpack(lo, hi, src):
    for x in unpack_ops(lo, hi, src): e(x)
def emit(ops):
    for x in ops: e(x)

def poll_begin(bell=None):
    if bell and BELLFIRST: doorbell(*bell)
    top = uid("poll")
    lab(top)
    e("s_cbranch_execz %s_nl" % top)
    return top

def poll_mid(top):
    lab(top + "_nl")
    top2 = top + "x"
    e("s_cbranch_execz %s_nl" % top2)
    return top2

def poll_end(top, checks, last=None, bell=None):
    ok = top + "_ok"
    e("s_waitcnt vmcnt(0)")
    lab((last or top) + "_nl")
    for c in checks: e(c)
    e("s_cmp_eq_u64 exec, s[%d:%d]" % (S_FULL, S_FULL + 1))
    full()
    e("s_cbranch_scc1 %s" % ok)
    if SLEEP: e("s_sleep %d" % SLEEP)
    if bell and not BELLFIRST: doorbell(*bell)
    e("s_sub_u32 s%d, s%d, 1" % (S_SPIN, S_SPIN))
    e("s_cbranch_scc0 %s" % top)
    e("s_mov_b32 s%d, 0" % S_SPIN)
    lab(ok)

def doorbell(va, so, tagpos, off=0, atomic=False):
    if NOBELL: return
    top = uid("bell")
    e("s_cbranch_execz %s_ok" % top)
    lab(top)
    e("s_mov_b64 exec, 1")
    if atomic:
        e("v_mov_b32 v%d, 0" % V_T0)
        e("buffer_atomic_add v%d, v%d, s[%d:%d], s%d offen offset:%d sc0" % (V_T0, va, SRD_WS, SRD_WS + 3, so, off + 4 * tagpos))
    else:
        e("buffer_load_dword v%d, v%d, s[%d:%d], s%d offen offset:%d sc1" % (V_T0, va, SRD_WS, SRD_WS + 3, so, off + 4 * tagpos))
    e("s_waitcnt vmcnt(0)")
    e("v_cmpx_eq_u32 vcc, s%d, v%d" % (S_T, V_T0))
    e("s_cbranch_execnz %s_ok" % top)
    e("s_sleep %d" % BELLSLEEP)
    e("s_sub_u32 s%d, s%d, 1" % (S_SPIN, S_SPIN))
    e("s_cbranch_scc0 %s" % top)
    e("s_mov_b32 s%d, 0" % S_SPIN)
    lab(top + "_ok")
    full()

def chk64(v): return "v_cmpx_eq_u64 vcc, s[%d:%d], v[%d:%d]" % (S_TT, S_TT + 1, v, v + 1)
def chk32(v): return "v_cmpx_eq_u32 vcc, s%d, v%d" % (S_T, v)

def _mask(m, lanemask):
    if lanemask is None: e("s_mov_b64 exec, s[%d:%d]" % (m, m + 1))
    elif lanemask == "lo8": e("s_andn2_b64 exec, s[%d:%d], s[%d:%d]" % (m, m + 1, S_HI8, S_HI8 + 1))
    else: e("s_and_b64 exec, s[%d:%d], %s" % (m, m + 1, lanemask))

def store_g(instr, lanemask=None, flags=" sc1"):
    l = uid("ns")
    if lanemask is not None: _mask(S_FULL, lanemask)
    e("s_cbranch_execz %s" % l)
    e(instr + flags)
    lab(l)
    if lanemask is not None: full()

def store_l(instr, lanemask=None):
    for m, fl in ((S_ML, ""), (S_MG, " sc1")):
        l = uid("ns")
        _mask(m, lanemask)
        e("s_cbranch_execz %s" % l)
        e(instr + fl)
        lab(l)
    full()

def xcc_publish(vt, srd_, wave=4):
    e("s_getreg_b32 s%d, hwreg(HW_REG_XCC_ID, 0, 4)" % S_XCC)
    e("s_add_u32 s%d, s%d, 1" % (S_XCC, S_XCC))
    e("s_lshl_b32 s%d, s%d, 5" % (S_XOFF, S_XCD))
    skip = uid("noxcc")
    e("s_cmp_lg_u32 s%d, %d" % (S_WAVE, wave))
    e("s_cbranch_scc1 %s" % skip)
    e("s_lshr_b32 s%d, s2, 3" % S_B)
    e("s_add_u32 s%d, s%d, s%d" % (S_A, S_XOFF, S_B))
    e("v_mov_b32 v%d, s%d" % (vt, S_XCC))
    e("s_mov_b64 exec, 1")
    e("buffer_store_byte v%d, v%d, s[%d:%d], s%d offen sc1" % (vt, V_Z, srd_, srd_ + 3, S_A))
    e("s_mov_b64 exec, -1")
    lab(skip)
    e("s_mul_i32 s%d, s%d, 0x01010101" % (S_XCC, S_XCC))

def xcc_load(vd, vaddr, srd_):
    e("buffer_load_dword v%d, v%d, s[%d:%d], s%d offen sc1" % (vd, vaddr, srd_, srd_ + 3, S_XOFF))

def xcc_checks(vd, vt):
    return ["v_subrev_u32 v%d, 0x01010101, v%d" % (vt, vd),
            "v_bfi_b32 v%d, v%d, 0, v%d" % (vt, vd, vt),
            "v_and_b32 v%d, 0x80808080, v%d" % (vt, vt),
            "v_cmpx_eq_u32 vcc, 0, v%d" % vt]

def xcc_decide(vd):
    e("v_cmp_ne_u32 vcc, s%d, v%d" % (S_XCC, vd))
    e("s_nop 1")
    if NOLOCAL: e("s_cmp_eq_u32 s%d, 0" % S_XCC)
    else: e("s_cmp_eq_u64 vcc, 0")
    e("s_cselect_b64 s[%d:%d], s[%d:%d], 0" % (S_ML, S_ML + 1, S_FULL, S_FULL + 1))
    e("s_cselect_b64 s[%d:%d], 0, s[%d:%d]" % (S_MG, S_MG + 1, S_FULL, S_FULL + 1))

def ln_stats_ops(vals, vsum, vt, vmean, vrs, vsq):
    o = ["v_add_f32 v%d, v%d, v%d" % (vsum, vals[0], vals[1]), "v_add_f32 v%d, v%d, v%d" % (vt, vals[2], vals[3])]
    for i in range(4, 16, 2):
        o += ["v_add_f32 v%d, v%d, v%d" % (vsum, vsum, vals[i]), "v_add_f32 v%d, v%d, v%d" % (vt, vt, vals[i + 1])]
    o += ["v_add_f32 v%d, v%d, v%d" % (vsum, vsum, vt)]
    o += wave_allreduce_ops(vsum, vt)
    o += ["v_mul_f32 v%d, %s, v%d" % (vmean, f32(1.0 / 1024), vsum)]
    o += ["v_sub_f32 v%d, v%d, v%d" % (vt, vals[0], vmean), "v_mul_f32 v%d, v%d, v%d" % (vsum, vt, vt)]
    for i in range(1, 16):
        o += ["v_sub_f32 v%d, v%d, v%d" % (vt, vals[i], vmean), "v_fmac_f32 v%d, v%d, v%d" % (vsum, vt, vt)]
    o += wave_allreduce_ops(vsum, vt)
    o += ["v_mul_f32 v%d, %s, v%d" % (vsq, f32(1.0 / 1024), vsum)]
    o += bf16_round_ops(vsq)
    o += ["v_add_f32 v%d, %s, v%d" % (vsq, f32(1e-5), vsq)]
    o += bf16_round_ops(vsq)
    o += ["v_sqrt_f32 v%d, v%d" % (vsq, vsq)]
    o += bf16_round_ops(vmean)
    o += bf16_round_ops(vsq)
    o += ["v_rcp_f32 v%d, v%d" % (vrs, vsq), "s_nop 0"]
    return o

def ln_stats_dot_ops(pairs, one, s1, s2, vt, vmean, vrs):
    o = ["v_dot2_f32_bf16 v%d, v%d, v%d, 0" % (s1, pairs[0], one), "v_dot2_f32_bf16 v%d, v%d, v%d, 0" % (s2, pairs[0], pairs[0])]
    for p in pairs[1:]:
        o += ["v_dot2_f32_bf16 v%d, v%d, v%d, v%d" % (s1, p, one, s1), "v_dot2_f32_bf16 v%d, v%d, v%d, v%d" % (s2, p, p, s2)]
    o += ["s_nop 2"]
    for r in (8, 4, 2, 1):
        o += [dpp_add(s1, s1, "row_ror:%d" % r), dpp_add(s2, s2, "row_ror:%d" % r), "s_nop 0"]
    o += ["s_nop 0", "v_permlane32_swap_b32 v%d, v%d" % (s1, s2), "s_nop 0", "v_add_f32 v%d, v%d, v%d" % (s1, s1, s2),
          "v_mov_b32 v%d, v%d" % (s2, s1), "s_nop 1", "v_permlane16_swap_b32 v%d, v%d" % (s1, s2), "s_nop 0",
          "v_add_f32 v%d, v%d, v%d" % (s1, s1, s2), "v_mov_b32 v%d, v%d" % (s2, s1), "s_nop 1",
          "v_permlane32_swap_b32 v%d, v%d" % (s1, s2), "s_nop 0",
          "v_mul_f32 v%d, %s, v%d" % (vmean, f32(1.0 / 1024), s1),
          "v_mul_f32 v%d, %s, v%d" % (s2, f32(1.0 / 1024), s2),
          "v_fma_f32 v%d, -v%d, v%d, v%d" % (s2, vmean, vmean, s2),
          "v_max_f32 v%d, 0, v%d" % (s2, s2)]
    o += bf16_round_ops(s2)
    o += ["v_add_f32 v%d, %s, v%d" % (s2, f32(1e-5), s2)]
    o += bf16_round_ops(s2)
    o += ["v_sqrt_f32 v%d, v%d" % (s2, s2)]
    o += bf16_round_ops(vmean)
    o += bf16_round_ops(s2)
    o += ["v_rcp_f32 v%d, v%d" % (vrs, s2), "s_nop 0"]
    return o

def ln_apply_pair(dst, a, b, vmean, vrs, vsq, t0, t1):
    e("v_sub_f32 v%d, v%d, v%d" % (a, a, vmean))
    e("v_sub_f32 v%d, v%d, v%d" % (b, b, vmean))
    e("v_cvt_pk_bf16_f32 v%d, v%d, v%d" % (t0, a, b))
    unpack(a, b, t0)
    e("v_mul_f32 v%d, v%d, v%d" % (t0, a, vrs))
    e("v_mul_f32 v%d, v%d, v%d" % (t1, b, vrs))
    e("v_fma_f32 v%d, -v%d, v%d, v%d" % (a, t0, vsq, a))
    e("v_fma_f32 v%d, -v%d, v%d, v%d" % (b, t1, vsq, b))
    e("v_fmac_f32 v%d, v%d, v%d" % (t0, a, vrs))
    e("v_fmac_f32 v%d, v%d, v%d" % (t1, b, vrs))
    e("v_cvt_pk_bf16_f32 v%d, v%d, v%d" % (dst, t0, t1))

def sigma_of(dst, u, t):
    e("v_and_b32 v%d, 3, v%d" % (dst, u))
    e("v_lshlrev_b32 v%d, 1, v%d" % (dst, dst))
    e("v_bfe_u32 v%d, v%d, 2, 1" % (t, u))
    e("v_or_b32 v%d, v%d, v%d" % (dst, dst, t))

def dma256_voff(va, vb, pitch, t):
    e("v_bfe_u32 v%d, v1, 1, 3" % t)
    e("v_xor_b32 v%d, v3, v%d" % (t, t))
    e("v_lshlrev_b32 v%d, 5, v%d" % (t, t))
    e("v_and_b32 v%d, 1, v1" % va)
    e("v_lshl_add_u32 v%d, v%d, 4, v%d" % (t, va, t))
    e("v_mul_u32_u24 v%d, %d, v3" % (va, pitch))
    e("v_add_u32 v%d, v%d, v%d" % (va, va, t))
    e("v_xor_b32 v%d, 0x80, v%d" % (vb, va))

SKIP = opt("skip", "").split(",")
def dma_run(srd_, voffs, s_base, rowbytes, ldsbase, per_wave, m0, m1, pre=None, name=None):
    if name in SKIP: return
    _dma_run(srd_, voffs, s_base, rowbytes, ldsbase, per_wave, m0, m1, pre)

def _dma_run(srd_, voffs, s_base, rowbytes, ldsbase, per_wave, m0, m1, pre=None):
    e("s_mul_i32 s%d, s%d, %d" % (S_A, S_WAVE, per_wave * rowbytes))
    e("s_add_u32 s%d, s%d, s%d" % (S_A, S_A, s_base))
    if m0: e("s_add_u32 s%d, s%d, %d" % (S_A, S_A, rowbytes * m0))
    e("s_mul_i32 s%d, s%d, %d" % (S_B, S_WAVE, per_wave * 1024))
    if ldsbase + m0: e("s_add_u32 s%d, s%d, %d" % (S_B, S_B, ldsbase + 1024 * m0))
    for m in range(m0, m1):
        e("s_mov_b32 m0, s%d" % S_B)
        if pre: pre(m)
        if m < m1 - 1: e("s_add_u32 s%d, s%d, 1024" % (S_B, S_B))
        else: e("s_nop 0")
        e("buffer_load_dwordx4 v%d, s[%d:%d], s%d offen nt lds" % (voffs(m), srd_, srd_ + 3, S_A))
        if m < m1 - 1: e("s_add_u32 s%d, s%d, %d" % (S_A, S_A, rowbytes))

def tr256_addr(va, t):
    e("v_bfe_u32 v%d, v1, 2, 2" % t)
    e("v_and_b32 v%d, 1, v3" % va)
    e("v_lshl_or_b32 v%d, v%d, 2, v%d" % (va, va, t))
    e("v_xor_b32 v%d, s%d, v%d" % (va, S_WAVE, va))
    e("v_lshlrev_b32 v%d, 5, v%d" % (va, va))
    e("v_lshl_add_u32 v%d, v3, 3, v%d" % (t, t))
    e("v_lshl_add_u32 v%d, v%d, 8, v%d" % (va, t, va))
    e("v_and_b32 v%d, 3, v1" % t)
    e("v_lshl_add_u32 v%d, v%d, 3, v%d" % (va, t, va))

def tr256_read(dst, va):
    for m in range(8):
        for h in range(2):
            e("ds_read_b64_tr_b16 v[%d:%d], v%d offset:%d" % (dst + 4 * m + 2 * h, dst + 4 * m + 2 * h + 1, va, m * 8192 + h * 1024))

def act_rd_addr(ve, vo, t, ldsbase):
    e("v_and_b32 v%d, 7, v1" % t)
    e("v_lshlrev_b32 v%d, 1, v3" % ve)
    e("v_xor_b32 v%d, v%d, v%d" % (ve, ve, t))
    e("v_lshlrev_b32 v%d, 4, v%d" % (ve, ve))
    e("v_lshl_add_u32 v%d, v3, 7, v%d" % (ve, ve))
    e("v_add_u32 v%d, %d, v%d" % (ve, ldsbase, ve))
    e("v_xor_b32 v%d, 16, v%d" % (vo, ve))

def mfma(d, a, b, c):
    cs = "0" if c is None else "v[%d:%d]" % (c, c + 3)
    return "v_mfma_f32_16x16x32_bf16 v[%d:%d], v[%d:%d], v[%d:%d], %s" % (d, d + 3, a, a + 3, b, b + 3, cs)

def gemv8(acc, wf, af, ve, vo):
    for m in range(8):
        e("ds_read_b128 v[%d:%d], v%d offset:%d" % (af + 4 * m, af + 4 * m + 3, vo if (m & 1) else ve, m * 512))
    for m in range(8):
        e("s_waitcnt lgkmcnt(%d)" % (7 - m))
        e(mfma(acc, wf + 4 * m, af + 4 * m, None if m == 0 else acc))

def touch(items):
    for i, (va, so, off) in enumerate(items):
        e("buffer_load_dword v%d, v%d, s[%d:%d], s%d offen offset:%d sc1" % (V_X1 + 20 + i, va, SRD_WS, SRD_WS + 3, so, off))

def clean(instr, lanemask=None):
    if NOCLEAN: return
    l = uid("nc")
    _mask(S_ML, lanemask)
    e("s_cbranch_execz %s" % l)
    e(instr + " sc1")
    lab(l)
    full()

def trig2():
    l = uid("nt2")
    e("s_cmp_lg_u32 s%d, 0" % S_WAVE)
    e("s_cbranch_scc1 %s" % l)
    e("s_lshl_b32 s%d, s%d, 3" % (S_A, S_SLOT))
    e("s_or_b32 s%d, s%d, s%d" % (S_A, S_A, S_XCD))
    e("s_lshl_b32 s%d, s%d, 7" % (S_A, S_A))
    e("s_add_u32 s%d, s%d, 0x%x" % (S_A, S_A, WS_TRIG))
    store_g("buffer_store_dword v%d, v%d, s[%d:%d], s%d offen offset:8" % (V_P + 3, V_Z, SRD_WS, SRD_WS + 3, S_A), "1")
    lab(l)

def make_tag(vE=None):
    if vE is None:
        e("s_waitcnt lgkmcnt(0)")
        e("s_mov_b32 s%d, s100" % S_F)
    else:
        e("v_readfirstlane_b32 s%d, v%d" % (S_F, vE))
        e("s_nop 3")
    e("s_mul_i32 s%d, s%d, 0x9e3779b1" % (S_T, S_F))
    e("s_add_u32 s%d, s%d, 0x85ebca6b" % (S_T, S_T))
    e("s_mov_b32 s%d, s%d" % (S_TT, S_T))
    e("s_mov_b32 s%d, s%d" % (S_TT + 1, S_T))
    e("s_add_u32 s%d, s%d, 1" % (S_F, S_F))
    e("v_mov_b32 v%d, s%d" % (V_P + 2, S_T))
    e("v_mov_b32 v%d, s%d" % (V_P + 3, S_T))

def publish_partial(s_off, local):
    e("s_nop 7")
    e("v_cndmask_b32 v%d, v%d, v%d, s[%d:%d]" % (V_P, V_ACC, V_ACC + 2, S_HI8, S_HI8 + 1))
    e("v_cndmask_b32 v%d, v%d, v%d, s[%d:%d]" % (V_P + 1, V_ACC + 1, V_ACC + 3, S_HI8, S_HI8 + 1))
    ins = "buffer_store_dwordx4 v[%d:%d], v%d, s[%d:%d], s%d offen" % (V_P, V_P + 3, V_PUB, SRD_WS, SRD_WS + 3, s_off)
    (store_l if local else store_g)(ins)

def reduce16(s0, bell=False):
    top = poll_begin((V_RED, s0, 3, 0, "5" in AT) if bell else None)
    for n in range(4):
        e("buffer_load_dwordx4 v[%d:%d], v%d, s[%d:%d], s%d offen sc1" % (V_L + 4 * n, V_L + 4 * n + 3, V_RED, SRD_WS, SRD_WS + 3, s0 + n))
    poll_end(top, [chk64(V_L + 4 * n + 2) for n in range(4)], bell=(V_RED, s0, 3) if bell else None)
    a, b = V_L, V_L + 1
    e("v_pk_add_f32 v[%d:%d], v[%d:%d], v[%d:%d]" % (a, b, a, b, V_L + 4, V_L + 5))
    e("v_pk_add_f32 v[%d:%d], v[%d:%d], v[%d:%d]" % (V_L + 8, V_L + 9, V_L + 8, V_L + 9, V_L + 12, V_L + 13))
    e("v_pk_add_f32 v[%d:%d], v[%d:%d], v[%d:%d]" % (a, b, a, b, V_L + 8, V_L + 9))
    e("s_nop 1")
    e("v_permlane32_swap_b32 v%d, v%d" % (a, b))
    e("s_nop 0")
    e("v_add_f32 v%d, v%d, v%d" % (a, a, b))
    e("v_mov_b32 v%d, v%d" % (b, a))
    e("s_nop 1")
    e("v_permlane16_swap_b32 v%d, v%d" % (a, b))
    e("s_nop 0")
    e("v_add_f32 v%d, v%d, v%d" % (a, a, b))
    e("v_mov_b32 v%d, v%d" % (b, a))
    e("s_nop 1")
    e("v_permlane32_swap_b32 v%d, v%d" % (a, b))
    e("s_nop 0")

def only_red(lbl):
    e("s_cmp_ge_u32 s%d, s3" % S_WAVE)
    e("s_cbranch_scc1 %s" % lbl)

def residual_add(dst, vres):
    e("v_cvt_pk_bf16_f32 v%d, v%d, v%d" % (V_T0, V_L, V_L + 1))
    unpack(V_U + 2, V_U + 3, vres)
    unpack(V_U, V_U + 1, V_T0)
    e("v_add_f32 v%d, v%d, v%d" % (V_U, V_U, V_U + 2))
    e("v_add_f32 v%d, v%d, v%d" % (V_U + 1, V_U + 1, V_U + 3))
    e("v_cvt_pk_bf16_f32 v%d, v%d, v%d" % (dst, V_U, V_U + 1))

def pos_write_addr(dst, ldsbase):
    e("v_bfe_u32 v%d, v1, 1, 3" % V_T2)
    sigma_of(V_T0, V_T2, V_T1)
    e("v_xor_b32 v%d, s%d, v%d" % (V_T0, S_WAVE, V_T0))
    e("v_lshlrev_b32 v%d, 4, v%d" % (V_T0, V_T0))
    e("v_lshrrev_b32 v%d, 1, v1" % V_T1)
    e("v_lshl_add_u32 v%d, v%d, 7, v%d" % (V_T0, V_T1, V_T0))
    e("v_and_b32 v%d, 1, v1" % V_T1)
    e("v_lshl_add_u32 v%d, v%d, 3, v%d" % (V_T0, V_T1, V_T0))
    e("v_add_u32 v%d, %d, v%d" % (dst, ldsbase, V_T0))

def gen():
    for l in """Fused decode layer: preLN + sliding-window GQA attention + residual + preLN + GLU MLP + residual.
Kernarg (96 bytes, pointers only): 0 A_x, 8 A_k_cache, 16 A_v_cache, 24 A_wq, 32 A_wo, 40 B_x (unused), 48 B_w_gate,
  56 B_w_up, 64 B_w_down, 72 d_out, 80 d_debug, 88 d_ws.
One persistent launch, 256 workgroups x 8 waves, one workgroup per CU.  role = (wg>>3)&1:
  B: LN1 + Q-proj tile -> O-proj tile -> h reduce -> down-proj tile -> final reduce
  A: attention for (batch, kv head, 256-key split) -> split combine -> gate/up tile (LN2 folded in)
Weights / K / V stream HBM -> LDS (LDS-DMA, swizzled images) and feed MFMA through transposing LDS reads.
Hand-offs between workgroups are 8/16-byte granules in d_ws that carry a per-launch tag (hash of an epoch word
  kept in d_ws).  Groups of workgroups that find (via the XCC id table in d_debug) that they share an XCD
  exchange through L2 with plain stores; otherwise every hand-off is written through.  All spins are bounded.
Waves 4-7 run upcoming latency-critical code once with EXEC=0 (memory instructions branched around) so that it
  is resident in the instruction cache while waves 0-3 issue the streams.
Generated by a script (work/gen.py).""".split("\n"):
        lines.append("; " + l)
    lines.append("; @launch grid=(256,1,1) block=(512,1,1) lds=%d" % LDS_BYTES)
    lines.append('.amdgcn_target "amdgcn-amd-amdhsa--gfx950"')
    lines.append(".text")
    lines.append(".globl %s_kernel" % NAME)
    lines.append(".p2align 8")
    lines.append(".type %s_kernel,@function" % NAME)
    lab("%s_kernel" % NAME)
    e("s_cmp_ge_u32 s2, 256")
    e("s_cbranch_scc1 L_end")
    if STAMPS:
        e("s_memrealtime s[%d:%d]" % (S_TM, S_TM + 1))
        for k in range(1, 16): e("s_mov_b32 s%d, 0" % (S_ST + k))
    e("s_load_dwordx16 s[4:19], s[0:1], 0")
    e("s_load_dwordx8 s[20:27], s[0:1], 64")
    e("v_lshrrev_b32 v4, 6, v0")
    e("v_and_b32 v1, 63, v0")
    e("v_readfirstlane_b32 s%d, v4" % S_WAVE)
    e("v_and_b32 v2, 15, v1")
    e("v_lshrrev_b32 v3, 4, v1")
    e("s_and_b32 s%d, s2, 7" % S_XCD)
    e("s_lshr_b32 s%d, s2, 4" % S_SLOT)
    e("v_mov_b32 v%d, 0" % V_Z)
    if PRIO: e("s_setprio 3")
    code_prefetch()
    e("s_bitcmp1_b32 s2, 3")
    e("s_cbranch_scc1 L_roleA")
    role_b()
    lab("L_roleA")
    role_a()
    lab("L_end")
    e("s_endpgm")
    lines.append('.section .rodata,"a"')
    lines.append(".p2align 6")
    lines.append(".amdhsa_kernel %s_kernel" % NAME)
    lines.append("  .amdhsa_next_free_vgpr 256")
    lines.append("  .amdhsa_next_free_sgpr 102")
    lines.append("  .amdhsa_accum_offset 256")
    lines.append("  .amdhsa_group_segment_fixed_size 0")
    lines.append("  .amdhsa_kernarg_size 96")
    lines.append("  .amdhsa_user_sgpr_count 2")
    lines.append("  .amdhsa_user_sgpr_kernarg_segment_ptr 1")
    lines.append("  .amdhsa_system_sgpr_workgroup_id_x 1")
    lines.append(".end_amdhsa_kernel")

def code_prefetch():
    if NOCODEPF: return
    l = uid("nopf")
    e("s_lshr_b32 s%d, s2, 3" % S_A)
    e("s_lshl_b32 s%d, s%d, 3" % (S_A, S_A))
    e("s_add_u32 s%d, s%d, s%d" % (S_A, S_A, S_WAVE))
    e("s_cmp_lg_u32 s%d, 13" % S_A)
    e("s_cbranch_scc1 %s" % l)
    e("s_getpc_b64 s[%d:%d]" % (S_ML, S_ML + 1))
    lab(l + "_pc")
    e("s_sub_u32 s%d, s%d, %s_pc-%s_kernel" % (S_ML, S_ML, l, NAME))
    e("s_subb_u32 s%d, s%d, 0" % (S_ML + 1, S_ML + 1))
    e("v_lshlrev_b32 v%d, 7, v1" % V_T0)
    e("global_load_dword v%d, v%d, s[%d:%d]" % (V_U, V_T0, S_ML, S_ML + 1))
    e("v_add_u32 v%d, 0x2000, v%d" % (V_T0, V_T0))
    e("v_min_u32 v%d, L_end-%s_kernel, v%d" % (V_T0, NAME, V_T0))
    e("global_load_dword v%d, v%d, s[%d:%d]" % (V_U + 1, V_T0, S_ML, S_ML + 1))
    lab(l)

def common_consts():
    e("s_mov_b32 s%d, 0x40000" % S_SPIN)
    e("s_mov_b32 s%d, 0xff00ff00" % S_HI8)
    e("s_mov_b32 s%d, 0xff00ff00" % (S_HI8 + 1))
    e("s_mov_b64 s[%d:%d], -1" % (S_FULL, S_FULL + 1))
    e("s_mov_b32 s%d, 0" % S_DRY)

def role_b():
    cmt("================= role B =================")
    V_AWD, V_XA, V_HO, V_ZA, V_TR1 = V_X1 + 1, V_X1 + 2, V_X1 + 3, V_X1 + 4, V_X1 + 5
    V_VC, V_VD = V_X1 + 6, V_X1 + 7
    V_ZQ = V_X1 + 8
    ab = lambda m: V_VB if (m & 2) else V_VA
    dma256_voff(V_VA, V_VB, 8192, V_T0)
    e("v_lshlrev_b32 v%d, 4, v1" % V_G)
    if KQX:
        e("s_and_b32 s%d, s%d, 3" % (S_D, S_XCD))
        e("s_lshr_b32 s%d, s%d, 2" % (S_C, S_XCD))
        e("s_lshl_b32 s%d, s%d, 4" % (S_C, S_C))
        e("s_add_u32 s%d, s%d, s%d" % (S_C, S_C, S_SLOT))
    else:
        e("s_and_b32 s%d, s%d, 3" % (S_D, S_SLOT))
        e("s_lshr_b32 s%d, s%d, 2" % (S_A, S_SLOT))
        e("s_lshl_b32 s%d, s%d, 1" % (S_B, S_XCD))
        e("s_add_u32 s%d, s%d, s%d" % (S_B, S_B, S_A))
        e("s_lshl_b32 s%d, s%d, 2" % (S_C, S_B))
        e("s_add_u32 s%d, s%d, 1" % (S_C, S_C))
        e("s_sub_u32 s%d, s%d, 2" % (S_B, S_B))
        e("s_lshl_b32 s%d, s%d, 2" % (S_E, S_XCD))
        e("s_add_u32 s%d, s%d, s%d" % (S_E, S_E, S_A))
        e("s_sub_u32 s%d, s%d, 8" % (S_E, S_E))
        e("s_cmp_ge_u32 s%d, 4" % S_XCD)
        e("s_cselect_b32 s%d, s%d, s%d" % (S_B, S_E, S_B))
        e("s_cselect_b32 s%d, 2, s%d" % (S_A, S_A))
        e("s_mul_i32 s%d, s%d, 43" % (S_E, S_B))
        e("s_lshr_b32 s%d, s%d, 7" % (S_E, S_E))
        e("s_mul_i32 s%d, s%d, 3" % (S_F, S_E))
        e("s_sub_u32 s%d, s%d, s%d" % (S_F, S_B, S_F))
        e("s_lshl_b32 s%d, s%d, 2" % (S_E, S_E))
        e("s_add_u32 s%d, s%d, s%d" % (S_E, S_E, S_F))
        e("s_min_u32 s%d, s%d, 1" % (S_F, S_F))
        e("s_add_u32 s%d, s%d, s%d" % (S_E, S_E, S_F))
        e("s_cmp_ge_u32 s%d, 2" % S_A)
        e("s_cselect_b32 s%d, s%d, s%d" % (S_C, S_E, S_C))
    e("s_lshl_b32 s%d, s%d, 21" % (S_E, S_D))
    e("s_lshl_b32 s%d, s%d, 8" % (S_A, S_C))
    e("s_add_u32 s%d, s%d, s%d" % (S_E, S_E, S_A))
    e("s_lshl_b32 s82, s%d, 11" % S_WAVE)
    e("s_lshl_b32 s83, s%d, 9" % S_D)
    e("s_add_u32 s83, s83, s82")
    e("s_waitcnt lgkmcnt(0)")
    if STAMPS: e("s_mov_b32 s%d, s%d" % (S_ST, S_TM))
    srd(SRD_X, S_X, 16384)
    srd(SRD_W, S_WQ, 8 << 20)
    e("buffer_load_dwordx4 v[%d:%d], v%d, s[%d:%d], s82 offen" % (V_L, V_L + 3, V_G, SRD_X, SRD_X + 3))
    e("buffer_load_dwordx4 v[%d:%d], v%d, s[%d:%d], s82 offen offset:1024" % (V_L + 4, V_L + 7, V_G, SRD_X, SRD_X + 3))
    e("buffer_load_dwordx4 v[%d:%d], v%d, s[%d:%d], s83 offen" % (V_L + 8, V_L + 11, V_G, SRD_X, SRD_X + 3))
    if XBAR: e("s_barrier")
    dma_run(SRD_W, ab, S_E, 4 * 8192, L_W0, 8, 0, QFIRST)
    srd(SRD_WS, S_WS, WS_SIZE)
    e("buffer_load_dword v%d, v%d, s[%d:%d], 0 offen sc1" % (V_L + 12, V_Z, SRD_WS, SRD_WS + 3))
    stamp(1)
    common_consts()
    e("s_lshr_b32 s%d, s%d, 1" % (S_A, S_SLOT))
    e("s_lshl_b32 s%d, s%d, 11" % (S_A, S_A))
    e("s_lshl_b32 s%d, s%d, 8" % (S_B, S_XCD))
    e("s_add_u32 s%d, s%d, s%d" % (S_A, S_A, S_B))
    e("s_and_b32 s%d, s%d, 1" % (S_B, S_SLOT))
    e("s_lshl_b32 s%d, s%d, 7" % (S_B, S_B))
    e("s_add_u32 s%d, s%d, s%d" % (S_A, S_A, S_B))
    e("s_and_b32 s%d, s%d, 1" % (S_B, S_WAVE))
    e("s_lshl_b32 s%d, s%d, 6" % (S_B, S_B))
    e("s_add_u32 s80, s%d, s%d" % (S_A, S_B))
    e("v_lshlrev_b32 v%d, 2, v2" % V_X1)
    e("v_lshlrev_b32 v%d, 3, v2" % V_HO)
    e("buffer_load_dword v%d, v%d, s[%d:%d], s80 offen" % (V_XP, V_X1, SRD_X, SRD_X + 3))
    e("s_waitcnt vmcnt(%d)" % (QFIRST + 2))
    for i in range(8):
        unpack(V_U + 2 * i, V_U + 2 * i + 1, V_L + i)
    emit(ln_stats_ops([V_U + i for i in range(16)], V_SUM, V_T0, V_M, V_RS, V_SQ))
    if QFIRST < 8:
        dma_run(SRD_W, ab, S_E, 4 * 8192, L_W0, 8, QFIRST, 8)
    for i in range(4):
        unpack(V_U + 2 * i, V_U + 2 * i + 1, V_L + 8 + i)
    for i in range(4):
        ln_apply_pair(V_L + 16 + i, V_U + 2 * i, V_U + 2 * i + 1, V_M, V_RS, V_SQ, V_T0, V_T1)
    e("v_and_b32 v%d, 7, v1" % V_T2)
    e("v_lshlrev_b32 v%d, 2, v%d" % (V_XA, V_T2))
    sigma_of(V_T0, V_T2, V_T1)
    e("v_xor_b32 v%d, s%d, v%d" % (V_T0, S_WAVE, V_T0))
    e("v_lshlrev_b32 v%d, 4, v%d" % (V_T0, V_T0))
    e("v_lshl_add_u32 v%d, v1, 7, v%d" % (V_T0, V_T0))
    e("v_add_u32 v%d, %d, v%d" % (V_T0, L_ACT, V_T0))
    e("s_mov_b64 exec, 0xffffffff")
    e("ds_write_b128 v%d, v[%d:%d]" % (V_T0, V_L + 16, V_L + 19))
    e("s_mov_b64 exec, -1")
    srd(SRD_X, S_DBG, 256)
    xcc_publish(V_T0, SRD_X)
    if PFK:
        srd(SRD_O, S_K, 32 << 20)
        e("s_lshl_b32 s84, s%d, 22" % S_XCD)
        e("s_lshl_b32 s%d, s%d, 18" % (S_A, S_SLOT))
        e("s_and_b32 s%d, s%d, 0x300000" % (S_A, S_A))
        e("s_add_u32 s84, s84, s%d" % S_A)
        e("s_and_b32 s%d, s%d, 3" % (S_A, S_SLOT))
        e("s_lshl_b32 s%d, s%d, 16" % (S_A, S_A))
        e("s_add_u32 s84, s84, s%d" % S_A)
        e("s_add_u32 s84, s84, 0x%x" % (3072 * 256 + 65536 - 8192 * PFK))
        dma_run(SRD_O, lambda m: V_G, 84, 1024, L_W1, PFK, 0, PFK)
    tr256_addr(V_TR, V_T0)
    act_rd_addr(V_AE, V_AO, V_T0, L_ACT)
    e("v_and_b32 v%d, 7, v1" % V_T0)
    e("v_lshlrev_b32 v%d, 10, v%d" % (V_PUB, V_T0))
    e("v_lshrrev_b32 v%d, 3, v2" % V_T0)
    e("v_lshl_add_u32 v%d, v3, 1, v%d" % (V_T0, V_T0))
    e("v_lshl_add_u32 v%d, v%d, 4, v%d" % (V_PUB, V_T0, V_PUB))
    e("s_lshl_b32 s%d, s%d, 7" % (S_A, S_WAVE))
    e("v_add_u32 v%d, s%d, v%d" % (V_PUB, S_A, V_PUB))
    e("s_lshl_b32 s%d, s%d, 2" % (S_A, S_C))
    e("s_add_u32 s%d, s%d, s%d" % (S_A, S_A, S_D))
    e("s_lshl_b32 s%d, s%d, 13" % (S_A, S_A))
    e("s_add_u32 s81, s%d, 0x%x" % (S_A, WS_H1))
    stamp(2)
    if NODRY: e("s_branch L_q_real")
    e("s_waitcnt lgkmcnt(0)")
    set_dry()
    lab("L_q_top")
    tr256_read(V_WF, V_TR)
    gemv8(V_ACC, V_WF, V_AF, V_AE, V_AO)
    publish_partial(81, False)
    e("s_cmp_eq_u32 s%d, 0" % S_DRY)
    e("s_cbranch_scc1 L_q_done")
    lab("L_q_real")
    set_real()
    e("s_waitcnt vmcnt(%d)" % (8 - QFIRST + 1 + PFK))
    make_tag(V_L + 12)
    e("s_waitcnt vmcnt(%d) lgkmcnt(0)" % PFK)
    e("s_barrier")
    stamp(3)
    e("s_branch L_q_top")
    lab("L_q_done")
    stamp(4)
    dma256_voff(V_VA, V_VB, 2048, V_T0)
    e("v_add_u32 v%d, %d, v%d" % (V_TR1, L_W1, V_TR))
    e("s_and_b32 s%d, s%d, 1" % (S_A, S_WAVE))
    e("s_lshl_b32 s%d, s%d, 7" % (S_A, S_A))
    e("v_xor_b32 v%d, s%d, v%d" % (V_X1 + 14, S_A, V_VA))
    e("v_xor_b32 v%d, 0x80, v%d" % (V_X1 + 15, V_X1 + 14))
    pos_write_addr(V_AW, L_ACT)
    e("v_lshlrev_b32 v%d, 13, v3" % V_RED)
    e("v_lshl_add_u32 v%d, v2, 4, v%d" % (V_RED, V_RED))
    e("s_and_b32 s%d, s%d, 1" % (S_A, S_WAVE))
    e("s_lshl_b32 s%d, s%d, 8" % (S_A, S_A))
    e("v_add_u32 v%d, s%d, v%d" % (V_RED, S_A, V_RED))
    e("s_lshl_b32 s%d, s%d, 3" % (S_A, S_SLOT))
    e("s_or_b32 s%d, s%d, s%d" % (S_A, S_A, S_XCD))
    e("s_lshl_b32 s%d, s%d, 7" % (S_A, S_A))
    e("s_add_u32 s83, s%d, 0x%x" % (S_A, WS_TRIG))
    e("s_lshl_b32 s%d, s%d, 3" % (S_A, S_SLOT))
    e("s_add_u32 s%d, s%d, s%d" % (S_A, S_A, S_WAVE))
    e("s_lshl_b32 s%d, s%d, 10" % (S_A, S_A))
    e("s_add_u32 s82, s%d, 0x%x" % (S_A, WS_H2G))
    e("s_lshl_b32 s%d, s%d, 4" % (S_A, S_XCD))
    e("s_add_u32 s%d, s%d, s%d" % (S_A, S_A, S_SLOT))
    e("s_lshl_b32 s%d, s%d, 13" % (S_A, S_A))
    e("s_add_u32 s84, s%d, 0x%x" % (S_A, WS_H3A))
    e("s_lshl_b32 s%d, s%d, 17" % (S_A, S_XCD))
    e("s_lshl_b32 s%d, s%d, 9" % (S_B, S_SLOT))
    e("s_add_u32 s%d, s%d, s%d" % (S_A, S_A, S_B))
    e("s_add_u32 s85, s%d, 0x%x" % (S_A, WS_H3A))
    e("s_add_u32 s86, s%d, 0x%x" % (S_A, WS_H5))
    for n in range(4):
        e("s_add_u32 s%d, s85, %d" % (4 + n, 32768 * n))
        e("s_add_u32 s%d, s86, %d" % (8 + n, 32768 * n))
    e("s_lshl_b32 s%d, s80, 1" % S_A)
    e("s_add_u32 s90, s%d, 0x%x" % (S_A, WS_H3B))
    e("s_lshr_b32 s%d, s%d, 3" % (S_C, S_SLOT))
    e("s_lshl_b32 s%d, s%d, 1" % (S_A, S_XCD))
    e("s_add_u32 s%d, s%d, s%d" % (S_C, S_C, S_A))
    e("s_and_b32 s%d, s%d, 7" % (S_D, S_SLOT))
    e("s_mul_i32 s91, s%d, %d" % (S_C, 224 * 2048))
    e("s_lshl_b32 s%d, s%d, 8" % (S_A, S_D))
    e("s_add_u32 s91, s91, s%d" % S_A)
    e("s_min_u32 s%d, s%d, 6" % (S_A, S_WAVE))
    e("s_lshl_b32 s%d, s%d, 10" % (S_B, S_A))
    e("s_mul_i32 s%d, s%d, 7168" % (S_E, S_C))
    e("s_add_u32 s%d, s%d, s%d" % (S_E, S_E, S_B))
    e("s_add_u32 s87, s%d, 0x%x" % (S_E, WS_H4S))
    e("s_add_u32 s88, s%d, 0x%x" % (S_E, WS_H4U))
    e("s_lshl_b32 s%d, s%d, 2" % (S_B, S_A))
    e("v_add_u32 v%d, s%d, v3" % (V_T3, S_B))
    e("v_and_b32 v%d, 7, v%d" % (V_T2, V_T3))
    sigma_of(V_T0, V_T2, V_T1)
    e("v_and_b32 v%d, 7, v1" % V_T1)
    e("v_xor_b32 v%d, v%d, v%d" % (V_T0, V_T0, V_T1))
    e("v_lshlrev_b32 v%d, 4, v%d" % (V_T0, V_T0))
    e("v_lshl_add_u32 v%d, v%d, 7, v%d" % (V_T0, V_T3, V_T0))
    e("v_bfe_u32 v%d, v1, 3, 1" % V_T1)
    e("v_lshl_add_u32 v%d, v%d, 3, v%d" % (V_T0, V_T1, V_T0))
    e("v_add_u32 v%d, %d, v%d" % (V_AWD, L_ACT, V_T0))
    e("s_lshl_b32 s%d, s%d, 4" % (S_A, S_D))
    e("s_add_u32 s%d, s%d, s%d" % (S_A, S_A, S_C))
    e("s_lshl_b32 s%d, s%d, 13" % (S_A, S_A))
    e("s_add_u32 s89, s%d, 0x%x" % (S_A, WS_H5))
    e("v_and_b32 v%d, 31, v1" % V_T0)
    e("v_lshlrev_b32 v%d, 4, v%d" % (V_T0, V_T0))
    e("v_add_u32 v%d, %d, v%d" % (V_ZA, L_ACT + 28 * 128, V_T0))
    for k in range(4): e("v_mov_b32 v%d, 0" % (V_ZQ + k))
    srd(SRD_O, S_OUT, 16384)
    e("s_lshr_b32 s%d, s%d, 7" % (S_E, S_WG))
    e("s_mul_i32 s%d, s%d, 7" % (S_A, S_XCD))
    e("s_add_u32 s%d, s%d, s%d" % (S_E, S_E, S_A))
    e("s_sub_u32 s%d, 3, s%d" % (S_E, S_E))
    e("s_and_b32 s%d, s%d, 7" % (S_E, S_E))
    e("s_lshr_b32 s%d, s%d, 3" % (S_A, S_SLOT))
    e("s_mul_i32 s%d, s%d, 56" % (S_A, S_A))
    e("s_min_u32 s%d, s%d, 6" % (S_B, S_WAVE))
    e("s_lshl_b32 s%d, s%d, 3" % (S_B, S_B))
    e("s_add_u32 s%d, s%d, s%d" % (S_A, S_A, S_B))
    e("s_lshr_b32 s%d, s%d, 4" % (S_B, S_A))
    e("s_cmp_eq_u32 s%d, s%d" % (S_B, S_E))
    e("s_cselect_b32 s96, 1, 0")
    e("s_and_b32 s%d, s%d, 8" % (S_A, S_A))
    e("s_lshl_b32 s%d, s%d, 8" % (S_A, S_A))
    e("s_lshl_b32 s%d, s%d, 12" % (S_B, S_XCD))
    e("s_add_u32 s%d, s%d, s%d" % (S_A, S_A, S_B))
    e("s_add_u32 s81, s%d, 0x%x" % (S_A, WS_H4P))
    e("v_lshlrev_b32 v%d, 5, v1" % V_VC)
    e("v_add_u32 v%d, 0x8000, v%d" % (V_VD, V_VC))
    e("v_add_u32 v%d, 0x10000, v%d" % (V_X1 + 12, V_VC))
    e("v_add_u32 v%d, 0x18000, v%d" % (V_X1 + 13, V_VC))
    e("s_lshl_b32 s99, s%d, 19" % S_SLOT)
    e("s_lshl_b32 s%d, s%d, 8" % (S_A, S_XCD))
    e("s_add_u32 s99, s99, s%d" % S_A)
    e("s_barrier")
    e("s_cmp_ge_u32 s%d, 4" % S_WAVE)
    e("s_cbranch_scc1 L_b_warm")
    srd(SRD_W, S_WO, 8 << 20)
    top = poll_begin()
    e("buffer_load_dwordx2 v[%d:%d], v%d, s[%d:%d], s83 offen sc1" % (V_L, V_L + 1, V_Z, SRD_WS, SRD_WS + 3))
    xcc_load(V_L + 2, V_XA, SRD_X)
    poll_end(top, ([] if NOTRIG else [chk64(V_L)]) + xcc_checks(V_L + 2, V_T0))
    xcc_decide(V_L + 2)
    dma_run(SRD_W, ab, 99, 4 * 2048, L_W1, 16, 0, 16, name="wo")
    if DEARLY:
        srd(SRD_W, S_WD, 3584 * 2048)
        dma_run(SRD_W, lambda m: V_X1 + 15 if (m & 2) else V_X1 + 14, 91, 4 * 2048, L_W0, 14, 0, 14)
    if DSPLIT:
        srd(SRD_W, S_WD, 3584 * 2048)
        dma_run(SRD_W, ab, 91, 4 * 2048, L_W0, 8, 0, 8)
    stamp(5)
    e("s_waitcnt vmcnt(%d)" % (14 if DEARLY else 8 if DSPLIT else 0))
    e("s_branch L_b_real")
    lab("L_b_warm")
    if not NOTOUCH:
        e("s_cmp_lg_u32 s%d, 4" % S_WAVE)
        e("s_cbranch_scc1 L_b_notouch")
        e("v_lshlrev_b32 v%d, 7, v1" % V_T0)
        e("v_lshrrev_b32 v%d, 2, v1" % V_T1)
        e("v_lshlrev_b32 v%d, 13, v%d" % (V_T1, V_T1))
        e("v_and_b32 v%d, 3, v1" % V_T2)
        e("v_lshl_add_u32 v%d, v%d, 7, v%d" % (V_T1, V_T2, V_T1))
        e("s_sub_u32 s%d, s87, 4096" % S_A)
        e("s_sub_u32 s%d, s88, 4096" % S_B)
        e("s_lshl_b32 s%d, s%d, 12" % (S_C, S_XCD))
        e("s_add_u32 s%d, s%d, 0x%x" % (S_C, S_C, WS_H4P))
        e("v_and_b32 v%d, 31, v1" % V_T2)
        e("v_lshlrev_b32 v%d, 7, v%d" % (V_T2, V_T2))
        e("v_lshrrev_b32 v%d, 5, v1" % V_T3)
        e("v_lshl_add_u32 v%d, v%d, 15, v%d" % (V_T2, V_T3, V_T2))
        e("v_add_u32 v%d, 0x10000, v%d" % (V_T3, V_T2))
        touch([(V_T1, 85, 0), (V_T0, S_A, 0), (V_T0, S_B, 0), (V_T2, S_C, 0), (V_T3, S_C, 0), (V_Z, 82, 0), (V_Z, 86, 0), (V_Z, 89, 0), (V_Z, 90, 0)])
        if TLBT:
            e("v_mov_b32 v%d, s99" % V_T0)
            e("v_mov_b32 v%d, s91" % V_T1)
            e("global_load_dword v%d, v%d, s[%d:%d]" % (V_X1 + 29, V_T0, S_WO, S_WO + 1))
            e("global_load_dword v%d, v%d, s[%d:%d]" % (V_X1 + 30, V_T1, S_WD, S_WD + 1))
            e("global_load_dword v%d, v%d, s[%d:%d]" % (V_X1 + 31, V_Z, S_OUT, S_OUT + 1))
        lab("L_b_notouch")
    if NODRY: e("s_branch L_b_real0")
    set_dry()
    e("s_branch L_b_tail")
    lab("L_b_real0")
    set_real()
    top = poll_begin()
    xcc_load(V_L, V_XA, SRD_X)
    poll_end(top, xcc_checks(V_L, V_T0))
    xcc_decide(V_L)
    lab("L_b_real")
    e("s_barrier")
    lab("L_b_tail")
    tr256_read(V_WF, V_TR1)
    stamp(6)
    top = poll_begin((V_G, 82, 3, 0, "2" in AT))
    e("buffer_load_dwordx4 v[%d:%d], v%d, s[%d:%d], s82 offen sc1" % (V_L, V_L + 3, V_G, SRD_WS, SRD_WS + 3))
    poll_end(top, [chk64(V_L + 2)], bell=(V_G, 82, 3))
    e("ds_write_b64 v%d, v[%d:%d]" % (V_AW, V_L, V_L + 1))
    stamp(7)
    e("s_waitcnt lgkmcnt(0)")
    barrier(True)
    gemv8(V_ACC, V_WF, V_AF, V_AE, V_AO)
    publish_partial(84, True)
    stamp(8)
    only_red("L_b_nor3")
    reduce16(4)
    stamp(9)
    residual_add(V_U + 4, V_XP)
    e("v_mov_b32 v%d, s%d" % (V_U + 6, S_T))
    e("v_mov_b32 v%d, s%d" % (V_U + 7, S_T))
    e("v_mov_b32_dpp v%d, v%d quad_perm:[1,1,3,3] row_mask:0xf bank_mask:0xf" % (V_U + 5, V_U + 4))
    store_g("buffer_store_dwordx4 v[%d:%d], v%d, s[%d:%d], s90 offen" % (V_U + 4, V_U + 7, V_HO, SRD_WS, SRD_WS + 3), "0x5555")
    e("v_mov_b32 v%d, v%d" % (V_H, V_U + 4))
    stamp(10)
    lab("L_b_nor3")
    if DEARLY:
        barrier(True)
    else:
        e("s_cbranch_execz L_b_nod")
        e("s_barrier")
        srd(SRD_W, S_WD, 3584 * 2048)
        if TRIG2: doorbell(V_Z, 83, 2)
        e("s_cmp_ge_u32 s%d, %d" % (S_WAVE, 6 if DSPLIT else 7))
        e("s_cbranch_scc1 L_b_nod7")
        if DSPLIT: dma_run(SRD_W, ab, 91, 4 * 2048, L_W0, 4, 32, 36, name="d")
        else: dma_run(SRD_W, ab, 91, 4 * 2048, L_W0, 8, 0, 8, name="d")
        lab("L_b_nod7")
        e("s_waitcnt vmcnt(0)")
        e("s_barrier")
        lab("L_b_nod")
    e("ds_write_b128 v%d, v[%d:%d]" % (V_ZA, V_ZQ, V_ZQ + 3))
    tr256_read(V_WF, V_TR)
    stamp(11)
    e("s_cmp_eq_u32 s96, 0")
    e("s_cbranch_scc0 L_b_split")
    lab("L_b_plain")
    top = poll_begin((V_G, 88, 3) if "4" not in NB else None)
    e("buffer_load_dwordx4 v[%d:%d], v%d, s[%d:%d], s87 offen sc1" % (V_L, V_L + 3, V_G, SRD_WS, SRD_WS + 3))
    e("buffer_load_dwordx4 v[%d:%d], v%d, s[%d:%d], s88 offen sc1" % (V_L + 4, V_L + 7, V_G, SRD_WS, SRD_WS + 3))
    poll_end(top, [chk32(V_L + 1), chk32(V_L + 3), chk32(V_L + 5), chk32(V_L + 7)], bell=(V_G, 88, 3))
    unpack(V_U, V_U + 1, V_L); unpack(V_U + 4, V_U + 5, V_L + 4)
    unpack(V_U + 2, V_U + 3, V_L + 2); unpack(V_U + 6, V_U + 7, V_L + 6)
    e("s_cbranch_execnz L_b_join")
    lab("L_b_split")
    top = poll_begin((V_X1 + 12, 81, 3) if "4" not in NB else None)
    for i, va in enumerate((V_VC, V_VD, V_X1 + 12, V_X1 + 13)):
        if i == 2: top2 = poll_mid(top)
        for h in range(2):
            r = V_L + 8 * i + 4 * h
            e("buffer_load_dwordx4 v[%d:%d], v%d, s[%d:%d], s81 offen offset:%d sc1" % (r, r + 3, va, SRD_WS, SRD_WS + 3, 16 * h))
    poll_end(top, [chk64(V_L + 4 * i + 2) for i in range(8)], last=top2, bell=(V_X1 + 12, 81, 3))
    for mat in range(2):
        for h in range(2):
            for k in range(2):
                e("v_add_f32 v%d, v%d, v%d" % (V_U + 4 * mat + 2 * h + k, V_L + 16 * mat + 4 * h + k, V_L + 16 * mat + 8 + 4 * h + k))
    for i in range(4):
        e("v_cvt_pk_bf16_f32 v%d, v%d, v%d" % (V_L + i, V_U + 2 * i, V_U + 2 * i + 1))
    for i in range(4):
        unpack(V_U + 2 * i, V_U + 2 * i + 1, V_L + i)
    for k in range(4): e("v_mul_f32 v%d, %s, v%d" % (V_U + k, f32(-LOG2E), V_U + k))
    for k in range(4): e("v_exp_f32 v%d, v%d" % (V_U + k, V_U + k))
    for k in range(4): e("v_add_f32 v%d, 1.0, v%d" % (V_U + k, V_U + k))
    for k in range(4): e("v_rcp_f32 v%d, v%d" % (V_U + k, V_U + k))
    e("s_nop 0")
    for i in range(2):
        e("v_cvt_pk_bf16_f32 v%d, v%d, v%d" % (V_L + i, V_U + 2 * i, V_U + 2 * i + 1))
    for i in range(2):
        unpack(V_U + 2 * i, V_U + 2 * i + 1, V_L + i)
    lab("L_b_join")
    stamp(12)
    for k in range(4): e("v_mul_f32 v%d, v%d, v%d" % (V_U + k, V_U + k, V_U + 4 + k))
    e("v_cvt_pk_bf16_f32 v%d, v%d, v%d" % (V_U + 16, V_U, V_U + 1))
    e("v_cvt_pk_bf16_f32 v%d, v%d, v%d" % (V_U + 17, V_U + 2, V_U + 3))
    e("ds_write_b64 v%d, v[%d:%d]" % (V_AWD, V_U + 16, V_U + 17))
    e("s_waitcnt lgkmcnt(0)")
    barrier(True)
    gemv8(V_ACC, V_WF, V_AF, V_AE, V_AO)
    publish_partial(89, False)
    stamp(13)
    noep = uid("noep")
    e("s_add_u32 s%d, s2, s%d" % (S_A, S_WAVE))
    e("s_cmp_lg_u32 s%d, 0" % S_A)
    e("s_cbranch_scc1 %s" % noep)
    e("s_mov_b64 exec, 1")
    e("v_mov_b32 v%d, s%d" % (V_T0, S_F))
    e("buffer_store_dword v%d, v%d, s[%d:%d], 0 offen sc1" % (V_T0, V_Z, SRD_WS, SRD_WS + 3))
    e("s_mov_b64 exec, -1")
    lab(noep)
    only_red("L_b_end2")
    reduce16(8, BELL5)
    stamp(14)
    residual_add(V_U + 4, V_H)
    store_g("buffer_store_dword v%d, v%d, s[%d:%d], s80 offen" % (V_U + 4, V_X1, SRD_O, SRD_O + 3), "0xffff", flags="")
    e("s_cmp_lg_u32 s%d, 0" % S_DRY)
    e("s_cbranch_scc1 L_b_real0")
    stamp(15)
    lab("L_b_end")
    stamps_flush(V_U)
    e("s_endpgm")
    lab("L_b_end2")
    if "b" in CLEAN: clean("buffer_store_dwordx4 v[%d:%d], v%d, s[%d:%d], s84 offen" % (V_P, V_P + 3, V_PUB, SRD_WS, SRD_WS + 3))
    e("s_branch L_b_end")

def role_a():
    cmt("================= role A =================")
    KO = V_X1
    KA = V_X1 + 4
    QE, QO, QW, PW0, PW1, SW, SR, XA, EP = [V_X1 + 8 + i for i in range(9)]
    ab = lambda m: V_VB if (m & 2) else V_VA
    dma256_voff(V_VA, V_VB, 256, V_T0)
    e("s_lshl_b32 s%d, s%d, 22" % (S_E, S_XCD))
    e("s_lshr_b32 s%d, s%d, 2" % (S_C, S_SLOT))
    e("s_lshl_b32 s%d, s%d, 20" % (S_A, S_C))
    e("s_add_u32 s%d, s%d, s%d" % (S_E, S_E, S_A))
    e("s_and_b32 s%d, s%d, 3" % (S_D, S_SLOT))
    e("s_lshl_b32 s%d, s%d, 16" % (S_A, S_D))
    e("s_add_u32 s%d, s%d, s%d" % (S_E, S_E, S_A))
    e("s_add_u32 s%d, s%d, 0x%x" % (S_E, S_E, 3072 * 256))
    e("v_xor_b32 v%d, v2, v3" % V_T0)
    e("v_lshlrev_b32 v%d, 4, v%d" % (V_T0, V_T0))
    e("v_lshl_add_u32 v%d, v3, 8, v%d" % (KO, V_T0))
    for i in range(1, 4): e("v_xor_b32 v%d, %d, v%d" % (KO + i, 64 * i, KO))
    e("s_waitcnt lgkmcnt(0)")
    if STAMPS: e("s_mov_b32 s%d, s%d" % (S_ST, S_TM))
    e("s_load_dword s100, s[%d:%d], 0" % (S_WS, S_WS + 1))
    srd(SRD_O, S_DBG, 256)
    xcc_publish(V_T0, SRD_O, 0)
    e("s_cmp_ge_u32 s%d, %d" % (S_WAVE, NLD))
    e("s_cbranch_scc1 L_a_noissue0")
    srd(SRD_X, S_K, 32 << 20)
    def thr(c):
        if AWIN <= c < ATHR: e("s_waitcnt vmcnt(%d)" % (AWIN - 1))
    if KFIRST:
        dma_run(SRD_X, lambda m: KO + (m & 3), S_E, 1024, L_W1, 16, 0, 16, pre=thr, name="k")
    else:
        srd(SRD_W, S_V, 32 << 20)
        dma_run(SRD_W, ab, S_E, 1024, L_W0, 16, 0, 16, pre=thr, name="v")
        dma_run(SRD_X, lambda m: KO + (m & 3), S_E, 1024, L_W1, 8, 0, 8, pre=lambda m: thr(16 + m), name="k")
        dma_run(SRD_X, lambda m: KO + (m & 3), S_E, 1024, L_W1, 8, 32, 40, name="k")
    lab("L_a_noissue0")
    srd(SRD_WS, S_WS, WS_SIZE)
    stamp(1)
    common_consts()
    e("v_lshlrev_b32 v%d, 4, v1" % V_G)
    tr256_addr(V_TR, V_T0)
    e("v_xor_b32 v%d, v2, v3" % V_T0)
    e("v_lshlrev_b32 v%d, 4, v%d" % (V_T0, V_T0))
    e("v_lshl_add_u32 v%d, v2, 8, v%d" % (V_T0, V_T0))
    e("s_lshl_b32 s%d, s%d, 13" % (S_A, S_WAVE))
    e("s_add_u32 s%d, s%d, %d" % (S_A, S_A, L_W1))
    e("v_add_u32 v%d, s%d, v%d" % (KA, S_A, V_T0))
    for i in range(1, 4): e("v_xor_b32 v%d, %d, v%d" % (KA + i, 64 * i, KA))
    act_rd_addr(QE, QO, V_T0, L_QB)
    act_rd_addr(V_AE, V_AO, V_T0, L_PB)
    e("v_bfe_u32 v%d, v1, 2, 3" % V_T2)
    sigma_of(V_T0, V_T2, V_T1)
    e("v_xor_b32 v%d, s%d, v%d" % (V_T0, S_WAVE, V_T0))
    e("v_lshlrev_b32 v%d, 4, v%d" % (V_T0, V_T0))
    e("v_lshrrev_b32 v%d, 2, v1" % V_T1)
    e("v_lshl_add_u32 v%d, v%d, 7, v%d" % (V_T0, V_T1, V_T0))
    e("v_and_b32 v%d, 3, v1" % V_T1)
    e("v_lshl_add_u32 v%d, v%d, 2, v%d" % (V_T0, V_T1, V_T0))
    e("v_add_u32 v%d, %d, v%d" % (QW, L_QB, V_T0))
    e("v_and_b32 v%d, 2, v3" % V_T0)
    e("s_and_b32 s%d, s%d, 1" % (S_A, S_WAVE))
    e("v_or_b32 v%d, s%d, v%d" % (V_T0, S_A, V_T0))
    e("v_and_b32 v%d, 7, v1" % V_T1)
    e("v_xor_b32 v%d, v%d, v%d" % (V_T0, V_T0, V_T1))
    e("v_lshlrev_b32 v%d, 4, v%d" % (V_T0, V_T0))
    e("v_lshrrev_b32 v%d, 1, v3" % V_T1)
    e("v_lshl_add_u32 v%d, v%d, 7, v%d" % (V_T0, V_T1, V_T0))
    e("v_and_b32 v%d, 1, v3" % V_T1)
    e("v_lshl_add_u32 v%d, v%d, 3, v%d" % (V_T0, V_T1, V_T0))
    e("s_lshl_b32 s%d, s%d, 9" % (S_A, S_WAVE))
    e("s_add_u32 s%d, s%d, %d" % (S_A, S_A, L_PB))
    e("v_add_u32 v%d, s%d, v%d" % (PW0, S_A, V_T0))
    e("v_xor_b32 v%d, 64, v%d" % (PW1, PW0))
    e("v_add_u32 v%d, 0x100, v%d" % (PW1, PW1))
    e("v_cndmask_b32 v%d, v%d, v%d, s[%d:%d]" % (PW0, PW0, PW1, S_HI8, S_HI8 + 1))
    e("v_and_b32 v%d, 7, v1" % V_T0)
    e("v_lshlrev_b32 v%d, 2, v%d" % (XA, V_T0))
    e("v_lshlrev_b32 v%d, 6, v%d" % (V_T0, V_T0))
    e("v_add_u32 v%d, %d, v%d" % (SR, L_MX, V_T0))
    e("s_lshl_b32 s%d, s%d, 2" % (S_A, S_WAVE))
    e("v_add_u32 v%d, s%d, v%d" % (SW, S_A, SR))
    e("s_lshl_b32 s%d, s%d, 3" % (S_A, S_C))
    e("s_add_u32 s%d, s%d, s%d" % (S_A, S_A, S_WAVE))
    e("s_lshl_b32 s%d, s%d, 15" % (S_A, S_A))
    e("s_lshl_b32 s%d, s%d, 10" % (S_B, S_XCD))
    e("s_add_u32 s%d, s%d, s%d" % (S_A, S_A, S_B))
    e("s_add_u32 s80, s%d, 0x%x" % (S_A, WS_H1))
    for i in range(1, 4): e("s_add_u32 s%d, s80, %d" % (80 + i, 8192 * i))
    e("s_lshl_b32 s%d, s%d, 3" % (S_A, S_C))
    e("s_add_u32 s%d, s%d, s%d" % (S_A, S_A, S_XCD))
    e("s_lshl_b32 s%d, s%d, 14" % (S_A, S_A))
    e("s_add_u32 s%d, s%d, 0x%x" % (S_A, S_A, WS_H2))
    e("s_lshl_b32 s%d, s%d, 10" % (S_B, S_D))
    e("s_add_u32 s87, s%d, s%d" % (S_A, S_B))
    for i in range(1, 4): e("s_add_u32 s%d, s87, %d" % (87 + i, 4096 * i))
    e("s_lshl_b32 s%d, s%d, 12" % (S_B, S_D))
    e("s_add_u32 s%d, s%d, s%d" % (S_A, S_A, S_B))
    e("s_lshl_b32 s%d, s%d, 6" % (S_B, S_WAVE))
    e("s_add_u32 s84, s%d, s%d" % (S_A, S_B))
    e("v_and_b32 v%d, 7, v1" % V_T0)
    e("v_lshlrev_b32 v%d, 9, v%d" % (V_PUB, V_T0))
    e("v_lshl_add_u32 v%d, v3, 4, v%d" % (V_PUB, V_PUB))
    e("s_lshl_b32 s%d, s%d, 3" % (S_A, S_SLOT))
    e("s_add_u32 s%d, s%d, s%d" % (S_A, S_A, S_XCD))
    e("s_lshl_b32 s%d, s%d, 10" % (S_A, S_A))
    e("s_add_u32 s91, s%d, 0x%x" % (S_A, WS_H2G))
    e("s_mov_b32 s96, %s" % f32(LOG2E))
    e("s_cmp_lt_u32 s%d, %d" % (S_WAVE, NLD))
    e("s_cbranch_scc1 L_a_real")
    if NODRY: e("s_branch L_a_real0")
    set_dry()
    e("s_branch L_a_att")
    def gu_scalar_setup():
        GO = V_GO
        e("s_lshr_b32 s%d, s%d, 7" % (S_D, S_WG))
        e("s_mul_i32 s%d, s%d, 7" % (S_A, S_XCD))
        e("s_add_u32 s%d, s%d, s%d" % (S_D, S_D, S_A))
        e("s_sub_u32 s%d, 3, s%d" % (S_D, S_D))
        e("s_and_b32 s%d, s%d, 7" % (S_D, S_D))
        e("s_mov_b32 s101, 0")
        e("s_cmp_ge_u32 s%d, 7" % S_SLOT)
        e("s_cselect_b32 s%d, 7, 0" % S_B)
        e("s_cselect_b32 s100, 1, 0")
        e("s_sub_u32 s%d, s%d, s%d" % (S_C, S_SLOT, S_B))
        e("s_cmp_eq_u32 s%d, s%d" % (S_C, S_D))
        e("s_cselect_b32 s99, 1, 0")
        e("s_cmp_lt_u32 s%d, 14" % S_SLOT)
        e("s_cbranch_scc1 L_a_nohelp")
        e("s_cmp_eq_u32 s%d, 7" % S_D)
        e("s_cselect_b32 s101, 1, 0")
        e("s_mov_b32 s%d, s%d" % (S_C, S_D))
        e("s_sub_u32 s100, s%d, 14" % S_SLOT)
        e("s_mov_b32 s99, 2")
        lab("L_a_nohelp")
        e("s_cmp_lg_u32 s100, 0")
        e("s_cselect_b32 s%d, s%d, s%d" % (SRD_W, S_WU, S_WG))
        e("s_cselect_b32 s%d, s%d, s%d" % (S_A, S_WU + 1, S_WG + 1))
        e("s_cselect_b32 s85, 0x%x, 0" % (WS_H4U - WS_H4S))
        e("s_add_u32 s85, s85, 0x%x" % WS_H4S)
        e("s_and_b32 s%d, s%d, 0xffff" % (SRD_W + 1, S_A))
        e("s_cmp_lg_u32 s101, 0")
        e("s_cselect_b32 s%d, 0, 0x%x" % (SRD_W + 2, 1024 * 7168))
        e("s_mov_b32 s%d, 0x20000" % (SRD_W + 3))
        e("s_mul_i32 s%d, s%d, 7" % (S_A, S_XCD))
        e("s_add_u32 s%d, s%d, s%d" % (S_C, S_C, S_A))
        e("v_lshrrev_b32 v%d, 3, v1" % V_T0)
        e("v_bfe_u32 v%d, v1, 4, 1" % V_T1)
        e("v_and_b32 v%d, 7, v1" % V_T2)
        e("v_xor_b32 v%d, v%d, v%d" % (V_T1, V_T1, V_T2))
        e("v_lshlrev_b32 v%d, 4, v%d" % (V_T1, V_T1))
        e("v_mul_u32_u24 v%d, 7168, v%d" % (GO, V_T0))
        e("v_add_u32 v%d, v%d, v%d" % (GO, GO, V_T1))
        for i in range(1, 4): e("v_xor_b32 v%d, %d, v%d" % (GO + i, 32 * i, GO))
        e("s_and_b32 s%d, s%d, 1" % (S_A, S_WAVE))
        e("s_lshl_b32 s%d, s%d, 6" % (S_A, S_A))
        e("v_xor_b32 v%d, s%d, v%d" % (GO + 4, S_A, GO))
        e("v_xor_b32 v%d, 32, v%d" % (GO + 5, GO + 4))
        NE = 8 * GE
        e("s_cmp_eq_u32 s99, 2")
        e("s_cselect_b32 s%d, 64, 0" % S_B)
        e("s_mul_i32 s%d, s%d, %d" % (S_A, S_WAVE, GE))
        e("s_add_u32 s%d, s%d, s%d" % (S_A, S_A, S_B))
        e("s_lshl_b32 s9, s%d, 10" % S_A)
        e("s_mul_i32 s8, s%d, %d" % (S_A, 8 * 7168))
        e("s_lshl_b32 s%d, s%d, 7" % (S_E, S_C))
        e("s_add_u32 s8, s8, s%d" % S_E)
        e("s_cmp_eq_u32 s99, 0")
        e("s_cselect_b32 s%d, %d, %d" % (S_A, (128 - NE) // 4, (64 - NE) // 4))
        e("s_cselect_b32 s6, %d, %d" % ((128 - NE) // 32, (64 - NE) // 32))
        e("s_mul_i32 s%d, s%d, s%d" % (S_A, S_A, S_WAVE))
        e("s_add_u32 s%d, s%d, s%d" % (S_A, S_A, S_B))
        e("s_add_u32 s%d, s%d, %d" % (S_A, S_A, NE))
        e("s_lshl_b32 s5, s%d, 10" % S_A)
        e("s_mul_i32 s4, s%d, %d" % (S_A, 8 * 7168))
        e("s_add_u32 s4, s4, s%d" % S_E)
    def gu_early(ms):
        if not ms or "gu" in SKIP: return
        l = uid("nge")
        e("s_cbranch_execz %s" % l)
        for m in ms:
            e("s_mov_b32 m0, s9")
            e("s_add_u32 s9, s9, 1024")
            e("buffer_load_dwordx4 v%d, s[%d:%d], s8 offen nt lds" % (V_GO + 4 + (m & 1) if GE == 4 else V_GO + ((m & 1) | (((m >> 2) & 1) << 1)), SRD_W, SRD_W + 3))
            e("s_add_u32 s8, s8, %d" % (8 * 7168))
        lab(l)
    def h1_loads():
        for k in range(4):
            e("buffer_load_dwordx4 v[%d:%d], v%d, s[%d:%d], s%d offen sc1" % (V_L + 4 * k, V_L + 4 * k + 3, V_G, SRD_WS, SRD_WS + 3, 80 + k))
        xcc_load(V_L + 16, XA, SRD_O)
    def trig1(w):
        notr = uid("notr")
        e("s_cmp_lg_u32 s%d, %d" % (S_WAVE, w))
        e("s_cbranch_scc1 %s" % notr)
        e("s_lshl_b32 s%d, s%d, 3" % (S_A, S_SLOT))
        e("s_or_b32 s%d, s%d, s%d" % (S_A, S_A, S_XCD))
        e("s_lshl_b32 s%d, s%d, 7" % (S_A, S_A))
        e("s_add_u32 s%d, s%d, 0x%x" % (S_A, S_A, WS_TRIG))
        e("s_mov_b64 exec, 1")
        e("buffer_store_dwordx2 v[%d:%d], v%d, s[%d:%d], s%d offen sc1" % (V_T2 + 1, V_T2 + 2, V_Z, SRD_WS, SRD_WS + 3, S_A) if False else
          "buffer_store_dwordx2 v[%d:%d], v%d, s[%d:%d], s%d offen sc1" % (V_X1 + 18, V_X1 + 19, V_Z, SRD_WS, SRD_WS + 3, S_A))
        full()
        lab(notr)
    if KFIRST:
        lab("L_a_real0")
        e("s_waitcnt vmcnt(0)")
        e("s_branch L_a_sync")
        lab("L_a_real")
        dma_run(SRD_W, ab, S_E, 1024, L_W0, 16, 0, VP, pre=lambda m: thr(16 + m), name="v")
        e("s_waitcnt vmcnt(%d)" % VP)
        lab("L_a_sync")
        set_real()
        make_tag(EP)
        e("v_mov_b32 v%d, s%d" % (V_X1 + 18, S_T))
        e("v_mov_b32 v%d, s%d" % (V_X1 + 19, S_T))
        e("s_barrier")
        stamp(2)
        lab("L_a_att")
        e("s_cbranch_execz L_a_h1k")
        h1_loads()
        e("s_cmp_ge_u32 s%d, 4" % S_WAVE)
        e("s_cbranch_scc1 L_a_h1k")
        if VP < 16:
            dma_run(SRD_W, ab, S_E, 1024, L_W0, 16, VP, 16, name="v")
        lab("L_a_h1k")
    else:
        lab("L_a_real0")
        set_real()
        if not NOTOUCH:
            e("s_cmp_lg_u32 s%d, 4" % S_WAVE)
            e("s_cbranch_scc1 L_a_notouch")
            e("v_and_b32 v%d, 7, v1" % V_T0)
            e("v_lshlrev_b32 v%d, 7, v%d" % (V_T0, V_T0))
            e("v_bfe_u32 v%d, v1, 3, 2" % V_T1)
            e("v_lshl_add_u32 v%d, v%d, 12, v%d" % (V_T0, V_T1, V_T0))
            touch([(V_T0, 87, 0), (V_Z, 80, 0), (V_Z, 91, 0)])
            if TLBT:
                e("v_min_u32 v%d, 27, v1" % V_T1)
                e("v_lshlrev_b32 v%d, 18, v%d" % (V_T1, V_T1))
                e("global_load_dword v%d, v%d, s[%d:%d]" % (V_X1 + 23, V_T1, S_WG, S_WG + 1))
                e("global_load_dword v%d, v%d, s[%d:%d]" % (V_X1 + 23, V_T1, S_WU, S_WU + 1))
                e("s_mov_b32 s%d, 0x%x" % (S_A, WS_H3B))
                e("s_mov_b32 s%d, 0x%x" % (S_B, WS_H4P))
                e("buffer_load_dword v%d, v%d, s[%d:%d], s%d offen offset:64 sc1" % (V_X1 + 23, V_Z, SRD_WS, SRD_WS + 3, S_B))
            lab("L_a_notouch")
        lab("L_a_real")
        set_real()
        make_tag()
        gu_scalar_setup()
        e("s_waitcnt vmcnt(%d)" % (TRIGV * 4 // NLD))
        notr = uid("notr")
        e("s_cmp_lg_u32 s%d, 0" % S_WAVE)
        e("s_cbranch_scc1 %s" % notr)
        e("s_lshl_b32 s%d, s%d, 3" % (S_A, S_SLOT))
        e("s_or_b32 s%d, s%d, s%d" % (S_A, S_A, S_XCD))
        e("s_lshl_b32 s%d, s%d, 7" % (S_A, S_A))
        e("s_add_u32 s%d, s%d, 0x%x" % (S_A, S_A, WS_TRIG))
        e("s_mov_b64 exec, 1")
        e("buffer_store_dwordx2 v[%d:%d], v%d, s[%d:%d], s%d offen sc1" % (V_P + 2, V_P + 3, V_Z, SRD_WS, SRD_WS + 3, S_A))
        e("s_mov_b64 exec, -1")
        lab(notr)
        e("s_waitcnt vmcnt(%d)" % (64 // NLD))
        e("s_barrier")
        stamp(2)
        tr256_read(V_WF, V_TR)
        lab("L_a_att")
        e("s_cbranch_execz L_a_h1k")
        if H1LATE:
            e("s_waitcnt vmcnt(%d)" % H1V)
            e("s_barrier")
            h1_loads()
            e("s_waitcnt vmcnt(5)")
            e("s_barrier")
        else:
            h1_loads()
            e("s_waitcnt vmcnt(5)")
            e("s_barrier")
        lab("L_a_h1k")
        stamp(3)
    for sg in range(4):
        for t in range(2):
            r = V_KF + 16 * t + 4 * sg
            e("ds_read_b128 v[%d:%d], v%d offset:%d" % (r, r + 3, KA + sg, t * 4096))
    e("s_cbranch_execz L_a_h1_nl")
    if KFIRST:
        e("s_cmp_ge_u32 s%d, 4" % S_WAVE)
        e("s_cbranch_scc1 L_a_h1w")
        e("s_waitcnt vmcnt(%d)" % (16 - VP))
        e("s_branch L_a_h1_nl")
    else:
        e("s_branch L_a_h1w")
    lab("L_a_h1")
    h1_loads()
    lab("L_a_h1w")
    poll_end("L_a_h1", [chk64(V_L + 4 * k + 2) for k in range(4)] + xcc_checks(V_L + 16, V_T0))
    stamp(4)
    e("v_pk_add_f32 v[%d:%d], v[%d:%d], v[%d:%d]" % (V_L, V_L + 1, V_L, V_L + 1, V_L + 4, V_L + 5))
    e("v_pk_add_f32 v[%d:%d], v[%d:%d], v[%d:%d]" % (V_L + 8, V_L + 9, V_L + 8, V_L + 9, V_L + 12, V_L + 13))
    e("v_pk_add_f32 v[%d:%d], v[%d:%d], v[%d:%d]" % (V_L, V_L + 1, V_L, V_L + 1, V_L + 8, V_L + 9))
    e("v_cvt_pk_bf16_f32 v%d, v%d, v%d" % (V_T0, V_L, V_L + 1))
    e("ds_write_b32 v%d, v%d" % (QW, V_T0))
    xcc_decide(V_L + 16)
    e("s_waitcnt lgkmcnt(0)")
    barrier(True)
    for sg in range(4):
        e("ds_read_b128 v[%d:%d], v%d offset:%d" % (V_AF + 4 * sg, V_AF + 4 * sg + 3, QO if (sg & 1) else QE, sg * 512))
    S0, S1 = V_U, V_U + 4
    gu_early(range(0, GE1))
    for sg in range(4):
        e("s_waitcnt lgkmcnt(%d)" % (3 - sg))
        for t, acc in ((0, S0), (1, S1)):
            e(mfma(acc, V_KF + 16 * t + 4 * sg, V_AF + 4 * sg, None if sg == 0 else acc))
    gu_early(range(GE1, GE))
    e("s_nop 7")
    X = V_U + 8
    W = V_U + 16
    for k in range(4):
        e("v_cndmask_b32 v%d, v%d, v%d, s[%d:%d]" % (X + k, S0 + k, S1 + k, S_HI8, S_HI8 + 1))
    for rnd in range(2):
        for i2 in range(2):
            e("v_cvt_pk_bf16_f32 v%d, v%d, v%d" % (W + i2, X + 2 * i2, X + 2 * i2 + 1))
        for i2 in range(2):
            unpack(X + 2 * i2, X + 2 * i2 + 1, W + i2)
        if rnd == 0:
            for k in range(4):
                e("v_mul_f32 v%d, %s, v%d" % (X + k, f32(128 ** -0.5), X + k))
    e("v_max3_f32 v%d, v%d, v%d, v%d" % (V_M, X, X + 1, X + 2))
    e("v_max_f32 v%d, v%d, v%d" % (V_M, V_M, X + 3))
    e("s_nop 1")
    e(dpp_add(V_M, V_M, "row_ror:8", "v_max_f32"))
    emit(xrow_ops(V_M, V_T0, "v_max_f32"))
    e("v_mul_f32 v%d, s96, v%d" % (V_M, V_M))
    for k in range(4):
        e("v_fma_f32 v%d, v%d, s96, -v%d" % (X + k, X + k, V_M))
    for k in range(4):
        e("v_exp_f32 v%d, v%d" % (X + k, X + k))
    e("s_nop 0")
    e("v_cvt_pk_bf16_f32 v%d, v%d, v%d" % (W, X, X + 1))
    e("v_cvt_pk_bf16_f32 v%d, v%d, v%d" % (W + 1, X + 2, X + 3))
    e("v_add_f32 v%d, v%d, v%d" % (V_SUM, X, X + 1))
    e("v_add_f32 v%d, v%d, v%d" % (V_T1, X + 2, X + 3))
    e("ds_write_b64 v%d, v[%d:%d]" % (PW0, W, W + 1))
    e("v_add_f32 v%d, v%d, v%d" % (V_SUM, V_SUM, V_T1))
    e("s_nop 1")
    e(dpp_add(V_SUM, V_SUM, "row_ror:8"))
    emit(xrow_ops(V_SUM, V_T0))
    e("ds_write2_b32 v%d, v%d, v%d offset0:0 offset1:8" % (SW, V_M, V_SUM))
    if KFIRST:
        e("s_cbranch_execz L_a_nov")
        trig1(4)
        e("s_waitcnt vmcnt(0) lgkmcnt(0)")
        e("s_barrier")
        lab("L_a_nov")
    else:
        e("s_waitcnt lgkmcnt(0)")
        barrier(True)
    stamp(5)
    MS, LS = V_L, V_L + 8
    for i2 in range(4):
        e("ds_read_b128 v[%d:%d], v%d offset:%d" % (V_L + 4 * i2, V_L + 4 * i2 + 3, SR, 16 * i2))
    def pv_reads(m):
        if KFIRST:
            for h in range(2):
                e("ds_read_b64_tr_b16 v[%d:%d], v%d offset:%d" % (V_WF + 4 * m + 2 * h, V_WF + 4 * m + 2 * h + 1, V_TR, m * 8192 + h * 1024))
        e("ds_read_b128 v[%d:%d], v%d offset:%d" % (V_AF + 4 * m, V_AF + 4 * m + 3, V_AO if (m & 1) else V_AE, m * 512))
    for m in range(4 if KFIRST else 8): pv_reads(m)
    AC = V_U
    side = ["v_max3_f32 v%d, v%d, v%d, v%d" % (V_M, MS, MS + 1, MS + 2),
            "v_max3_f32 v%d, v%d, v%d, v%d" % (V_T0, MS + 3, MS + 4, MS + 5),
            "v_max3_f32 v%d, v%d, v%d, v%d" % (V_M, V_M, MS + 6, MS + 7),
            "v_max_f32 v%d, v%d, v%d" % (V_M, V_M, V_T0)]
    side += ["v_sub_f32 v%d, v%d, v%d" % (MS + i2, MS + i2, V_M) for i2 in range(8)]
    side += ["v_exp_f32 v%d, v%d" % (MS + i2, MS + i2) for i2 in range(8)]
    side += ["v_mul_f32 v%d, v%d, v%d" % (V_SUM, LS, MS), "v_mul_f32 v%d, v%d, v%d" % (V_T1, LS + 1, MS + 1)]
    for i2 in range(2, 8, 2):
        side += ["v_fmac_f32 v%d, v%d, v%d" % (V_SUM, LS + i2, MS + i2), "v_fmac_f32 v%d, v%d, v%d" % (V_T1, LS + i2 + 1, MS + i2 + 1)]
    side += ["v_add_f32 v%d, v%d, v%d" % (V_SUM, V_SUM, V_T1),
             "v_rcp_f32 v%d, v%d" % (V_RS, V_SUM), "v_log_f32 v%d, v%d" % (V_T1, V_SUM), "s_nop 0",
             "v_add_f32 v%d, v%d, v%d" % (V_P + 2, V_T1, V_M)]
    per = (len(side) + 7) // 8
    for m in range(8):
        e("s_waitcnt lgkmcnt(%d)" % ((9 if m < 5 else 3 * (7 - m)) if KFIRST else 7 - m))
        e(mfma(AC + 4 * m, V_WF + 4 * m, V_AF + 4 * m, None))
        if KFIRST and m < 4: pv_reads(m + 4)
        emit(side[m * per:(m + 1) * per])
    def bsel(r):
        return (r & ~1, "op_sel:[0,%d,0] op_sel_hi:[1,%d,1]" % (r & 1, r & 1), "op_sel:[0,%d] op_sel_hi:[1,%d]" % (r & 1, r & 1))
    for m in range(8):
        fb, sel, sel2 = bsel(MS + m)
        for h in range(2):
            a = V_ACC + 2 * h
            if m == 0:
                e("v_pk_mul_f32 v[%d:%d], v[%d:%d], v[%d:%d] %s" % (a, a + 1, AC + 2 * h, AC + 2 * h + 1, fb, fb + 1, sel2))
            else:
                e("v_pk_fma_f32 v[%d:%d], v[%d:%d], v[%d:%d], v[%d:%d] %s" % (a, a + 1, AC + 4 * m + 2 * h, AC + 4 * m + 2 * h + 1, fb, fb + 1, a, a + 1, sel))
    fb, sel, sel2 = bsel(V_RS)
    for h in range(2):
        a = V_ACC + 2 * h
        e("v_pk_mul_f32 v[%d:%d], v[%d:%d], v[%d:%d] %s" % (a, a + 1, a, a + 1, fb, fb + 1, sel2))
    e("v_cvt_pk_bf16_f32 v%d, v%d, v%d" % (V_P, V_ACC, V_ACC + 1))
    e("v_cvt_pk_bf16_f32 v%d, v%d, v%d" % (V_P + 1, V_ACC + 2, V_ACC + 3))
    store_l("buffer_store_dwordx4 v[%d:%d], v%d, s[%d:%d], s84 offen" % (V_P, V_P + 3, V_PUB, SRD_WS, SRD_WS + 3), "lo8")
    stamp(6)
    e("s_sub_u32 s%d, s%d, 1" % (S_A, S_WAVE))
    e("s_cmp_lt_u32 s%d, 3" % S_A)
    e("s_cbranch_scc1 L_a_nocomb")
    e("s_cmp_lg_u32 s%d, 0" % S_DRY)
    e("s_cbranch_scc1 L_a_comb")
    e("s_cmp_lg_u32 s%d, 0" % S_WAVE)
    e("s_cbranch_scc1 L_a_nocomb")
    lab("L_a_comb")
    top = poll_begin()
    for s in range(4):
        e("buffer_load_dwordx4 v[%d:%d], v%d, s[%d:%d], s%d offen sc1" % (V_L + 4 * s, V_L + 4 * s + 3, V_G, SRD_WS, SRD_WS + 3, 87 + s))
    poll_end(top, [chk32(V_L + 4 * s + 3) for s in range(4)])
    Ls = [V_L + 4 * s + 2 for s in range(4)]
    e("v_max3_f32 v%d, v%d, v%d, v%d" % (V_T0, Ls[0], Ls[1], Ls[2]))
    e("v_max_f32 v%d, v%d, v%d" % (V_T0, V_T0, Ls[3]))
    for s in range(4): e("v_sub_f32 v%d, v%d, v%d" % (Ls[s], Ls[s], V_T0))
    for s in range(4): e("v_exp_f32 v%d, v%d" % (Ls[s], Ls[s]))
    for s in range(4):
        unpack(V_U + 4 * s, V_U + 4 * s + 1, V_L + 4 * s)
        unpack(V_U + 4 * s + 2, V_U + 4 * s + 3, V_L + 4 * s + 1)
    e("v_add_f32 v%d, v%d, v%d" % (V_T0, Ls[0], Ls[1]))
    e("v_add_f32 v%d, v%d, v%d" % (V_T1, Ls[2], Ls[3]))
    e("v_add_f32 v%d, v%d, v%d" % (V_T0, V_T0, V_T1))
    e("v_rcp_f32 v%d, v%d" % (V_T0, V_T0))
    for k in range(4):
        e("v_mul_f32 v%d, v%d, v%d" % (V_U + k, V_U + k, Ls[0]))
    for s in range(1, 4):
        for k in range(4):
            e("v_fmac_f32 v%d, v%d, v%d" % (V_U + k, V_U + 4 * s + k, Ls[s]))
    for k in range(4):
        e("v_mul_f32 v%d, v%d, v%d" % (V_U + k, V_U + k, V_T0))
    e("v_cvt_pk_bf16_f32 v%d, v%d, v%d" % (V_U + 16, V_U, V_U + 1))
    e("v_cvt_pk_bf16_f32 v%d, v%d, v%d" % (V_U + 17, V_U + 2, V_U + 3))
    e("v_mov_b32 v%d, s%d" % (V_U + 18, S_T))
    e("v_mov_b32 v%d, s%d" % (V_U + 19, S_T))
    store_g("buffer_store_dwordx4 v[%d:%d], v%d, s[%d:%d], s91 offen" % (V_U + 16, V_U + 19, V_G, SRD_WS, SRD_WS + 3))
    stamp(13)
    lab("L_a_nocomb")
    e("s_cmp_lg_u32 s%d, 0" % S_DRY)
    e("s_cbranch_scc1 L_a_real0")
    e("s_cmp_lg_u32 s101, 0")
    e("s_cbranch_scc1 L_a_idle")
    e("s_mov_b32 s96, s100")
    e("s_mov_b32 s%d, s4" % S_A)
    e("s_mov_b32 s%d, s5" % S_B)
    e("s_mov_b32 s%d, s6" % S_D)
    e("s_barrier")
    e("s_cmp_ge_u32 s%d, %d" % (S_WAVE, 0 if "gu" in SKIP else 4))
    e("s_cbranch_scc1 L_a_gusetup")
    e("s_cmp_eq_u32 s%d, 0" % S_D)
    e("s_cbranch_scc1 L_a_gusetup")
    def gu_group(win):
        for m in range(8):
            e("s_mov_b32 m0, s%d" % S_B)
            if win and m >= win: e("s_waitcnt vmcnt(%d)" % (win - 1))
            e("s_add_u32 s%d, s%d, 1024" % (S_B, S_B))
            var = (m & 1) | (((m >> 2) & 1) << 1)
            e("buffer_load_dwordx4 v%d, s[%d:%d], s%d offen nt lds" % (V_GO + var, SRD_W, SRD_W + 3, S_A))
            e("s_add_u32 s%d, s%d, %d" % (S_A, S_A, 8 * 7168))
    if GW:
        gu_group(GW)
        e("s_sub_u32 s%d, s%d, 1" % (S_D, S_D))
    lab("L_a_guld")
    gu_group(0)
    e("s_sub_u32 s%d, s%d, 1" % (S_D, S_D))
    e("s_cmp_lg_u32 s%d, 0" % S_D)
    e("s_cbranch_scc1 L_a_guld")
    stamp(7)
    lab("L_a_gusetup")
    e("v_bfe_u32 v%d, v1, 3, 1" % V_T0)
    e("v_and_b32 v%d, 1, v3" % V_T1)
    e("v_lshl_or_b32 v%d, v%d, 1, v%d" % (V_T0, V_T1, V_T0))
    e("v_bfe_u32 v%d, v1, 1, 1" % V_T1)
    e("v_lshl_or_b32 v%d, v%d, 2, v%d" % (V_T0, V_T1, V_T0))
    e("v_xor_b32 v%d, s%d, v%d" % (V_T0, S_WAVE, V_T0))
    e("v_lshlrev_b32 v%d, 4, v%d" % (V_T0, V_T0))
    e("v_bfe_u32 v%d, v1, 2, 2" % V_T2)
    e("v_lshl_add_u32 v%d, v3, 3, v%d" % (V_T2, V_T2))
    e("v_lshl_add_u32 v%d, v%d, 5, v%d" % (V_T2, V_T1, V_T2))
    e("v_lshl_add_u32 v%d, v%d, 7, v%d" % (V_T0, V_T2, V_T0))
    e("v_and_b32 v%d, 1, v1" % V_T1)
    e("v_lshl_add_u32 v%d, v%d, 3, v%d" % (V_TR, V_T1, V_T0))
    e("v_add_u32 v%d, 0x10000, v%d" % (V_VA, V_TR))
    e("v_lshrrev_b32 v%d, 3, v2" % V_T0)
    e("v_lshl_or_b32 v%d, v3, 1, v%d" % (V_T1, V_T0))
    e("v_and_b32 v%d, 7, v1" % V_T2)
    e("v_xor_b32 v%d, v%d, v%d" % (V_T1, V_T1, V_T2))
    e("v_lshlrev_b32 v%d, 4, v%d" % (V_T1, V_T1))
    e("v_lshl_add_u32 v%d, v%d, 2, v3" % (V_T0, V_T0))
    e("v_lshl_add_u32 v%d, v%d, 7, v%d" % (V_T1, V_T0, V_T1))
    e("v_add_u32 v%d, %d, v%d" % (V_AE, L_ACT, V_T1))
    e("v_lshlrev_b32 v%d, 3, v%d" % (V_T2, V_T2))
    e("v_add_u32 v%d, %d, v%d" % (V_AO, L_MX, V_T2))
    e("s_lshl_b32 s%d, s%d, 3" % (S_A, S_WAVE))
    e("s_add_u32 s%d, s%d, %d" % (S_A, S_A, L_MX))
    e("v_mov_b32 v%d, s%d" % (V_RED, S_A))
    pos_write_addr(V_AW, L_ACT)
    e("s_lshl_b32 s%d, s%d, 12" % (S_A, S_WAVE))
    e("s_add_u32 s86, s%d, 0x%x" % (S_A, WS_H3B))
    e("s_lshl_b32 s%d, s%d, 11" % (S_A, S_C))
    e("s_lshl_b32 s%d, s%d, 8" % (S_B, S_WAVE))
    e("s_add_u32 s%d, s%d, s%d" % (S_A, S_A, S_B))
    e("s_add_u32 s85, s85, s%d" % S_A)
    e("v_and_b32 v%d, 1, v3" % V_T0)
    e("v_lshlrev_b32 v%d, 7, v%d" % (V_PUB, V_T0))
    e("v_and_b32 v%d, 7, v1" % V_T0)
    e("v_lshl_add_u32 v%d, v%d, 4, v%d" % (V_PUB, V_T0, V_PUB))
    e("v_lshrrev_b32 v%d, 1, v3" % V_T0)
    e("v_lshl_add_u32 v%d, v%d, 3, v%d" % (V_PUB, V_T0, V_PUB))
    e("s_lshl_b32 s%d, s96, 1" % S_A)
    e("s_add_u32 s%d, s%d, s99" % (S_A, S_A))
    e("s_sub_u32 s%d, s%d, 1" % (S_A, S_A))
    e("s_lshl_b32 s%d, s%d, 3" % (S_A, S_A))
    e("s_add_u32 s%d, s%d, s%d" % (S_A, S_A, S_XCD))
    e("s_lshl_b32 s%d, s%d, 12" % (S_A, S_A))
    e("s_lshl_b32 s%d, s%d, 9" % (S_B, S_WAVE))
    e("s_add_u32 s%d, s%d, s%d" % (S_A, S_A, S_B))
    e("s_add_u32 s84, s%d, 0x%x" % (S_A, WS_H4P))
    e("v_lshlrev_b32 v%d, 1, v%d" % (V_H, V_PUB))
    e("v_mov_b32 v%d, s%d" % (V_ACC + 6, S_T))
    e("v_mov_b32 v%d, s%d" % (V_ACC + 7, S_T))
    ONE = V_WF
    CS = V_WF + 4
    for k in range(4): e("v_mov_b32 v%d, 0x3f803f80" % (ONE + k))
    e("v_mov_b32 v%d, s%d" % (V_P + 1, S_T))
    e("s_mov_b64 s[%d:%d], s[%d:%d]" % (80, 81, S_ML, S_ML + 1))
    e("s_mov_b64 s[%d:%d], s[%d:%d]" % (82, 83, S_MG, S_MG + 1))
    e("s_cmp_lt_u32 s%d, 4" % S_WAVE)
    e("s_cbranch_scc1 L_a_gureal")
    if NODRY: e("s_branch L_a_gureal")
    set_dry()
    e("s_branch L_a_gutop")
    lab("L_a_gureal")
    set_real()
    e("s_mov_b64 s[%d:%d], s[%d:%d]" % (S_ML, S_ML + 1, 80, 81))
    e("s_mov_b64 s[%d:%d], s[%d:%d]" % (S_MG, S_MG + 1, 82, 83))
    e("s_waitcnt vmcnt(%d)" % T2V)
    if TRIG2: trig2()
    e("s_waitcnt vmcnt(0)")
    e("s_barrier")
    lab("L_a_gutop")
    GF = V_KF
    for m in range(16):
        for h in range(2):
            e("ds_read_b64_tr_b16 v[%d:%d], v%d offset:%d" % (GF + 4 * m + 2 * h, GF + 4 * m + 2 * h + 1, V_TR if m < 8 else V_VA, (m & 7) * 8192 + h * 512))
    e("s_waitcnt lgkmcnt(0)")
    e("s_cmp_lg_u32 s99, 1")
    e("s_cbranch_scc1 L_a_z1")
    for k in range(32, 64): e("v_mov_b32 v%d, 0" % (GF + k))
    lab("L_a_z1")
    e("s_cmp_lg_u32 s99, 2")
    e("s_cbranch_scc1 L_a_z2")
    for k in range(0, 32): e("v_mov_b32 v%d, 0" % (GF + k))
    lab("L_a_z2")
    e("s_nop 1")
    for m in range(16):
        e(mfma(CS, GF + 4 * m, ONE, None if m == 0 else CS))
    e("s_nop 7")
    e("v_permlane32_swap_b32 v%d, v%d" % (CS, CS + 2))
    e("v_permlane32_swap_b32 v%d, v%d" % (CS + 1, CS + 3))
    e("s_nop 1")
    e("v_add_f32_dpp v%d, v%d, v%d row_shl:8 row_mask:0xf bank_mask:0xf" % (CS, CS + 2, CS))
    e("v_add_f32_dpp v%d, v%d, v%d row_shl:8 row_mask:0xf bank_mask:0xf" % (CS + 1, CS + 3, CS + 1))
    stamp(8)
    top = poll_begin((V_G, 86, 3) if "3" not in NB else None)
    for n in range(4):
        e("buffer_load_dwordx4 v[%d:%d], v%d, s[%d:%d], s86 offen offset:%d sc1" % (V_L + 4 * n, V_L + 4 * n + 3, V_G, SRD_WS, SRD_WS + 3, n * 1024))
    poll_end(top, [chk64(V_L + 4 * n + 2) for n in range(4)], bell=(V_G, 86, 3))
    for n in range(4):
        e("ds_write_b64 v%d, v[%d:%d] offset:%d" % (V_AW, V_L + 4 * n, V_L + 4 * n + 1, n * 4096))
    stamp(9)
    side = ln_stats_dot_ops([V_L + 4 * (i >> 1) + (i & 1) for i in range(8)], ONE, V_SUM, V_SQ, V_T0, V_M, V_RS)
    emit(side[:16])
    side = side[16:]
    e("s_waitcnt lgkmcnt(0)")
    barrier(True)
    stamp(10)
    for m in range(16):
        e("ds_read_b128 v[%d:%d], v%d offset:%d" % (V_AF + 4 * m, V_AF + 4 * m + 3, V_AE, m * 1024))
    nfirst = 22
    emit(side[:nfirst])
    rest = side[nfirst:]
    mm = [0]
    def next_mfma():
        m = mm[0]; mm[0] += 1
        if m % 2 == 0: e("s_waitcnt lgkmcnt(%d)" % (14 - m))
        e(mfma(V_ACC, GF + 4 * m, V_AF + 4 * m, None if m == 0 else V_ACC))
        return 2 if m % 2 == 0 else 1
    cnt = 0
    for op in rest:
        if op.startswith("s_nop") and mm[0] < 10:
            need = int(op.split()[1]) + 1
            while need > 0 and mm[0] < 10: need -= next_mfma()
            if need > 0: e("s_nop %d" % (need - 1))
            cnt = 0
        else:
            e(op); cnt += 1
            if cnt == 2 and mm[0] < 10: next_mfma(); cnt = 0
    e("ds_write_b64 v%d, v[%d:%d]" % (V_RED, V_M, V_RS))
    while mm[0] < 10: next_mfma() if False else None; break
    while mm[0] < 12:
        m = mm[0]; mm[0] += 1
        if m == 10 or m % 2 == 0: e("s_waitcnt lgkmcnt(%d)" % max(0, min(15, 15 - m)))
        e(mfma(V_ACC, GF + 4 * m, V_AF + 4 * m, None if m == 0 else V_ACC))
    e("s_waitcnt lgkmcnt(0)")
    barrier(True)
    e("ds_read_b64 v[%d:%d], v%d" % (V_M, V_RS, V_AO))
    for m in range(12, 16):
        e(mfma(V_ACC, GF + 4 * m, V_AF + 4 * m, V_ACC))
    e("s_waitcnt lgkmcnt(0)")
    e("v_mul_f32 v%d, v%d, v%d" % (V_T0, V_M, V_RS))
    e("v_mul_f32 v%d, v%d, v%d" % (V_T1, V_T0, CS))
    e("v_mul_f32 v%d, v%d, v%d" % (V_T2, V_T0, CS + 1))
    e("s_nop 3")
    e("v_permlane32_swap_b32 v%d, v%d" % (V_ACC, V_ACC + 2))
    e("v_permlane32_swap_b32 v%d, v%d" % (V_ACC + 1, V_ACC + 3))
    e("s_nop 1")
    e("v_add_f32_dpp v%d, v%d, v%d row_shl:8 row_mask:0xf bank_mask:0xf" % (V_ACC, V_ACC + 2, V_ACC))
    e("v_add_f32_dpp v%d, v%d, v%d row_shl:8 row_mask:0xf bank_mask:0xf" % (V_ACC + 1, V_ACC + 3, V_ACC + 1))
    e("v_fma_f32 v%d, v%d, v%d, -v%d" % (V_ACC, V_ACC, V_RS, V_T1))
    e("v_fma_f32 v%d, v%d, v%d, -v%d" % (V_ACC + 1, V_ACC + 1, V_RS, V_T2))
    e("s_cmp_lg_u32 s99, 0")
    e("s_cbranch_scc1 L_a_part")
    e("v_cvt_pk_bf16_f32 v%d, v%d, v%d" % (V_P, V_ACC, V_ACC + 1))
    nosig = uid("nosig")
    e("s_cmp_lg_u32 s96, 0")
    e("s_cbranch_scc1 %s" % nosig)
    unpack(V_U, V_U + 1, V_P)
    e("v_mul_f32 v%d, %s, v%d" % (V_U, f32(-LOG2E), V_U))
    e("v_mul_f32 v%d, %s, v%d" % (V_U + 1, f32(-LOG2E), V_U + 1))
    e("v_exp_f32 v%d, v%d" % (V_U, V_U))
    e("v_exp_f32 v%d, v%d" % (V_U + 1, V_U + 1))
    e("s_nop 0")
    e("v_add_f32 v%d, 1.0, v%d" % (V_U, V_U))
    e("v_add_f32 v%d, 1.0, v%d" % (V_U + 1, V_U + 1))
    e("v_rcp_f32 v%d, v%d" % (V_U, V_U))
    e("v_rcp_f32 v%d, v%d" % (V_U + 1, V_U + 1))
    e("s_nop 0")
    e("v_cvt_pk_bf16_f32 v%d, v%d, v%d" % (V_P, V_U, V_U + 1))
    lab(nosig)
    store_l("buffer_store_dwordx2 v[%d:%d], v%d, s[%d:%d], s85 offen" % (V_P, V_P + 1, V_PUB, SRD_WS, SRD_WS + 3), "lo8")
    e("s_branch L_a_pubd")
    lab("L_a_part")
    e("v_mov_b32 v%d, v%d" % (V_P, V_ACC))
    e("v_mov_b32 v%d, v%d" % (V_P + 1, V_ACC + 1))
    store_l("buffer_store_dwordx4 v[%d:%d], v%d, s[%d:%d], s84 offen" % (V_P, V_P + 3, V_H, SRD_WS, SRD_WS + 3), "lo8")
    lab("L_a_pubd")
    e("s_cmp_lg_u32 s%d, 0" % S_DRY)
    e("s_cbranch_scc1 L_a_gureal")
    stamp(11)
    if "a" in CLEAN: clean("buffer_store_dwordx4 v[%d:%d], v%d, s[%d:%d], s87 offen" % (V_WF + 8, V_WF + 11, V_WF + 12, SRD_WS, SRD_WS + 3), "lo8")
    lab("L_a_done")
    stamps_flush(V_U)
    e("s_endpgm")
    lab("L_a_idle")
    if TRIG2: trig2()
    e("s_branch L_a_done")

gen()
open(OUT, "w").write("\n".join(lines) + "\n")
print("wrote", OUT, len(lines), "lines")
```

```python
import sys, struct

NAME = "sequential_preLN__sliding_block_cached__glu_gated_glu__decode"
def opt(name, default):
    for a in sys.argv:
        if a.startswith("--%s=" % name): return a.split("=", 1)[1]
    return default
STSET = opt("st", None)
STAMPS = "--stamps" in sys.argv or STSET is not None
STSET = None if STSET is None else set(int(x) for x in STSET.split(","))
NOLOCAL = "--nolocal" in sys.argv
NODRY = "--nodry" in sys.argv
NOTOUCH = "--notouch" in sys.argv
NOBELL = "--nobell" in sys.argv
BELLSLEEP = int(opt("bellsleep", 1))
NB = opt("nb", "")
GW = 0
NOTRIG = "--notrig" in sys.argv
KQX = "--kqx" in sys.argv
PRIO = "--prio" in sys.argv
DSPLIT = "--dsplit" in sys.argv
XBAR = "--xbar" in sys.argv
AT = opt("at", "")
BELL5 = "5" not in NB
BELL1 = "--bell1" in sys.argv
TRIG2 = "--notrig2" not in sys.argv
NOCLEAN = "--clean-on" not in sys.argv
CLEAN = opt("clean", "ab")
NLD = 4
KFIRST = False
PFK = int(opt("pfk", 0))
H1V = int(opt("h1v", 2))
H1LATE = H1V >= 0
GE = int(opt("ge", 0))
GE1 = int(opt("ge1", GE // 2))
VP = int(opt("vp", 8))
BELLFIRST = "--belllast" not in sys.argv
T2V = int(opt("t2v", 12))
DEARLY = "--dearly" in sys.argv
NOCODEPF = "--codepf" not in sys.argv
TLBT = "--notlb" not in sys.argv
SLEEP = int(opt("sleep", 0))
QFIRST = int(opt("qfirst", 8))
AWIN = int(opt("awin", 8))
ATHR = int(opt("athr", 0))
TRIGV = int(opt("trigv", 8))
OUT = [a for a in sys.argv[1:] if not a.startswith("--")]
OUT = OUT[0] if OUT else "cdna_kernels/%s.s" % NAME

lines = []
def e(s): lines.append("    " + s)
def lab(s): lines.append(s + ":")
def cmt(s): lines.append("    ; " + s)
_uid = [0]
def uid(p):
    _uid[0] += 1
    return "L_%s_%d" % (p, _uid[0])
def f32(x): return "0x%08x" % struct.unpack("<I", struct.pack("<f", x))[0]

WS_TRIG = 0x4000
WS_H1 = 0x100000
WS_H2 = 0x200000
WS_H3B = 0x280000
WS_H4S = 0x290000
WS_H4U = 0x2B0000
WS_H2G = 0x2E0000
WS_H4P = 0x500000
WS_H3A = 0x300000
WS_H5 = 0x400000
WS_TS = 0x600000
WS_SIZE = 0x800000

L_W0 = 0
L_W1 = 65536
L_ACT = 131072
L_QB = 147456
L_PB = 149504
L_MX = 153600
LDS_BYTES = 154112

S_X, S_K, S_V, S_WQ, S_WO, S_BX, S_WG, S_WU = 4, 6, 8, 10, 12, 14, 16, 18
S_WD, S_OUT, S_DBG, S_WS = 20, 22, 24, 26
S_WAVE, S_XCD, S_SLOT, S_T = 28, 29, 30, 31
SRD_W, SRD_WS, SRD_X, SRD_O = 32, 36, 40, 44
S_TT = 48
S_HI8 = 50
S_SPIN = 52
S_A, S_B, S_C, S_D, S_E, S_F = 53, 54, 55, 56, 57, 58
S_DRY = 59
S_TM = 60
S_ML = 62
S_ST = 64
S_MG = 92
S_FULL = 94
S_XCC, S_XOFF = 97, 98

LOG2E = 1.4426950408889634

V_VA, V_VB = 4, 5
V_TR = 6
V_AE, V_AO = 7, 8
V_T0, V_T1, V_T2, V_T3 = 9, 10, 11, 12
V_PUB, V_RED, V_H, V_XP, V_AW, V_G, V_Z = 13, 14, 15, 16, 17, 18, 19
V_ACC = 20
V_P = 24
V_M, V_RS, V_SQ, V_SUM = 28, 29, 30, 31
V_L = 32
V_U = 64
V_WF = 96
V_AF = 128
V_KF = 192
V_X1 = 224
V_GO = 248

def srd(dst, ptr, nbytes):
    e("s_mov_b32 s%d, s%d" % (dst, ptr))
    e("s_and_b32 s%d, s%d, 0xffff" % (dst + 1, ptr + 1))
    e("s_mov_b32 s%d, 0x%x" % (dst + 2, nbytes))
    e("s_mov_b32 s%d, 0x20000" % (dst + 3))

def stamp(k):
    if not STAMPS or (STSET is not None and k not in STSET): return
    e("s_memrealtime s[%d:%d]" % (S_TM, S_TM + 1))
    e("s_waitcnt lgkmcnt(0)")
    e("s_mov_b32 s%d, s%d" % (S_ST + k, S_TM))

def stamps_flush(vtmp):
    if not STAMPS: return
    e("s_mov_b64 exec, -1")
    for k in range(16):
        e("v_writelane_b32 v%d, s%d, %d" % (vtmp, S_ST + k, k))
    e("s_lshl_b32 s%d, s2, 9" % S_A)
    e("s_lshl_b32 s%d, s%d, 6" % (S_B, S_WAVE))
    e("s_add_u32 s%d, s%d, s%d" % (S_A, S_A, S_B))
    e("s_add_u32 s%d, s%d, 0x%x" % (S_A, S_A, WS_TS))
    e("v_lshlrev_b32 v%d, 2, v1" % (vtmp + 1))
    e("s_mov_b64 exec, 0xffff")
    e("buffer_store_dword v%d, v%d, s[%d:%d], s%d offen" % (vtmp, vtmp + 1, SRD_WS, SRD_WS + 3, S_A))

def full(): e("s_mov_b64 exec, s[%d:%d]" % (S_FULL, S_FULL + 1))

def barrier(dry=False):
    if dry:
        l = uid("nb")
        e("s_cbranch_execz %s" % l)
        e("s_barrier")
        lab(l)
    else:
        e("s_barrier")

def set_dry():
    e("s_mov_b64 s[%d:%d], 0" % (S_FULL, S_FULL + 1))
    e("s_mov_b64 s[%d:%d], 0" % (S_ML, S_ML + 1))
    e("s_mov_b64 s[%d:%d], 0" % (S_MG, S_MG + 1))
    e("s_mov_b32 s%d, 1" % S_DRY)
    e("s_mov_b32 s3, 8")
    if PRIO: e("s_setprio 0")
    full()

def set_real():
    e("s_mov_b64 s[%d:%d], -1" % (S_FULL, S_FULL + 1))
    e("s_mov_b32 s%d, 0" % S_DRY)
    e("s_mov_b32 s3, 2")
    if PRIO: e("s_setprio 3")
    full()

def dpp_add(dst, src, ctrl, op="v_add_f32"):
    return "%s_dpp v%d, v%d, v%d %s row_mask:0xf bank_mask:0xf" % (op, dst, src, src, ctrl)

def xrow_ops(v, t, op="v_add_f32"):
    return ["v_mov_b32 v%d, v%d" % (t, v), "s_nop 1", "v_permlane16_swap_b32 v%d, v%d" % (v, t), "s_nop 0",
            "%s v%d, v%d, v%d" % (op, v, v, t),
            "v_mov_b32 v%d, v%d" % (t, v), "s_nop 1", "v_permlane32_swap_b32 v%d, v%d" % (v, t), "s_nop 0",
            "%s v%d, v%d, v%d" % (op, v, v, t)]

def wave_allreduce_ops(v, t, op="v_add_f32"):
    o = []
    for r in (8, 4, 2, 1):
        o += ["s_nop 1", dpp_add(v, v, "row_ror:%d" % r, op)]
    return o + xrow_ops(v, t, op)

def bf16_round_ops(v):
    return ["v_cvt_pk_bf16_f32 v%d, v%d, v%d" % (v, v, v), "v_lshlrev_b32 v%d, 16, v%d" % (v, v)]

def unpack_ops(lo, hi, src):
    return ["v_lshlrev_b32 v%d, 16, v%d" % (lo, src), "v_and_b32 v%d, 0xffff0000, v%d" % (hi, src)]
def unpack(lo, hi, src):
    for x in unpack_ops(lo, hi, src): e(x)
def emit(ops):
    for x in ops: e(x)

def poll_begin(bell=None):
    if bell and BELLFIRST: doorbell(*bell)
    top = uid("poll")
    lab(top)
    e("s_cbranch_execz %s_nl" % top)
    return top

def poll_mid(top):
    lab(top + "_nl")
    top2 = top + "x"
    e("s_cbranch_execz %s_nl" % top2)
    return top2

def poll_end(top, checks, last=None, bell=None):
    ok = top + "_ok"
    e("s_waitcnt vmcnt(0)")
    lab((last or top) + "_nl")
    for c in checks: e(c)
    e("s_cmp_eq_u64 exec, s[%d:%d]" % (S_FULL, S_FULL + 1))
    full()
    e("s_cbranch_scc1 %s" % ok)
    if SLEEP: e("s_sleep %d" % SLEEP)
    if bell and not BELLFIRST: doorbell(*bell)
    e("s_sub_u32 s%d, s%d, 1" % (S_SPIN, S_SPIN))
    e("s_cbranch_scc0 %s" % top)
    e("s_mov_b32 s%d, 0" % S_SPIN)
    lab(ok)

def doorbell(va, so, tagpos, off=0, atomic=False):
    if NOBELL: return
    top = uid("bell")
    e("s_cbranch_execz %s_ok" % top)
    lab(top)
    e("s_mov_b64 exec, 1")
    if atomic:
        e("v_mov_b32 v%d, 0" % V_T0)
        e("buffer_atomic_add v%d, v%d, s[%d:%d], s%d offen offset:%d sc0" % (V_T0, va, SRD_WS, SRD_WS + 3, so, off + 4 * tagpos))
    else:
        e("buffer_load_dword v%d, v%d, s[%d:%d], s%d offen offset:%d sc1" % (V_T0, va, SRD_WS, SRD_WS + 3, so, off + 4 * tagpos))
    e("s_waitcnt vmcnt(0)")
    e("v_cmpx_eq_u32 vcc, s%d, v%d" % (S_T, V_T0))
    e("s_cbranch_execnz %s_ok" % top)
    e("s_sleep %d" % BELLSLEEP)
    e("s_sub_u32 s%d, s%d, 1" % (S_SPIN, S_SPIN))
    e("s_cbranch_scc0 %s" % top)
    e("s_mov_b32 s%d, 0" % S_SPIN)
    lab(top + "_ok")
    full()

def chk64(v): return "v_cmpx_eq_u64 vcc, s[%d:%d], v[%d:%d]" % (S_TT, S_TT + 1, v, v + 1)
def chk32(v): return "v_cmpx_eq_u32 vcc, s%d, v%d" % (S_T, v)

def _mask(m, lanemask):
    if lanemask is None: e("s_mov_b64 exec, s[%d:%d]" % (m, m + 1))
    elif lanemask == "lo8": e("s_andn2_b64 exec, s[%d:%d], s[%d:%d]" % (m, m + 1, S_HI8, S_HI8 + 1))
    else: e("s_and_b64 exec, s[%d:%d], %s" % (m, m + 1, lanemask))

def store_g(instr, lanemask=None, flags=" sc1"):
    l = uid("ns")
    if lanemask is not None: _mask(S_FULL, lanemask)
    e("s_cbranch_execz %s" % l)
    e(instr + flags)
    lab(l)
    if lanemask is not None: full()

def store_l(instr, lanemask=None):
    for m, fl in ((S_ML, ""), (S_MG, " sc1")):
        l = uid("ns")
        _mask(m, lanemask)
        e("s_cbranch_execz %s" % l)
        e(instr + fl)
        lab(l)
    full()

def xcc_publish(vt, srd_, wave=4):
    e("s_getreg_b32 s%d, hwreg(HW_REG_XCC_ID, 0, 4)" % S_XCC)
    e("s_add_u32 s%d, s%d, 1" % (S_XCC, S_XCC))
    e("s_lshl_b32 s%d, s%d, 5" % (S_XOFF, S_XCD))
    skip = uid("noxcc")
    e("s_cmp_lg_u32 s%d, %d" % (S_WAVE, wave))
    e("s_cbranch_scc1 %s" % skip)
    e("s_lshr_b32 s%d, s2, 3" % S_B)
    e("s_add_u32 s%d, s%d, s%d" % (S_A, S_XOFF, S_B))
    e("v_mov_b32 v%d, s%d" % (vt, S_XCC))
    e("s_mov_b64 exec, 1")
    e("buffer_store_byte v%d, v%d, s[%d:%d], s%d offen sc1" % (vt, V_Z, srd_, srd_ + 3, S_A))
    e("s_mov_b64 exec, -1")
    lab(skip)
    e("s_mul_i32 s%d, s%d, 0x01010101" % (S_XCC, S_XCC))

def xcc_load(vd, vaddr, srd_):
    e("buffer_load_dword v%d, v%d, s[%d:%d], s%d offen sc1" % (vd, vaddr, srd_, srd_ + 3, S_XOFF))

def xcc_checks(vd, vt):
    return ["v_subrev_u32 v%d, 0x01010101, v%d" % (vt, vd),
            "v_bfi_b32 v%d, v%d, 0, v%d" % (vt, vd, vt),
            "v_and_b32 v%d, 0x80808080, v%d" % (vt, vt),
            "v_cmpx_eq_u32 vcc, 0, v%d" % vt]

def xcc_decide(vd):
    e("v_cmp_ne_u32 vcc, s%d, v%d" % (S_XCC, vd))
    e("s_nop 1")
    if NOLOCAL: e("s_cmp_eq_u32 s%d, 0" % S_XCC)
    else: e("s_cmp_eq_u64 vcc, 0")
    e("s_cselect_b64 s[%d:%d], s[%d:%d], 0" % (S_ML, S_ML + 1, S_FULL, S_FULL + 1))
    e("s_cselect_b64 s[%d:%d], 0, s[%d:%d]" % (S_MG, S_MG + 1, S_FULL, S_FULL + 1))

def ln_stats_ops(vals, vsum, vt, vmean, vrs, vsq):
    o = ["v_add_f32 v%d, v%d, v%d" % (vsum, vals[0], vals[1]), "v_add_f32 v%d, v%d, v%d" % (vt, vals[2], vals[3])]
    for i in range(4, 16, 2):
        o += ["v_add_f32 v%d, v%d, v%d" % (vsum, vsum, vals[i]), "v_add_f32 v%d, v%d, v%d" % (vt, vt, vals[i + 1])]
    o += ["v_add_f32 v%d, v%d, v%d" % (vsum, vsum, vt)]
    o += wave_allreduce_ops(vsum, vt)
    o += ["v_mul_f32 v%d, %s, v%d" % (vmean, f32(1.0 / 1024), vsum)]
    o += ["v_sub_f32 v%d, v%d, v%d" % (vt, vals[0], vmean), "v_mul_f32 v%d, v%d, v%d" % (vsum, vt, vt)]
    for i in range(1, 16):
        o += ["v_sub_f32 v%d, v%d, v%d" % (vt, vals[i], vmean), "v_fmac_f32 v%d, v%d, v%d" % (vsum, vt, vt)]
    o += wave_allreduce_ops(vsum, vt)
    o += ["v_mul_f32 v%d, %s, v%d" % (vsq, f32(1.0 / 1024), vsum)]
    o += bf16_round_ops(vsq)
    o += ["v_add_f32 v%d, %s, v%d" % (vsq, f32(1e-5), vsq)]
    o += bf16_round_ops(vsq)
    o += ["v_sqrt_f32 v%d, v%d" % (vsq, vsq)]
    o += bf16_round_ops(vmean)
    o += bf16_round_ops(vsq)
    o += ["v_rcp_f32 v%d, v%d" % (vrs, vsq), "s_nop 0"]
    return o

def ln_stats_dot_ops(pairs, one, s1, s2, vt, vmean, vrs):
    o = ["v_dot2_f32_bf16 v%d, v%d, v%d, 0" % (s1, pairs[0], one), "v_dot2_f32_bf16 v%d, v%d, v%d, 0" % (s2, pairs[0], pairs[0])]
    for p in pairs[1:]:
        o += ["v_dot2_f32_bf16 v%d, v%d, v%d, v%d" % (s1, p, one, s1), "v_dot2_f32_bf16 v%d, v%d, v%d, v%d" % (s2, p, p, s2)]
    o += ["s_nop 2"]
    for r in (8, 4, 2, 1):
        o += [dpp_add(s1, s1, "row_ror:%d" % r), dpp_add(s2, s2, "row_ror:%d" % r), "s_nop 0"]
    o += ["s_nop 0", "v_permlane32_swap_b32 v%d, v%d" % (s1, s2), "s_nop 0", "v_add_f32 v%d, v%d, v%d" % (s1, s1, s2),
          "v_mov_b32 v%d, v%d" % (s2, s1), "s_nop 1", "v_permlane16_swap_b32 v%d, v%d" % (s1, s2), "s_nop 0",
          "v_add_f32 v%d, v%d, v%d" % (s1, s1, s2), "v_mov_b32 v%d, v%d" % (s2, s1), "s_nop 1",
          "v_permlane32_swap_b32 v%d, v%d" % (s1, s2), "s_nop 0",
          "v_mul_f32 v%d, %s, v%d" % (vmean, f32(1.0 / 1024), s1),
          "v_mul_f32 v%d, %s, v%d" % (s2, f32(1.0 / 1024), s2),
          "v_fma_f32 v%d, -v%d, v%d, v%d" % (s2, vmean, vmean, s2),
          "v_max_f32 v%d, 0, v%d" % (s2, s2)]
    o += bf16_round_ops(s2)
    o += ["v_add_f32 v%d, %s, v%d" % (s2, f32(1e-5), s2)]
    o += bf16_round_ops(s2)
    o += ["v_sqrt_f32 v%d, v%d" % (s2, s2)]
    o += bf16_round_ops(vmean)
    o += bf16_round_ops(s2)
    o += ["v_rcp_f32 v%d, v%d" % (vrs, s2), "s_nop 0"]
    return o

def ln_apply_pair(dst, a, b, vmean, vrs, vsq, t0, t1):
    e("v_sub_f32 v%d, v%d, v%d" % (a, a, vmean))
    e("v_sub_f32 v%d, v%d, v%d" % (b, b, vmean))
    e("v_cvt_pk_bf16_f32 v%d, v%d, v%d" % (t0, a, b))
    unpack(a, b, t0)
    e("v_mul_f32 v%d, v%d, v%d" % (t0, a, vrs))
    e("v_mul_f32 v%d, v%d, v%d" % (t1, b, vrs))
    e("v_fma_f32 v%d, -v%d, v%d, v%d" % (a, t0, vsq, a))
    e("v_fma_f32 v%d, -v%d, v%d, v%d" % (b, t1, vsq, b))
    e("v_fmac_f32 v%d, v%d, v%d" % (t0, a, vrs))
    e("v_fmac_f32 v%d, v%d, v%d" % (t1, b, vrs))
    e("v_cvt_pk_bf16_f32 v%d, v%d, v%d" % (dst, t0, t1))

def sigma_of(dst, u, t):
    e("v_and_b32 v%d, 3, v%d" % (dst, u))
    e("v_lshlrev_b32 v%d, 1, v%d" % (dst, dst))
    e("v_bfe_u32 v%d, v%d, 2, 1" % (t, u))
    e("v_or_b32 v%d, v%d, v%d" % (dst, dst, t))

def dma256_voff(va, vb, pitch, t):
    e("v_bfe_u32 v%d, v1, 1, 3" % t)
    e("v_xor_b32 v%d, v3, v%d" % (t, t))
    e("v_lshlrev_b32 v%d, 5, v%d" % (t, t))
    e("v_and_b32 v%d, 1, v1" % va)
    e("v_lshl_add_u32 v%d, v%d, 4, v%d" % (t, va, t))
    e("v_mul_u32_u24 v%d, %d, v3" % (va, pitch))
    e("v_add_u32 v%d, v%d, v%d" % (va, va, t))
    e("v_xor_b32 v%d, 0x80, v%d" % (vb, va))

SKIP = opt("skip", "").split(",")
def vmem_dry(instr, dry):
    if dry:
        l = uid("sk")
        e("s_cbranch_execz %s" % l)
        e(instr)
        lab(l)
    else:
        e(instr)

def dma_run(srd_, voffs, s_base, rowbytes, ldsbase, per_wave, m0, m1, pre=None, name=None, dry=False):
    if name in SKIP: return
    _dma_run(srd_, voffs, s_base, rowbytes, ldsbase, per_wave, m0, m1, pre, dry)

def _dma_run(srd_, voffs, s_base, rowbytes, ldsbase, per_wave, m0, m1, pre=None, dry=False):
    e("s_mul_i32 s%d, s%d, %d" % (S_A, S_WAVE, per_wave * rowbytes))
    e("s_add_u32 s%d, s%d, s%d" % (S_A, S_A, s_base))
    if m0: e("s_add_u32 s%d, s%d, %d" % (S_A, S_A, rowbytes * m0))
    e("s_mul_i32 s%d, s%d, %d" % (S_B, S_WAVE, per_wave * 1024))
    if ldsbase + m0: e("s_add_u32 s%d, s%d, %d" % (S_B, S_B, ldsbase + 1024 * m0))
    for m in range(m0, m1):
        e("s_mov_b32 m0, s%d" % S_B)
        if pre: pre(m)
        if m < m1 - 1: e("s_add_u32 s%d, s%d, 1024" % (S_B, S_B))
        else: e("s_nop 0")
        vmem_dry("buffer_load_dwordx4 v%d, s[%d:%d], s%d offen nt lds" % (voffs(m), srd_, srd_ + 3, S_A), dry)
        if m < m1 - 1: e("s_add_u32 s%d, s%d, %d" % (S_A, S_A, rowbytes))

def tr256_addr(va, t):
    e("v_bfe_u32 v%d, v1, 2, 2" % t)
    e("v_and_b32 v%d, 1, v3" % va)
    e("v_lshl_or_b32 v%d, v%d, 2, v%d" % (va, va, t))
    e("v_xor_b32 v%d, s%d, v%d" % (va, S_WAVE, va))
    e("v_lshlrev_b32 v%d, 5, v%d" % (va, va))
    e("v_lshl_add_u32 v%d, v3, 3, v%d" % (t, t))
    e("v_lshl_add_u32 v%d, v%d, 8, v%d" % (va, t, va))
    e("v_and_b32 v%d, 3, v1" % t)
    e("v_lshl_add_u32 v%d, v%d, 3, v%d" % (va, t, va))

def tr256_read(dst, va):
    for m in range(8):
        for h in range(2):
            e("ds_read_b64_tr_b16 v[%d:%d], v%d offset:%d" % (dst + 4 * m + 2 * h, dst + 4 * m + 2 * h + 1, va, m * 8192 + h * 1024))

def act_rd_addr(ve, vo, t, ldsbase):
    e("v_and_b32 v%d, 7, v1" % t)
    e("v_lshlrev_b32 v%d, 1, v3" % ve)
    e("v_xor_b32 v%d, v%d, v%d" % (ve, ve, t))
    e("v_lshlrev_b32 v%d, 4, v%d" % (ve, ve))
    e("v_lshl_add_u32 v%d, v3, 7, v%d" % (ve, ve))
    e("v_add_u32 v%d, %d, v%d" % (ve, ldsbase, ve))
    e("v_xor_b32 v%d, 16, v%d" % (vo, ve))

def mfma(d, a, b, c):
    cs = "0" if c is None else "v[%d:%d]" % (c, c + 3)
    return "v_mfma_f32_16x16x32_bf16 v[%d:%d], v[%d:%d], v[%d:%d], %s" % (d, d + 3, a, a + 3, b, b + 3, cs)

def gemv8(acc, wf, af, ve, vo):
    for m in range(8):
        e("ds_read_b128 v[%d:%d], v%d offset:%d" % (af + 4 * m, af + 4 * m + 3, vo if (m & 1) else ve, m * 512))
    for m in range(8):
        e("s_waitcnt lgkmcnt(%d)" % (7 - m))
        e(mfma(acc, wf + 4 * m, af + 4 * m, None if m == 0 else acc))

def touch(items):
    for i, (va, so, off) in enumerate(items):
        e("buffer_load_dword v%d, v%d, s[%d:%d], s%d offen offset:%d sc1" % (V_X1 + 20 + i, va, SRD_WS, SRD_WS + 3, so, off))

def clean(instr, lanemask=None):
    if NOCLEAN: return
    l = uid("nc")
    _mask(S_ML, lanemask)
    e("s_cbranch_execz %s" % l)
    e(instr + " sc1")
    lab(l)
    full()

def trig2():
    l = uid("nt2")
    e("s_cmp_lg_u32 s%d, 0" % S_WAVE)
    e("s_cbranch_scc1 %s" % l)
    e("s_lshl_b32 s%d, s%d, 3" % (S_A, S_SLOT))
    e("s_or_b32 s%d, s%d, s%d" % (S_A, S_A, S_XCD))
    e("s_lshl_b32 s%d, s%d, 7" % (S_A, S_A))
    e("s_add_u32 s%d, s%d, 0x%x" % (S_A, S_A, WS_TRIG))
    store_g("buffer_store_dword v%d, v%d, s[%d:%d], s%d offen offset:8" % (V_P + 3, V_Z, SRD_WS, SRD_WS + 3, S_A), "1")
    lab(l)

def make_tag(vE=None):
    if vE is None:
        e("s_waitcnt lgkmcnt(0)")
        e("s_mov_b32 s%d, s100" % S_F)
    else:
        e("v_readfirstlane_b32 s%d, v%d" % (S_F, vE))
        e("s_nop 3")
    e("s_mul_i32 s%d, s%d, 0x9e3779b1" % (S_T, S_F))
    e("s_add_u32 s%d, s%d, 0x85ebca6b" % (S_T, S_T))
    e("s_mov_b32 s%d, s%d" % (S_TT, S_T))
    e("s_mov_b32 s%d, s%d" % (S_TT + 1, S_T))
    e("s_add_u32 s%d, s%d, 1" % (S_F, S_F))
    e("v_mov_b32 v%d, s%d" % (V_P + 2, S_T))
    e("v_mov_b32 v%d, s%d" % (V_P + 3, S_T))

def publish_partial(s_off, local):
    e("s_nop 7")
    e("v_cndmask_b32 v%d, v%d, v%d, s[%d:%d]" % (V_P, V_ACC, V_ACC + 2, S_HI8, S_HI8 + 1))
    e("v_cndmask_b32 v%d, v%d, v%d, s[%d:%d]" % (V_P + 1, V_ACC + 1, V_ACC + 3, S_HI8, S_HI8 + 1))
    ins = "buffer_store_dwordx4 v[%d:%d], v%d, s[%d:%d], s%d offen" % (V_P, V_P + 3, V_PUB, SRD_WS, SRD_WS + 3, s_off)
    (store_l if local else store_g)(ins)

def reduce16(s0, bell=False):
    top = poll_begin((V_RED, s0, 3, 0, "5" in AT) if bell else None)
    for n in range(4):
        e("buffer_load_dwordx4 v[%d:%d], v%d, s[%d:%d], s%d offen sc1" % (V_L + 4 * n, V_L + 4 * n + 3, V_RED, SRD_WS, SRD_WS + 3, s0 + n))
    poll_end(top, [chk64(V_L + 4 * n + 2) for n in range(4)], bell=(V_RED, s0, 3) if bell else None)
    a, b = V_L, V_L + 1
    e("v_pk_add_f32 v[%d:%d], v[%d:%d], v[%d:%d]" % (a, b, a, b, V_L + 4, V_L + 5))
    e("v_pk_add_f32 v[%d:%d], v[%d:%d], v[%d:%d]" % (V_L + 8, V_L + 9, V_L + 8, V_L + 9, V_L + 12, V_L + 13))
    e("v_pk_add_f32 v[%d:%d], v[%d:%d], v[%d:%d]" % (a, b, a, b, V_L + 8, V_L + 9))
    e("s_nop 1")
    e("v_permlane32_swap_b32 v%d, v%d" % (a, b))
    e("s_nop 0")
    e("v_add_f32 v%d, v%d, v%d" % (a, a, b))
    e("v_mov_b32 v%d, v%d" % (b, a))
    e("s_nop 1")
    e("v_permlane16_swap_b32 v%d, v%d" % (a, b))
    e("s_nop 0")
    e("v_add_f32 v%d, v%d, v%d" % (a, a, b))
    e("v_mov_b32 v%d, v%d" % (b, a))
    e("s_nop 1")
    e("v_permlane32_swap_b32 v%d, v%d" % (a, b))
    e("s_nop 0")

def only_red(lbl):
    e("s_cmp_ge_u32 s%d, s3" % S_WAVE)
    e("s_cbranch_scc1 %s" % lbl)

def residual_add(dst, vres):
    e("v_cvt_pk_bf16_f32 v%d, v%d, v%d" % (V_T0, V_L, V_L + 1))
    unpack(V_U + 2, V_U + 3, vres)
    unpack(V_U, V_U + 1, V_T0)
    e("v_add_f32 v%d, v%d, v%d" % (V_U, V_U, V_U + 2))
    e("v_add_f32 v%d, v%d, v%d" % (V_U + 1, V_U + 1, V_U + 3))
    e("v_cvt_pk_bf16_f32 v%d, v%d, v%d" % (dst, V_U, V_U + 1))

def pos_write_addr(dst, ldsbase):
    e("v_bfe_u32 v%d, v1, 1, 3" % V_T2)
    sigma_of(V_T0, V_T2, V_T1)
    e("v_xor_b32 v%d, s%d, v%d" % (V_T0, S_WAVE, V_T0))
    e("v_lshlrev_b32 v%d, 4, v%d" % (V_T0, V_T0))
    e("v_lshrrev_b32 v%d, 1, v1" % V_T1)
    e("v_lshl_add_u32 v%d, v%d, 7, v%d" % (V_T0, V_T1, V_T0))
    e("v_and_b32 v%d, 1, v1" % V_T1)
    e("v_lshl_add_u32 v%d, v%d, 3, v%d" % (V_T0, V_T1, V_T0))
    e("v_add_u32 v%d, %d, v%d" % (dst, ldsbase, V_T0))

def gen():
    for l in """Fused decode layer: preLN + sliding-window GQA attention + residual + preLN + GLU MLP + residual.
Kernarg (96 bytes, pointers only): 0 A_x, 8 A_k_cache, 16 A_v_cache, 24 A_wq, 32 A_wo, 40 B_x (unused), 48 B_w_gate,
  56 B_w_up, 64 B_w_down, 72 d_out, 80 d_debug, 88 d_ws.
One persistent launch, 256 workgroups x 8 waves, one workgroup per CU.  role = (wg>>3)&1:
  B: LN1 + Q-proj tile -> O-proj tile -> h reduce -> down-proj tile -> final reduce
  A: attention for (batch, kv head, 256-key split) -> split combine -> gate/up tile (LN2 folded in)
Weights / K / V stream HBM -> LDS (LDS-DMA, swizzled images) and feed MFMA through transposing LDS reads.
Hand-offs between workgroups are 8/16-byte granules in d_ws that carry a per-launch tag (hash of an epoch word
  kept in d_ws).  Groups of workgroups that find (via the XCC id table in d_debug) that they share an XCD
  exchange through L2 with plain stores; otherwise every hand-off is written through.  All spins are bounded.
Waves 4-7 run upcoming latency-critical code once with EXEC=0 (memory instructions branched around) so that it
  is resident in the instruction cache while waves 0-3 issue the streams.
Generated by a script (work/gen.py).""".split("\n"):
        lines.append("; " + l)
    lines.append("; @launch grid=(256,1,1) block=(512,1,1) lds=%d" % LDS_BYTES)
    lines.append('.amdgcn_target "amdgcn-amd-amdhsa--gfx950"')
    lines.append(".text")
    lines.append(".globl %s_kernel" % NAME)
    lines.append(".p2align 8")
    lines.append(".type %s_kernel,@function" % NAME)
    lab("%s_kernel" % NAME)
    e("s_cmp_ge_u32 s2, 256")
    e("s_cbranch_scc1 L_end")
    if STAMPS:
        e("s_memrealtime s[%d:%d]" % (S_TM, S_TM + 1))
        for k in range(1, 16): e("s_mov_b32 s%d, 0" % (S_ST + k))
    e("s_load_dwordx16 s[4:19], s[0:1], 0")
    e("s_load_dwordx8 s[20:27], s[0:1], 64")
    e("v_lshrrev_b32 v4, 6, v0")
    e("v_and_b32 v1, 63, v0")
    e("v_readfirstlane_b32 s%d, v4" % S_WAVE)
    e("v_and_b32 v2, 15, v1")
    e("v_lshrrev_b32 v3, 4, v1")
    e("s_and_b32 s%d, s2, 7" % S_XCD)
    e("s_lshr_b32 s%d, s2, 4" % S_SLOT)
    e("v_mov_b32 v%d, 0" % V_Z)
    if PRIO: e("s_setprio 3")
    code_prefetch()
    e("s_bitcmp1_b32 s2, 3")
    e("s_cbranch_scc1 L_roleA")
    role_b()
    lab("L_roleA")
    role_a()
    lab("L_end")
    e("s_endpgm")
    lines.append('.section .rodata,"a"')
    lines.append(".p2align 6")
    lines.append(".amdhsa_kernel %s_kernel" % NAME)
    lines.append("  .amdhsa_next_free_vgpr 256")
    lines.append("  .amdhsa_next_free_sgpr 102")
    lines.append("  .amdhsa_accum_offset 256")
    lines.append("  .amdhsa_group_segment_fixed_size 0")
    lines.append("  .amdhsa_kernarg_size 96")
    lines.append("  .amdhsa_user_sgpr_count 2")
    lines.append("  .amdhsa_user_sgpr_kernarg_segment_ptr 1")
    lines.append("  .amdhsa_system_sgpr_workgroup_id_x 1")
    lines.append(".end_amdhsa_kernel")

def code_prefetch():
    if NOCODEPF: return
    l = uid("nopf")
    e("s_lshr_b32 s%d, s2, 3" % S_A)
    e("s_lshl_b32 s%d, s%d, 3" % (S_A, S_A))
    e("s_add_u32 s%d, s%d, s%d" % (S_A, S_A, S_WAVE))
    e("s_cmp_lg_u32 s%d, 13" % S_A)
    e("s_cbranch_scc1 %s" % l)
    e("s_getpc_b64 s[%d:%d]" % (S_ML, S_ML + 1))
    lab(l + "_pc")
    e("s_sub_u32 s%d, s%d, %s_pc-%s_kernel" % (S_ML, S_ML, l, NAME))
    e("s_subb_u32 s%d, s%d, 0" % (S_ML + 1, S_ML + 1))
    e("v_lshlrev_b32 v%d, 7, v1" % V_T0)
    e("global_load_dword v%d, v%d, s[%d:%d]" % (V_U, V_T0, S_ML, S_ML + 1))
    e("v_add_u32 v%d, 0x2000, v%d" % (V_T0, V_T0))
    e("v_min_u32 v%d, L_end-%s_kernel, v%d" % (V_T0, NAME, V_T0))
    e("global_load_dword v%d, v%d, s[%d:%d]" % (V_U + 1, V_T0, S_ML, S_ML + 1))
    lab(l)

def common_consts():
    e("s_mov_b32 s%d, 0x40000" % S_SPIN)
    e("s_mov_b32 s%d, 0xff00ff00" % S_HI8)
    e("s_mov_b32 s%d, 0xff00ff00" % (S_HI8 + 1))
    e("s_mov_b64 s[%d:%d], -1" % (S_FULL, S_FULL + 1))
    e("s_mov_b32 s%d, 0" % S_DRY)

def role_b():
    cmt("================= role B =================")
    V_AWD, V_XA, V_HO, V_ZA, V_TR1 = V_X1 + 1, V_X1 + 2, V_X1 + 3, V_X1 + 4, V_X1 + 5
    V_VC, V_VD = V_X1 + 6, V_X1 + 7
    V_ZQ = V_X1 + 8
    ab = lambda m: V_VB if (m & 2) else V_VA
    dma256_voff(V_VA, V_VB, 8192, V_T0)
    e("v_lshlrev_b32 v%d, 4, v1" % V_G)
    if KQX:
        e("s_and_b32 s%d, s%d, 3" % (S_D, S_XCD))
        e("s_lshr_b32 s%d, s%d, 2" % (S_C, S_XCD))
        e("s_lshl_b32 s%d, s%d, 4" % (S_C, S_C))
        e("s_add_u32 s%d, s%d, s%d" % (S_C, S_C, S_SLOT))
    else:
        e("s_and_b32 s%d, s%d, 3" % (S_D, S_SLOT))
        e("s_lshr_b32 s%d, s%d, 2" % (S_A, S_SLOT))
        e("s_lshl_b32 s%d, s%d, 1" % (S_B, S_XCD))
        e("s_add_u32 s%d, s%d, s%d" % (S_B, S_B, S_A))
        e("s_lshl_b32 s%d, s%d, 2" % (S_C, S_B))
        e("s_add_u32 s%d, s%d, 1" % (S_C, S_C))
        e("s_sub_u32 s%d, s%d, 2" % (S_B, S_B))
        e("s_lshl_b32 s%d, s%d, 2" % (S_E, S_XCD))
        e("s_add_u32 s%d, s%d, s%d" % (S_E, S_E, S_A))
        e("s_sub_u32 s%d, s%d, 8" % (S_E, S_E))
        e("s_cmp_ge_u32 s%d, 4" % S_XCD)
        e("s_cselect_b32 s%d, s%d, s%d" % (S_B, S_E, S_B))
        e("s_cselect_b32 s%d, 2, s%d" % (S_A, S_A))
        e("s_mul_i32 s%d, s%d, 43" % (S_E, S_B))
        e("s_lshr_b32 s%d, s%d, 7" % (S_E, S_E))
        e("s_mul_i32 s%d, s%d, 3" % (S_F, S_E))
        e("s_sub_u32 s%d, s%d, s%d" % (S_F, S_B, S_F))
        e("s_lshl_b32 s%d, s%d, 2" % (S_E, S_E))
        e("s_add_u32 s%d, s%d, s%d" % (S_E, S_E, S_F))
        e("s_min_u32 s%d, s%d, 1" % (S_F, S_F))
        e("s_add_u32 s%d, s%d, s%d" % (S_E, S_E, S_F))
        e("s_cmp_ge_u32 s%d, 2" % S_A)
        e("s_cselect_b32 s%d, s%d, s%d" % (S_C, S_E, S_C))
    e("s_lshl_b32 s%d, s%d, 21" % (S_E, S_D))
    e("s_lshl_b32 s%d, s%d, 8" % (S_A, S_C))
    e("s_add_u32 s%d, s%d, s%d" % (S_E, S_E, S_A))
    e("s_lshl_b32 s82, s%d, 11" % S_WAVE)
    e("s_lshl_b32 s83, s%d, 9" % S_D)
    e("s_add_u32 s83, s83, s82")
    e("s_waitcnt lgkmcnt(0)")
    if STAMPS: e("s_mov_b32 s%d, s%d" % (S_ST, S_TM))
    srd(SRD_X, S_X, 16384)
    srd(SRD_W, S_WQ, 8 << 20)
    e("buffer_load_dwordx4 v[%d:%d], v%d, s[%d:%d], s82 offen" % (V_L, V_L + 3, V_G, SRD_X, SRD_X + 3))
    e("buffer_load_dwordx4 v[%d:%d], v%d, s[%d:%d], s82 offen offset:1024" % (V_L + 4, V_L + 7, V_G, SRD_X, SRD_X + 3))
    e("buffer_load_dwordx4 v[%d:%d], v%d, s[%d:%d], s83 offen" % (V_L + 8, V_L + 11, V_G, SRD_X, SRD_X + 3))
    if XBAR: e("s_barrier")
    dma_run(SRD_W, ab, S_E, 4 * 8192, L_W0, 8, 0, QFIRST)
    srd(SRD_WS, S_WS, WS_SIZE)
    e("buffer_load_dword v%d, v%d, s[%d:%d], 0 offen sc1" % (V_L + 12, V_Z, SRD_WS, SRD_WS + 3))
    stamp(1)
    common_consts()
    e("s_lshr_b32 s%d, s%d, 1" % (S_A, S_SLOT))
    e("s_lshl_b32 s%d, s%d, 11" % (S_A, S_A))
    e("s_lshl_b32 s%d, s%d, 8" % (S_B, S_XCD))
    e("s_add_u32 s%d, s%d, s%d" % (S_A, S_A, S_B))
    e("s_and_b32 s%d, s%d, 1" % (S_B, S_SLOT))
    e("s_lshl_b32 s%d, s%d, 7" % (S_B, S_B))
    e("s_add_u32 s%d, s%d, s%d" % (S_A, S_A, S_B))
    e("s_and_b32 s%d, s%d, 1" % (S_B, S_WAVE))
    e("s_lshl_b32 s%d, s%d, 6" % (S_B, S_B))
    e("s_add_u32 s80, s%d, s%d" % (S_A, S_B))
    e("v_lshlrev_b32 v%d, 2, v2" % V_X1)
    e("v_lshlrev_b32 v%d, 3, v2" % V_HO)
    e("buffer_load_dword v%d, v%d, s[%d:%d], s80 offen" % (V_XP, V_X1, SRD_X, SRD_X + 3))
    e("s_waitcnt vmcnt(%d)" % (QFIRST + 2))
    for i in range(8):
        unpack(V_U + 2 * i, V_U + 2 * i + 1, V_L + i)
    emit(ln_stats_ops([V_U + i for i in range(16)], V_SUM, V_T0, V_M, V_RS, V_SQ))
    if QFIRST < 8:
        dma_run(SRD_W, ab, S_E, 4 * 8192, L_W0, 8, QFIRST, 8)
    for i in range(4):
        unpack(V_U + 2 * i, V_U + 2 * i + 1, V_L + 8 + i)
    for i in range(4):
        ln_apply_pair(V_L + 16 + i, V_U + 2 * i, V_U + 2 * i + 1, V_M, V_RS, V_SQ, V_T0, V_T1)
    e("v_and_b32 v%d, 7, v1" % V_T2)
    e("v_lshlrev_b32 v%d, 2, v%d" % (V_XA, V_T2))
    sigma_of(V_T0, V_T2, V_T1)
    e("v_xor_b32 v%d, s%d, v%d" % (V_T0, S_WAVE, V_T0))
    e("v_lshlrev_b32 v%d, 4, v%d" % (V_T0, V_T0))
    e("v_lshl_add_u32 v%d, v1, 7, v%d" % (V_T0, V_T0))
    e("v_add_u32 v%d, %d, v%d" % (V_T0, L_ACT, V_T0))
    e("s_mov_b64 exec, 0xffffffff")
    e("ds_write_b128 v%d, v[%d:%d]" % (V_T0, V_L + 16, V_L + 19))
    e("s_mov_b64 exec, -1")
    srd(SRD_X, S_DBG, 256)
    xcc_publish(V_T0, SRD_X)
    if PFK:
        srd(SRD_O, S_K, 32 << 20)
        e("s_lshl_b32 s84, s%d, 22" % S_XCD)
        e("s_lshl_b32 s%d, s%d, 18" % (S_A, S_SLOT))
        e("s_and_b32 s%d, s%d, 0x300000" % (S_A, S_A))
        e("s_add_u32 s84, s84, s%d" % S_A)
        e("s_and_b32 s%d, s%d, 3" % (S_A, S_SLOT))
        e("s_lshl_b32 s%d, s%d, 16" % (S_A, S_A))
        e("s_add_u32 s84, s84, s%d" % S_A)
        e("s_add_u32 s84, s84, 0x%x" % (3072 * 256 + 65536 - 8192 * PFK))
        dma_run(SRD_O, lambda m: V_G, 84, 1024, L_W1, PFK, 0, PFK)
    tr256_addr(V_TR, V_T0)
    act_rd_addr(V_AE, V_AO, V_T0, L_ACT)
    e("v_and_b32 v%d, 7, v1" % V_T0)
    e("v_lshlrev_b32 v%d, 10, v%d" % (V_PUB, V_T0))
    e("v_lshrrev_b32 v%d, 3, v2" % V_T0)
    e("v_lshl_add_u32 v%d, v3, 1, v%d" % (V_T0, V_T0))
    e("v_lshl_add_u32 v%d, v%d, 4, v%d" % (V_PUB, V_T0, V_PUB))
    e("s_lshl_b32 s%d, s%d, 7" % (S_A, S_WAVE))
    e("v_add_u32 v%d, s%d, v%d" % (V_PUB, S_A, V_PUB))
    e("s_lshl_b32 s%d, s%d, 2" % (S_A, S_C))
    e("s_add_u32 s%d, s%d, s%d" % (S_A, S_A, S_D))
    e("s_lshl_b32 s%d, s%d, 13" % (S_A, S_A))
    e("s_add_u32 s81, s%d, 0x%x" % (S_A, WS_H1))
    stamp(2)
    if NODRY: e("s_branch L_q_real")
    e("s_waitcnt lgkmcnt(0)")
    set_dry()
    lab("L_q_top")
    tr256_read(V_WF, V_TR)
    gemv8(V_ACC, V_WF, V_AF, V_AE, V_AO)
    publish_partial(81, False)
    e("s_cmp_eq_u32 s%d, 0" % S_DRY)
    e("s_cbranch_scc1 L_q_done")
    lab("L_q_real")
    set_real()
    e("s_waitcnt vmcnt(%d)" % (8 - QFIRST + 1 + PFK))
    make_tag(V_L + 12)
    e("s_waitcnt vmcnt(%d) lgkmcnt(0)" % PFK)
    e("s_barrier")
    stamp(3)
    e("s_branch L_q_top")
    lab("L_q_done")
    stamp(4)
    dma256_voff(V_VA, V_VB, 2048, V_T0)
    e("v_add_u32 v%d, %d, v%d" % (V_TR1, L_W1, V_TR))
    e("s_and_b32 s%d, s%d, 1" % (S_A, S_WAVE))
    e("s_lshl_b32 s%d, s%d, 7" % (S_A, S_A))
    e("v_xor_b32 v%d, s%d, v%d" % (V_X1 + 14, S_A, V_VA))
    e("v_xor_b32 v%d, 0x80, v%d" % (V_X1 + 15, V_X1 + 14))
    pos_write_addr(V_AW, L_ACT)
    e("v_lshlrev_b32 v%d, 13, v3" % V_RED)
    e("v_lshl_add_u32 v%d, v2, 4, v%d" % (V_RED, V_RED))
    e("s_and_b32 s%d, s%d, 1" % (S_A, S_WAVE))
    e("s_lshl_b32 s%d, s%d, 8" % (S_A, S_A))
    e("v_add_u32 v%d, s%d, v%d" % (V_RED, S_A, V_RED))
    e("s_lshl_b32 s%d, s%d, 3" % (S_A, S_SLOT))
    e("s_or_b32 s%d, s%d, s%d" % (S_A, S_A, S_XCD))
    e("s_lshl_b32 s%d, s%d, 7" % (S_A, S_A))
    e("s_add_u32 s83, s%d, 0x%x" % (S_A, WS_TRIG))
    e("s_lshl_b32 s%d, s%d, 3" % (S_A, S_SLOT))
    e("s_add_u32 s%d, s%d, s%d" % (S_A, S_A, S_WAVE))
    e("s_lshl_b32 s%d, s%d, 10" % (S_A, S_A))
    e("s_add_u32 s82, s%d, 0x%x" % (S_A, WS_H2G))
    e("s_lshl_b32 s%d, s%d, 4" % (S_A, S_XCD))
    e("s_add_u32 s%d, s%d, s%d" % (S_A, S_A, S_SLOT))
    e("s_lshl_b32 s%d, s%d, 13" % (S_A, S_A))
    e("s_add_u32 s84, s%d, 0x%x" % (S_A, WS_H3A))
    e("s_lshl_b32 s%d, s%d, 17" % (S_A, S_XCD))
    e("s_lshl_b32 s%d, s%d, 9" % (S_B, S_SLOT))
    e("s_add_u32 s%d, s%d, s%d" % (S_A, S_A, S_B))
    e("s_add_u32 s85, s%d, 0x%x" % (S_A, WS_H3A))
    e("s_add_u32 s86, s%d, 0x%x" % (S_A, WS_H5))
    for n in range(4):
        e("s_add_u32 s%d, s85, %d" % (4 + n, 32768 * n))
        e("s_add_u32 s%d, s86, %d" % (8 + n, 32768 * n))
    e("s_lshl_b32 s%d, s80, 1" % S_A)
    e("s_add_u32 s90, s%d, 0x%x" % (S_A, WS_H3B))
    e("s_lshr_b32 s%d, s%d, 3" % (S_C, S_SLOT))
    e("s_lshl_b32 s%d, s%d, 1" % (S_A, S_XCD))
    e("s_add_u32 s%d, s%d, s%d" % (S_C, S_C, S_A))
    e("s_and_b32 s%d, s%d, 7" % (S_D, S_SLOT))
    e("s_mul_i32 s91, s%d, %d" % (S_C, 224 * 2048))
    e("s_lshl_b32 s%d, s%d, 8" % (S_A, S_D))
    e("s_add_u32 s91, s91, s%d" % S_A)
    e("s_min_u32 s%d, s%d, 6" % (S_A, S_WAVE))
    e("s_lshl_b32 s%d, s%d, 10" % (S_B, S_A))
    e("s_mul_i32 s%d, s%d, 7168" % (S_E, S_C))
    e("s_add_u32 s%d, s%d, s%d" % (S_E, S_E, S_B))
    e("s_add_u32 s87, s%d, 0x%x" % (S_E, WS_H4S))
    e("s_add_u32 s88, s%d, 0x%x" % (S_E, WS_H4U))
    e("s_lshl_b32 s%d, s%d, 2" % (S_B, S_A))
    e("v_add_u32 v%d, s%d, v3" % (V_T3, S_B))
    e("v_and_b32 v%d, 7, v%d" % (V_T2, V_T3))
    sigma_of(V_T0, V_T2, V_T1)
    e("v_and_b32 v%d, 7, v1" % V_T1)
    e("v_xor_b32 v%d, v%d, v%d" % (V_T0, V_T0, V_T1))
    e("v_lshlrev_b32 v%d, 4, v%d" % (V_T0, V_T0))
    e("v_lshl_add_u32 v%d, v%d, 7, v%d" % (V_T0, V_T3, V_T0))
    e("v_bfe_u32 v%d, v1, 3, 1" % V_T1)
    e("v_lshl_add_u32 v%d, v%d, 3, v%d" % (V_T0, V_T1, V_T0))
    e("v_add_u32 v%d, %d, v%d" % (V_AWD, L_ACT, V_T0))
    e("s_lshl_b32 s%d, s%d, 4" % (S_A, S_D))
    e("s_add_u32 s%d, s%d, s%d" % (S_A, S_A, S_C))
    e("s_lshl_b32 s%d, s%d, 13" % (S_A, S_A))
    e("s_add_u32 s89, s%d, 0x%x" % (S_A, WS_H5))
    e("v_and_b32 v%d, 31, v1" % V_T0)
    e("v_lshlrev_b32 v%d, 4, v%d" % (V_T0, V_T0))
    e("v_add_u32 v%d, %d, v%d" % (V_ZA, L_ACT + 28 * 128, V_T0))
    for k in range(4): e("v_mov_b32 v%d, 0" % (V_ZQ + k))
    srd(SRD_O, S_OUT, 16384)
    e("s_lshr_b32 s%d, s%d, 7" % (S_E, S_WG))
    e("s_mul_i32 s%d, s%d, 7" % (S_A, S_XCD))
    e("s_add_u32 s%d, s%d, s%d" % (S_E, S_E, S_A))
    e("s_sub_u32 s%d, 3, s%d" % (S_E, S_E))
    e("s_and_b32 s%d, s%d, 7" % (S_E, S_E))
    e("s_lshr_b32 s%d, s%d, 3" % (S_A, S_SLOT))
    e("s_mul_i32 s%d, s%d, 56" % (S_A, S_A))
    e("s_min_u32 s%d, s%d, 6" % (S_B, S_WAVE))
    e("s_lshl_b32 s%d, s%d, 3" % (S_B, S_B))
    e("s_add_u32 s%d, s%d, s%d" % (S_A, S_A, S_B))
    e("s_lshr_b32 s%d, s%d, 4" % (S_B, S_A))
    e("s_cmp_eq_u32 s%d, s%d" % (S_B, S_E))
    e("s_cselect_b32 s96, 1, 0")
    e("s_and_b32 s%d, s%d, 8" % (S_A, S_A))
    e("s_lshl_b32 s%d, s%d, 8" % (S_A, S_A))
    e("s_lshl_b32 s%d, s%d, 12" % (S_B, S_XCD))
    e("s_add_u32 s%d, s%d, s%d" % (S_A, S_A, S_B))
    e("s_add_u32 s81, s%d, 0x%x" % (S_A, WS_H4P))
    e("v_lshlrev_b32 v%d, 5, v1" % V_VC)
    e("v_add_u32 v%d, 0x8000, v%d" % (V_VD, V_VC))
    e("v_add_u32 v%d, 0x10000, v%d" % (V_X1 + 12, V_VC))
    e("v_add_u32 v%d, 0x18000, v%d" % (V_X1 + 13, V_VC))
    e("s_lshl_b32 s99, s%d, 19" % S_SLOT)
    e("s_lshl_b32 s%d, s%d, 8" % (S_A, S_XCD))
    e("s_add_u32 s99, s99, s%d" % S_A)
    e("s_barrier")
    e("s_cmp_ge_u32 s%d, 4" % S_WAVE)
    e("s_cbranch_scc1 L_b_warm")
    srd(SRD_W, S_WO, 8 << 20)
    top = poll_begin()
    e("buffer_load_dwordx2 v[%d:%d], v%d, s[%d:%d], s83 offen sc1" % (V_L, V_L + 1, V_Z, SRD_WS, SRD_WS + 3))
    xcc_load(V_L + 2, V_XA, SRD_X)
    poll_end(top, ([] if NOTRIG else [chk64(V_L)]) + xcc_checks(V_L + 2, V_T0))
    xcc_decide(V_L + 2)
    dma_run(SRD_W, ab, 99, 4 * 2048, L_W1, 16, 0, 16, name="wo")
    if DEARLY:
        srd(SRD_W, S_WD, 3584 * 2048)
        dma_run(SRD_W, lambda m: V_X1 + 15 if (m & 2) else V_X1 + 14, 91, 4 * 2048, L_W0, 14, 0, 14)
    if DSPLIT:
        srd(SRD_W, S_WD, 3584 * 2048)
        dma_run(SRD_W, ab, 91, 4 * 2048, L_W0, 8, 0, 8)
    stamp(5)
    e("s_waitcnt vmcnt(%d)" % (14 if DEARLY else 8 if DSPLIT else 0))
    e("s_branch L_b_real")
    lab("L_b_warm")
    if not NOTOUCH:
        e("s_cmp_lg_u32 s%d, 4" % S_WAVE)
        e("s_cbranch_scc1 L_b_notouch")
        e("v_lshlrev_b32 v%d, 7, v1" % V_T0)
        e("v_lshrrev_b32 v%d, 2, v1" % V_T1)
        e("v_lshlrev_b32 v%d, 13, v%d" % (V_T1, V_T1))
        e("v_and_b32 v%d, 3, v1" % V_T2)
        e("v_lshl_add_u32 v%d, v%d, 7, v%d" % (V_T1, V_T2, V_T1))
        e("s_sub_u32 s%d, s87, 4096" % S_A)
        e("s_sub_u32 s%d, s88, 4096" % S_B)
        e("s_lshl_b32 s%d, s%d, 12" % (S_C, S_XCD))
        e("s_add_u32 s%d, s%d, 0x%x" % (S_C, S_C, WS_H4P))
        e("v_and_b32 v%d, 31, v1" % V_T2)
        e("v_lshlrev_b32 v%d, 7, v%d" % (V_T2, V_T2))
        e("v_lshrrev_b32 v%d, 5, v1" % V_T3)
        e("v_lshl_add_u32 v%d, v%d, 15, v%d" % (V_T2, V_T3, V_T2))
        e("v_add_u32 v%d, 0x10000, v%d" % (V_T3, V_T2))
        touch([(V_T1, 85, 0), (V_T0, S_A, 0), (V_T0, S_B, 0), (V_T2, S_C, 0), (V_T3, S_C, 0), (V_Z, 82, 0), (V_Z, 86, 0), (V_Z, 89, 0), (V_Z, 90, 0)])
        if TLBT:
            e("v_mov_b32 v%d, s99" % V_T0)
            e("v_mov_b32 v%d, s91" % V_T1)
            e("global_load_dword v%d, v%d, s[%d:%d]" % (V_X1 + 29, V_T0, S_WO, S_WO + 1))
            e("global_load_dword v%d, v%d, s[%d:%d]" % (V_X1 + 30, V_T1, S_WD, S_WD + 1))
            e("global_load_dword v%d, v%d, s[%d:%d]" % (V_X1 + 31, V_Z, S_OUT, S_OUT + 1))
        lab("L_b_notouch")
    if NODRY: e("s_branch L_b_real0")
    set_dry()
    e("s_branch L_b_tail")
    lab("L_b_real0")
    set_real()
    top = poll_begin()
    xcc_load(V_L, V_XA, SRD_X)
    poll_end(top, xcc_checks(V_L, V_T0))
    xcc_decide(V_L)
    lab("L_b_real")
    e("s_barrier")
    lab("L_b_tail")
    tr256_read(V_WF, V_TR1)
    stamp(6)
    top = poll_begin((V_G, 82, 3, 0, "2" in AT))
    e("buffer_load_dwordx4 v[%d:%d], v%d, s[%d:%d], s82 offen sc1" % (V_L, V_L + 3, V_G, SRD_WS, SRD_WS + 3))
    poll_end(top, [chk64(V_L + 2)], bell=(V_G, 82, 3))
    e("ds_write_b64 v%d, v[%d:%d]" % (V_AW, V_L, V_L + 1))
    stamp(7)
    e("s_waitcnt lgkmcnt(0)")
    barrier(True)
    gemv8(V_ACC, V_WF, V_AF, V_AE, V_AO)
    publish_partial(84, True)
    stamp(8)
    only_red("L_b_nor3")
    reduce16(4)
    stamp(9)
    residual_add(V_U + 4, V_XP)
    e("v_mov_b32 v%d, s%d" % (V_U + 6, S_T))
    e("v_mov_b32 v%d, s%d" % (V_U + 7, S_T))
    e("v_mov_b32_dpp v%d, v%d quad_perm:[1,1,3,3] row_mask:0xf bank_mask:0xf" % (V_U + 5, V_U + 4))
    store_g("buffer_store_dwordx4 v[%d:%d], v%d, s[%d:%d], s90 offen" % (V_U + 4, V_U + 7, V_HO, SRD_WS, SRD_WS + 3), "0x5555")
    e("v_mov_b32 v%d, v%d" % (V_H, V_U + 4))
    stamp(10)
    lab("L_b_nor3")
    if DEARLY:
        barrier(True)
    else:
        barrier(True)
        srd(SRD_W, S_WD, 3584 * 2048)
        if TRIG2: doorbell(V_Z, 83, 2)
        e("s_cmp_eq_u32 s%d, 7" % S_WAVE)
        e("s_cbranch_scc1 L_b_nod7")
        dma_run(SRD_W, ab, 91, 4 * 2048, L_W0, 8, 0, 8, name="d", dry=True)
        lab("L_b_nod7")
        e("s_cbranch_execz L_b_nod")
        e("s_waitcnt vmcnt(0)")
        e("s_barrier")
        lab("L_b_nod")
    e("ds_write_b128 v%d, v[%d:%d]" % (V_ZA, V_ZQ, V_ZQ + 3))
    tr256_read(V_WF, V_TR)
    stamp(11)
    e("s_cmp_eq_u32 s96, 0")
    e("s_cbranch_scc0 L_b_split")
    lab("L_b_plain")
    top = poll_begin((V_G, 88, 3) if "4" not in NB else None)
    e("buffer_load_dwordx4 v[%d:%d], v%d, s[%d:%d], s87 offen sc1" % (V_L, V_L + 3, V_G, SRD_WS, SRD_WS + 3))
    e("buffer_load_dwordx4 v[%d:%d], v%d, s[%d:%d], s88 offen sc1" % (V_L + 4, V_L + 7, V_G, SRD_WS, SRD_WS + 3))
    poll_end(top, [chk32(V_L + 1), chk32(V_L + 3), chk32(V_L + 5), chk32(V_L + 7)], bell=(V_G, 88, 3))
    unpack(V_U, V_U + 1, V_L); unpack(V_U + 4, V_U + 5, V_L + 4)
    unpack(V_U + 2, V_U + 3, V_L + 2); unpack(V_U + 6, V_U + 7, V_L + 6)
    e("s_cbranch_execnz L_b_join")
    lab("L_b_split")
    top = poll_begin((V_X1 + 12, 81, 3) if "4" not in NB else None)
    for i, va in enumerate((V_VC, V_VD, V_X1 + 12, V_X1 + 13)):
        if i == 2: top2 = poll_mid(top)
        for h in range(2):
            r = V_L + 8 * i + 4 * h
            e("buffer_load_dwordx4 v[%d:%d], v%d, s[%d:%d], s81 offen offset:%d sc1" % (r, r + 3, va, SRD_WS, SRD_WS + 3, 16 * h))
    poll_end(top, [chk64(V_L + 4 * i + 2) for i in range(8)], last=top2, bell=(V_X1 + 12, 81, 3))
    for mat in range(2):
        for h in range(2):
            for k in range(2):
                e("v_add_f32 v%d, v%d, v%d" % (V_U + 4 * mat + 2 * h + k, V_L + 16 * mat + 4 * h + k, V_L + 16 * mat + 8 + 4 * h + k))
    for i in range(4):
        e("v_cvt_pk_bf16_f32 v%d, v%d, v%d" % (V_L + i, V_U + 2 * i, V_U + 2 * i + 1))
    for i in range(4):
        unpack(V_U + 2 * i, V_U + 2 * i + 1, V_L + i)
    for k in range(4): e("v_mul_f32 v%d, %s, v%d" % (V_U + k, f32(-LOG2E), V_U + k))
    for k in range(4): e("v_exp_f32 v%d, v%d" % (V_U + k, V_U + k))
    for k in range(4): e("v_add_f32 v%d, 1.0, v%d" % (V_U + k, V_U + k))
    for k in range(4): e("v_rcp_f32 v%d, v%d" % (V_U + k, V_U + k))
    e("s_nop 0")
    for i in range(2):
        e("v_cvt_pk_bf16_f32 v%d, v%d, v%d" % (V_L + i, V_U + 2 * i, V_U + 2 * i + 1))
    for i in range(2):
        unpack(V_U + 2 * i, V_U + 2 * i + 1, V_L + i)
    lab("L_b_join")
    stamp(12)
    for k in range(4): e("v_mul_f32 v%d, v%d, v%d" % (V_U + k, V_U + k, V_U + 4 + k))
    e("v_cvt_pk_bf16_f32 v%d, v%d, v%d" % (V_U + 16, V_U, V_U + 1))
    e("v_cvt_pk_bf16_f32 v%d, v%d, v%d" % (V_U + 17, V_U + 2, V_U + 3))
    e("ds_write_b64 v%d, v[%d:%d]" % (V_AWD, V_U + 16, V_U + 17))
    e("s_waitcnt lgkmcnt(0)")
    barrier(True)
    gemv8(V_ACC, V_WF, V_AF, V_AE, V_AO)
    publish_partial(89, False)
    stamp(13)
    noep = uid("noep")
    e("s_add_u32 s%d, s2, s%d" % (S_A, S_WAVE))
    e("s_cmp_lg_u32 s%d, 0" % S_A)
    e("s_cbranch_scc1 %s" % noep)
    e("s_mov_b64 exec, 1")
    e("v_mov_b32 v%d, s%d" % (V_T0, S_F))
    e("buffer_store_dword v%d, v%d, s[%d:%d], 0 offen sc1" % (V_T0, V_Z, SRD_WS, SRD_WS + 3))
    e("s_mov_b64 exec, -1")
    lab(noep)
    only_red("L_b_end2")
    reduce16(8, BELL5)
    stamp(14)
    residual_add(V_U + 4, V_H)
    store_g("buffer_store_dword v%d, v%d, s[%d:%d], s80 offen" % (V_U + 4, V_X1, SRD_O, SRD_O + 3), "0xffff", flags="")
    e("s_cmp_lg_u32 s%d, 0" % S_DRY)
    e("s_cbranch_scc1 L_b_real0")
    stamp(15)
    lab("L_b_end")
    stamps_flush(V_U)
    e("s_endpgm")
    lab("L_b_end2")
    if "b" in CLEAN: clean("buffer_store_dwordx4 v[%d:%d], v%d, s[%d:%d], s84 offen" % (V_P, V_P + 3, V_PUB, SRD_WS, SRD_WS + 3))
    e("s_branch L_b_end")

def role_a():
    cmt("================= role A =================")
    KO = V_X1
    KA = V_X1 + 4
    QE, QO, QW, PW0, PW1, SW, SR, XA, EP = [V_X1 + 8 + i for i in range(9)]
    ab = lambda m: V_VB if (m & 2) else V_VA
    dma256_voff(V_VA, V_VB, 256, V_T0)
    e("s_lshl_b32 s%d, s%d, 22" % (S_E, S_XCD))
    e("s_lshr_b32 s%d, s%d, 2" % (S_C, S_SLOT))
    e("s_lshl_b32 s%d, s%d, 20" % (S_A, S_C))
    e("s_add_u32 s%d, s%d, s%d" % (S_E, S_E, S_A))
    e("s_and_b32 s%d, s%d, 3" % (S_D, S_SLOT))
    e("s_lshl_b32 s%d, s%d, 16" % (S_A, S_D))
    e("s_add_u32 s%d, s%d, s%d" % (S_E, S_E, S_A))
    e("s_add_u32 s%d, s%d, 0x%x" % (S_E, S_E, 3072 * 256))
    e("v_xor_b32 v%d, v2, v3" % V_T0)
    e("v_lshlrev_b32 v%d, 4, v%d" % (V_T0, V_T0))
    e("v_lshl_add_u32 v%d, v3, 8, v%d" % (KO, V_T0))
    for i in range(1, 4): e("v_xor_b32 v%d, %d, v%d" % (KO + i, 64 * i, KO))
    e("s_waitcnt lgkmcnt(0)")
    if STAMPS: e("s_mov_b32 s%d, s%d" % (S_ST, S_TM))
    e("s_load_dword s100, s[%d:%d], 0" % (S_WS, S_WS + 1))
    srd(SRD_O, S_DBG, 256)
    xcc_publish(V_T0, SRD_O, 0)
    e("s_cmp_ge_u32 s%d, %d" % (S_WAVE, NLD))
    e("s_cbranch_scc1 L_a_noissue0")
    srd(SRD_X, S_K, 32 << 20)
    def thr(c):
        if AWIN <= c < ATHR: e("s_waitcnt vmcnt(%d)" % (AWIN - 1))
    if KFIRST:
        dma_run(SRD_X, lambda m: KO + (m & 3), S_E, 1024, L_W1, 16, 0, 16, pre=thr, name="k")
    else:
        srd(SRD_W, S_V, 32 << 20)
        dma_run(SRD_W, ab, S_E, 1024, L_W0, 16, 0, 16, pre=thr, name="v")
        dma_run(SRD_X, lambda m: KO + (m & 3), S_E, 1024, L_W1, 8, 0, 8, pre=lambda m: thr(16 + m), name="k")
        dma_run(SRD_X, lambda m: KO + (m & 3), S_E, 1024, L_W1, 8, 32, 40, name="k")
    lab("L_a_noissue0")
    srd(SRD_WS, S_WS, WS_SIZE)
    stamp(1)
    common_consts()
    e("v_lshlrev_b32 v%d, 4, v1" % V_G)
    tr256_addr(V_TR, V_T0)
    e("v_xor_b32 v%d, v2, v3" % V_T0)
    e("v_lshlrev_b32 v%d, 4, v%d" % (V_T0, V_T0))
    e("v_lshl_add_u32 v%d, v2, 8, v%d" % (V_T0, V_T0))
    e("s_lshl_b32 s%d, s%d, 13" % (S_A, S_WAVE))
    e("s_add_u32 s%d, s%d, %d" % (S_A, S_A, L_W1))
    e("v_add_u32 v%d, s%d, v%d" % (KA, S_A, V_T0))
    for i in range(1, 4): e("v_xor_b32 v%d, %d, v%d" % (KA + i, 64 * i, KA))
    act_rd_addr(QE, QO, V_T0, L_QB)
    act_rd_addr(V_AE, V_AO, V_T0, L_PB)
    e("v_bfe_u32 v%d, v1, 2, 3" % V_T2)
    sigma_of(V_T0, V_T2, V_T1)
    e("v_xor_b32 v%d, s%d, v%d" % (V_T0, S_WAVE, V_T0))
    e("v_lshlrev_b32 v%d, 4, v%d" % (V_T0, V_T0))
    e("v_lshrrev_b32 v%d, 2, v1" % V_T1)
    e("v_lshl_add_u32 v%d, v%d, 7, v%d" % (V_T0, V_T1, V_T0))
    e("v_and_b32 v%d, 3, v1" % V_T1)
    e("v_lshl_add_u32 v%d, v%d, 2, v%d" % (V_T0, V_T1, V_T0))
    e("v_add_u32 v%d, %d, v%d" % (QW, L_QB, V_T0))
    e("v_and_b32 v%d, 2, v3" % V_T0)
    e("s_and_b32 s%d, s%d, 1" % (S_A, S_WAVE))
    e("v_or_b32 v%d, s%d, v%d" % (V_T0, S_A, V_T0))
    e("v_and_b32 v%d, 7, v1" % V_T1)
    e("v_xor_b32 v%d, v%d, v%d" % (V_T0, V_T0, V_T1))
    e("v_lshlrev_b32 v%d, 4, v%d" % (V_T0, V_T0))
    e("v_lshrrev_b32 v%d, 1, v3" % V_T1)
    e("v_lshl_add_u32 v%d, v%d, 7, v%d" % (V_T0, V_T1, V_T0))
    e("v_and_b32 v%d, 1, v3" % V_T1)
    e("v_lshl_add_u32 v%d, v%d, 3, v%d" % (V_T0, V_T1, V_T0))
    e("s_lshl_b32 s%d, s%d, 9" % (S_A, S_WAVE))
    e("s_add_u32 s%d, s%d, %d" % (S_A, S_A, L_PB))
    e("v_add_u32 v%d, s%d, v%d" % (PW0, S_A, V_T0))
    e("v_xor_b32 v%d, 64, v%d" % (PW1, PW0))
    e("v_add_u32 v%d, 0x100, v%d" % (PW1, PW1))
    e("v_cndmask_b32 v%d, v%d, v%d, s[%d:%d]" % (PW0, PW0, PW1, S_HI8, S_HI8 + 1))
    e("v_and_b32 v%d, 7, v1" % V_T0)
    e("v_lshlrev_b32 v%d, 2, v%d" % (XA, V_T0))
    e("v_lshlrev_b32 v%d, 6, v%d" % (V_T0, V_T0))
    e("v_add_u32 v%d, %d, v%d" % (SR, L_MX, V_T0))
    e("s_lshl_b32 s%d, s%d, 2" % (S_A, S_WAVE))
    e("v_add_u32 v%d, s%d, v%d" % (SW, S_A, SR))
    e("s_lshl_b32 s%d, s%d, 3" % (S_A, S_C))
    e("s_add_u32 s%d, s%d, s%d" % (S_A, S_A, S_WAVE))
    e("s_lshl_b32 s%d, s%d, 15" % (S_A, S_A))
    e("s_lshl_b32 s%d, s%d, 10" % (S_B, S_XCD))
    e("s_add_u32 s%d, s%d, s%d" % (S_A, S_A, S_B))
    e("s_add_u32 s80, s%d, 0x%x" % (S_A, WS_H1))
    for i in range(1, 4): e("s_add_u32 s%d, s80, %d" % (80 + i, 8192 * i))
    e("s_lshl_b32 s%d, s%d, 3" % (S_A, S_C))
    e("s_add_u32 s%d, s%d, s%d" % (S_A, S_A, S_XCD))
    e("s_lshl_b32 s%d, s%d, 14" % (S_A, S_A))
    e("s_add_u32 s%d, s%d, 0x%x" % (S_A, S_A, WS_H2))
    e("s_lshl_b32 s%d, s%d, 10" % (S_B, S_D))
    e("s_add_u32 s87, s%d, s%d" % (S_A, S_B))
    for i in range(1, 4): e("s_add_u32 s%d, s87, %d" % (87 + i, 4096 * i))
    e("s_lshl_b32 s%d, s%d, 12" % (S_B, S_D))
    e("s_add_u32 s%d, s%d, s%d" % (S_A, S_A, S_B))
    e("s_lshl_b32 s%d, s%d, 6" % (S_B, S_WAVE))
    e("s_add_u32 s84, s%d, s%d" % (S_A, S_B))
    e("v_and_b32 v%d, 7, v1" % V_T0)
    e("v_lshlrev_b32 v%d, 9, v%d" % (V_PUB, V_T0))
    e("v_lshl_add_u32 v%d, v3, 4, v%d" % (V_PUB, V_PUB))
    e("s_lshl_b32 s%d, s%d, 3" % (S_A, S_SLOT))
    e("s_add_u32 s%d, s%d, s%d" % (S_A, S_A, S_XCD))
    e("s_lshl_b32 s%d, s%d, 10" % (S_A, S_A))
    e("s_add_u32 s91, s%d, 0x%x" % (S_A, WS_H2G))
    e("s_mov_b32 s96, %s" % f32(LOG2E))
    e("s_cmp_lt_u32 s%d, %d" % (S_WAVE, NLD))
    e("s_cbranch_scc1 L_a_real")
    if NODRY: e("s_branch L_a_real0")
    set_dry()
    e("s_branch L_a_att")
    def gu_scalar_setup():
        GO = V_GO
        e("s_lshr_b32 s%d, s%d, 7" % (S_D, S_WG))
        e("s_mul_i32 s%d, s%d, 7" % (S_A, S_XCD))
        e("s_add_u32 s%d, s%d, s%d" % (S_D, S_D, S_A))
        e("s_sub_u32 s%d, 3, s%d" % (S_D, S_D))
        e("s_and_b32 s%d, s%d, 7" % (S_D, S_D))
        e("s_mov_b32 s101, 0")
        e("s_cmp_ge_u32 s%d, 7" % S_SLOT)
        e("s_cselect_b32 s%d, 7, 0" % S_B)
        e("s_cselect_b32 s100, 1, 0")
        e("s_sub_u32 s%d, s%d, s%d" % (S_C, S_SLOT, S_B))
        e("s_cmp_eq_u32 s%d, s%d" % (S_C, S_D))
        e("s_cselect_b32 s99, 1, 0")
        e("s_cmp_lt_u32 s%d, 14" % S_SLOT)
        e("s_cbranch_scc1 L_a_nohelp")
        e("s_cmp_eq_u32 s%d, 7" % S_D)
        e("s_cselect_b32 s101, 1, 0")
        e("s_mov_b32 s%d, s%d" % (S_C, S_D))
        e("s_sub_u32 s100, s%d, 14" % S_SLOT)
        e("s_mov_b32 s99, 2")
        lab("L_a_nohelp")
        e("s_cmp_lg_u32 s100, 0")
        e("s_cselect_b32 s%d, s%d, s%d" % (SRD_W, S_WU, S_WG))
        e("s_cselect_b32 s%d, s%d, s%d" % (S_A, S_WU + 1, S_WG + 1))
        e("s_cselect_b32 s85, 0x%x, 0" % (WS_H4U - WS_H4S))
        e("s_add_u32 s85, s85, 0x%x" % WS_H4S)
        e("s_and_b32 s%d, s%d, 0xffff" % (SRD_W + 1, S_A))
        e("s_cmp_lg_u32 s101, 0")
        e("s_cselect_b32 s%d, 0, 0x%x" % (SRD_W + 2, 1024 * 7168))
        e("s_mov_b32 s%d, 0x20000" % (SRD_W + 3))
        e("s_mul_i32 s%d, s%d, 7" % (S_A, S_XCD))
        e("s_add_u32 s%d, s%d, s%d" % (S_C, S_C, S_A))
        e("v_lshrrev_b32 v%d, 3, v1" % V_T0)
        e("v_bfe_u32 v%d, v1, 4, 1" % V_T1)
        e("v_and_b32 v%d, 7, v1" % V_T2)
        e("v_xor_b32 v%d, v%d, v%d" % (V_T1, V_T1, V_T2))
        e("v_lshlrev_b32 v%d, 4, v%d" % (V_T1, V_T1))
        e("v_mul_u32_u24 v%d, 7168, v%d" % (GO, V_T0))
        e("v_add_u32 v%d, v%d, v%d" % (GO, GO, V_T1))
        for i in range(1, 4): e("v_xor_b32 v%d, %d, v%d" % (GO + i, 32 * i, GO))
        e("s_and_b32 s%d, s%d, 1" % (S_A, S_WAVE))
        e("s_lshl_b32 s%d, s%d, 6" % (S_A, S_A))
        e("v_xor_b32 v%d, s%d, v%d" % (GO + 4, S_A, GO))
        e("v_xor_b32 v%d, 32, v%d" % (GO + 5, GO + 4))
        NE = 8 * GE
        e("s_cmp_eq_u32 s99, 2")
        e("s_cselect_b32 s%d, 64, 0" % S_B)
        e("s_mul_i32 s%d, s%d, %d" % (S_A, S_WAVE, GE))
        e("s_add_u32 s%d, s%d, s%d" % (S_A, S_A, S_B))
        e("s_lshl_b32 s9, s%d, 10" % S_A)
        e("s_mul_i32 s8, s%d, %d" % (S_A, 8 * 7168))
        e("s_lshl_b32 s%d, s%d, 7" % (S_E, S_C))
        e("s_add_u32 s8, s8, s%d" % S_E)
        e("s_cmp_eq_u32 s99, 0")
        e("s_cselect_b32 s%d, %d, %d" % (S_A, (128 - NE) // 4, (64 - NE) // 4))
        e("s_cselect_b32 s6, %d, %d" % ((128 - NE) // 32, (64 - NE) // 32))
        e("s_mul_i32 s%d, s%d, s%d" % (S_A, S_A, S_WAVE))
        e("s_add_u32 s%d, s%d, s%d" % (S_A, S_A, S_B))
        e("s_add_u32 s%d, s%d, %d" % (S_A, S_A, NE))
        e("s_lshl_b32 s5, s%d, 10" % S_A)
        e("s_mul_i32 s4, s%d, %d" % (S_A, 8 * 7168))
        e("s_add_u32 s4, s4, s%d" % S_E)
    def gu_early(ms):
        if not ms or "gu" in SKIP: return
        l = uid("nge")
        e("s_cbranch_execz %s" % l)
        for m in ms:
            e("s_mov_b32 m0, s9")
            e("s_add_u32 s9, s9, 1024")
            e("buffer_load_dwordx4 v%d, s[%d:%d], s8 offen nt lds" % (V_GO + 4 + (m & 1) if GE == 4 else V_GO + ((m & 1) | (((m >> 2) & 1) << 1)), SRD_W, SRD_W + 3))
            e("s_add_u32 s8, s8, %d" % (8 * 7168))
        lab(l)
    def h1_loads():
        for k in range(4):
            e("buffer_load_dwordx4 v[%d:%d], v%d, s[%d:%d], s%d offen sc1" % (V_L + 4 * k, V_L + 4 * k + 3, V_G, SRD_WS, SRD_WS + 3, 80 + k))
        xcc_load(V_L + 16, XA, SRD_O)
    def trig1(w):
        notr = uid("notr")
        e("s_cmp_lg_u32 s%d, %d" % (S_WAVE, w))
        e("s_cbranch_scc1 %s" % notr)
        e("s_lshl_b32 s%d, s%d, 3" % (S_A, S_SLOT))
        e("s_or_b32 s%d, s%d, s%d" % (S_A, S_A, S_XCD))
        e("s_lshl_b32 s%d, s%d, 7" % (S_A, S_A))
        e("s_add_u32 s%d, s%d, 0x%x" % (S_A, S_A, WS_TRIG))
        e("s_mov_b64 exec, 1")
        e("buffer_store_dwordx2 v[%d:%d], v%d, s[%d:%d], s%d offen sc1" % (V_T2 + 1, V_T2 + 2, V_Z, SRD_WS, SRD_WS + 3, S_A) if False else
          "buffer_store_dwordx2 v[%d:%d], v%d, s[%d:%d], s%d offen sc1" % (V_X1 + 18, V_X1 + 19, V_Z, SRD_WS, SRD_WS + 3, S_A))
        full()
        lab(notr)
    if KFIRST:
        lab("L_a_real0")
        e("s_waitcnt vmcnt(0)")
        e("s_branch L_a_sync")
        lab("L_a_real")
        dma_run(SRD_W, ab, S_E, 1024, L_W0, 16, 0, VP, pre=lambda m: thr(16 + m), name="v")
        e("s_waitcnt vmcnt(%d)" % VP)
        lab("L_a_sync")
        set_real()
        make_tag(EP)
        e("v_mov_b32 v%d, s%d" % (V_X1 + 18, S_T))
        e("v_mov_b32 v%d, s%d" % (V_X1 + 19, S_T))
        e("s_barrier")
        stamp(2)
        lab("L_a_att")
        e("s_cbranch_execz L_a_h1k")
        h1_loads()
        e("s_cmp_ge_u32 s%d, 4" % S_WAVE)
        e("s_cbranch_scc1 L_a_h1k")
        if VP < 16:
            dma_run(SRD_W, ab, S_E, 1024, L_W0, 16, VP, 16, name="v")
        lab("L_a_h1k")
    else:
        lab("L_a_real0")
        set_real()
        if not NOTOUCH:
            e("s_cmp_lg_u32 s%d, 4" % S_WAVE)
            e("s_cbranch_scc1 L_a_notouch")
            e("v_and_b32 v%d, 7, v1" % V_T0)
            e("v_lshlrev_b32 v%d, 7, v%d" % (V_T0, V_T0))
            e("v_bfe_u32 v%d, v1, 3, 2" % V_T1)
            e("v_lshl_add_u32 v%d, v%d, 12, v%d" % (V_T0, V_T1, V_T0))
            touch([(V_T0, 87, 0), (V_Z, 80, 0), (V_Z, 91, 0)])
            if TLBT:
                e("v_min_u32 v%d, 27, v1" % V_T1)
                e("v_lshlrev_b32 v%d, 18, v%d" % (V_T1, V_T1))
                e("global_load_dword v%d, v%d, s[%d:%d]" % (V_X1 + 23, V_T1, S_WG, S_WG + 1))
                e("global_load_dword v%d, v%d, s[%d:%d]" % (V_X1 + 23, V_T1, S_WU, S_WU + 1))
                e("s_mov_b32 s%d, 0x%x" % (S_A, WS_H3B))
                e("s_mov_b32 s%d, 0x%x" % (S_B, WS_H4P))
                e("buffer_load_dword v%d, v%d, s[%d:%d], s%d offen offset:64 sc1" % (V_X1 + 23, V_Z, SRD_WS, SRD_WS + 3, S_B))
            lab("L_a_notouch")
        lab("L_a_real")
        set_real()
        make_tag()
        gu_scalar_setup()
        e("s_waitcnt vmcnt(%d)" % (TRIGV * 4 // NLD))
        notr = uid("notr")
        e("s_cmp_lg_u32 s%d, 0" % S_WAVE)
        e("s_cbranch_scc1 %s" % notr)
        e("s_lshl_b32 s%d, s%d, 3" % (S_A, S_SLOT))
        e("s_or_b32 s%d, s%d, s%d" % (S_A, S_A, S_XCD))
        e("s_lshl_b32 s%d, s%d, 7" % (S_A, S_A))
        e("s_add_u32 s%d, s%d, 0x%x" % (S_A, S_A, WS_TRIG))
        e("s_mov_b64 exec, 1")
        e("buffer_store_dwordx2 v[%d:%d], v%d, s[%d:%d], s%d offen sc1" % (V_P + 2, V_P + 3, V_Z, SRD_WS, SRD_WS + 3, S_A))
        e("s_mov_b64 exec, -1")
        lab(notr)
        e("s_waitcnt vmcnt(%d)" % (64 // NLD))
        e("s_barrier")
        stamp(2)
        tr256_read(V_WF, V_TR)
        lab("L_a_att")
        e("s_cbranch_execz L_a_h1k")
        if H1LATE:
            e("s_waitcnt vmcnt(%d)" % H1V)
            e("s_barrier")
            h1_loads()
            e("s_waitcnt vmcnt(5)")
            e("s_barrier")
        else:
            h1_loads()
            e("s_waitcnt vmcnt(5)")
            e("s_barrier")
        lab("L_a_h1k")
        stamp(3)
    for sg in range(4):
        for t in range(2):
            r = V_KF + 16 * t + 4 * sg
            e("ds_read_b128 v[%d:%d], v%d offset:%d" % (r, r + 3, KA + sg, t * 4096))
    e("s_cbranch_execz L_a_h1_nl")
    if KFIRST:
        e("s_cmp_ge_u32 s%d, 4" % S_WAVE)
        e("s_cbranch_scc1 L_a_h1w")
        e("s_waitcnt vmcnt(%d)" % (16 - VP))
        e("s_branch L_a_h1_nl")
    else:
        e("s_branch L_a_h1w")
    lab("L_a_h1")
    h1_loads()
    lab("L_a_h1w")
    poll_end("L_a_h1", [chk64(V_L + 4 * k + 2) for k in range(4)] + xcc_checks(V_L + 16, V_T0))
    stamp(4)
    e("v_pk_add_f32 v[%d:%d], v[%d:%d], v[%d:%d]" % (V_L, V_L + 1, V_L, V_L + 1, V_L + 4, V_L + 5))
    e("v_pk_add_f32 v[%d:%d], v[%d:%d], v[%d:%d]" % (V_L + 8, V_L + 9, V_L + 8, V_L + 9, V_L + 12, V_L + 13))
    e("v_pk_add_f32 v[%d:%d], v[%d:%d], v[%d:%d]" % (V_L, V_L + 1, V_L, V_L + 1, V_L + 8, V_L + 9))
    e("v_cvt_pk_bf16_f32 v%d, v%d, v%d" % (V_T0, V_L, V_L + 1))
    e("ds_write_b32 v%d, v%d" % (QW, V_T0))
    xcc_decide(V_L + 16)
    e("s_waitcnt lgkmcnt(0)")
    barrier(True)
    for sg in range(4):
        e("ds_read_b128 v[%d:%d], v%d offset:%d" % (V_AF + 4 * sg, V_AF + 4 * sg + 3, QO if (sg & 1) else QE, sg * 512))
    S0, S1 = V_U, V_U + 4
    gu_early(range(0, GE1))
    for sg in range(4):
        e("s_waitcnt lgkmcnt(%d)" % (3 - sg))
        for t, acc in ((0, S0), (1, S1)):
            e(mfma(acc, V_KF + 16 * t + 4 * sg, V_AF + 4 * sg, None if sg == 0 else acc))
    gu_early(range(GE1, GE))
    e("s_nop 7")
    X = V_U + 8
    W = V_U + 16
    for k in range(4):
        e("v_cndmask_b32 v%d, v%d, v%d, s[%d:%d]" % (X + k, S0 + k, S1 + k, S_HI8, S_HI8 + 1))
    for rnd in range(2):
        for i2 in range(2):
            e("v_cvt_pk_bf16_f32 v%d, v%d, v%d" % (W + i2, X + 2 * i2, X + 2 * i2 + 1))
        for i2 in range(2):
            unpack(X + 2 * i2, X + 2 * i2 + 1, W + i2)
        if rnd == 0:
            for k in range(4):
                e("v_mul_f32 v%d, %s, v%d" % (X + k, f32(128 ** -0.5), X + k))
    e("v_max3_f32 v%d, v%d, v%d, v%d" % (V_M, X, X + 1, X + 2))
    e("v_max_f32 v%d, v%d, v%d" % (V_M, V_M, X + 3))
    e("s_nop 1")
    e(dpp_add(V_M, V_M, "row_ror:8", "v_max_f32"))
    emit(xrow_ops(V_M, V_T0, "v_max_f32"))
    e("v_mul_f32 v%d, s96, v%d" % (V_M, V_M))
    for k in range(4):
        e("v_fma_f32 v%d, v%d, s96, -v%d" % (X + k, X + k, V_M))
    for k in range(4):
        e("v_exp_f32 v%d, v%d" % (X + k, X + k))
    e("s_nop 0")
    e("v_cvt_pk_bf16_f32 v%d, v%d, v%d" % (W, X, X + 1))
    e("v_cvt_pk_bf16_f32 v%d, v%d, v%d" % (W + 1, X + 2, X + 3))
    e("v_add_f32 v%d, v%d, v%d" % (V_SUM, X, X + 1))
    e("v_add_f32 v%d, v%d, v%d" % (V_T1, X + 2, X + 3))
    e("ds_write_b64 v%d, v[%d:%d]" % (PW0, W, W + 1))
    e("v_add_f32 v%d, v%d, v%d" % (V_SUM, V_SUM, V_T1))
    e("s_nop 1")
    e(dpp_add(V_SUM, V_SUM, "row_ror:8"))
    emit(xrow_ops(V_SUM, V_T0))
    e("ds_write2_b32 v%d, v%d, v%d offset0:0 offset1:8" % (SW, V_M, V_SUM))
    if KFIRST:
        e("s_cbranch_execz L_a_nov")
        trig1(4)
        e("s_waitcnt vmcnt(0) lgkmcnt(0)")
        e("s_barrier")
        lab("L_a_nov")
    else:
        e("s_waitcnt lgkmcnt(0)")
        barrier(True)
    stamp(5)
    MS, LS = V_L, V_L + 8
    for i2 in range(4):
        e("ds_read_b128 v[%d:%d], v%d offset:%d" % (V_L + 4 * i2, V_L + 4 * i2 + 3, SR, 16 * i2))
    def pv_reads(m):
        if KFIRST:
            for h in range(2):
                e("ds_read_b64_tr_b16 v[%d:%d], v%d offset:%d" % (V_WF + 4 * m + 2 * h, V_WF + 4 * m + 2 * h + 1, V_TR, m * 8192 + h * 1024))
        e("ds_read_b128 v[%d:%d], v%d offset:%d" % (V_AF + 4 * m, V_AF + 4 * m + 3, V_AO if (m & 1) else V_AE, m * 512))
    for m in range(4 if KFIRST else 8): pv_reads(m)
    AC = V_U
    side = ["v_max3_f32 v%d, v%d, v%d, v%d" % (V_M, MS, MS + 1, MS + 2),
            "v_max3_f32 v%d, v%d, v%d, v%d" % (V_T0, MS + 3, MS + 4, MS + 5),
            "v_max3_f32 v%d, v%d, v%d, v%d" % (V_M, V_M, MS + 6, MS + 7),
            "v_max_f32 v%d, v%d, v%d" % (V_M, V_M, V_T0)]
    side += ["v_sub_f32 v%d, v%d, v%d" % (MS + i2, MS + i2, V_M) for i2 in range(8)]
    side += ["v_exp_f32 v%d, v%d" % (MS + i2, MS + i2) for i2 in range(8)]
    side += ["v_mul_f32 v%d, v%d, v%d" % (V_SUM, LS, MS), "v_mul_f32 v%d, v%d, v%d" % (V_T1, LS + 1, MS + 1)]
    for i2 in range(2, 8, 2):
        side += ["v_fmac_f32 v%d, v%d, v%d" % (V_SUM, LS + i2, MS + i2), "v_fmac_f32 v%d, v%d, v%d" % (V_T1, LS + i2 + 1, MS + i2 + 1)]
    side += ["v_add_f32 v%d, v%d, v%d" % (V_SUM, V_SUM, V_T1),
             "v_rcp_f32 v%d, v%d" % (V_RS, V_SUM), "v_log_f32 v%d, v%d" % (V_T1, V_SUM), "s_nop 0",
             "v_add_f32 v%d, v%d, v%d" % (V_P + 2, V_T1, V_M)]
    per = (len(side) + 7) // 8
    for m in range(8):
        e("s_waitcnt lgkmcnt(%d)" % ((9 if m < 5 else 3 * (7 - m)) if KFIRST else 7 - m))
        e(mfma(AC + 4 * m, V_WF + 4 * m, V_AF + 4 * m, None))
        if KFIRST and m < 4: pv_reads(m + 4)
        emit(side[m * per:(m + 1) * per])
    def bsel(r):
        return (r & ~1, "op_sel:[0,%d,0] op_sel_hi:[1,%d,1]" % (r & 1, r & 1), "op_sel:[0,%d] op_sel_hi:[1,%d]" % (r & 1, r & 1))
    for m in range(8):
        fb, sel, sel2 = bsel(MS + m)
        for h in range(2):
            a = V_ACC + 2 * h
            if m == 0:
                e("v_pk_mul_f32 v[%d:%d], v[%d:%d], v[%d:%d] %s" % (a, a + 1, AC + 2 * h, AC + 2 * h + 1, fb, fb + 1, sel2))
            else:
                e("v_pk_fma_f32 v[%d:%d], v[%d:%d], v[%d:%d], v[%d:%d] %s" % (a, a + 1, AC + 4 * m + 2 * h, AC + 4 * m + 2 * h + 1, fb, fb + 1, a, a + 1, sel))
    fb, sel, sel2 = bsel(V_RS)
    for h in range(2):
        a = V_ACC + 2 * h
        e("v_pk_mul_f32 v[%d:%d], v[%d:%d], v[%d:%d] %s" % (a, a + 1, a, a + 1, fb, fb + 1, sel2))
    e("v_cvt_pk_bf16_f32 v%d, v%d, v%d" % (V_P, V_ACC, V_ACC + 1))
    e("v_cvt_pk_bf16_f32 v%d, v%d, v%d" % (V_P + 1, V_ACC + 2, V_ACC + 3))
    store_l("buffer_store_dwordx4 v[%d:%d], v%d, s[%d:%d], s84 offen" % (V_P, V_P + 3, V_PUB, SRD_WS, SRD_WS + 3), "lo8")
    stamp(6)
    e("s_sub_u32 s%d, s%d, 1" % (S_A, S_WAVE))
    e("s_cmp_lt_u32 s%d, 3" % S_A)
    e("s_cbranch_scc1 L_a_nocomb")
    e("s_cmp_lg_u32 s%d, 0" % S_DRY)
    e("s_cbranch_scc1 L_a_comb")
    e("s_cmp_lg_u32 s%d, 0" % S_WAVE)
    e("s_cbranch_scc1 L_a_nocomb")
    lab("L_a_comb")
    top = poll_begin()
    for s in range(4):
        e("buffer_load_dwordx4 v[%d:%d], v%d, s[%d:%d], s%d offen sc1" % (V_L + 4 * s, V_L + 4 * s + 3, V_G, SRD_WS, SRD_WS + 3, 87 + s))
    poll_end(top, [chk32(V_L + 4 * s + 3) for s in range(4)])
    Ls = [V_L + 4 * s + 2 for s in range(4)]
    e("v_max3_f32 v%d, v%d, v%d, v%d" % (V_T0, Ls[0], Ls[1], Ls[2]))
    e("v_max_f32 v%d, v%d, v%d" % (V_T0, V_T0, Ls[3]))
    for s in range(4): e("v_sub_f32 v%d, v%d, v%d" % (Ls[s], Ls[s], V_T0))
    for s in range(4): e("v_exp_f32 v%d, v%d" % (Ls[s], Ls[s]))
    for s in range(4):
        unpack(V_U + 4 * s, V_U + 4 * s + 1, V_L + 4 * s)
        unpack(V_U + 4 * s + 2, V_U + 4 * s + 3, V_L + 4 * s + 1)
    e("v_add_f32 v%d, v%d, v%d" % (V_T0, Ls[0], Ls[1]))
    e("v_add_f32 v%d, v%d, v%d" % (V_T1, Ls[2], Ls[3]))
    e("v_add_f32 v%d, v%d, v%d" % (V_T0, V_T0, V_T1))
    e("v_rcp_f32 v%d, v%d" % (V_T0, V_T0))
    for k in range(4):
        e("v_mul_f32 v%d, v%d, v%d" % (V_U + k, V_U + k, Ls[0]))
    for s in range(1, 4):
        for k in range(4):
            e("v_fmac_f32 v%d, v%d, v%d" % (V_U + k, V_U + 4 * s + k, Ls[s]))
    for k in range(4):
        e("v_mul_f32 v%d, v%d, v%d" % (V_U + k, V_U + k, V_T0))
    e("v_cvt_pk_bf16_f32 v%d, v%d, v%d" % (V_U + 16, V_U, V_U + 1))
    e("v_cvt_pk_bf16_f32 v%d, v%d, v%d" % (V_U + 17, V_U + 2, V_U + 3))
    e("v_mov_b32 v%d, s%d" % (V_U + 18, S_T))
    e("v_mov_b32 v%d, s%d" % (V_U + 19, S_T))
    store_g("buffer_store_dwordx4 v[%d:%d], v%d, s[%d:%d], s91 offen" % (V_U + 16, V_U + 19, V_G, SRD_WS, SRD_WS + 3))
    stamp(13)
    lab("L_a_nocomb")
    e("s_cbranch_execz L_a_gud")
    e("s_cmp_lg_u32 s101, 0")
    e("s_cbranch_scc1 L_a_idle")
    e("s_mov_b32 s96, s100")
    e("s_mov_b32 s%d, s4" % S_A)
    e("s_mov_b32 s%d, s5" % S_B)
    e("s_mov_b32 s%d, s6" % S_D)
    e("s_barrier")
    e("s_cmp_ge_u32 s%d, %d" % (S_WAVE, 0 if "gu" in SKIP else 4))
    e("s_cbranch_scc1 L_a_gusetup")
    e("s_branch L_a_guld")
    lab("L_a_gud")
    e("s_mov_b32 s%d, 1" % S_D)
    def gu_group(win):
        for m in range(8):
            e("s_mov_b32 m0, s%d" % S_B)
            if win and m >= win: e("s_waitcnt vmcnt(%d)" % (win - 1))
            e("s_add_u32 s%d, s%d, 1024" % (S_B, S_B))
            var = (m & 1) | (((m >> 2) & 1) << 1)
            vmem_dry("buffer_load_dwordx4 v%d, s[%d:%d], s%d offen nt lds" % (V_GO + var, SRD_W, SRD_W + 3, S_A), True)
            e("s_add_u32 s%d, s%d, %d" % (S_A, S_A, 8 * 7168))
    if GW:
        gu_group(GW)
        e("s_sub_u32 s%d, s%d, 1" % (S_D, S_D))
    lab("L_a_guld")
    gu_group(0)
    e("s_sub_u32 s%d, s%d, 1" % (S_D, S_D))
    e("s_cmp_lg_u32 s%d, 0" % S_D)
    e("s_cbranch_scc1 L_a_guld")
    e("s_cbranch_execz L_a_real0")
    stamp(7)
    lab("L_a_gusetup")
    e("v_bfe_u32 v%d, v1, 3, 1" % V_T0)
    e("v_and_b32 v%d, 1, v3" % V_T1)
    e("v_lshl_or_b32 v%d, v%d, 1, v%d" % (V_T0, V_T1, V_T0))
    e("v_bfe_u32 v%d, v1, 1, 1" % V_T1)
    e("v_lshl_or_b32 v%d, v%d, 2, v%d" % (V_T0, V_T1, V_T0))
    e("v_xor_b32 v%d, s%d, v%d" % (V_T0, S_WAVE, V_T0))
    e("v_lshlrev_b32 v%d, 4, v%d" % (V_T0, V_T0))
    e("v_bfe_u32 v%d, v1, 2, 2" % V_T2)
    e("v_lshl_add_u32 v%d, v3, 3, v%d" % (V_T2, V_T2))
    e("v_lshl_add_u32 v%d, v%d, 5, v%d" % (V_T2, V_T1, V_T2))
    e("v_lshl_add_u32 v%d, v%d, 7, v%d" % (V_T0, V_T2, V_T0))
    e("v_and_b32 v%d, 1, v1" % V_T1)
    e("v_lshl_add_u32 v%d, v%d, 3, v%d" % (V_TR, V_T1, V_T0))
    e("v_add_u32 v%d, 0x10000, v%d" % (V_VA, V_TR))
    e("v_lshrrev_b32 v%d, 3, v2" % V_T0)
    e("v_lshl_or_b32 v%d, v3, 1, v%d" % (V_T1, V_T0))
    e("v_and_b32 v%d, 7, v1" % V_T2)
    e("v_xor_b32 v%d, v%d, v%d" % (V_T1, V_T1, V_T2))
    e("v_lshlrev_b32 v%d, 4, v%d" % (V_T1, V_T1))
    e("v_lshl_add_u32 v%d, v%d, 2, v3" % (V_T0, V_T0))
    e("v_lshl_add_u32 v%d, v%d, 7, v%d" % (V_T1, V_T0, V_T1))
    e("v_add_u32 v%d, %d, v%d" % (V_AE, L_ACT, V_T1))
    e("v_lshlrev_b32 v%d, 3, v%d" % (V_T2, V_T2))
    e("v_add_u32 v%d, %d, v%d" % (V_AO, L_MX, V_T2))
    e("s_lshl_b32 s%d, s%d, 3" % (S_A, S_WAVE))
    e("s_add_u32 s%d, s%d, %d" % (S_A, S_A, L_MX))
    e("v_mov_b32 v%d, s%d" % (V_RED, S_A))
    pos_write_addr(V_AW, L_ACT)
    e("s_lshl_b32 s%d, s%d, 12" % (S_A, S_WAVE))
    e("s_add_u32 s86, s%d, 0x%x" % (S_A, WS_H3B))
    e("s_lshl_b32 s%d, s%d, 11" % (S_A, S_C))
    e("s_lshl_b32 s%d, s%d, 8" % (S_B, S_WAVE))
    e("s_add_u32 s%d, s%d, s%d" % (S_A, S_A, S_B))
    e("s_add_u32 s85, s85, s%d" % S_A)
    e("v_and_b32 v%d, 1, v3" % V_T0)
    e("v_lshlrev_b32 v%d, 7, v%d" % (V_PUB, V_T0))
    e("v_and_b32 v%d, 7, v1" % V_T0)
    e("v_lshl_add_u32 v%d, v%d, 4, v%d" % (V_PUB, V_T0, V_PUB))
    e("v_lshrrev_b32 v%d, 1, v3" % V_T0)
    e("v_lshl_add_u32 v%d, v%d, 3, v%d" % (V_PUB, V_T0, V_PUB))
    e("s_lshl_b32 s%d, s96, 1" % S_A)
    e("s_add_u32 s%d, s%d, s99" % (S_A, S_A))
    e("s_sub_u32 s%d, s%d, 1" % (S_A, S_A))
    e("s_lshl_b32 s%d, s%d, 3" % (S_A, S_A))
    e("s_add_u32 s%d, s%d, s%d" % (S_A, S_A, S_XCD))
    e("s_lshl_b32 s%d, s%d, 12" % (S_A, S_A))
    e("s_lshl_b32 s%d, s%d, 9" % (S_B, S_WAVE))
    e("s_add_u32 s%d, s%d, s%d" % (S_A, S_A, S_B))
    e("s_add_u32 s84, s%d, 0x%x" % (S_A, WS_H4P))
    e("v_lshlrev_b32 v%d, 1, v%d" % (V_H, V_PUB))
    e("v_mov_b32 v%d, s%d" % (V_ACC + 6, S_T))
    e("v_mov_b32 v%d, s%d" % (V_ACC + 7, S_T))
    ONE = V_WF
    CS = V_WF + 4
    for k in range(4): e("v_mov_b32 v%d, 0x3f803f80" % (ONE + k))
    e("v_mov_b32 v%d, s%d" % (V_P + 1, S_T))
    e("s_mov_b64 s[%d:%d], s[%d:%d]" % (80, 81, S_ML, S_ML + 1))
    e("s_mov_b64 s[%d:%d], s[%d:%d]" % (82, 83, S_MG, S_MG + 1))
    e("s_cmp_lt_u32 s%d, 4" % S_WAVE)
    e("s_cbranch_scc1 L_a_gureal")
    if NODRY: e("s_branch L_a_gureal")
    set_dry()
    e("s_branch L_a_gutop")
    lab("L_a_gureal")
    set_real()
    e("s_mov_b64 s[%d:%d], s[%d:%d]" % (S_ML, S_ML + 1, 80, 81))
    e("s_mov_b64 s[%d:%d], s[%d:%d]" % (S_MG, S_MG + 1, 82, 83))
    e("s_waitcnt vmcnt(%d)" % T2V)
    if TRIG2: trig2()
    e("s_waitcnt vmcnt(0)")
    e("s_barrier")
    lab("L_a_gutop")
    GF = V_KF
    for m in range(16):
        for h in range(2):
            e("ds_read_b64_tr_b16 v[%d:%d], v%d offset:%d" % (GF + 4 * m + 2 * h, GF + 4 * m + 2 * h + 1, V_TR if m < 8 else V_VA, (m & 7) * 8192 + h * 512))
    e("s_waitcnt lgkmcnt(0)")
    e("s_cmp_lg_u32 s99, 1")
    e("s_cbranch_scc1 L_a_z1")
    for k in range(32, 64): e("v_mov_b32 v%d, 0" % (GF + k))
    lab("L_a_z1")
    e("s_cmp_lg_u32 s99, 2")
    e("s_cbranch_scc1 L_a_z2")
    for k in range(0, 32): e("v_mov_b32 v%d, 0" % (GF + k))
    lab("L_a_z2")
    e("s_nop 1")
    for m in range(16):
        e(mfma(CS, GF + 4 * m, ONE, None if m == 0 else CS))
    e("s_nop 7")
    e("v_permlane32_swap_b32 v%d, v%d" % (CS, CS + 2))
    e("v_permlane32_swap_b32 v%d, v%d" % (CS + 1, CS + 3))
    e("s_nop 1")
    e("v_add_f32_dpp v%d, v%d, v%d row_shl:8 row_mask:0xf bank_mask:0xf" % (CS, CS + 2, CS))
    e("v_add_f32_dpp v%d, v%d, v%d row_shl:8 row_mask:0xf bank_mask:0xf" % (CS + 1, CS + 3, CS + 1))
    stamp(8)
    top = poll_begin((V_G, 86, 3) if "3" not in NB else None)
    for n in range(4):
        e("buffer_load_dwordx4 v[%d:%d], v%d, s[%d:%d], s86 offen offset:%d sc1" % (V_L + 4 * n, V_L + 4 * n + 3, V_G, SRD_WS, SRD_WS + 3, n * 1024))
    poll_end(top, [chk64(V_L + 4 * n + 2) for n in range(4)], bell=(V_G, 86, 3))
    for n in range(4):
        e("ds_write_b64 v%d, v[%d:%d] offset:%d" % (V_AW, V_L + 4 * n, V_L + 4 * n + 1, n * 4096))
    stamp(9)
    side = ln_stats_dot_ops([V_L + 4 * (i >> 1) + (i & 1) for i in range(8)], ONE, V_SUM, V_SQ, V_T0, V_M, V_RS)
    emit(side[:16])
    side = side[16:]
    e("s_waitcnt lgkmcnt(0)")
    barrier(True)
    stamp(10)
    for m in range(16):
        e("ds_read_b128 v[%d:%d], v%d offset:%d" % (V_AF + 4 * m, V_AF + 4 * m + 3, V_AE, m * 1024))
    nfirst = 22
    emit(side[:nfirst])
    rest = side[nfirst:]
    mm = [0]
    def next_mfma():
        m = mm[0]; mm[0] += 1
        if m % 2 == 0: e("s_waitcnt lgkmcnt(%d)" % (14 - m))
        e(mfma(V_ACC, GF + 4 * m, V_AF + 4 * m, None if m == 0 else V_ACC))
        return 2 if m % 2 == 0 else 1
    cnt = 0
    for op in rest:
        if op.startswith("s_nop") and mm[0] < 10:
            need = int(op.split()[1]) + 1
            while need > 0 and mm[0] < 10: need -= next_mfma()
            if need > 0: e("s_nop %d" % (need - 1))
            cnt = 0
        else:
            e(op); cnt += 1
            if cnt == 2 and mm[0] < 10: next_mfma(); cnt = 0
    e("ds_write_b64 v%d, v[%d:%d]" % (V_RED, V_M, V_RS))
    while mm[0] < 10: next_mfma() if False else None; break
    while mm[0] < 12:
        m = mm[0]; mm[0] += 1
        if m == 10 or m % 2 == 0: e("s_waitcnt lgkmcnt(%d)" % max(0, min(15, 15 - m)))
        e(mfma(V_ACC, GF + 4 * m, V_AF + 4 * m, None if m == 0 else V_ACC))
    e("s_waitcnt lgkmcnt(0)")
    barrier(True)
    e("ds_read_b64 v[%d:%d], v%d" % (V_M, V_RS, V_AO))
    for m in range(12, 16):
        e(mfma(V_ACC, GF + 4 * m, V_AF + 4 * m, V_ACC))
    e("s_waitcnt lgkmcnt(0)")
    e("v_mul_f32 v%d, v%d, v%d" % (V_T0, V_M, V_RS))
    e("v_mul_f32 v%d, v%d, v%d" % (V_T1, V_T0, CS))
    e("v_mul_f32 v%d, v%d, v%d" % (V_T2, V_T0, CS + 1))
    e("s_nop 3")
    e("v_permlane32_swap_b32 v%d, v%d" % (V_ACC, V_ACC + 2))
    e("v_permlane32_swap_b32 v%d, v%d" % (V_ACC + 1, V_ACC + 3))
    e("s_nop 1")
    e("v_add_f32_dpp v%d, v%d, v%d row_shl:8 row_mask:0xf bank_mask:0xf" % (V_ACC, V_ACC + 2, V_ACC))
    e("v_add_f32_dpp v%d, v%d, v%d row_shl:8 row_mask:0xf bank_mask:0xf" % (V_ACC + 1, V_ACC + 3, V_ACC + 1))
    e("v_fma_f32 v%d, v%d, v%d, -v%d" % (V_ACC, V_ACC, V_RS, V_T1))
    e("v_fma_f32 v%d, v%d, v%d, -v%d" % (V_ACC + 1, V_ACC + 1, V_RS, V_T2))
    e("s_cmp_lg_u32 s99, 0")
    e("s_cbranch_scc1 L_a_part")
    e("v_cvt_pk_bf16_f32 v%d, v%d, v%d" % (V_P, V_ACC, V_ACC + 1))
    nosig = uid("nosig")
    e("s_cmp_lg_u32 s96, 0")
    e("s_cbranch_scc1 %s" % nosig)
    unpack(V_U, V_U + 1, V_P)
    e("v_mul_f32 v%d, %s, v%d" % (V_U, f32(-LOG2E), V_U))
    e("v_mul_f32 v%d, %s, v%d" % (V_U + 1, f32(-LOG2E), V_U + 1))
    e("v_exp_f32 v%d, v%d" % (V_U, V_U))
    e("v_exp_f32 v%d, v%d" % (V_U + 1, V_U + 1))
    e("s_nop 0")
    e("v_add_f32 v%d, 1.0, v%d" % (V_U, V_U))
    e("v_add_f32 v%d, 1.0, v%d" % (V_U + 1, V_U + 1))
    e("v_rcp_f32 v%d, v%d" % (V_U, V_U))
    e("v_rcp_f32 v%d, v%d" % (V_U + 1, V_U + 1))
    e("s_nop 0")
    e("v_cvt_pk_bf16_f32 v%d, v%d, v%d" % (V_P, V_U, V_U + 1))
    lab(nosig)
    store_l("buffer_store_dwordx2 v[%d:%d], v%d, s[%d:%d], s85 offen" % (V_P, V_P + 1, V_PUB, SRD_WS, SRD_WS + 3), "lo8")
    e("s_branch L_a_pubd")
    lab("L_a_part")
    e("v_mov_b32 v%d, v%d" % (V_P, V_ACC))
    e("v_mov_b32 v%d, v%d" % (V_P + 1, V_ACC + 1))
    store_l("buffer_store_dwordx4 v[%d:%d], v%d, s[%d:%d], s84 offen" % (V_P, V_P + 3, V_H, SRD_WS, SRD_WS + 3), "lo8")
    lab("L_a_pubd")
    e("s_cmp_lg_u32 s%d, 0" % S_DRY)
    e("s_cbranch_scc1 L_a_gureal")
    stamp(11)
    if "a" in CLEAN: clean("buffer_store_dwordx4 v[%d:%d], v%d, s[%d:%d], s87 offen" % (V_WF + 8, V_WF + 11, V_WF + 12, SRD_WS, SRD_WS + 3), "lo8")
    lab("L_a_done")
    stamps_flush(V_U)
    e("s_endpgm")
    lab("L_a_idle")
    if TRIG2: trig2()
    e("s_branch L_a_done")

gen()
open(OUT, "w").write("\n".join(lines) + "\n")
print("wrote", OUT, len(lines), "lines")
```

```python
import sys, struct

NAME = "sequential_preLN__sliding_block_cached__glu_gated_glu__decode"
def opt(name, default):
    for a in sys.argv:
        if a.startswith("--%s=" % name): return a.split("=", 1)[1]
    return default
STSET = opt("st", None)
STAMPS = "--stamps" in sys.argv or STSET is not None
STSET = None if STSET is None else set(int(x) for x in STSET.split(","))
NOLOCAL = "--nolocal" in sys.argv
NODRY = "--nodry" in sys.argv
NOTOUCH = "--notouch" in sys.argv
NOBELL = "--nobell" in sys.argv
BELLSLEEP = int(opt("bellsleep", 1))
NB = opt("nb", "")
GW = 0
NOTRIG = "--notrig" in sys.argv
KQX = "--kqx" in sys.argv
PRIO = "--prio" in sys.argv
DSPLIT = "--dsplit" in sys.argv
XBAR = "--xbar" in sys.argv
AT = opt("at", "")
BELL5 = "5" not in NB
BELL1 = "--bell1" in sys.argv
TRIG2 = "--notrig2" not in sys.argv
NOCLEAN = "--clean-on" not in sys.argv
CLEAN = opt("clean", "ab")
NLD = 4
KFIRST = "--kfirst" in sys.argv
PFK = int(opt("pfk", 0))
H1V = int(opt("h1v", 2))
H1LATE = H1V >= 0
GE = int(opt("ge", 0))
GE1 = int(opt("ge1", GE // 2))
VP = int(opt("vp", 8))
BELLFIRST = "--belllast" not in sys.argv
T2V = int(opt("t2v", 12))
DEARLY = "--dearly" in sys.argv
NOCODEPF = "--codepf" not in sys.argv
TLBT = "--notlb" not in sys.argv
SLEEP = int(opt("sleep", 0))
QFIRST = int(opt("qfirst", 8))
AWIN = int(opt("awin", 8))
ATHR = int(opt("athr", 0))
TRIGV = int(opt("trigv", 8))
OUT = [a for a in sys.argv[1:] if not a.startswith("--")]
OUT = OUT[0] if OUT else "cdna_kernels/%s.s" % NAME

lines = []
def e(s): lines.append("    " + s)
def lab(s): lines.append(s + ":")
def cmt(s): lines.append("    ; " + s)
_uid = [0]
def uid(p):
    _uid[0] += 1
    return "L_%s_%d" % (p, _uid[0])
def f32(x): return "0x%08x" % struct.unpack("<I", struct.pack("<f", x))[0]

WS_TRIG = 0x4000
WS_H1 = 0x100000
WS_H2 = 0x200000
WS_H3B = 0x280000
WS_H4S = 0x290000
WS_H4U = 0x2B0000
WS_H2G = 0x2E0000
WS_H4P = 0x500000
WS_H3A = 0x300000
WS_H5 = 0x400000
WS_TS = 0x600000
WS_SIZE = 0x800000

L_W0 = 0
L_W1 = 65536
L_ACT = 131072
L_QB = 147456
L_PB = 149504
L_MX = 153600
LDS_BYTES = 154112

S_X, S_K, S_V, S_WQ, S_WO, S_BX, S_WG, S_WU = 4, 6, 8, 10, 12, 14, 16, 18
S_WD, S_OUT, S_DBG, S_WS = 20, 22, 24, 26
S_WAVE, S_XCD, S_SLOT, S_T = 28, 29, 30, 31
SRD_W, SRD_WS, SRD_X, SRD_O = 32, 36, 40, 44
S_TT = 48
S_HI8 = 50
S_SPIN = 52
S_A, S_B, S_C, S_D, S_E, S_F = 53, 54, 55, 56, 57, 58
S_DRY = 59
S_TM = 60
S_ML = 62
S_ST = 64
S_MG = 92
S_FULL = 94
S_XCC, S_XOFF = 97, 98

LOG2E = 1.4426950408889634

V_VA, V_VB = 4, 5
V_TR = 6
V_AE, V_AO = 7, 8
V_T0, V_T1, V_T2, V_T3 = 9, 10, 11, 12
V_PUB, V_RED, V_H, V_XP, V_AW, V_G, V_Z = 13, 14, 15, 16, 17, 18, 19
V_ACC = 20
V_P = 24
V_M, V_RS, V_SQ, V_SUM = 28, 29, 30, 31
V_L = 32
V_U = 64
V_WF = 96
V_AF = 128
V_KF = 192
V_X1 = 224
V_GO = 248

def srd(dst, ptr, nbytes):
    e("s_mov_b32 s%d, s%d" % (dst, ptr))
    e("s_and_b32 s%d, s%d, 0xffff" % (dst + 1, ptr + 1))
    e("s_mov_b32 s%d, 0x%x" % (dst + 2, nbytes))
    e("s_mov_b32 s%d, 0x20000" % (dst + 3))

def stamp(k):
    if not STAMPS or (STSET is not None and k not in STSET): return
    e("s_memrealtime s[%d:%d]" % (S_TM, S_TM + 1))
    e("s_waitcnt lgkmcnt(0)")
    e("s_mov_b32 s%d, s%d" % (S_ST + k, S_TM))

def stamps_flush(vtmp):
    if not STAMPS: return
    e("s_mov_b64 exec, -1")
    for k in range(16):
        e("v_writelane_b32 v%d, s%d, %d" % (vtmp, S_ST + k, k))
    e("s_lshl_b32 s%d, s2, 9" % S_A)
    e("s_lshl_b32 s%d, s%d, 6" % (S_B, S_WAVE))
    e("s_add_u32 s%d, s%d, s%d" % (S_A, S_A, S_B))
    e("s_add_u32 s%d, s%d, 0x%x" % (S_A, S_A, WS_TS))
    e("v_lshlrev_b32 v%d, 2, v1" % (vtmp + 1))
    e("s_mov_b64 exec, 0xffff")
    e("buffer_store_dword v%d, v%d, s[%d:%d], s%d offen" % (vtmp, vtmp + 1, SRD_WS, SRD_WS + 3, S_A))

def full(): e("s_mov_b64 exec, s[%d:%d]" % (S_FULL, S_FULL + 1))

def barrier(dry=False):
    if dry:
        l = uid("nb")
        e("s_cbranch_execz %s" % l)
        e("s_barrier")
        lab(l)
    else:
        e("s_barrier")

def set_dry():
    e("s_mov_b64 s[%d:%d], 0" % (S_FULL, S_FULL + 1))
    e("s_mov_b64 s[%d:%d], 0" % (S_ML, S_ML + 1))
    e("s_mov_b64 s[%d:%d], 0" % (S_MG, S_MG + 1))
    e("s_mov_b32 s%d, 1" % S_DRY)
    e("s_mov_b32 s3, 8")
    if PRIO: e("s_setprio 0")
    full()

def set_real():
    e("s_mov_b64 s[%d:%d], -1" % (S_FULL, S_FULL + 1))
    e("s_mov_b32 s%d, 0" % S_DRY)
    e("s_mov_b32 s3, 2")
    if PRIO: e("s_setprio 3")
    full()

def dpp_add(dst, src, ctrl, op="v_add_f32"):
    return "%s_dpp v%d, v%d, v%d %s row_mask:0xf bank_mask:0xf" % (op, dst, src, src, ctrl)

def xrow_ops(v, t, op="v_add_f32"):
    return ["v_mov_b32 v%d, v%d" % (t, v), "s_nop 1", "v_permlane16_swap_b32 v%d, v%d" % (v, t), "s_nop 0",
            "%s v%d, v%d, v%d" % (op, v, v, t),
            "v_mov_b32 v%d, v%d" % (t, v), "s_nop 1", "v_permlane32_swap_b32 v%d, v%d" % (v, t), "s_nop 0",
            "%s v%d, v%d, v%d" % (op, v, v, t)]

def wave_allreduce_ops(v, t, op="v_add_f32"):
    o = []
    for r in (8, 4, 2, 1):
        o += ["s_nop 1", dpp_add(v, v, "row_ror:%d" % r, op)]
    return o + xrow_ops(v, t, op)

def bf16_round_ops(v):
    return ["v_cvt_pk_bf16_f32 v%d, v%d, v%d" % (v, v, v), "v_lshlrev_b32 v%d, 16, v%d" % (v, v)]

def unpack_ops(lo, hi, src):
    return ["v_lshlrev_b32 v%d, 16, v%d" % (lo, src), "v_and_b32 v%d, 0xffff0000, v%d" % (hi, src)]
def unpack(lo, hi, src):
    for x in unpack_ops(lo, hi, src): e(x)
def emit(ops):
    for x in ops: e(x)

def poll_begin(bell=None):
    if bell and BELLFIRST: doorbell(*bell)
    top = uid("poll")
    lab(top)
    e("s_cbranch_execz %s_nl" % top)
    return top

def poll_mid(top):
    lab(top + "_nl")
    top2 = top + "x"
    e("s_cbranch_execz %s_nl" % top2)
    return top2

def poll_end(top, checks, last=None, bell=None):
    ok = top + "_ok"
    e("s_waitcnt vmcnt(0)")
    lab((last or top) + "_nl")
    for c in checks: e(c)
    e("s_cmp_eq_u64 exec, s[%d:%d]" % (S_FULL, S_FULL + 1))
    full()
    e("s_cbranch_scc1 %s" % ok)
    if SLEEP: e("s_sleep %d" % SLEEP)
    if bell and not BELLFIRST: doorbell(*bell)
    e("s_sub_u32 s%d, s%d, 1" % (S_SPIN, S_SPIN))
    e("s_cbranch_scc0 %s" % top)
    e("s_mov_b32 s%d, 0" % S_SPIN)
    lab(ok)

def doorbell(va, so, tagpos, off=0, atomic=False):
    if NOBELL: return
    top = uid("bell")
    e("s_cbranch_execz %s_ok" % top)
    lab(top)
    e("s_mov_b64 exec, 1")
    if atomic:
        e("v_mov_b32 v%d, 0" % V_T0)
        e("buffer_atomic_add v%d, v%d, s[%d:%d], s%d offen offset:%d sc0" % (V_T0, va, SRD_WS, SRD_WS + 3, so, off + 4 * tagpos))
    else:
        e("buffer_load_dword v%d, v%d, s[%d:%d], s%d offen offset:%d sc1" % (V_T0, va, SRD_WS, SRD_WS + 3, so, off + 4 * tagpos))
    e("s_waitcnt vmcnt(0)")
    e("v_cmpx_eq_u32 vcc, s%d, v%d" % (S_T, V_T0))
    e("s_cbranch_execnz %s_ok" % top)
    e("s_sleep %d" % BELLSLEEP)
    e("s_sub_u32 s%d, s%d, 1" % (S_SPIN, S_SPIN))
    e("s_cbranch_scc0 %s" % top)
    e("s_mov_b32 s%d, 0" % S_SPIN)
    lab(top + "_ok")
    full()

def chk64(v): return "v_cmpx_eq_u64 vcc, s[%d:%d], v[%d:%d]" % (S_TT, S_TT + 1, v, v + 1)
def chk32(v): return "v_cmpx_eq_u32 vcc, s%d, v%d" % (S_T, v)

def _mask(m, lanemask):
    if lanemask is None: e("s_mov_b64 exec, s[%d:%d]" % (m, m + 1))
    elif lanemask == "lo8": e("s_andn2_b64 exec, s[%d:%d], s[%d:%d]" % (m, m + 1, S_HI8, S_HI8 + 1))
    else: e("s_and_b64 exec, s[%d:%d], %s" % (m, m + 1, lanemask))

def store_g(instr, lanemask=None, flags=" sc1"):
    l = uid("ns")
    if lanemask is not None: _mask(S_FULL, lanemask)
    e("s_cbranch_execz %s" % l)
    e(instr + flags)
    lab(l)
    if lanemask is not None: full()

def store_l(instr, lanemask=None):
    for m, fl in ((S_ML, ""), (S_MG, " sc1")):
        l = uid("ns")
        _mask(m, lanemask)
        e("s_cbranch_execz %s" % l)
        e(instr + fl)
        lab(l)
    full()

def xcc_publish(vt, srd_, wave=4):
    e("s_getreg_b32 s%d, hwreg(HW_REG_XCC_ID, 0, 4)" % S_XCC)
    e("s_add_u32 s%d, s%d, 1" % (S_XCC, S_XCC))
    e("s_lshl_b32 s%d, s%d, 5" % (S_XOFF, S_XCD))
    skip = uid("noxcc")
    e("s_cmp_lg_u32 s%d, %d" % (S_WAVE, wave))
    e("s_cbranch_scc1 %s" % skip)
    e("s_lshr_b32 s%d, s2, 3" % S_B)
    e("s_add_u32 s%d, s%d, s%d" % (S_A, S_XOFF, S_B))
    e("v_mov_b32 v%d, s%d" % (vt, S_XCC))
    e("s_mov_b64 exec, 1")
    e("buffer_store_byte v%d, v%d, s[%d:%d], s%d offen sc1" % (vt, V_Z, srd_, srd_ + 3, S_A))
    e("s_mov_b64 exec, -1")
    lab(skip)
    e("s_mul_i32 s%d, s%d, 0x01010101" % (S_XCC, S_XCC))

def xcc_load(vd, vaddr, srd_):
    e("buffer_load_dword v%d, v%d, s[%d:%d], s%d offen sc1" % (vd, vaddr, srd_, srd_ + 3, S_XOFF))

def xcc_checks(vd, vt):
    return ["v_subrev_u32 v%d, 0x01010101, v%d" % (vt, vd),
            "v_bfi_b32 v%d, v%d, 0, v%d" % (vt, vd, vt),
            "v_and_b32 v%d, 0x80808080, v%d" % (vt, vt),
            "v_cmpx_eq_u32 vcc, 0, v%d" % vt]

def xcc_decide(vd):
    e("v_cmp_ne_u32 vcc, s%d, v%d" % (S_XCC, vd))
    e("s_nop 1")
    if NOLOCAL: e("s_cmp_eq_u32 s%d, 0" % S_XCC)
    else: e("s_cmp_eq_u64 vcc, 0")
    e("s_cselect_b64 s[%d:%d], s[%d:%d], 0" % (S_ML, S_ML + 1, S_FULL, S_FULL + 1))
    e("s_cselect_b64 s[%d:%d], 0, s[%d:%d]" % (S_MG, S_MG + 1, S_FULL, S_FULL + 1))

def ln_stats_ops(vals, vsum, vt, vmean, vrs, vsq):
    o = ["v_add_f32 v%d, v%d, v%d" % (vsum, vals[0], vals[1]), "v_add_f32 v%d, v%d, v%d" % (vt, vals[2], vals[3])]
    for i in range(4, 16, 2):
        o += ["v_add_f32 v%d, v%d, v%d" % (vsum, vsum, vals[i]), "v_add_f32 v%d, v%d, v%d" % (vt, vt, vals[i + 1])]
    o += ["v_add_f32 v%d, v%d, v%d" % (vsum, vsum, vt)]
    o += wave_allreduce_ops(vsum, vt)
    o += ["v_mul_f32 v%d, %s, v%d" % (vmean, f32(1.0 / 1024), vsum)]
    o += ["v_sub_f32 v%d, v%d, v%d" % (vt, vals[0], vmean), "v_mul_f32 v%d, v%d, v%d" % (vsum, vt, vt)]
    for i in range(1, 16):
        o += ["v_sub_f32 v%d, v%d, v%d" % (vt, vals[i], vmean), "v_fmac_f32 v%d, v%d, v%d" % (vsum, vt, vt)]
    o += wave_allreduce_ops(vsum, vt)
    o += ["v_mul_f32 v%d, %s, v%d" % (vsq, f32(1.0 / 1024), vsum)]
    o += bf16_round_ops(vsq)
    o += ["v_add_f32 v%d, %s, v%d" % (vsq, f32(1e-5), vsq)]
    o += bf16_round_ops(vsq)
    o += ["v_sqrt_f32 v%d, v%d" % (vsq, vsq)]
    o += bf16_round_ops(vmean)
    o += bf16_round_ops(vsq)
    o += ["v_rcp_f32 v%d, v%d" % (vrs, vsq), "s_nop 0"]
    return o

def ln_stats_dot_ops(pairs, one, s1, s2, vt, vmean, vrs):
    o = ["v_dot2_f32_bf16 v%d, v%d, v%d, 0" % (s1, pairs[0], one), "v_dot2_f32_bf16 v%d, v%d, v%d, 0" % (s2, pairs[0], pairs[0])]
    for p in pairs[1:]:
        o += ["v_dot2_f32_bf16 v%d, v%d, v%d, v%d" % (s1, p, one, s1), "v_dot2_f32_bf16 v%d, v%d, v%d, v%d" % (s2, p, p, s2)]
    o += ["s_nop 2"]
    for r in (8, 4, 2, 1):
        o += [dpp_add(s1, s1, "row_ror:%d" % r), dpp_add(s2, s2, "row_ror:%d" % r), "s_nop 0"]
    o += ["s_nop 0", "v_permlane32_swap_b32 v%d, v%d" % (s1, s2), "s_nop 0", "v_add_f32 v%d, v%d, v%d" % (s1, s1, s2),
          "v_mov_b32 v%d, v%d" % (s2, s1), "s_nop 1", "v_permlane16_swap_b32 v%d, v%d" % (s1, s2), "s_nop 0",
          "v_add_f32 v%d, v%d, v%d" % (s1, s1, s2), "v_mov_b32 v%d, v%d" % (s2, s1), "s_nop 1",
          "v_permlane32_swap_b32 v%d, v%d" % (s1, s2), "s_nop 0",
          "v_mul_f32 v%d, %s, v%d" % (vmean, f32(1.0 / 1024), s1),
          "v_mul_f32 v%d, %s, v%d" % (s2, f32(1.0 / 1024), s2),
          "v_fma_f32 v%d, -v%d, v%d, v%d" % (s2, vmean, vmean, s2),
          "v_max_f32 v%d, 0, v%d" % (s2, s2)]
    o += bf16_round_ops(s2)
    o += ["v_add_f32 v%d, %s, v%d" % (s2, f32(1e-5), s2)]
    o += bf16_round_ops(s2)
    o += ["v_sqrt_f32 v%d, v%d" % (s2, s2)]
    o += bf16_round_ops(vmean)
    o += bf16_round_ops(s2)
    o += ["v_rcp_f32 v%d, v%d" % (vrs, s2), "s_nop 0"]
    return o

def ln_apply_pair(dst, a, b, vmean, vrs, vsq, t0, t1):
    e("v_sub_f32 v%d, v%d, v%d" % (a, a, vmean))
    e("v_sub_f32 v%d, v%d, v%d" % (b, b, vmean))
    e("v_cvt_pk_bf16_f32 v%d, v%d, v%d" % (t0, a, b))
    unpack(a, b, t0)
    e("v_mul_f32 v%d, v%d, v%d" % (t0, a, vrs))
    e("v_mul_f32 v%d, v%d, v%d" % (t1, b, vrs))
    e("v_fma_f32 v%d, -v%d, v%d, v%d" % (a, t0, vsq, a))
    e("v_fma_f32 v%d, -v%d, v%d, v%d" % (b, t1, vsq, b))
    e("v_fmac_f32 v%d, v%d, v%d" % (t0, a, vrs))
    e("v_fmac_f32 v%d, v%d, v%d" % (t1, b, vrs))
    e("v_cvt_pk_bf16_f32 v%d, v%d, v%d" % (dst, t0, t1))

def sigma_of(dst, u, t):
    e("v_and_b32 v%d, 3, v%d" % (dst, u))
    e("v_lshlrev_b32 v%d, 1, v%d" % (dst, dst))
    e("v_bfe_u32 v%d, v%d, 2, 1" % (t, u))
    e("v_or_b32 v%d, v%d, v%d" % (dst, dst, t))

def dma256_voff(va, vb, pitch, t):
    e("v_bfe_u32 v%d, v1, 1, 3" % t)
    e("v_xor_b32 v%d, v3, v%d" % (t, t))
    e("v_lshlrev_b32 v%d, 5, v%d" % (t, t))
    e("v_and_b32 v%d, 1, v1" % va)
    e("v_lshl_add_u32 v%d, v%d, 4, v%d" % (t, va, t))
    e("v_mul_u32_u24 v%d, %d, v3" % (va, pitch))
    e("v_add_u32 v%d, v%d, v%d" % (va, va, t))
    e("v_xor_b32 v%d, 0x80, v%d" % (vb, va))

SKIP = opt("skip", "").split(",")
def vmem_dry(instr, dry):
    if dry:
        l = uid("sk")
        e("s_cbranch_execz %s" % l)
        e(instr)
        lab(l)
    else:
        e(instr)

def dma_run(srd_, voffs, s_base, rowbytes, ldsbase, per_wave, m0, m1, pre=None, name=None, dry=False):
    if name in SKIP: return
    _dma_run(srd_, voffs, s_base, rowbytes, ldsbase, per_wave, m0, m1, pre, dry)

def _dma_run(srd_, voffs, s_base, rowbytes, ldsbase, per_wave, m0, m1, pre=None, dry=False):
    e("s_mul_i32 s%d, s%d, %d" % (S_A, S_WAVE, per_wave * rowbytes))
    e("s_add_u32 s%d, s%d, s%d" % (S_A, S_A, s_base))
    if m0: e("s_add_u32 s%d, s%d, %d" % (S_A, S_A, rowbytes * m0))
    e("s_mul_i32 s%d, s%d, %d" % (S_B, S_WAVE, per_wave * 1024))
    if ldsbase + m0: e("s_add_u32 s%d, s%d, %d" % (S_B, S_B, ldsbase + 1024 * m0))
    for m in range(m0, m1):
        e("s_mov_b32 m0, s%d" % S_B)
        if pre: pre(m)
        if m < m1 - 1: e("s_add_u32 s%d, s%d, 1024" % (S_B, S_B))
        else: e("s_nop 0")
        vmem_dry("buffer_load_dwordx4 v%d, s[%d:%d], s%d offen nt lds" % (voffs(m), srd_, srd_ + 3, S_A), dry)
        if m < m1 - 1: e("s_add_u32 s%d, s%d, %d" % (S_A, S_A, rowbytes))

def tr256_addr(va, t):
    e("v_bfe_u32 v%d, v1, 2, 2" % t)
    e("v_and_b32 v%d, 1, v3" % va)
    e("v_lshl_or_b32 v%d, v%d, 2, v%d" % (va, va, t))
    e("v_xor_b32 v%d, s%d, v%d" % (va, S_WAVE, va))
    e("v_lshlrev_b32 v%d, 5, v%d" % (va, va))
    e("v_lshl_add_u32 v%d, v3, 3, v%d" % (t, t))
    e("v_lshl_add_u32 v%d, v%d, 8, v%d" % (va, t, va))
    e("v_and_b32 v%d, 3, v1" % t)
    e("v_lshl_add_u32 v%d, v%d, 3, v%d" % (va, t, va))

def tr256_read(dst, va):
    for m in range(8):
        for h in range(2):
            e("ds_read_b64_tr_b16 v[%d:%d], v%d offset:%d" % (dst + 4 * m + 2 * h, dst + 4 * m + 2 * h + 1, va, m * 8192 + h * 1024))

def act_rd_addr(ve, vo, t, ldsbase):
    e("v_and_b32 v%d, 7, v1" % t)
    e("v_lshlrev_b32 v%d, 1, v3" % ve)
    e("v_xor_b32 v%d, v%d, v%d" % (ve, ve, t))
    e("v_lshlrev_b32 v%d, 4, v%d" % (ve, ve))
    e("v_lshl_add_u32 v%d, v3, 7, v%d" % (ve, ve))
    e("v_add_u32 v%d, %d, v%d" % (ve, ldsbase, ve))
    e("v_xor_b32 v%d, 16, v%d" % (vo, ve))

def mfma(d, a, b, c):
    cs = "0" if c is None else "v[%d:%d]" % (c, c + 3)
    return "v_mfma_f32_16x16x32_bf16 v[%d:%d], v[%d:%d], v[%d:%d], %s" % (d, d + 3, a, a + 3, b, b + 3, cs)

def gemv8(acc, wf, af, ve, vo):
    for m in range(8):
        e("ds_read_b128 v[%d:%d], v%d offset:%d" % (af + 4 * m, af + 4 * m + 3, vo if (m & 1) else ve, m * 512))
    for m in range(8):
        e("s_waitcnt lgkmcnt(%d)" % (7 - m))
        e(mfma(acc, wf + 4 * m, af + 4 * m, None if m == 0 else acc))

def touch(items):
    for i, (va, so, off) in enumerate(items):
        e("buffer_load_dword v%d, v%d, s[%d:%d], s%d offen offset:%d sc1" % (V_X1 + 20 + i, va, SRD_WS, SRD_WS + 3, so, off))

def clean(instr, lanemask=None):
    if NOCLEAN: return
    l = uid("nc")
    _mask(S_ML, lanemask)
    e("s_cbranch_execz %s" % l)
    e(instr + " sc1")
    lab(l)
    full()

def trig2():
    l = uid("nt2")
    e("s_cmp_lg_u32 s%d, 0" % S_WAVE)
    e("s_cbranch_scc1 %s" % l)
    e("s_lshl_b32 s%d, s%d, 3" % (S_A, S_SLOT))
    e("s_or_b32 s%d, s%d, s%d" % (S_A, S_A, S_XCD))
    e("s_lshl_b32 s%d, s%d, 7" % (S_A, S_A))
    e("s_add_u32 s%d, s%d, 0x%x" % (S_A, S_A, WS_TRIG))
    store_g("buffer_store_dword v%d, v%d, s[%d:%d], s%d offen offset:8" % (V_P + 3, V_Z, SRD_WS, SRD_WS + 3, S_A), "1")
    lab(l)

def make_tag(vE=None):
    if vE is None:
        e("s_waitcnt lgkmcnt(0)")
        e("s_mov_b32 s%d, s100" % S_F)
    else:
        e("v_readfirstlane_b32 s%d, v%d" % (S_F, vE))
        e("s_nop 3")
    e("s_mul_i32 s%d, s%d, 0x9e3779b1" % (S_T, S_F))
    e("s_add_u32 s%d, s%d, 0x85ebca6b" % (S_T, S_T))
    e("s_mov_b32 s%d, s%d" % (S_TT, S_T))
    e("s_mov_b32 s%d, s%d" % (S_TT + 1, S_T))
    e("s_add_u32 s%d, s%d, 1" % (S_F, S_F))
    e("v_mov_b32 v%d, s%d" % (V_P + 2, S_T))
    e("v_mov_b32 v%d, s%d" % (V_P + 3, S_T))

def publish_partial(s_off, local):
    e("s_nop 7")
    e("v_cndmask_b32 v%d, v%d, v%d, s[%d:%d]" % (V_P, V_ACC, V_ACC + 2, S_HI8, S_HI8 + 1))
    e("v_cndmask_b32 v%d, v%d, v%d, s[%d:%d]" % (V_P + 1, V_ACC + 1, V_ACC + 3, S_HI8, S_HI8 + 1))
    ins = "buffer_store_dwordx4 v[%d:%d], v%d, s[%d:%d], s%d offen" % (V_P, V_P + 3, V_PUB, SRD_WS, SRD_WS + 3, s_off)
    (store_l if local else store_g)(ins)

def reduce16(s0, bell=False):
    top = poll_begin((V_RED, s0, 3, 0, "5" in AT) if bell else None)
    for n in range(4):
        e("buffer_load_dwordx4 v[%d:%d], v%d, s[%d:%d], s%d offen sc1" % (V_L + 4 * n, V_L + 4 * n + 3, V_RED, SRD_WS, SRD_WS + 3, s0 + n))
    poll_end(top, [chk64(V_L + 4 * n + 2) for n in range(4)], bell=(V_RED, s0, 3) if bell else None)
    a, b = V_L, V_L + 1
    e("v_pk_add_f32 v[%d:%d], v[%d:%d], v[%d:%d]" % (a, b, a, b, V_L + 4, V_L + 5))
    e("v_pk_add_f32 v[%d:%d], v[%d:%d], v[%d:%d]" % (V_L + 8, V_L + 9, V_L + 8, V_L + 9, V_L + 12, V_L + 13))
    e("v_pk_add_f32 v[%d:%d], v[%d:%d], v[%d:%d]" % (a, b, a, b, V_L + 8, V_L + 9))
    e("s_nop 1")
    e("v_permlane32_swap_b32 v%d, v%d" % (a, b))
    e("s_nop 0")
    e("v_add_f32 v%d, v%d, v%d" % (a, a, b))
    e("v_mov_b32 v%d, v%d" % (b, a))
    e("s_nop 1")
    e("v_permlane16_swap_b32 v%d, v%d" % (a, b))
    e("s_nop 0")
    e("v_add_f32 v%d, v%d, v%d" % (a, a, b))
    e("v_mov_b32 v%d, v%d" % (b, a))
    e("s_nop 1")
    e("v_permlane32_swap_b32 v%d, v%d" % (a, b))
    e("s_nop 0")

def only_red(lbl):
    e("s_cmp_ge_u32 s%d, s3" % S_WAVE)
    e("s_cbranch_scc1 %s" % lbl)

def residual_add(dst, vres):
    e("v_cvt_pk_bf16_f32 v%d, v%d, v%d" % (V_T0, V_L, V_L + 1))
    unpack(V_U + 2, V_U + 3, vres)
    unpack(V_U, V_U + 1, V_T0)
    e("v_add_f32 v%d, v%d, v%d" % (V_U, V_U, V_U + 2))
    e("v_add_f32 v%d, v%d, v%d" % (V_U + 1, V_U + 1, V_U + 3))
    e("v_cvt_pk_bf16_f32 v%d, v%d, v%d" % (dst, V_U, V_U + 1))

def pos_write_addr(dst, ldsbase):
    e("v_bfe_u32 v%d, v1, 1, 3" % V_T2)
    sigma_of(V_T0, V_T2, V_T1)
    e("v_xor_b32 v%d, s%d, v%d" % (V_T0, S_WAVE, V_T0))
    e("v_lshlrev_b32 v%d, 4, v%d" % (V_T0, V_T0))
    e("v_lshrrev_b32 v%d, 1, v1" % V_T1)
    e("v_lshl_add_u32 v%d, v%d, 7, v%d" % (V_T0, V_T1, V_T0))
    e("v_and_b32 v%d, 1, v1" % V_T1)
    e("v_lshl_add_u32 v%d, v%d, 3, v%d" % (V_T0, V_T1, V_T0))
    e("v_add_u32 v%d, %d, v%d" % (dst, ldsbase, V_T0))

def gen():
    for l in """Fused decode layer: preLN + sliding-window GQA attention + residual + preLN + GLU MLP + residual.
Kernarg (96 bytes, pointers only): 0 A_x, 8 A_k_cache, 16 A_v_cache, 24 A_wq, 32 A_wo, 40 B_x (unused), 48 B_w_gate,
  56 B_w_up, 64 B_w_down, 72 d_out, 80 d_debug, 88 d_ws.
One persistent launch, 256 workgroups x 8 waves, one workgroup per CU.  role = (wg>>3)&1:
  B: LN1 + Q-proj tile -> O-proj tile -> h reduce -> down-proj tile -> final reduce
  A: attention for (batch, kv head, 256-key split) -> split combine -> gate/up tile (LN2 folded in)
Weights / K / V stream HBM -> LDS (LDS-DMA, swizzled images) and feed MFMA through transposing LDS reads.
Hand-offs between workgroups are 8/16-byte granules in d_ws that carry a per-launch tag (hash of an epoch word
  kept in d_ws).  Groups of workgroups that find (via the XCC id table in d_debug) that they share an XCD
  exchange through L2 with plain stores; otherwise every hand-off is written through.  All spins are bounded.
Waves 4-7 run upcoming latency-critical code once with EXEC=0 (memory instructions branched around) so that it
  is resident in the instruction cache while waves 0-3 issue the streams.
Generated by a script (work/gen.py).""".split("\n"):
        lines.append("; " + l)
    lines.append("; @launch grid=(256,1,1) block=(512,1,1) lds=%d" % LDS_BYTES)
    lines.append('.amdgcn_target "amdgcn-amd-amdhsa--gfx950"')
    lines.append(".text")
    lines.append(".globl %s_kernel" % NAME)
    lines.append(".p2align 8")
    lines.append(".type %s_kernel,@function" % NAME)
    lab("%s_kernel" % NAME)
    e("s_cmp_ge_u32 s2, 256")
    e("s_cbranch_scc1 L_end")
    if STAMPS:
        e("s_memrealtime s[%d:%d]" % (S_TM, S_TM + 1))
        for k in range(1, 16): e("s_mov_b32 s%d, 0" % (S_ST + k))
    e("s_load_dwordx16 s[4:19], s[0:1], 0")
    e("s_load_dwordx8 s[20:27], s[0:1], 64")
    e("v_lshrrev_b32 v4, 6, v0")
    e("v_and_b32 v1, 63, v0")
    e("v_readfirstlane_b32 s%d, v4" % S_WAVE)
    e("v_and_b32 v2, 15, v1")
    e("v_lshrrev_b32 v3, 4, v1")
    e("s_and_b32 s%d, s2, 7" % S_XCD)
    e("s_lshr_b32 s%d, s2, 4" % S_SLOT)
    e("v_mov_b32 v%d, 0" % V_Z)
    if PRIO: e("s_setprio 3")
    code_prefetch()
    e("s_bitcmp1_b32 s2, 3")
    e("s_cbranch_scc1 L_roleA")
    role_b()
    lab("L_roleA")
    role_a()
    lab("L_end")
    e("s_endpgm")
    lines.append('.section .rodata,"a"')
    lines.append(".p2align 6")
    lines.append(".amdhsa_kernel %s_kernel" % NAME)
    lines.append("  .amdhsa_next_free_vgpr 256")
    lines.append("  .amdhsa_next_free_sgpr 102")
    lines.append("  .amdhsa_accum_offset 256")
    lines.append("  .amdhsa_group_segment_fixed_size 0")
    lines.append("  .amdhsa_kernarg_size 96")
    lines.append("  .amdhsa_user_sgpr_count 2")
    lines.append("  .amdhsa_user_sgpr_kernarg_segment_ptr 1")
    lines.append("  .amdhsa_system_sgpr_workgroup_id_x 1")
    lines.append(".end_amdhsa_kernel")

def code_prefetch():
    if NOCODEPF: return
    l = uid("nopf")
    e("s_lshr_b32 s%d, s2, 3" % S_A)
    e("s_lshl_b32 s%d, s%d, 3" % (S_A, S_A))
    e("s_add_u32 s%d, s%d, s%d" % (S_A, S_A, S_WAVE))
    e("s_cmp_lg_u32 s%d, 13" % S_A)
    e("s_cbranch_scc1 %s" % l)
    e("s_getpc_b64 s[%d:%d]" % (S_ML, S_ML + 1))
    lab(l + "_pc")
    e("s_sub_u32 s%d, s%d, %s_pc-%s_kernel" % (S_ML, S_ML, l, NAME))
    e("s_subb_u32 s%d, s%d, 0" % (S_ML + 1, S_ML + 1))
    e("v_lshlrev_b32 v%d, 7, v1" % V_T0)
    e("global_load_dword v%d, v%d, s[%d:%d]" % (V_U, V_T0, S_ML, S_ML + 1))
    e("v_add_u32 v%d, 0x2000, v%d" % (V_T0, V_T0))
    e("v_min_u32 v%d, L_end-%s_kernel, v%d" % (V_T0, NAME, V_T0))
    e("global_load_dword v%d, v%d, s[%d:%d]" % (V_U + 1, V_T0, S_ML, S_ML + 1))
    lab(l)

def common_consts():
    e("s_mov_b32 s%d, 0x200000" % S_SPIN)
    e("s_mov_b32 s%d, 0xff00ff00" % S_HI8)
    e("s_mov_b32 s%d, 0xff00ff00" % (S_HI8 + 1))
    e("s_mov_b64 s[%d:%d], -1" % (S_FULL, S_FULL + 1))
    e("s_mov_b32 s%d, 0" % S_DRY)

def role_b():
    cmt("================= role B =================")
    V_AWD, V_XA, V_HO, V_ZA, V_TR1 = V_X1 + 1, V_X1 + 2, V_X1 + 3, V_X1 + 4, V_X1 + 5
    V_VC, V_VD = V_X1 + 6, V_X1 + 7
    V_ZQ = V_X1 + 8
    ab = lambda m: V_VB if (m & 2) else V_VA
    dma256_voff(V_VA, V_VB, 8192, V_T0)
    e("v_lshlrev_b32 v%d, 4, v1" % V_G)
    if KQX:
        e("s_and_b32 s%d, s%d, 3" % (S_D, S_XCD))
        e("s_lshr_b32 s%d, s%d, 2" % (S_C, S_XCD))
        e("s_lshl_b32 s%d, s%d, 4" % (S_C, S_C))
        e("s_add_u32 s%d, s%d, s%d" % (S_C, S_C, S_SLOT))
    else:
        e("s_and_b32 s%d, s%d, 3" % (S_D, S_SLOT))
        e("s_lshr_b32 s%d, s%d, 2" % (S_A, S_SLOT))
        e("s_lshl_b32 s%d, s%d, 1" % (S_B, S_XCD))
        e("s_add_u32 s%d, s%d, s%d" % (S_B, S_B, S_A))
        e("s_lshl_b32 s%d, s%d, 2" % (S_C, S_B))
        e("s_add_u32 s%d, s%d, 1" % (S_C, S_C))
        e("s_sub_u32 s%d, s%d, 2" % (S_B, S_B))
        e("s_lshl_b32 s%d, s%d, 2" % (S_E, S_XCD))
        e("s_add_u32 s%d, s%d, s%d" % (S_E, S_E, S_A))
        e("s_sub_u32 s%d, s%d, 8" % (S_E, S_E))
        e("s_cmp_ge_u32 s%d, 4" % S_XCD)
        e("s_cselect_b32 s%d, s%d, s%d" % (S_B, S_E, S_B))
        e("s_cselect_b32 s%d, 2, s%d" % (S_A, S_A))
        e("s_mul_i32 s%d, s%d, 43" % (S_E, S_B))
        e("s_lshr_b32 s%d, s%d, 7" % (S_E, S_E))
        e("s_mul_i32 s%d, s%d, 3" % (S_F, S_E))
        e("s_sub_u32 s%d, s%d, s%d" % (S_F, S_B, S_F))
        e("s_lshl_b32 s%d, s%d, 2" % (S_E, S_E))
        e("s_add_u32 s%d, s%d, s%d" % (S_E, S_E, S_F))
        e("s_min_u32 s%d, s%d, 1" % (S_F, S_F))
        e("s_add_u32 s%d, s%d, s%d" % (S_E, S_E, S_F))
        e("s_cmp_ge_u32 s%d, 2" % S_A)
        e("s_cselect_b32 s%d, s%d, s%d" % (S_C, S_E, S_C))
    e("s_lshl_b32 s%d, s%d, 21" % (S_E, S_D))
    e("s_lshl_b32 s%d, s%d, 8" % (S_A, S_C))
    e("s_add_u32 s%d, s%d, s%d" % (S_E, S_E, S_A))
    e("s_lshl_b32 s82, s%d, 11" % S_WAVE)
    e("s_lshl_b32 s83, s%d, 9" % S_D)
    e("s_add_u32 s83, s83, s82")
    e("s_waitcnt lgkmcnt(0)")
    if STAMPS: e("s_mov_b32 s%d, s%d" % (S_ST, S_TM))
    srd(SRD_X, S_X, 16384)
    srd(SRD_W, S_WQ, 8 << 20)
    e("buffer_load_dwordx4 v[%d:%d], v%d, s[%d:%d], s82 offen" % (V_L, V_L + 3, V_G, SRD_X, SRD_X + 3))
    e("buffer_load_dwordx4 v[%d:%d], v%d, s[%d:%d], s82 offen offset:1024" % (V_L + 4, V_L + 7, V_G, SRD_X, SRD_X + 3))
    e("buffer_load_dwordx4 v[%d:%d], v%d, s[%d:%d], s83 offen" % (V_L + 8, V_L + 11, V_G, SRD_X, SRD_X + 3))
    if XBAR: e("s_barrier")
    dma_run(SRD_W, ab, S_E, 4 * 8192, L_W0, 8, 0, QFIRST)
    srd(SRD_WS, S_WS, WS_SIZE)
    e("buffer_load_dword v%d, v%d, s[%d:%d], 0 offen sc1" % (V_L + 12, V_Z, SRD_WS, SRD_WS + 3))
    stamp(1)
    common_consts()
    e("s_lshr_b32 s%d, s%d, 1" % (S_A, S_SLOT))
    e("s_lshl_b32 s%d, s%d, 11" % (S_A, S_A))
    e("s_lshl_b32 s%d, s%d, 8" % (S_B, S_XCD))
    e("s_add_u32 s%d, s%d, s%d" % (S_A, S_A, S_B))
    e("s_and_b32 s%d, s%d, 1" % (S_B, S_SLOT))
    e("s_lshl_b32 s%d, s%d, 7" % (S_B, S_B))
    e("s_add_u32 s%d, s%d, s%d" % (S_A, S_A, S_B))
    e("s_and_b32 s%d, s%d, 1" % (S_B, S_WAVE))
    e("s_lshl_b32 s%d, s%d, 6" % (S_B, S_B))
    e("s_add_u32 s80, s%d, s%d" % (S_A, S_B))
    e("v_lshlrev_b32 v%d, 2, v2" % V_X1)
    e("v_lshlrev_b32 v%d, 3, v2" % V_HO)
    e("buffer_load_dword v%d, v%d, s[%d:%d], s80 offen" % (V_XP, V_X1, SRD_X, SRD_X + 3))
    e("s_waitcnt vmcnt(%d)" % (QFIRST + 2))
    for i in range(8):
        unpack(V_U + 2 * i, V_U + 2 * i + 1, V_L + i)
    emit(ln_stats_ops([V_U + i for i in range(16)], V_SUM, V_T0, V_M, V_RS, V_SQ))
    if QFIRST < 8:
        dma_run(SRD_W, ab, S_E, 4 * 8192, L_W0, 8, QFIRST, 8)
    for i in range(4):
        unpack(V_U + 2 * i, V_U + 2 * i + 1, V_L + 8 + i)
    for i in range(4):
        ln_apply_pair(V_L + 16 + i, V_U + 2 * i, V_U + 2 * i + 1, V_M, V_RS, V_SQ, V_T0, V_T1)
    e("v_and_b32 v%d, 7, v1" % V_T2)
    e("v_lshlrev_b32 v%d, 2, v%d" % (V_XA, V_T2))
    sigma_of(V_T0, V_T2, V_T1)
    e("v_xor_b32 v%d, s%d, v%d" % (V_T0, S_WAVE, V_T0))
    e("v_lshlrev_b32 v%d, 4, v%d" % (V_T0, V_T0))
    e("v_lshl_add_u32 v%d, v1, 7, v%d" % (V_T0, V_T0))
    e("v_add_u32 v%d, %d, v%d" % (V_T0, L_ACT, V_T0))
    e("s_mov_b64 exec, 0xffffffff")
    e("ds_write_b128 v%d, v[%d:%d]" % (V_T0, V_L + 16, V_L + 19))
    e("s_mov_b64 exec, -1")
    srd(SRD_X, S_DBG, 256)
    xcc_publish(V_T0, SRD_X)
    if PFK:
        srd(SRD_O, S_K, 32 << 20)
        e("s_lshl_b32 s84, s%d, 22" % S_XCD)
        e("s_lshl_b32 s%d, s%d, 18" % (S_A, S_SLOT))
        e("s_and_b32 s%d, s%d, 0x300000" % (S_A, S_A))
        e("s_add_u32 s84, s84, s%d" % S_A)
        e("s_and_b32 s%d, s%d, 3" % (S_A, S_SLOT))
        e("s_lshl_b32 s%d, s%d, 16" % (S_A, S_A))
        e("s_add_u32 s84, s84, s%d" % S_A)
        e("s_add_u32 s84, s84, 0x%x" % (3072 * 256 + 65536 - 8192 * PFK))
        dma_run(SRD_O, lambda m: V_G, 84, 1024, L_W1, PFK, 0, PFK)
    tr256_addr(V_TR, V_T0)
    act_rd_addr(V_AE, V_AO, V_T0, L_ACT)
    e("v_and_b32 v%d, 7, v1" % V_T0)
    e("v_lshlrev_b32 v%d, 10, v%d" % (V_PUB, V_T0))
    e("v_lshrrev_b32 v%d, 3, v2" % V_T0)
    e("v_lshl_add_u32 v%d, v3, 1, v%d" % (V_T0, V_T0))
    e("v_lshl_add_u32 v%d, v%d, 4, v%d" % (V_PUB, V_T0, V_PUB))
    e("s_lshl_b32 s%d, s%d, 7" % (S_A, S_WAVE))
    e("v_add_u32 v%d, s%d, v%d" % (V_PUB, S_A, V_PUB))
    e("s_lshl_b32 s%d, s%d, 2" % (S_A, S_C))
    e("s_add_u32 s%d, s%d, s%d" % (S_A, S_A, S_D))
    e("s_lshl_b32 s%d, s%d, 13" % (S_A, S_A))
    e("s_add_u32 s81, s%d, 0x%x" % (S_A, WS_H1))
    stamp(2)
    if NODRY: e("s_branch L_q_real")
    e("s_waitcnt lgkmcnt(0)")
    set_dry()
    lab("L_q_top")
    tr256_read(V_WF, V_TR)
    gemv8(V_ACC, V_WF, V_AF, V_AE, V_AO)
    publish_partial(81, False)
    e("s_cmp_eq_u32 s%d, 0" % S_DRY)
    e("s_cbranch_scc1 L_q_done")
    lab("L_q_real")
    set_real()
    e("s_waitcnt vmcnt(%d)" % (8 - QFIRST + 1 + PFK))
    make_tag(V_L + 12)
    e("s_waitcnt vmcnt(%d) lgkmcnt(0)" % PFK)
    e("s_barrier")
    stamp(3)
    e("s_branch L_q_top")
    lab("L_q_done")
    stamp(4)
    dma256_voff(V_VA, V_VB, 2048, V_T0)
    e("v_add_u32 v%d, %d, v%d" % (V_TR1, L_W1, V_TR))
    e("s_and_b32 s%d, s%d, 1" % (S_A, S_WAVE))
    e("s_lshl_b32 s%d, s%d, 7" % (S_A, S_A))
    e("v_xor_b32 v%d, s%d, v%d" % (V_X1 + 14, S_A, V_VA))
    e("v_xor_b32 v%d, 0x80, v%d" % (V_X1 + 15, V_X1 + 14))
    pos_write_addr(V_AW, L_ACT)
    e("v_lshlrev_b32 v%d, 13, v3" % V_RED)
    e("v_lshl_add_u32 v%d, v2, 4, v%d" % (V_RED, V_RED))
    e("s_and_b32 s%d, s%d, 1" % (S_A, S_WAVE))
    e("s_lshl_b32 s%d, s%d, 8" % (S_A, S_A))
    e("v_add_u32 v%d, s%d, v%d" % (V_RED, S_A, V_RED))
    e("s_lshl_b32 s%d, s%d, 3" % (S_A, S_SLOT))
    e("s_or_b32 s%d, s%d, s%d" % (S_A, S_A, S_XCD))
    e("s_lshl_b32 s%d, s%d, 7" % (S_A, S_A))
    e("s_add_u32 s83, s%d, 0x%x" % (S_A, WS_TRIG))
    e("s_lshl_b32 s%d, s%d, 3" % (S_A, S_SLOT))
    e("s_add_u32 s%d, s%d, s%d" % (S_A, S_A, S_WAVE))
    e("s_lshl_b32 s%d, s%d, 10" % (S_A, S_A))
    e("s_add_u32 s82, s%d, 0x%x" % (S_A, WS_H2G))
    e("s_lshl_b32 s%d, s%d, 4" % (S_A, S_XCD))
    e("s_add_u32 s%d, s%d, s%d" % (S_A, S_A, S_SLOT))
    e("s_lshl_b32 s%d, s%d, 13" % (S_A, S_A))
    e("s_add_u32 s84, s%d, 0x%x" % (S_A, WS_H3A))
    e("s_lshl_b32 s%d, s%d, 17" % (S_A, S_XCD))
    e("s_lshl_b32 s%d, s%d, 9" % (S_B, S_SLOT))
    e("s_add_u32 s%d, s%d, s%d" % (S_A, S_A, S_B))
    e("s_add_u32 s85, s%d, 0x%x" % (S_A, WS_H3A))
    e("s_add_u32 s86, s%d, 0x%x" % (S_A, WS_H5))
    for n in range(4):
        e("s_add_u32 s%d, s85, %d" % (4 + n, 32768 * n))
        e("s_add_u32 s%d, s86, %d" % (8 + n, 32768 * n))
    e("s_lshl_b32 s%d, s80, 1" % S_A)
    e("s_add_u32 s90, s%d, 0x%x" % (S_A, WS_H3B))
    e("s_lshr_b32 s%d, s%d, 3" % (S_C, S_SLOT))
    e("s_lshl_b32 s%d, s%d, 1" % (S_A, S_XCD))
    e("s_add_u32 s%d, s%d, s%d" % (S_C, S_C, S_A))
    e("s_and_b32 s%d, s%d, 7" % (S_D, S_SLOT))
    e("s_mul_i32 s91, s%d, %d" % (S_C, 224 * 2048))
    e("s_lshl_b32 s%d, s%d, 8" % (S_A, S_D))
    e("s_add_u32 s91, s91, s%d" % S_A)
    e("s_min_u32 s%d, s%d, 6" % (S_A, S_WAVE))
    e("s_lshl_b32 s%d, s%d, 10" % (S_B, S_A))
    e("s_mul_i32 s%d, s%d, 7168" % (S_E, S_C))
    e("s_add_u32 s%d, s%d, s%d" % (S_E, S_E, S_B))
    e("s_add_u32 s87, s%d, 0x%x" % (S_E, WS_H4S))
    e("s_add_u32 s88, s%d, 0x%x" % (S_E, WS_H4U))
    e("s_lshl_b32 s%d, s%d, 2" % (S_B, S_A))
    e("v_add_u32 v%d, s%d, v3" % (V_T3, S_B))
    e("v_and_b32 v%d, 7, v%d" % (V_T2, V_T3))
    sigma_of(V_T0, V_T2, V_T1)
    e("v_and_b32 v%d, 7, v1" % V_T1)
    e("v_xor_b32 v%d, v%d, v%d" % (V_T0, V_T0, V_T1))
    e("v_lshlrev_b32 v%d, 4, v%d" % (V_T0, V_T0))
    e("v_lshl_add_u32 v%d, v%d, 7, v%d" % (V_T0, V_T3, V_T0))
    e("v_bfe_u32 v%d, v1, 3, 1" % V_T1)
    e("v_lshl_add_u32 v%d, v%d, 3, v%d" % (V_T0, V_T1, V_T0))
    e("v_add_u32 v%d, %d, v%d" % (V_AWD, L_ACT, V_T0))
    e("s_lshl_b32 s%d, s%d, 4" % (S_A, S_D))
    e("s_add_u32 s%d, s%d, s%d" % (S_A, S_A, S_C))
    e("s_lshl_b32 s%d, s%d, 13" % (S_A, S_A))
    e("s_add_u32 s89, s%d, 0x%x" % (S_A, WS_H5))
    e("v_and_b32 v%d, 31, v1" % V_T0)
    e("v_lshlrev_b32 v%d, 4, v%d" % (V_T0, V_T0))
    e("v_add_u32 v%d, %d, v%d" % (V_ZA, L_ACT + 28 * 128, V_T0))
    for k in range(4): e("v_mov_b32 v%d, 0" % (V_ZQ + k))
    srd(SRD_O, S_OUT, 16384)
    e("s_lshr_b32 s%d, s%d, 7" % (S_E, S_WG))
    e("s_mul_i32 s%d, s%d, 7" % (S_A, S_XCD))
    e("s_add_u32 s%d, s%d, s%d" % (S_E, S_E, S_A))
    e("s_sub_u32 s%d, 3, s%d" % (S_E, S_E))
    e("s_and_b32 s%d, s%d, 7" % (S_E, S_E))
    e("s_lshr_b32 s%d, s%d, 3" % (S_A, S_SLOT))
    e("s_mul_i32 s%d, s%d, 56" % (S_A, S_A))
    e("s_min_u32 s%d, s%d, 6" % (S_B, S_WAVE))
    e("s_lshl_b32 s%d, s%d, 3" % (S_B, S_B))
    e("s_add_u32 s%d, s%d, s%d" % (S_A, S_A, S_B))
    e("s_lshr_b32 s%d, s%d, 4" % (S_B, S_A))
    e("s_cmp_eq_u32 s%d, s%d" % (S_B, S_E))
    e("s_cselect_b32 s96, 1, 0")
    e("s_and_b32 s%d, s%d, 8" % (S_A, S_A))
    e("s_lshl_b32 s%d, s%d, 8" % (S_A, S_A))
    e("s_lshl_b32 s%d, s%d, 12" % (S_B, S_XCD))
    e("s_add_u32 s%d, s%d, s%d" % (S_A, S_A, S_B))
    e("s_add_u32 s81, s%d, 0x%x" % (S_A, WS_H4P))
    e("v_lshlrev_b32 v%d, 5, v1" % V_VC)
    e("v_add_u32 v%d, 0x8000, v%d" % (V_VD, V_VC))
    e("v_add_u32 v%d, 0x10000, v%d" % (V_X1 + 12, V_VC))
    e("v_add_u32 v%d, 0x18000, v%d" % (V_X1 + 13, V_VC))
    e("s_lshl_b32 s99, s%d, 19" % S_SLOT)
    e("s_lshl_b32 s%d, s%d, 8" % (S_A, S_XCD))
    e("s_add_u32 s99, s99, s%d" % S_A)
    e("s_barrier")
    e("s_cmp_ge_u32 s%d, 4" % S_WAVE)
    e("s_cbranch_scc1 L_b_warm")
    srd(SRD_W, S_WO, 8 << 20)
    top = poll_begin()
    e("buffer_load_dwordx2 v[%d:%d], v%d, s[%d:%d], s83 offen sc1" % (V_L, V_L + 1, V_Z, SRD_WS, SRD_WS + 3))
    xcc_load(V_L + 2, V_XA, SRD_X)
    poll_end(top, ([] if NOTRIG else [chk64(V_L)]) + xcc_checks(V_L + 2, V_T0))
    xcc_decide(V_L + 2)
    dma_run(SRD_W, ab, 99, 4 * 2048, L_W1, 16, 0, 16, name="wo")
    if DEARLY:
        srd(SRD_W, S_WD, 3584 * 2048)
        dma_run(SRD_W, lambda m: V_X1 + 15 if (m & 2) else V_X1 + 14, 91, 4 * 2048, L_W0, 14, 0, 14)
    if DSPLIT:
        srd(SRD_W, S_WD, 3584 * 2048)
        dma_run(SRD_W, ab, 91, 4 * 2048, L_W0, 8, 0, 8)
    stamp(5)
    e("s_waitcnt vmcnt(%d)" % (14 if DEARLY else 8 if DSPLIT else 0))
    e("s_branch L_b_real")
    lab("L_b_warm")
    if not NOTOUCH:
        e("s_cmp_lg_u32 s%d, 4" % S_WAVE)
        e("s_cbranch_scc1 L_b_notouch")
        e("v_lshlrev_b32 v%d, 7, v1" % V_T0)
        e("v_lshrrev_b32 v%d, 2, v1" % V_T1)
        e("v_lshlrev_b32 v%d, 13, v%d" % (V_T1, V_T1))
        e("v_and_b32 v%d, 3, v1" % V_T2)
        e("v_lshl_add_u32 v%d, v%d, 7, v%d" % (V_T1, V_T2, V_T1))
        e("s_sub_u32 s%d, s87, 4096" % S_A)
        e("s_sub_u32 s%d, s88, 4096" % S_B)
        e("s_lshl_b32 s%d, s%d, 12" % (S_C, S_XCD))
        e("s_add_u32 s%d, s%d, 0x%x" % (S_C, S_C, WS_H4P))
        e("v_and_b32 v%d, 31, v1" % V_T2)
        e("v_lshlrev_b32 v%d, 7, v%d" % (V_T2, V_T2))
        e("v_lshrrev_b32 v%d, 5, v1" % V_T3)
        e("v_lshl_add_u32 v%d, v%d, 15, v%d" % (V_T2, V_T3, V_T2))
        e("v_add_u32 v%d, 0x10000, v%d" % (V_T3, V_T2))
        touch([(V_T1, 85, 0), (V_T0, S_A, 0), (V_T0, S_B, 0), (V_T2, S_C, 0), (V_T3, S_C, 0), (V_Z, 82, 0), (V_Z, 86, 0), (V_Z, 89, 0), (V_Z, 90, 0)])
        if TLBT:
            e("v_mov_b32 v%d, s99" % V_T0)
            e("v_mov_b32 v%d, s91" % V_T1)
            e("global_load_dword v%d, v%d, s[%d:%d]" % (V_X1 + 29, V_T0, S_WO, S_WO + 1))
            e("global_load_dword v%d, v%d, s[%d:%d]" % (V_X1 + 30, V_T1, S_WD, S_WD + 1))
            e("global_load_dword v%d, v%d, s[%d:%d]" % (V_X1 + 31, V_Z, S_OUT, S_OUT + 1))
        lab("L_b_notouch")
    if NODRY: e("s_branch L_b_real0")
    set_dry()
    e("s_branch L_b_tail")
    lab("L_b_real0")
    set_real()
    top = poll_begin()
    xcc_load(V_L, V_XA, SRD_X)
    poll_end(top, xcc_checks(V_L, V_T0))
    xcc_decide(V_L)
    lab("L_b_real")
    e("s_barrier")
    lab("L_b_tail")
    tr256_read(V_WF, V_TR1)
    stamp(6)
    top = poll_begin((V_G, 82, 3, 0, "2" in AT))
    e("buffer_load_dwordx4 v[%d:%d], v%d, s[%d:%d], s82 offen sc1" % (V_L, V_L + 3, V_G, SRD_WS, SRD_WS + 3))
    poll_end(top, [chk64(V_L + 2)], bell=(V_G, 82, 3))
    e("ds_write_b64 v%d, v[%d:%d]" % (V_AW, V_L, V_L + 1))
    stamp(7)
    e("s_waitcnt lgkmcnt(0)")
    barrier(True)
    gemv8(V_ACC, V_WF, V_AF, V_AE, V_AO)
    publish_partial(84, True)
    stamp(8)
    only_red("L_b_nor3")
    reduce16(4)
    stamp(9)
    residual_add(V_U + 4, V_XP)
    e("v_mov_b32 v%d, s%d" % (V_U + 6, S_T))
    e("v_mov_b32 v%d, s%d" % (V_U + 7, S_T))
    e("v_mov_b32_dpp v%d, v%d quad_perm:[1,1,3,3] row_mask:0xf bank_mask:0xf" % (V_U + 5, V_U + 4))
    store_g("buffer_store_dwordx4 v[%d:%d], v%d, s[%d:%d], s90 offen" % (V_U + 4, V_U + 7, V_HO, SRD_WS, SRD_WS + 3), "0x5555")
    e("v_mov_b32 v%d, v%d" % (V_H, V_U + 4))
    stamp(10)
    lab("L_b_nor3")
    if DEARLY:
        barrier(True)
    else:
        barrier(True)
        srd(SRD_W, S_WD, 3584 * 2048)
        if TRIG2: doorbell(V_Z, 83, 2)
        e("s_cmp_eq_u32 s%d, 7" % S_WAVE)
        e("s_cbranch_scc1 L_b_nod7")
        dma_run(SRD_W, ab, 91, 4 * 2048, L_W0, 8, 0, 8, name="d", dry=True)
        lab("L_b_nod7")
        e("s_cbranch_execz L_b_nod")
        e("s_waitcnt vmcnt(0)")
        e("s_barrier")
        lab("L_b_nod")
    e("ds_write_b128 v%d, v[%d:%d]" % (V_ZA, V_ZQ, V_ZQ + 3))
    tr256_read(V_WF, V_TR)
    stamp(11)
    e("s_cmp_eq_u32 s96, 0")
    e("s_cbranch_scc0 L_b_split")
    lab("L_b_plain")
    top = poll_begin((V_G, 88, 3) if "4" not in NB else None)
    e("buffer_load_dwordx4 v[%d:%d], v%d, s[%d:%d], s87 offen sc1" % (V_L, V_L + 3, V_G, SRD_WS, SRD_WS + 3))
    e("buffer_load_dwordx4 v[%d:%d], v%d, s[%d:%d], s88 offen sc1" % (V_L + 4, V_L + 7, V_G, SRD_WS, SRD_WS + 3))
    poll_end(top, [chk32(V_L + 1), chk32(V_L + 3), chk32(V_L + 5), chk32(V_L + 7)], bell=(V_G, 88, 3))
    unpack(V_U, V_U + 1, V_L); unpack(V_U + 4, V_U + 5, V_L + 4)
    unpack(V_U + 2, V_U + 3, V_L + 2); unpack(V_U + 6, V_U + 7, V_L + 6)
    e("s_cbranch_execnz L_b_join")
    lab("L_b_split")
    top = poll_begin((V_X1 + 12, 81, 3) if "4" not in NB else None)
    for i, va in enumerate((V_VC, V_VD, V_X1 + 12, V_X1 + 13)):
        if i == 2: top2 = poll_mid(top)
        for h in range(2):
            r = V_L + 8 * i + 4 * h
            e("buffer_load_dwordx4 v[%d:%d], v%d, s[%d:%d], s81 offen offset:%d sc1" % (r, r + 3, va, SRD_WS, SRD_WS + 3, 16 * h))
    poll_end(top, [chk64(V_L + 4 * i + 2) for i in range(8)], last=top2, bell=(V_X1 + 12, 81, 3))
    for mat in range(2):
        for h in range(2):
            for k in range(2):
                e("v_add_f32 v%d, v%d, v%d" % (V_U + 4 * mat + 2 * h + k, V_L + 16 * mat + 4 * h + k, V_L + 16 * mat + 8 + 4 * h + k))
    for i in range(4):
        e("v_cvt_pk_bf16_f32 v%d, v%d, v%d" % (V_L + i, V_U + 2 * i, V_U + 2 * i + 1))
    for i in range(4):
        unpack(V_U + 2 * i, V_U + 2 * i + 1, V_L + i)
    for k in range(4): e("v_mul_f32 v%d, %s, v%d" % (V_U + k, f32(-LOG2E), V_U + k))
    for k in range(4): e("v_exp_f32 v%d, v%d" % (V_U + k, V_U + k))
    for k in range(4): e("v_add_f32 v%d, 1.0, v%d" % (V_U + k, V_U + k))
    for k in range(4): e("v_rcp_f32 v%d, v%d" % (V_U + k, V_U + k))
    e("s_nop 0")
    for i in range(2):
        e("v_cvt_pk_bf16_f32 v%d, v%d, v%d" % (V_L + i, V_U + 2 * i, V_U + 2 * i + 1))
    for i in range(2):
        unpack(V_U + 2 * i, V_U + 2 * i + 1, V_L + i)
    lab("L_b_join")
    stamp(12)
    for k in range(4): e("v_mul_f32 v%d, v%d, v%d" % (V_U + k, V_U + k, V_U + 4 + k))
    e("v_cvt_pk_bf16_f32 v%d, v%d, v%d" % (V_U + 16, V_U, V_U + 1))
    e("v_cvt_pk_bf16_f32 v%d, v%d, v%d" % (V_U + 17, V_U + 2, V_U + 3))
    e("ds_write_b64 v%d, v[%d:%d]" % (V_AWD, V_U + 16, V_U + 17))
    e("s_waitcnt lgkmcnt(0)")
    barrier(True)
    gemv8(V_ACC, V_WF, V_AF, V_AE, V_AO)
    publish_partial(89, False)
    stamp(13)
    noep = uid("noep")
    e("s_add_u32 s%d, s2, s%d" % (S_A, S_WAVE))
    e("s_cmp_lg_u32 s%d, 0" % S_A)
    e("s_cbranch_scc1 %s" % noep)
    e("s_mov_b64 exec, 1")
    e("v_mov_b32 v%d, s%d" % (V_T0, S_F))
    e("buffer_store_dword v%d, v%d, s[%d:%d], 0 offen sc1" % (V_T0, V_Z, SRD_WS, SRD_WS + 3))
    e("s_mov_b64 exec, -1")
    lab(noep)
    only_red("L_b_end2")
    reduce16(8, BELL5)
    stamp(14)
    residual_add(V_U + 4, V_H)
    store_g("buffer_store_dword v%d, v%d, s[%d:%d], s80 offen" % (V_U + 4, V_X1, SRD_O, SRD_O + 3), "0xffff", flags="")
    e("s_cmp_lg_u32 s%d, 0" % S_DRY)
    e("s_cbranch_scc1 L_b_real0")
    stamp(15)
    lab("L_b_end")
    stamps_flush(V_U)
    e("s_endpgm")
    lab("L_b_end2")
    if "b" in CLEAN: clean("buffer_store_dwordx4 v[%d:%d], v%d, s[%d:%d], s84 offen" % (V_P, V_P + 3, V_PUB, SRD_WS, SRD_WS + 3))
    e("s_branch L_b_end")

def role_a():
    cmt("================= role A =================")
    KO = V_X1
    KA = V_X1 + 4
    QE, QO, QW, PW0, PW1, SW, SR, XA, EP = [V_X1 + 8 + i for i in range(9)]
    ab = lambda m: V_VB if (m & 2) else V_VA
    dma256_voff(V_VA, V_VB, 256, V_T0)
    e("s_lshl_b32 s%d, s%d, 22" % (S_E, S_XCD))
    e("s_lshr_b32 s%d, s%d, 2" % (S_C, S_SLOT))
    e("s_lshl_b32 s%d, s%d, 20" % (S_A, S_C))
    e("s_add_u32 s%d, s%d, s%d" % (S_E, S_E, S_A))
    e("s_and_b32 s%d, s%d, 3" % (S_D, S_SLOT))
    e("s_lshl_b32 s%d, s%d, 16" % (S_A, S_D))
    e("s_add_u32 s%d, s%d, s%d" % (S_E, S_E, S_A))
    e("s_add_u32 s%d, s%d, 0x%x" % (S_E, S_E, 3072 * 256))
    e("v_xor_b32 v%d, v2, v3" % V_T0)
    e("v_lshlrev_b32 v%d, 4, v%d" % (V_T0, V_T0))
    e("v_lshl_add_u32 v%d, v3, 8, v%d" % (KO, V_T0))
    for i in range(1, 4): e("v_xor_b32 v%d, %d, v%d" % (KO + i, 64 * i, KO))
    e("s_waitcnt lgkmcnt(0)")
    if STAMPS: e("s_mov_b32 s%d, s%d" % (S_ST, S_TM))
    e("s_load_dword s100, s[%d:%d], 0" % (S_WS, S_WS + 1))
    srd(SRD_O, S_DBG, 256)
    xcc_publish(V_T0, SRD_O, 0)
    e("s_cmp_ge_u32 s%d, %d" % (S_WAVE, NLD))
    e("s_cbranch_scc1 L_a_noissue0")
    def thr(c):
        if AWIN <= c < ATHR: e("s_waitcnt vmcnt(%d)" % (AWIN - 1))
    if KFIRST:
        srd(SRD_W, S_K, 32 << 20)
        dma_run(SRD_W, lambda m: KO + (m & 3), S_E, 1024, L_W1, 16, 0, 16, pre=thr, name="k")
    else:
        srd(SRD_X, S_K, 32 << 20)
        srd(SRD_W, S_V, 32 << 20)
        dma_run(SRD_W, ab, S_E, 1024, L_W0, 16, 0, 16, pre=thr, name="v")
        dma_run(SRD_X, lambda m: KO + (m & 3), S_E, 1024, L_W1, 8, 0, 8, pre=lambda m: thr(16 + m), name="k")
        dma_run(SRD_X, lambda m: KO + (m & 3), S_E, 1024, L_W1, 8, 32, 40, name="k")
    lab("L_a_noissue0")
    if KFIRST:
        srd(SRD_X, S_V, 32 << 20)
        e("s_mov_b32 s7, s%d" % S_E)
    srd(SRD_WS, S_WS, WS_SIZE)
    stamp(1)
    common_consts()
    e("v_lshlrev_b32 v%d, 4, v1" % V_G)
    tr256_addr(V_TR, V_T0)
    e("v_xor_b32 v%d, v2, v3" % V_T0)
    e("v_lshlrev_b32 v%d, 4, v%d" % (V_T0, V_T0))
    e("v_lshl_add_u32 v%d, v2, 8, v%d" % (V_T0, V_T0))
    e("s_lshl_b32 s%d, s%d, 13" % (S_A, S_WAVE))
    e("s_add_u32 s%d, s%d, %d" % (S_A, S_A, L_W1))
    e("v_add_u32 v%d, s%d, v%d" % (KA, S_A, V_T0))
    for i in range(1, 4): e("v_xor_b32 v%d, %d, v%d" % (KA + i, 64 * i, KA))
    act_rd_addr(QE, QO, V_T0, L_QB)
    act_rd_addr(V_AE, V_AO, V_T0, L_PB)
    e("v_bfe_u32 v%d, v1, 2, 3" % V_T2)
    sigma_of(V_T0, V_T2, V_T1)
    e("v_xor_b32 v%d, s%d, v%d" % (V_T0, S_WAVE, V_T0))
    e("v_lshlrev_b32 v%d, 4, v%d" % (V_T0, V_T0))
    e("v_lshrrev_b32 v%d, 2, v1" % V_T1)
    e("v_lshl_add_u32 v%d, v%d, 7, v%d" % (V_T0, V_T1, V_T0))
    e("v_and_b32 v%d, 3, v1" % V_T1)
    e("v_lshl_add_u32 v%d, v%d, 2, v%d" % (V_T0, V_T1, V_T0))
    e("v_add_u32 v%d, %d, v%d" % (QW, L_QB, V_T0))
    e("v_and_b32 v%d, 2, v3" % V_T0)
    e("s_and_b32 s%d, s%d, 1" % (S_A, S_WAVE))
    e("v_or_b32 v%d, s%d, v%d" % (V_T0, S_A, V_T0))
    e("v_and_b32 v%d, 7, v1" % V_T1)
    e("v_xor_b32 v%d, v%d, v%d" % (V_T0, V_T0, V_T1))
    e("v_lshlrev_b32 v%d, 4, v%d" % (V_T0, V_T0))
    e("v_lshrrev_b32 v%d, 1, v3" % V_T1)
    e("v_lshl_add_u32 v%d, v%d, 7, v%d" % (V_T0, V_T1, V_T0))
    e("v_and_b32 v%d, 1, v3" % V_T1)
    e("v_lshl_add_u32 v%d, v%d, 3, v%d" % (V_T0, V_T1, V_T0))
    e("s_lshl_b32 s%d, s%d, 9" % (S_A, S_WAVE))
    e("s_add_u32 s%d, s%d, %d" % (S_A, S_A, L_PB))
    e("v_add_u32 v%d, s%d, v%d" % (PW0, S_A, V_T0))
    e("v_xor_b32 v%d, 64, v%d" % (PW1, PW0))
    e("v_add_u32 v%d, 0x100, v%d" % (PW1, PW1))
    e("v_cndmask_b32 v%d, v%d, v%d, s[%d:%d]" % (PW0, PW0, PW1, S_HI8, S_HI8 + 1))
    e("v_and_b32 v%d, 7, v1" % V_T0)
    e("v_lshlrev_b32 v%d, 2, v%d" % (XA, V_T0))
    e("v_lshlrev_b32 v%d, 6, v%d" % (V_T0, V_T0))
    e("v_add_u32 v%d, %d, v%d" % (SR, L_MX, V_T0))
    e("s_lshl_b32 s%d, s%d, 2" % (S_A, S_WAVE))
    e("v_add_u32 v%d, s%d, v%d" % (SW, S_A, SR))
    e("s_lshl_b32 s%d, s%d, 3" % (S_A, S_C))
    e("s_add_u32 s%d, s%d, s%d" % (S_A, S_A, S_WAVE))
    e("s_lshl_b32 s%d, s%d, 15" % (S_A, S_A))
    e("s_lshl_b32 s%d, s%d, 10" % (S_B, S_XCD))
    e("s_add_u32 s%d, s%d, s%d" % (S_A, S_A, S_B))
    e("s_add_u32 s80, s%d, 0x%x" % (S_A, WS_H1))
    for i in range(1, 4): e("s_add_u32 s%d, s80, %d" % (80 + i, 8192 * i))
    e("s_lshl_b32 s%d, s%d, 3" % (S_A, S_C))
    e("s_add_u32 s%d, s%d, s%d" % (S_A, S_A, S_XCD))
    e("s_lshl_b32 s%d, s%d, 14" % (S_A, S_A))
    e("s_add_u32 s%d, s%d, 0x%x" % (S_A, S_A, WS_H2))
    e("s_lshl_b32 s%d, s%d, 10" % (S_B, S_D))
    e("s_add_u32 s87, s%d, s%d" % (S_A, S_B))
    for i in range(1, 4): e("s_add_u32 s%d, s87, %d" % (87 + i, 4096 * i))
    e("s_lshl_b32 s%d, s%d, 12" % (S_B, S_D))
    e("s_add_u32 s%d, s%d, s%d" % (S_A, S_A, S_B))
    e("s_lshl_b32 s%d, s%d, 6" % (S_B, S_WAVE))
    e("s_add_u32 s84, s%d, s%d" % (S_A, S_B))
    e("v_and_b32 v%d, 7, v1" % V_T0)
    e("v_lshlrev_b32 v%d, 9, v%d" % (V_PUB, V_T0))
    e("v_lshl_add_u32 v%d, v3, 4, v%d" % (V_PUB, V_PUB))
    e("s_lshl_b32 s%d, s%d, 3" % (S_A, S_SLOT))
    e("s_add_u32 s%d, s%d, s%d" % (S_A, S_A, S_XCD))
    e("s_lshl_b32 s%d, s%d, 10" % (S_A, S_A))
    e("s_add_u32 s91, s%d, 0x%x" % (S_A, WS_H2G))
    e("s_mov_b32 s96, %s" % f32(LOG2E))
    e("s_cmp_lt_u32 s%d, %d" % (S_WAVE, NLD))
    e("s_cbranch_scc1 L_a_real")
    if NODRY: e("s_branch L_a_real0")
    set_dry()
    e("s_branch L_a_att")
    def gu_scalar_setup():
        GO = V_GO
        e("s_lshr_b32 s%d, s%d, 7" % (S_D, S_WG))
        e("s_mul_i32 s%d, s%d, 7" % (S_A, S_XCD))
        e("s_add_u32 s%d, s%d, s%d" % (S_D, S_D, S_A))
        e("s_sub_u32 s%d, 3, s%d" % (S_D, S_D))
        e("s_and_b32 s%d, s%d, 7" % (S_D, S_D))
        e("s_mov_b32 s101, 0")
        e("s_cmp_ge_u32 s%d, 7" % S_SLOT)
        e("s_cselect_b32 s%d, 7, 0" % S_B)
        e("s_cselect_b32 s100, 1, 0")
        e("s_sub_u32 s%d, s%d, s%d" % (S_C, S_SLOT, S_B))
        e("s_cmp_eq_u32 s%d, s%d" % (S_C, S_D))
        e("s_cselect_b32 s99, 1, 0")
        e("s_cmp_lt_u32 s%d, 14" % S_SLOT)
        e("s_cbranch_scc1 L_a_nohelp")
        e("s_cmp_eq_u32 s%d, 7" % S_D)
        e("s_cselect_b32 s101, 1, 0")
        e("s_mov_b32 s%d, s%d" % (S_C, S_D))
        e("s_sub_u32 s100, s%d, 14" % S_SLOT)
        e("s_mov_b32 s99, 2")
        lab("L_a_nohelp")
        e("s_cmp_lg_u32 s100, 0")
        e("s_cselect_b32 s%d, s%d, s%d" % (SRD_W, S_WU, S_WG))
        e("s_cselect_b32 s%d, s%d, s%d" % (S_A, S_WU + 1, S_WG + 1))
        e("s_cselect_b32 s85, 0x%x, 0" % (WS_H4U - WS_H4S))
        e("s_add_u32 s85, s85, 0x%x" % WS_H4S)
        e("s_and_b32 s%d, s%d, 0xffff" % (SRD_W + 1, S_A))
        e("s_cmp_lg_u32 s101, 0")
        e("s_cselect_b32 s%d, 0, 0x%x" % (SRD_W + 2, 1024 * 7168))
        e("s_mov_b32 s%d, 0x20000" % (SRD_W + 3))
        e("s_mul_i32 s%d, s%d, 7" % (S_A, S_XCD))
        e("s_add_u32 s%d, s%d, s%d" % (S_C, S_C, S_A))
        e("v_lshrrev_b32 v%d, 3, v1" % V_T0)
        e("v_bfe_u32 v%d, v1, 4, 1" % V_T1)
        e("v_and_b32 v%d, 7, v1" % V_T2)
        e("v_xor_b32 v%d, v%d, v%d" % (V_T1, V_T1, V_T2))
        e("v_lshlrev_b32 v%d, 4, v%d" % (V_T1, V_T1))
        e("v_mul_u32_u24 v%d, 7168, v%d" % (GO, V_T0))
        e("v_add_u32 v%d, v%d, v%d" % (GO, GO, V_T1))
        for i in range(1, 4): e("v_xor_b32 v%d, %d, v%d" % (GO + i, 32 * i, GO))
        e("s_and_b32 s%d, s%d, 1" % (S_A, S_WAVE))
        e("s_lshl_b32 s%d, s%d, 6" % (S_A, S_A))
        e("v_xor_b32 v%d, s%d, v%d" % (GO + 4, S_A, GO))
        e("v_xor_b32 v%d, 32, v%d" % (GO + 5, GO + 4))
        NE = 8 * GE
        e("s_cmp_eq_u32 s99, 2")
        e("s_cselect_b32 s%d, 64, 0" % S_B)
        e("s_mul_i32 s%d, s%d, %d" % (S_A, S_WAVE, GE))
        e("s_add_u32 s%d, s%d, s%d" % (S_A, S_A, S_B))
        e("s_lshl_b32 s9, s%d, 10" % S_A)
        e("s_mul_i32 s8, s%d, %d" % (S_A, 8 * 7168))
        e("s_lshl_b32 s%d, s%d, 7" % (S_E, S_C))
        e("s_add_u32 s8, s8, s%d" % S_E)
        e("s_cmp_eq_u32 s99, 0")
        e("s_cselect_b32 s%d, %d, %d" % (S_A, (128 - NE) // 4, (64 - NE) // 4))
        e("s_cselect_b32 s6, %d, %d" % ((128 - NE) // 32, (64 - NE) // 32))
        e("s_mul_i32 s%d, s%d, s%d" % (S_A, S_A, S_WAVE))
        e("s_add_u32 s%d, s%d, s%d" % (S_A, S_A, S_B))
        e("s_add_u32 s%d, s%d, %d" % (S_A, S_A, NE))
        e("s_lshl_b32 s5, s%d, 10" % S_A)
        e("s_mul_i32 s4, s%d, %d" % (S_A, 8 * 7168))
        e("s_add_u32 s4, s4, s%d" % S_E)
    def gu_early(ms):
        if not ms or "gu" in SKIP: return
        l = uid("nge")
        e("s_cbranch_execz %s" % l)
        for m in ms:
            e("s_mov_b32 m0, s9")
            e("s_add_u32 s9, s9, 1024")
            e("buffer_load_dwordx4 v%d, s[%d:%d], s8 offen nt lds" % (V_GO + 4 + (m & 1) if GE == 4 else V_GO + ((m & 1) | (((m >> 2) & 1) << 1)), SRD_W, SRD_W + 3))
            e("s_add_u32 s8, s8, %d" % (8 * 7168))
        lab(l)
    def h1_loads():
        for k in range(4):
            e("buffer_load_dwordx4 v[%d:%d], v%d, s[%d:%d], s%d offen sc1" % (V_L + 4 * k, V_L + 4 * k + 3, V_G, SRD_WS, SRD_WS + 3, 80 + k))
        xcc_load(V_L + 16, XA, SRD_O)
    def trig1(w):
        notr = uid("notr")
        e("s_cmp_lg_u32 s%d, %d" % (S_WAVE, w))
        e("s_cbranch_scc1 %s" % notr)
        e("s_lshl_b32 s%d, s%d, 3" % (S_A, S_SLOT))
        e("s_or_b32 s%d, s%d, s%d" % (S_A, S_A, S_XCD))
        e("s_lshl_b32 s%d, s%d, 7" % (S_A, S_A))
        e("s_add_u32 s%d, s%d, 0x%x" % (S_A, S_A, WS_TRIG))
        e("s_mov_b64 exec, 1")
        e("buffer_store_dwordx2 v[%d:%d], v%d, s[%d:%d], s%d offen sc1" % (V_T2 + 1, V_T2 + 2, V_Z, SRD_WS, SRD_WS + 3, S_A) if False else
          "buffer_store_dwordx2 v[%d:%d], v%d, s[%d:%d], s%d offen sc1" % (V_X1 + 18, V_X1 + 19, V_Z, SRD_WS, SRD_WS + 3, S_A))
        full()
        lab(notr)
    if KFIRST:
        lab("L_a_real0")
        set_real()
        if not NOTOUCH:
            e("s_cmp_lg_u32 s%d, 4" % S_WAVE)
            e("s_cbranch_scc1 L_a_notouch")
            e("v_and_b32 v%d, 7, v1" % V_T0)
            e("v_lshlrev_b32 v%d, 7, v%d" % (V_T0, V_T0))
            e("v_bfe_u32 v%d, v1, 3, 2" % V_T1)
            e("v_lshl_add_u32 v%d, v%d, 12, v%d" % (V_T0, V_T1, V_T0))
            touch([(V_T0, 87, 0), (V_Z, 80, 0), (V_Z, 91, 0)])
            if TLBT:
                e("v_min_u32 v%d, 27, v1" % V_T1)
                e("v_lshlrev_b32 v%d, 18, v%d" % (V_T1, V_T1))
                e("global_load_dword v%d, v%d, s[%d:%d]" % (V_X1 + 23, V_T1, S_WG, S_WG + 1))
                e("global_load_dword v%d, v%d, s[%d:%d]" % (V_X1 + 23, V_T1, S_WU, S_WU + 1))
                e("s_mov_b32 s%d, 0x%x" % (S_A, WS_H3B))
                e("s_mov_b32 s%d, 0x%x" % (S_B, WS_H4P))
                e("buffer_load_dword v%d, v%d, s[%d:%d], s%d offen offset:64 sc1" % (V_X1 + 23, V_Z, SRD_WS, SRD_WS + 3, S_B))
            lab("L_a_notouch")
        e("s_branch L_a_sync")
        lab("L_a_real")
        dma_run(SRD_X, ab, 7, 1024, L_W0, 16, 0, VP, name="v")
        lab("L_a_sync")
        set_real()
        make_tag()
        gu_scalar_setup()
        e("v_mov_b32 v%d, s%d" % (V_X1 + 18, S_T))
        e("v_mov_b32 v%d, s%d" % (V_X1 + 19, S_T))
        e("s_waitcnt vmcnt(%d)" % VP)
        trig1(0)
        e("s_barrier")
        stamp(2)
        lab("L_a_att")
        e("s_cbranch_execz L_a_h1k")
        h1_loads()
        e("s_cmp_ge_u32 s%d, 4" % S_WAVE)
        e("s_cbranch_scc1 L_a_h1k")
        if VP < 16:
            dma_run(SRD_X, ab, 7, 1024, L_W0, 16, VP, 16, name="v")
        lab("L_a_h1k")
    else:
        lab("L_a_real0")
        set_real()
        if not NOTOUCH:
            e("s_cmp_lg_u32 s%d, 4" % S_WAVE)
            e("s_cbranch_scc1 L_a_notouch")
            e("v_and_b32 v%d, 7, v1" % V_T0)
            e("v_lshlrev_b32 v%d, 7, v%d" % (V_T0, V_T0))
            e("v_bfe_u32 v%d, v1, 3, 2" % V_T1)
            e("v_lshl_add_u32 v%d, v%d, 12, v%d" % (V_T0, V_T1, V_T0))
            touch([(V_T0, 87, 0), (V_Z, 80, 0), (V_Z, 91, 0)])
            if TLBT:
                e("v_min_u32 v%d, 27, v1" % V_T1)
                e("v_lshlrev_b32 v%d, 18, v%d" % (V_T1, V_T1))
                e("global_load_dword v%d, v%d, s[%d:%d]" % (V_X1 + 23, V_T1, S_WG, S_WG + 1))
                e("global_load_dword v%d, v%d, s[%d:%d]" % (V_X1 + 23, V_T1, S_WU, S_WU + 1))
                e("s_mov_b32 s%d, 0x%x" % (S_A, WS_H3B))
                e("s_mov_b32 s%d, 0x%x" % (S_B, WS_H4P))
                e("buffer_load_dword v%d, v%d, s[%d:%d], s%d offen offset:64 sc1" % (V_X1 + 23, V_Z, SRD_WS, SRD_WS + 3, S_B))
            lab("L_a_notouch")
        lab("L_a_real")
        set_real()
        make_tag()
        gu_scalar_setup()
        e("s_waitcnt vmcnt(%d)" % (TRIGV * 4 // NLD))
        notr = uid("notr")
        e("s_cmp_lg_u32 s%d, 0" % S_WAVE)
        e("s_cbranch_scc1 %s" % notr)
        e("s_lshl_b32 s%d, s%d, 3" % (S_A, S_SLOT))
        e("s_or_b32 s%d, s%d, s%d" % (S_A, S_A, S_XCD))
        e("s_lshl_b32 s%d, s%d, 7" % (S_A, S_A))
        e("s_add_u32 s%d, s%d, 0x%x" % (S_A, S_A, WS_TRIG))
        e("s_mov_b64 exec, 1")
        e("buffer_store_dwordx2 v[%d:%d], v%d, s[%d:%d], s%d offen sc1" % (V_P + 2, V_P + 3, V_Z, SRD_WS, SRD_WS + 3, S_A))
        e("s_mov_b64 exec, -1")
        lab(notr)
        e("s_waitcnt vmcnt(%d)" % (64 // NLD))
        e("s_barrier")
        stamp(2)
        tr256_read(V_WF, V_TR)
        lab("L_a_att")
        e("s_cbranch_execz L_a_h1k")
        if H1LATE:
            e("s_waitcnt vmcnt(%d)" % H1V)
            e("s_barrier")
            h1_loads()
            e("s_waitcnt vmcnt(5)")
            e("s_barrier")
        else:
            h1_loads()
            e("s_waitcnt vmcnt(5)")
            e("s_barrier")
        lab("L_a_h1k")
        stamp(3)
    for sg in range(4):
        for t in range(2):
            r = V_KF + 16 * t + 4 * sg
            e("ds_read_b128 v[%d:%d], v%d offset:%d" % (r, r + 3, KA + sg, t * 4096))
    e("s_cbranch_execz L_a_h1_nl")
    if KFIRST:
        e("s_cmp_ge_u32 s%d, 4" % S_WAVE)
        e("s_cbranch_scc1 L_a_h1w")
        e("s_waitcnt vmcnt(%d)" % (16 - VP))
        e("s_branch L_a_h1_nl")
    else:
        e("s_branch L_a_h1w")
    lab("L_a_h1")
    h1_loads()
    lab("L_a_h1w")
    poll_end("L_a_h1", [chk64(V_L + 4 * k + 2) for k in range(4)] + xcc_checks(V_L + 16, V_T0))
    stamp(4)
    e("v_pk_add_f32 v[%d:%d], v[%d:%d], v[%d:%d]" % (V_L, V_L + 1, V_L, V_L + 1, V_L + 4, V_L + 5))
    e("v_pk_add_f32 v[%d:%d], v[%d:%d], v[%d:%d]" % (V_L + 8, V_L + 9, V_L + 8, V_L + 9, V_L + 12, V_L + 13))
    e("v_pk_add_f32 v[%d:%d], v[%d:%d], v[%d:%d]" % (V_L, V_L + 1, V_L, V_L + 1, V_L + 8, V_L + 9))
    e("v_cvt_pk_bf16_f32 v%d, v%d, v%d" % (V_T0, V_L, V_L + 1))
    e("ds_write_b32 v%d, v%d" % (QW, V_T0))
    xcc_decide(V_L + 16)
    e("s_waitcnt lgkmcnt(0)")
    barrier(True)
    for sg in range(4):
        e("ds_read_b128 v[%d:%d], v%d offset:%d" % (V_AF + 4 * sg, V_AF + 4 * sg + 3, QO if (sg & 1) else QE, sg * 512))
    S0, S1 = V_U, V_U + 4
    gu_early(range(0, GE1))
    for sg in range(4):
        e("s_waitcnt lgkmcnt(%d)" % (3 - sg))
        for t, acc in ((0, S0), (1, S1)):
            e(mfma(acc, V_KF + 16 * t + 4 * sg, V_AF + 4 * sg, None if sg == 0 else acc))
    gu_early(range(GE1, GE))
    e("s_nop 7")
    X = V_U + 8
    W = V_U + 16
    for k in range(4):
        e("v_cndmask_b32 v%d, v%d, v%d, s[%d:%d]" % (X + k, S0 + k, S1 + k, S_HI8, S_HI8 + 1))
    for rnd in range(2):
        for i2 in range(2):
            e("v_cvt_pk_bf16_f32 v%d, v%d, v%d" % (W + i2, X + 2 * i2, X + 2 * i2 + 1))
        for i2 in range(2):
            unpack(X + 2 * i2, X + 2 * i2 + 1, W + i2)
        if rnd == 0:
            for k in range(4):
                e("v_mul_f32 v%d, %s, v%d" % (X + k, f32(128 ** -0.5), X + k))
    e("v_max3_f32 v%d, v%d, v%d, v%d" % (V_M, X, X + 1, X + 2))
    e("v_max_f32 v%d, v%d, v%d" % (V_M, V_M, X + 3))
    e("s_nop 1")
    e(dpp_add(V_M, V_M, "row_ror:8", "v_max_f32"))
    emit(xrow_ops(V_M, V_T0, "v_max_f32"))
    e("v_mul_f32 v%d, s96, v%d" % (V_M, V_M))
    for k in range(4):
        e("v_fma_f32 v%d, v%d, s96, -v%d" % (X + k, X + k, V_M))
    for k in range(4):
        e("v_exp_f32 v%d, v%d" % (X + k, X + k))
    e("s_nop 0")
    e("v_cvt_pk_bf16_f32 v%d, v%d, v%d" % (W, X, X + 1))
    e("v_cvt_pk_bf16_f32 v%d, v%d, v%d" % (W + 1, X + 2, X + 3))
    e("v_add_f32 v%d, v%d, v%d" % (V_SUM, X, X + 1))
    e("v_add_f32 v%d, v%d, v%d" % (V_T1, X + 2, X + 3))
    e("ds_write_b64 v%d, v[%d:%d]" % (PW0, W, W + 1))
    e("v_add_f32 v%d, v%d, v%d" % (V_SUM, V_SUM, V_T1))
    e("s_nop 1")
    e(dpp_add(V_SUM, V_SUM, "row_ror:8"))
    emit(xrow_ops(V_SUM, V_T0))
    e("ds_write2_b32 v%d, v%d, v%d offset0:0 offset1:8" % (SW, V_M, V_SUM))
    if KFIRST:
        e("s_cbranch_execz L_a_nov")
        e("s_waitcnt vmcnt(0) lgkmcnt(0)")
        e("s_barrier")
        lab("L_a_nov")
    else:
        e("s_waitcnt lgkmcnt(0)")
        barrier(True)
    stamp(5)
    MS, LS = V_L, V_L + 8
    for i2 in range(4):
        e("ds_read_b128 v[%d:%d], v%d offset:%d" % (V_L + 4 * i2, V_L + 4 * i2 + 3, SR, 16 * i2))
    def pv_reads(m):
        if KFIRST:
            for h in range(2):
                e("ds_read_b64_tr_b16 v[%d:%d], v%d offset:%d" % (V_WF + 4 * m + 2 * h, V_WF + 4 * m + 2 * h + 1, V_TR, m * 8192 + h * 1024))
        e("ds_read_b128 v[%d:%d], v%d offset:%d" % (V_AF + 4 * m, V_AF + 4 * m + 3, V_AO if (m & 1) else V_AE, m * 512))
    for m in range(4 if KFIRST else 8): pv_reads(m)
    AC = V_U
    side = ["v_max3_f32 v%d, v%d, v%d, v%d" % (V_M, MS, MS + 1, MS + 2),
            "v_max3_f32 v%d, v%d, v%d, v%d" % (V_T0, MS + 3, MS + 4, MS + 5),
            "v_max3_f32 v%d, v%d, v%d, v%d" % (V_M, V_M, MS + 6, MS + 7),
            "v_max_f32 v%d, v%d, v%d" % (V_M, V_M, V_T0)]
    side += ["v_sub_f32 v%d, v%d, v%d" % (MS + i2, MS + i2, V_M) for i2 in range(8)]
    side += ["v_exp_f32 v%d, v%d" % (MS + i2, MS + i2) for i2 in range(8)]
    side += ["v_mul_f32 v%d, v%d, v%d" % (V_SUM, LS, MS), "v_mul_f32 v%d, v%d, v%d" % (V_T1, LS + 1, MS + 1)]
    for i2 in range(2, 8, 2):
        side += ["v_fmac_f32 v%d, v%d, v%d" % (V_SUM, LS + i2, MS + i2), "v_fmac_f32 v%d, v%d, v%d" % (V_T1, LS + i2 + 1, MS + i2 + 1)]
    side += ["v_add_f32 v%d, v%d, v%d" % (V_SUM, V_SUM, V_T1),
             "v_rcp_f32 v%d, v%d" % (V_RS, V_SUM), "v_log_f32 v%d, v%d" % (V_T1, V_SUM), "s_nop 0",
             "v_add_f32 v%d, v%d, v%d" % (V_P + 2, V_T1, V_M)]
    per = (len(side) + 7) // 8
    for m in range(8):
        e("s_waitcnt lgkmcnt(%d)" % ((9 if m < 5 else 3 * (7 - m)) if KFIRST else 7 - m))
        e(mfma(AC + 4 * m, V_WF + 4 * m, V_AF + 4 * m, None))
        if KFIRST and m < 4: pv_reads(m + 4)
        emit(side[m * per:(m + 1) * per])
    def bsel(r):
        return (r & ~1, "op_sel:[0,%d,0] op_sel_hi:[1,%d,1]" % (r & 1, r & 1), "op_sel:[0,%d] op_sel_hi:[1,%d]" % (r & 1, r & 1))
    for m in range(8):
        fb, sel, sel2 = bsel(MS + m)
        for h in range(2):
            a = V_ACC + 2 * h
            if m == 0:
                e("v_pk_mul_f32 v[%d:%d], v[%d:%d], v[%d:%d] %s" % (a, a + 1, AC + 2 * h, AC + 2 * h + 1, fb, fb + 1, sel2))
            else:
                e("v_pk_fma_f32 v[%d:%d], v[%d:%d], v[%d:%d], v[%d:%d] %s" % (a, a + 1, AC + 4 * m + 2 * h, AC + 4 * m + 2 * h + 1, fb, fb + 1, a, a + 1, sel))
    fb, sel, sel2 = bsel(V_RS)
    for h in range(2):
        a = V_ACC + 2 * h
        e("v_pk_mul_f32 v[%d:%d], v[%d:%d], v[%d:%d] %s" % (a, a + 1, a, a + 1, fb, fb + 1, sel2))
    e("v_cvt_pk_bf16_f32 v%d, v%d, v%d" % (V_P, V_ACC, V_ACC + 1))
    e("v_cvt_pk_bf16_f32 v%d, v%d, v%d" % (V_P + 1, V_ACC + 2, V_ACC + 3))
    store_l("buffer_store_dwordx4 v[%d:%d], v%d, s[%d:%d], s84 offen" % (V_P, V_P + 3, V_PUB, SRD_WS, SRD_WS + 3), "lo8")
    stamp(6)
    e("s_sub_u32 s%d, s%d, 1" % (S_A, S_WAVE))
    e("s_cmp_lt_u32 s%d, 3" % S_A)
    e("s_cbranch_scc1 L_a_nocomb")
    e("s_cmp_lg_u32 s%d, 0" % S_DRY)
    e("s_cbranch_scc1 L_a_comb")
    e("s_cmp_lg_u32 s%d, 0" % S_WAVE)
    e("s_cbranch_scc1 L_a_nocomb")
    lab("L_a_comb")
    top = poll_begin()
    for s in range(4):
        e("buffer_load_dwordx4 v[%d:%d], v%d, s[%d:%d], s%d offen sc1" % (V_L + 4 * s, V_L + 4 * s + 3, V_G, SRD_WS, SRD_WS + 3, 87 + s))
    poll_end(top, [chk32(V_L + 4 * s + 3) for s in range(4)])
    Ls = [V_L + 4 * s + 2 for s in range(4)]
    e("v_max3_f32 v%d, v%d, v%d, v%d" % (V_T0, Ls[0], Ls[1], Ls[2]))
    e("v_max_f32 v%d, v%d, v%d" % (V_T0, V_T0, Ls[3]))
    for s in range(4): e("v_sub_f32 v%d, v%d, v%d" % (Ls[s], Ls[s], V_T0))
    for s in range(4): e("v_exp_f32 v%d, v%d" % (Ls[s], Ls[s]))
    for s in range(4):
        unpack(V_U + 4 * s, V_U + 4 * s + 1, V_L + 4 * s)
        unpack(V_U + 4 * s + 2, V_U + 4 * s + 3, V_L + 4 * s + 1)
    e("v_add_f32 v%d, v%d, v%d" % (V_T0, Ls[0], Ls[1]))
    e("v_add_f32 v%d, v%d, v%d" % (V_T1, Ls[2], Ls[3]))
    e("v_add_f32 v%d, v%d, v%d" % (V_T0, V_T0, V_T1))
    e("v_rcp_f32 v%d, v%d" % (V_T0, V_T0))
    for k in range(4):
        e("v_mul_f32 v%d, v%d, v%d" % (V_U + k, V_U + k, Ls[0]))
    for s in range(1, 4):
        for k in range(4):
            e("v_fmac_f32 v%d, v%d, v%d" % (V_U + k, V_U + 4 * s + k, Ls[s]))
    for k in range(4):
        e("v_mul_f32 v%d, v%d, v%d" % (V_U + k, V_U + k, V_T0))
    e("v_cvt_pk_bf16_f32 v%d, v%d, v%d" % (V_U + 16, V_U, V_U + 1))
    e("v_cvt_pk_bf16_f32 v%d, v%d, v%d" % (V_U + 17, V_U + 2, V_U + 3))
    e("v_mov_b32 v%d, s%d" % (V_U + 18, S_T))
    e("v_mov_b32 v%d, s%d" % (V_U + 19, S_T))
    store_g("buffer_store_dwordx4 v[%d:%d], v%d, s[%d:%d], s91 offen" % (V_U + 16, V_U + 19, V_G, SRD_WS, SRD_WS + 3))
    stamp(13)
    lab("L_a_nocomb")
    e("s_cbranch_execz L_a_gud")
    e("s_cmp_lg_u32 s101, 0")
    e("s_cbranch_scc1 L_a_idle")
    e("s_mov_b32 s96, s100")
    e("s_mov_b32 s%d, s4" % S_A)
    e("s_mov_b32 s%d, s5" % S_B)
    e("s_mov_b32 s%d, s6" % S_D)
    e("s_barrier")
    e("s_cmp_ge_u32 s%d, %d" % (S_WAVE, 0 if "gu" in SKIP else 4))
    e("s_cbranch_scc1 L_a_gusetup")
    e("s_branch L_a_guld")
    lab("L_a_gud")
    e("s_mov_b32 s%d, 1" % S_D)
    def gu_group(win):
        for m in range(8):
            e("s_mov_b32 m0, s%d" % S_B)
            if win and m >= win: e("s_waitcnt vmcnt(%d)" % (win - 1))
            e("s_add_u32 s%d, s%d, 1024" % (S_B, S_B))
            var = (m & 1) | (((m >> 2) & 1) << 1)
            vmem_dry("buffer_load_dwordx4 v%d, s[%d:%d], s%d offen nt lds" % (V_GO + var, SRD_W, SRD_W + 3, S_A), True)
            e("s_add_u32 s%d, s%d, %d" % (S_A, S_A, 8 * 7168))
    if GW:
        gu_group(GW)
        e("s_sub_u32 s%d, s%d, 1" % (S_D, S_D))
    lab("L_a_guld")
    gu_group(0)
    e("s_sub_u32 s%d, s%d, 1" % (S_D, S_D))
    e("s_cmp_lg_u32 s%d, 0" % S_D)
    e("s_cbranch_scc1 L_a_guld")
    e("s_cbranch_execz L_a_real0")
    stamp(7)
    lab("L_a_gusetup")
    e("v_bfe_u32 v%d, v1, 3, 1" % V_T0)
    e("v_and_b32 v%d, 1, v3" % V_T1)
    e("v_lshl_or_b32 v%d, v%d, 1, v%d" % (V_T0, V_T1, V_T0))
    e("v_bfe_u32 v%d, v1, 1, 1" % V_T1)
    e("v_lshl_or_b32 v%d, v%d, 2, v%d" % (V_T0, V_T1, V_T0))
    e("v_xor_b32 v%d, s%d, v%d" % (V_T0, S_WAVE, V_T0))
    e("v_lshlrev_b32 v%d, 4, v%d" % (V_T0, V_T0))
    e("v_bfe_u32 v%d, v1, 2, 2" % V_T2)
    e("v_lshl_add_u32 v%d, v3, 3, v%d" % (V_T2, V_T2))
    e("v_lshl_add_u32 v%d, v%d, 5, v%d" % (V_T2, V_T1, V_T2))
    e("v_lshl_add_u32 v%d, v%d, 7, v%d" % (V_T0, V_T2, V_T0))
    e("v_and_b32 v%d, 1, v1" % V_T1)
    e("v_lshl_add_u32 v%d, v%d, 3, v%d" % (V_TR, V_T1, V_T0))
    e("v_add_u32 v%d, 0x10000, v%d" % (V_VA, V_TR))
    e("v_lshrrev_b32 v%d, 3, v2" % V_T0)
    e("v_lshl_or_b32 v%d, v3, 1, v%d" % (V_T1, V_T0))
    e("v_and_b32 v%d, 7, v1" % V_T2)
    e("v_xor_b32 v%d, v%d, v%d" % (V_T1, V_T1, V_T2))
    e("v_lshlrev_b32 v%d, 4, v%d" % (V_T1, V_T1))
    e("v_lshl_add_u32 v%d, v%d, 2, v3" % (V_T0, V_T0))
    e("v_lshl_add_u32 v%d, v%d, 7, v%d" % (V_T1, V_T0, V_T1))
    e("v_add_u32 v%d, %d, v%d" % (V_AE, L_ACT, V_T1))
    e("v_lshlrev_b32 v%d, 3, v%d" % (V_T2, V_T2))
    e("v_add_u32 v%d, %d, v%d" % (V_AO, L_MX, V_T2))
    e("s_lshl_b32 s%d, s%d, 3" % (S_A, S_WAVE))
    e("s_add_u32 s%d, s%d, %d" % (S_A, S_A, L_MX))
    e("v_mov_b32 v%d, s%d" % (V_RED, S_A))
    pos_write_addr(V_AW, L_ACT)
    e("s_lshl_b32 s%d, s%d, 12" % (S_A, S_WAVE))
    e("s_add_u32 s86, s%d, 0x%x" % (S_A, WS_H3B))
    e("s_lshl_b32 s%d, s%d, 11" % (S_A, S_C))
    e("s_lshl_b32 s%d, s%d, 8" % (S_B, S_WAVE))
    e("s_add_u32 s%d, s%d, s%d" % (S_A, S_A, S_B))
    e("s_add_u32 s85, s85, s%d" % S_A)
    e("v_and_b32 v%d, 1, v3" % V_T0)
    e("v_lshlrev_b32 v%d, 7, v%d" % (V_PUB, V_T0))
    e("v_and_b32 v%d, 7, v1" % V_T0)
    e("v_lshl_add_u32 v%d, v%d, 4, v%d" % (V_PUB, V_T0, V_PUB))
    e("v_lshrrev_b32 v%d, 1, v3" % V_T0)
    e("v_lshl_add_u32 v%d, v%d, 3, v%d" % (V_PUB, V_T0, V_PUB))
    e("s_lshl_b32 s%d, s96, 1" % S_A)
    e("s_add_u32 s%d, s%d, s99" % (S_A, S_A))
    e("s_sub_u32 s%d, s%d, 1" % (S_A, S_A))
    e("s_lshl_b32 s%d, s%d, 3" % (S_A, S_A))
    e("s_add_u32 s%d, s%d, s%d" % (S_A, S_A, S_XCD))
    e("s_lshl_b32 s%d, s%d, 12" % (S_A, S_A))
    e("s_lshl_b32 s%d, s%d, 9" % (S_B, S_WAVE))
    e("s_add_u32 s%d, s%d, s%d" % (S_A, S_A, S_B))
    e("s_add_u32 s84, s%d, 0x%x" % (S_A, WS_H4P))
    e("v_lshlrev_b32 v%d, 1, v%d" % (V_H, V_PUB))
    e("v_mov_b32 v%d, s%d" % (V_ACC + 6, S_T))
    e("v_mov_b32 v%d, s%d" % (V_ACC + 7, S_T))
    ONE = V_WF
    CS = V_WF + 4
    for k in range(4): e("v_mov_b32 v%d, 0x3f803f80" % (ONE + k))
    e("v_mov_b32 v%d, s%d" % (V_P + 1, S_T))
    e("s_mov_b64 s[%d:%d], s[%d:%d]" % (80, 81, S_ML, S_ML + 1))
    e("s_mov_b64 s[%d:%d], s[%d:%d]" % (82, 83, S_MG, S_MG + 1))
    e("s_cmp_lt_u32 s%d, 4" % S_WAVE)
    e("s_cbranch_scc1 L_a_gureal")
    if NODRY: e("s_branch L_a_gureal")
    set_dry()
    e("s_branch L_a_gutop")
    lab("L_a_gureal")
    set_real()
    e("s_mov_b64 s[%d:%d], s[%d:%d]" % (S_ML, S_ML + 1, 80, 81))
    e("s_mov_b64 s[%d:%d], s[%d:%d]" % (S_MG, S_MG + 1, 82, 83))
    e("s_waitcnt vmcnt(%d)" % T2V)
    if TRIG2: trig2()
    e("s_waitcnt vmcnt(0)")
    e("s_barrier")
    lab("L_a_gutop")
    GF = V_KF
    for m in range(16):
        for h in range(2):
            e("ds_read_b64_tr_b16 v[%d:%d], v%d offset:%d" % (GF + 4 * m + 2 * h, GF + 4 * m + 2 * h + 1, V_TR if m < 8 else V_VA, (m & 7) * 8192 + h * 512))
    e("s_waitcnt lgkmcnt(0)")
    e("s_cmp_lg_u32 s99, 1")
    e("s_cbranch_scc1 L_a_z1")
    for k in range(32, 64): e("v_mov_b32 v%d, 0" % (GF + k))
    lab("L_a_z1")
    e("s_cmp_lg_u32 s99, 2")
    e("s_cbranch_scc1 L_a_z2")
    for k in range(0, 32): e("v_mov_b32 v%d, 0" % (GF + k))
    lab("L_a_z2")
    e("s_nop 1")
    for m in range(16):
        e(mfma(CS, GF + 4 * m, ONE, None if m == 0 else CS))
    e("s_nop 7")
    e("v_permlane32_swap_b32 v%d, v%d" % (CS, CS + 2))
    e("v_permlane32_swap_b32 v%d, v%d" % (CS + 1, CS + 3))
    e("s_nop 1")
    e("v_add_f32_dpp v%d, v%d, v%d row_shl:8 row_mask:0xf bank_mask:0xf" % (CS, CS + 2, CS))
    e("v_add_f32_dpp v%d, v%d, v%d row_shl:8 row_mask:0xf bank_mask:0xf" % (CS + 1, CS + 3, CS + 1))
    stamp(8)
    top = poll_begin((V_G, 86, 3) if "3" not in NB else None)
    for n in range(4):
        e("buffer_load_dwordx4 v[%d:%d], v%d, s[%d:%d], s86 offen offset:%d sc1" % (V_L + 4 * n, V_L + 4 * n + 3, V_G, SRD_WS, SRD_WS + 3, n * 1024))
    poll_end(top, [chk64(V_L + 4 * n + 2) for n in range(4)], bell=(V_G, 86, 3))
    for n in range(4):
        e("ds_write_b64 v%d, v[%d:%d] offset:%d" % (V_AW, V_L + 4 * n, V_L + 4 * n + 1, n * 4096))
    stamp(9)
    side = ln_stats_dot_ops([V_L + 4 * (i >> 1) + (i & 1) for i in range(8)], ONE, V_SUM, V_SQ, V_T0, V_M, V_RS)
    emit(side[:16])
    side = side[16:]
    e("s_waitcnt lgkmcnt(0)")
    barrier(True)
    stamp(10)
    for m in range(16):
        e("ds_read_b128 v[%d:%d], v%d offset:%d" % (V_AF + 4 * m, V_AF + 4 * m + 3, V_AE, m * 1024))
    nfirst = 22
    emit(side[:nfirst])
    rest = side[nfirst:]
    mm = [0]
    def next_mfma():
        m = mm[0]; mm[0] += 1
        if m % 2 == 0: e("s_waitcnt lgkmcnt(%d)" % (14 - m))
        e(mfma(V_ACC, GF + 4 * m, V_AF + 4 * m, None if m == 0 else V_ACC))
        return 2 if m % 2 == 0 else 1
    cnt = 0
    for op in rest:
        if op.startswith("s_nop") and mm[0] < 10:
            need = int(op.split()[1]) + 1
            while need > 0 and mm[0] < 10: need -= next_mfma()
            if need > 0: e("s_nop %d" % (need - 1))
            cnt = 0
        else:
            e(op); cnt += 1
            if cnt == 2 and mm[0] < 10: next_mfma(); cnt = 0
    e("ds_write_b64 v%d, v[%d:%d]" % (V_RED, V_M, V_RS))
    while mm[0] < 10: next_mfma() if False else None; break
    while mm[0] < 12:
        m = mm[0]; mm[0] += 1
        if m == 10 or m % 2 == 0: e("s_waitcnt lgkmcnt(%d)" % max(0, min(15, 15 - m)))
        e(mfma(V_ACC, GF + 4 * m, V_AF + 4 * m, None if m == 0 else V_ACC))
    e("s_waitcnt lgkmcnt(0)")
    barrier(True)
    e("ds_read_b64 v[%d:%d], v%d" % (V_M, V_RS, V_AO))
    for m in range(12, 16):
        e(mfma(V_ACC, GF + 4 * m, V_AF + 4 * m, V_ACC))
    e("s_waitcnt lgkmcnt(0)")
    e("v_mul_f32 v%d, v%d, v%d" % (V_T0, V_M, V_RS))
    e("v_mul_f32 v%d, v%d, v%d" % (V_T1, V_T0, CS))
    e("v_mul_f32 v%d, v%d, v%d" % (V_T2, V_T0, CS + 1))
    e("s_nop 3")
    e("v_permlane32_swap_b32 v%d, v%d" % (V_ACC, V_ACC + 2))
    e("v_permlane32_swap_b32 v%d, v%d" % (V_ACC + 1, V_ACC + 3))
    e("s_nop 1")
    e("v_add_f32_dpp v%d, v%d, v%d row_shl:8 row_mask:0xf bank_mask:0xf" % (V_ACC, V_ACC + 2, V_ACC))
    e("v_add_f32_dpp v%d, v%d, v%d row_shl:8 row_mask:0xf bank_mask:0xf" % (V_ACC + 1, V_ACC + 3, V_ACC + 1))
    e("v_fma_f32 v%d, v%d, v%d, -v%d" % (V_ACC, V_ACC, V_RS, V_T1))
    e("v_fma_f32 v%d, v%d, v%d, -v%d" % (V_ACC + 1, V_ACC + 1, V_RS, V_T2))
    e("s_cmp_lg_u32 s99, 0")
    e("s_cbranch_scc1 L_a_part")
    e("v_cvt_pk_bf16_f32 v%d, v%d, v%d" % (V_P, V_ACC, V_ACC + 1))
    nosig = uid("nosig")
    e("s_cmp_lg_u32 s96, 0")
    e("s_cbranch_scc1 %s" % nosig)
    unpack(V_U, V_U + 1, V_P)
    e("v_mul_f32 v%d, %s, v%d" % (V_U, f32(-LOG2E), V_U))
    e("v_mul_f32 v%d, %s, v%d" % (V_U + 1, f32(-LOG2E), V_U + 1))
    e("v_exp_f32 v%d, v%d" % (V_U, V_U))
    e("v_exp_f32 v%d, v%d" % (V_U + 1, V_U + 1))
    e("s_nop 0")
    e("v_add_f32 v%d, 1.0, v%d" % (V_U, V_U))
    e("v_add_f32 v%d, 1.0, v%d" % (V_U + 1, V_U + 1))
    e("v_rcp_f32 v%d, v%d" % (V_U, V_U))
    e("v_rcp_f32 v%d, v%d" % (V_U + 1, V_U + 1))
    e("s_nop 0")
    e("v_cvt_pk_bf16_f32 v%d, v%d, v%d" % (V_P, V_U, V_U + 1))
    lab(nosig)
    store_l("buffer_store_dwordx2 v[%d:%d], v%d, s[%d:%d], s85 offen" % (V_P, V_P + 1, V_PUB, SRD_WS, SRD_WS + 3), "lo8")
    e("s_branch L_a_pubd")
    lab("L_a_part")
    e("v_mov_b32 v%d, v%d" % (V_P, V_ACC))
    e("v_mov_b32 v%d, v%d" % (V_P + 1, V_ACC + 1))
    store_l("buffer_store_dwordx4 v[%d:%d], v%d, s[%d:%d], s84 offen" % (V_P, V_P + 3, V_H, SRD_WS, SRD_WS + 3), "lo8")
    lab("L_a_pubd")
    e("s_cmp_lg_u32 s%d, 0" % S_DRY)
    e("s_cbranch_scc1 L_a_gureal")
    stamp(11)
    if "a" in CLEAN: clean("buffer_store_dwordx4 v[%d:%d], v%d, s[%d:%d], s87 offen" % (V_WF + 8, V_WF + 11, V_WF + 12, SRD_WS, SRD_WS + 3), "lo8")
    lab("L_a_done")
    stamps_flush(V_U)
    e("s_endpgm")
    lab("L_a_idle")
    if TRIG2: trig2()
    e("s_branch L_a_done")

gen()
open(OUT, "w").write("\n".join(lines) + "\n")
print("wrote", OUT, len(lines), "lines")
```
